```python
import torch

def _softmax(x, axis=-1):
    return torch.softmax(x, dim=axis)
def _gelu(x):
    return torch.nn.functional.gelu(x, approximate="tanh")
def _silu(x):
    return torch.nn.functional.silu(x)
def _sigmoid(x):
    return torch.sigmoid(x)
def _layernorm(x, axis=-1, eps=1e-5):
    m = x.mean(dim=axis, keepdim=True)
    v = x.var(dim=axis, keepdim=True, unbiased=False)
    return (x - m) / torch.sqrt(v + eps)
def _scatter_add(tgt, idx, src, axis=0):
    return tgt.clone().index_add_(axis, idx, src)
def _segment_sum(src, seg, n):
    out = torch.zeros((n,) + src.shape[1:], dtype=src.dtype)
    return out.index_add_(0, seg, src)
def _pad(x, pw):
    flat = tuple(v for pair in reversed(pw) for v in pair)
    return torch.nn.functional.pad(x, flat)

kernel_name = 'recurrent_scan__sliding_block_cached__dense_activation_relu__prompt'

def setup_inputs():

    _w = (lambda a: (lambda t: t.to(torch.bfloat16) if t.is_floating_point() else t)(torch.as_tensor(a)))
    def _A_setup():
        B, Sq, D = 1, 2048, 576
        Hq, Hkv, Sk, Dh = 32, 16, 2048, 128
        assert Hq % Hkv == 0, (Hq, Hkv)
        return {
            "x": _w((lambda *s: torch.randn(*s, dtype=torch.bfloat16) * 0.05)(B, Sq, D)),
            "k_cache": _w((lambda *s: torch.randn(*s, dtype=torch.bfloat16) * 0.8)(B, Hkv, Sk, Dh)),
            "v_cache": _w((lambda *s: torch.randn(*s, dtype=torch.bfloat16) * 0.2)(B, Hkv, Sk, Dh)),
            "wq": _w((lambda *s: torch.randn(*s, dtype=torch.bfloat16) * 0.8)(D, Hq * Dh) * (D ** -0.5)),
            "wo": _w((lambda *s: torch.randn(*s, dtype=torch.bfloat16) * 0.2)(Hq * Dh, D) * ((Hq * Dh) ** -0.5)),
        }
    _A_in = _A_setup()

    def _B_setup():
        B, S, D, Dff = 1, 2048, 576, 4608
        return {
            "x": _w((lambda *s: torch.randn(*s, dtype=torch.bfloat16) * 0.05)(B, S, D)),
            "w1": _w((lambda *s: torch.randn(*s, dtype=torch.bfloat16) * 0.1)(D, Dff)),
            "w2": _w((lambda *s: torch.randn(*s, dtype=torch.bfloat16) * 0.1)(Dff, D)),
        }
    _B_in = _B_setup()

    return {
        "A_x": _A_in["x"],
        "A_k_cache": _A_in["k_cache"],
        "A_v_cache": _A_in["v_cache"],
        "A_wq": _A_in["wq"],
        "A_wo": _A_in["wo"],
        "B_x": _B_in["x"],
        "B_w1": _B_in["w1"],
        "B_w2": _B_in["w2"],
    }

def reference(A_x, A_k_cache, A_v_cache, A_wq, A_wo, B_x, B_w1, B_w2):
    def _A_ref(x, k_cache, v_cache, wq, wo):
        B, Sq, D = x.shape
        Hq, Dh = 32, 128
        Hkv, Sk = k_cache.shape[1], k_cache.shape[2]
        W = min(4096, max(256, Sk // 4))
        rep = Hq // Hkv
        q = (lambda x, *d: x.permute(*d))((x @ wq).reshape(B, Sq, Hq, Dh), 0, 2, 1, 3)
        k = (lambda x, n, axis: torch.repeat_interleave(x, n, dim=axis))(k_cache[:, :, Sk - W:, :], rep, axis=1)
        v = (lambda x, n, axis: torch.repeat_interleave(x, n, dim=axis))(v_cache[:, :, Sk - W:, :], rep, axis=1)
        scores = torch.einsum("bhqd,bhkd->bhqk", q, k) * (Dh ** -0.5)
        p = _softmax(scores, axis=-1)
        o = torch.einsum("bhqk,bhkd->bhqd", p, v)
        return (lambda x, *d: x.permute(*d))(o, 0, 2, 1, 3).reshape(B, Sq, Hq * Dh) @ wo

    def _B_ref(x, w1, w2):
        h = torch.einsum("bsd,df->bsf", x, w1)
        zero = torch.zeros_like(h)
        h = torch.maximum(h, zero)
        return torch.einsum("bsf,fd->bsd", h, w2)

    x = A_x
    xn = _layernorm(x, axis=-1)
    s = _A_ref(xn, A_k_cache, A_v_cache, A_wq, A_wo)
    g = _silu(_B_ref(xn, B_w1, B_w2))
    return x + s * g
```

```python
WS_XN   = 0
WS_FLAG = 3 << 20
WS_KVP  = 4 << 20
WS_ACT  = 16 << 20
WS_PART = 64 << 20
WS_SIZE = 268435456
def srd(d, lo, nbytes):
    return [f"s_mov_b32 s{d}, s{lo}", f"s_mov_b32 s{d+1}, s{lo+1}", f"s_mov_b32 s{d+2}, {nbytes}", f"s_mov_b32 s{d+3}, 0x20000"]
def vr(b, n=4): return f"v[{b}:{b+n-1}]"
def ar(b, n=4): return f"a[{b}:{b+n-1}]"
def f32bits(x):
    import struct
    return struct.unpack("<I", struct.pack("<f", x))[0]
```

```python
from lib import *
from common import *

def gen_k0(name="k0_kernel"):
    k = Kernel(name)
    e = k.e
    e("s_cmp_ge_u32 s2, 256"); e("s_cbranch_scc1 K0_end")
    e("s_load_dwordx2 s[4:5], s[0:1], 0")
    e("s_load_dwordx4 s[24:27], s[0:1], 8")
    e("s_load_dwordx2 s[6:7], s[0:1], 80")
    e("v_lshrrev_b32 v1, 6, v0")
    e("v_and_b32 v2, 63, v0")
    e("v_readfirstlane_b32 s3, v1")
    e("v_and_b32 v3, 15, v2")
    e("v_lshrrev_b32 v4, 4, v2")
    e("s_waitcnt lgkmcnt(0)")
    e(srd(8, 4, 2048 * 1152))
    e(srd(12, 6, WS_SIZE))
    e(srd(16, 24, 8388608))
    e(srd(20, 26, 8388608))
    e("s_lshr_b32 s28, s2, 4")
    e("s_and_b32 s29, s2, 15")
    e("s_lshl_b32 s30, s28, 19")
    e("s_lshl_b32 s31, s29, 13")
    e("s_add_u32 s30, s30, s31")
    e(f"s_add_u32 s30, s30, {1536*256}")
    e("s_lshl_b32 s31, s2, 14")
    e(f"s_add_u32 s31, s31, {WS_KVP}")
    e("v_lshlrev_b32 v5, 4, v2")
    e("s_cmp_eq_u32 s3, 2"); e("s_cbranch_scc1 K0_k")
    e("s_cmp_eq_u32 s3, 3"); e("s_cbranch_scc1 K0_v")
    k.begin(name="ln")
    e("s_lshl_b32 s32, s2, 3"); e("s_lshl_b32 s33, s3, 2"); e("s_add_u32 s32, s32, s33")
    e("v_add_u32 v6, s32, v4")
    e("v_mul_u32_u24 v7, 1152, v6")
    e("v_lshl_add_u32 v7, v3, 4, v7")
    for r in range(32, 36): e(f"v_mov_b32 v{r}, 0")
    for q in range(4):
        e(f"buffer_load_dwordx4 {vr(16+4*q)}, v7, s[8:11], 0 offen offset:{q*256}")
    e("s_mov_b32 exec_lo, 0x00ff00ff"); e("s_mov_b32 exec_hi, 0x00ff00ff")
    e(f"buffer_load_dwordx4 {vr(32)}, v7, s[8:11], 0 offen offset:1024")
    e("s_mov_b64 exec, -1")
    e("v_lshrrev_b32 v8, 4, v6"); e("v_mul_u32_u24 v8, 18432, v8")
    e("v_lshrrev_b32 v9, 2, v3"); e("v_lshl_add_u32 v8, v9, 10, v8")
    e("v_and_b32 v9, 3, v3"); e("v_lshl_add_u32 v8, v9, 8, v8")
    e("v_and_b32 v9, 15, v6"); e("v_lshl_add_u32 v8, v9, 4, v8")
    F = 40
    for d in range(20):
        e(f"v_lshlrev_b32 v{F+2*d}, 16, v{16+d}")
        e(f"v_and_b32 v{F+2*d+1}, 0xffff0000, v{16+d}")
    for a in range(4): e(f"v_add_f32 v{10+a}, v{F+a}, v{F+4+a}")
    for d in range(8, 40): e(f"v_add_f32 v{10+d%4}, v{10+d%4}, v{F+d}")
    def red(r):
        e(f"v_add_f32 v{r}, v{r}, v{r+1}"); e(f"v_add_f32 v{r+2}, v{r+2}, v{r+3}"); e(f"v_add_f32 v{r}, v{r}, v{r+2}")
        for sh in (8, 4, 2, 1):
            e(f"v_add_f32_dpp v{r}, v{r}, v{r} row_ror:{sh} row_mask:0xf bank_mask:0xf")
    red(10)
    e(f"v_mul_f32 v10, {f32bits(1.0/576):#x}, v10")
    e("v_cvt_pk_bf16_f32 v14, v10, v10"); e("v_lshlrev_b32 v14, 16, v14")
    for a in range(4): e(f"v_mov_b32 v{80+a}, 0")
    for d in range(40):
        if d == 32:
            e("s_mov_b32 exec_lo, 0x00ff00ff"); e("s_mov_b32 exec_hi, 0x00ff00ff")
        e(f"v_sub_f32 v{84+d%4}, v{F+d}, v10")
        e(f"v_fmac_f32 v{80+d%4}, v{84+d%4}, v{84+d%4}")
    e("s_mov_b64 exec, -1")
    e("s_nop 4")
    red(80)
    e(f"v_mul_f32 v80, {f32bits(1.0/576):#x}, v80")
    def rbf(r): e(f"v_cvt_pk_bf16_f32 v{r}, v{r}, v{r}"); e(f"v_lshlrev_b32 v{r}, 16, v{r}")
    rbf(80)
    e(f"v_add_f32 v80, {f32bits(1e-5):#x}, v80"); rbf(80)
    e("v_sqrt_f32 v80, v80"); rbf(80)
    e("v_rcp_f32 v81, v80")
    e("v_fma_f32 v82, -v80, v81, 2.0"); e("v_mul_f32 v81, v81, v82")
    for d in range(20):
        a, b = F + 2 * d, F + 2 * d + 1
        e(f"v_sub_f32 v{a}, v{a}, v14"); e(f"v_sub_f32 v{b}, v{b}, v14")
        e(f"v_cvt_pk_bf16_f32 v{16+d}, v{a}, v{b}")
    for d in range(20):
        a, b = F + 2 * d, F + 2 * d + 1
        e(f"v_lshlrev_b32 v{a}, 16, v{16+d}"); e(f"v_and_b32 v{b}, 0xffff0000, v{16+d}")
        e(f"v_mul_f32 v{a}, v{a}, v81"); e(f"v_mul_f32 v{b}, v{b}, v81")
        e(f"v_cvt_pk_bf16_f32 v{16+d}, v{a}, v{b}")
        if d % 4 == 3:
            q = d // 4
            e(f"s_mov_b32 s34, {WS_XN + q*4096}")
            if q == 4:
                e("s_mov_b32 exec_lo, 0x00ff00ff"); e("s_mov_b32 exec_hi, 0x00ff00ff")
            e(f"buffer_store_dwordx4 {vr(16+4*q)}, v8, s[12:15], s34 offen")
    e("s_endpgm")
    k.begin(name="krelayout")
    e("K0_k:")
    e("v_lshlrev_b32 v6, 8, v3"); e("v_lshl_add_u32 v6, v4, 3, v6")
    e("s_add_u32 s32, s30, 4096")
    for kt in range(2):
        for s in range(4):
            f = kt * 4 + s
            so = "s30" if kt == 0 else "s32"
            e(f"buffer_load_dwordx2 {vr(16+4*f,2)}, v6, s[16:19], {so} offen offset:{s*64}")
            e(f"buffer_load_dwordx2 {vr(18+4*f,2)}, v6, s[16:19], {so} offen offset:{s*64+32}")
    e("v_mov_b32 v8, 0"); e("v_lshlrev_b32 v9, 2, v2")
    e("s_lshl_b32 s33, s2, 5"); e(f"s_add_u32 s33, s33, {WS_FLAG}")
    e("s_mov_b64 exec, 0xff")
    e("buffer_store_dword v8, v9, s[12:15], s33 offen")
    e("s_mov_b64 exec, -1")
    e("s_add_u32 s32, s31, 4096")
    for f in range(8):
        so = "s31" if f < 4 else "s32"
        e(f"buffer_store_dwordx4 {vr(16+4*f)}, v5, s[12:15], {so} offen offset:{(f%4)*1024}")
    e("s_endpgm")
    k.begin(name="vrelayout")
    e("K0_v:")
    e("s_add_u32 s32, s30, 4096")
    e("s_mov_b32 m0, 0")
    for p in range(4): e(f"buffer_load_dwordx4 v5, s[20:23], s30 offen offset:{p*1024} lds", "dma")
    e("s_mov_b32 m0, 4096")
    for p in range(4): e(f"buffer_load_dwordx4 v5, s[20:23], s32 offen offset:{p*1024} lds", "dma")
    e("v_lshrrev_b32 v6, 2, v3"); e("v_lshl_add_u32 v6, v4, 2, v6"); e("v_lshlrev_b32 v6, 8, v6")
    e("v_and_b32 v7, 3, v3"); e("v_lshl_add_u32 v6, v7, 3, v6")
    e("s_add_u32 s31, s31, 8192"); e("s_add_u32 s32, s31, 4096")
    k.wait_tags("dma")
    for dt in range(8):
        e(f"ds_read_b64_tr_b16 {vr(16+4*dt,2)}, v6 offset:{dt*32}")
        e(f"ds_read_b64_tr_b16 {vr(18+4*dt,2)}, v6 offset:{dt*32+4096}")
    for f in range(8):
        so = "s31" if f < 4 else "s32"
        e(f"buffer_store_dwordx4 {vr(16+4*f)}, v5, s[12:15], {so} offen offset:{(f%4)*1024}")
    e("K0_end:")
    e("s_endpgm")
    return kstart(name) + k.finish(), kdesc(name, 96, 96, 48), (name, 256, 256, 8192)
```

```python
from lib import *
from common import *
import math

SLOT = 36864
SPARE = 4 * SLOT
MF = "v_mfma_f32_16x16x32_bf16"
QSCALE = math.log2(math.e) / math.sqrt(128.0)
STFLAGS = ""

def gen_k1(name="k1_kernel", stamps=False, opt=None):
    opt = opt or {}
    STFLAGS = opt.get("stflags", "")
    k = Kernel(name)
    e = k.e
    vLANE16, vDMA, vB0, vB1, vA0, vA1, vL, vTMP = 1, 2, 3, 4, 5, 6, 7, 8
    vST = [10, 11, 12, 13]
    vXN = [120, 121, 122, 123]
    vDQ = 124
    XV = 16
    ACC = 48
    T = 80
    AF = 96; NF = 6; LEAD = 4
    Q = 128
    def X(u, s):
        f = s * 4 + u
        return ar(f * 4) if f < 64 else vr(XV + (f - 64) * 4)
    def acc(a, u): return ACC + a * 16 + u * 4
    def stamp(i):
        if stamps:
            e(stamp_l(i))
    def stamp_l(i):
        if not stamps: return []
        if isinstance(i, tuple):
            return ["s_memtime s[90:91]", f"s_add_u32 s92, {i[1]}, {i[0]}", "s_lshl_b32 s92, s92, 4", f"v_cmp_eq_u32 vcc, s92, v{vLANE16}",
                    "s_waitcnt lgkmcnt(0)", "v_mov_b32 v126, s90", "v_cndmask_b32 v127, v127, v126, vcc"]
        return ["s_memtime s[90:91]", "s_waitcnt lgkmcnt(0)", f"v_writelane_b32 v127, s90, {i}"]

    e("s_cmp_ge_u32 s2, 256"); e("s_cbranch_scc1 K1_end")
    e("s_load_dwordx2 s[4:5], s[0:1], 24")
    e("s_load_dwordx2 s[6:7], s[0:1], 48")
    e("s_load_dwordx2 s[24:25], s[0:1], 80")
    stamp(0)
    e("v_lshrrev_b32 v14, 6, v0")
    e("v_and_b32 v15, 63, v0")
    e("v_readfirstlane_b32 s3, v14")
    e(f"v_lshlrev_b32 v{vLANE16}, 4, v15")
    xm = opt.get("xmap", 0)
    e(f"s_bfe_u32 s26, s2, {hex(((3-xm) << 16) | xm)}"); e(f"s_lshl_b32 s26, s26, {2+xm}")
    e(f"s_bfe_u32 s40, s2, {hex(((2+xm) << 16) | 3)}"); e("s_add_u32 s26, s26, s40")
    e(f"s_lshr_b32 s27, s2, {5+xm}")
    e(f"s_and_b32 s40, s2, {(1<<xm)-1}"); e(f"s_lshl_b32 s40, s40, {3-xm}"); e("s_add_u32 s27, s27, s40")
    e("v_lshrrev_b32 v14, 5, v15"); e("v_lshlrev_b32 v14, 1, v14"); e("v_and_b32 v9, 3, v15"); e("v_xor_b32 v14, v14, v9")
    e("v_lshlrev_b32 v14, 4, v14")
    e("v_lshrrev_b32 v9, 2, v15")
    e(f"v_lshl_add_u32 v{vDQ}, v9, 13, v14")
    e(f"v_mul_u32_u24 v{vDMA}, 9216, v9"); e(f"v_add_u32 v{vDMA}, v{vDMA}, v14")
    e("v_lshrrev_b32 v14, 4, v15")
    e(f"v_lshlrev_b32 v{vB0}, 9, v14")
    e("v_bfe_u32 v9, v15, 2, 2"); e(f"v_lshl_add_u32 v{vB0}, v9, 6, v{vB0}")
    e("v_and_b32 v9, 3, v15"); e(f"v_lshl_add_u32 v{vB0}, v9, 3, v{vB0}")
    e("v_and_b32 v9, 1, v14"); e(f"v_lshl_add_u32 v{vB0}, v9, 5, v{vB0}")
    e(f"v_xor_b32 v{vB1}, 32, v{vB0}")
    e(f"v_mov_b32 v{vA0}, v{vB0}")
    e("s_lshl_b32 s40, s27, 4"); e("s_lshl_b32 s41, s3, 2"); e("s_add_u32 s40, s40, s41")
    e("s_and_b32 s41, s26, 1"); e("s_lshl_b32 s41, s41, 1")
    for u in range(4):
        e(f"s_xor_b32 s42, s41, {u}"); e("s_add_u32 s42, s42, s40")
        e("s_mul_i32 s43, s42, 18432"); e(f"v_add_u32 v{vXN[u]}, s43, v{vLANE16}")
        e(f"s_mul_i32 s43, s42, {272*1024}"); e(f"v_add_u32 v{vST[u]}, s43, v{vLANE16}")
    e("s_waitcnt lgkmcnt(0)")
    e(srd(8, 4, 576 * 8192)); e(srd(12, 6, 576 * 9216)); e(srd(16, 24, WS_SIZE))
    e("s_lshl_b32 s44, s26, 8"); e(f"s_mul_i32 s45, s3, {144*8192}"); e("s_add_u32 s44, s44, s45")
    e("s_mul_i32 s46, s3, 9216")
    def wq_piece(st, p):
        return [Inst(f"s_add_u32 m0, s46, {st*SLOT + p*1024}"), Inst(f"s_add_u32 s47, s44, {st*64 + p*16*8192}"),
                Inst(f"buffer_load_dwordx4 v{vDQ}, s[8:11], s47 offen lds", "dma")]
    for p in range(9): e(wq_piece(0, p))
    for i in range(1, 5): e(f"s_mov_b32 s{48+i}, {WS_XN + i*4096}")
    e(f"s_mov_b32 s48, {WS_XN}")
    def xn_load(f):
        s, u = f // 4, f % 4
        return Inst(f"buffer_load_dwordx4 {X(u, s)}, v{vXN[u]}, s[16:19], s{48 + s//4} offen offset:{(s%4)*1024}", "xn")
    NPRE = 52
    for f in range(NPRE): e(xn_load(f))
    e("s_lshr_b32 s40, s26, 1"); e("s_mul_i32 s29, s40, 576"); e("s_add_u32 s54, s29, 512")
    e("s_and_b32 s41, s26, 1"); e("s_lshl_b32 s41, s41, 8"); e("s_add_u32 s29, s29, s41")
    e(f"s_mul_i32 s45, s3, {144*9216}"); e("s_add_u32 s29, s29, s45"); e("s_add_u32 s54, s54, s45")
    e(f"s_mov_b32 s30, {16*9216}")
    e("s_mov_b32 s31, s46")
    e("s_lshl_b32 s55, s40, 18"); e(f"s_add_u32 s55, s55, {WS_KVP}")
    e(f"s_mov_b32 s33, {f32bits(QSCALE):#x}"); e("s_mov_b32 s34, 0x80008000")
    e("s_lshl_b32 s36, s26, 12"); e(f"s_add_u32 s36, s36, {WS_ACT}"); e("s_mov_b32 s37, s36")
    e("s_mul_i32 s56, s40, 9216"); e(f"s_add_u32 s56, s56, {WS_ACT + 128*1024}"); e("s_add_u32 s57, s56, 8192")
    e("s_lshl_b32 s41, s41, 4"); e("s_add_u32 s56, s56, s41")
    e("s_mov_b32 s32, 0"); e("s_mov_b32 s28, 1")
    k.wait_tags("dma")
    e("s_barrier")
    stamp(1)
    def rd(f):
        a, s = (f % 36) // 18, f % 18
        b = AF + (f % NF) * 4
        v = vA1 if a else vA0
        return [Inst(f"ds_read_b64_tr_b16 {vr(b,2)}, v{v} offset:{s*2048}"),
                Inst(f"ds_read_b64_tr_b16 {vr(b+2,2)}, v{v} offset:{s*2048+256}")]
    for f in range(LEAD): e(rd(f))

    def epi_b(us):
        out = []
        for u in us:
            c = acc(1, u)
            out += [f"v_mul_f32 v{c+i}, s33, v{c+i}" for i in range(4)]
            out += [f"v_cvt_pk_bf16_f32 v{T+4*u+2}, v{c}, v{c+1}", f"v_cvt_pk_bf16_f32 v{T+4*u+3}, v{c+2}, v{c+3}"]
            out += [f"v_pk_max_i16 v{T+4*u+i}, v{T+4*u+i}, s34" for i in range(4)]
            if not opt.get("nostore"):
                out += [Inst(f"buffer_store_dwordx4 {vr(T+4*u)}, v{vST[u]}, s[16:19], s36 offen{STFLAGS}", "st")]
        return out
    def epi_a(us):
        out = []
        for u in us:
            c = acc(0, u)
            out += [f"v_mul_f32 v{c+i}, s33, v{c+i}" for i in range(4)]
            out += [f"v_cvt_pk_bf16_f32 v{T+4*u}, v{c}, v{c+1}", f"v_cvt_pk_bf16_f32 v{T+4*u+1}, v{c+2}, v{c+3}"]
        return out
    def cur_piece(p):
        return [Inst(f"s_add_u32 m0, s31, {p*1024}"), Inst("s_add_u32 s47, s47, s30"),
                Inst("buffer_load_dwordx4 v%d, s[12:15], s47 offen lds" % vDMA, "dma")]
    def C(t): return Inst(t, "cond")

    def stage(kind):
        us = (0, 1) if kind == "special" else (0, 1, 2, 3)
        nu = len(us)
        mf = []
        for f in range(36):
            a, s = f // 18, f % 18
            for u in us:
                c = vr(acc(a, u))
                mf.append(f"{MF} {c}, {vr(AF + (f % NF)*4)}, {X(u, s)}, {'0' if s == 0 else c}")
        ft = lambda f: f * nu
        st = []
        for f in range(36):
            if kind == "special" and f + LEAD >= 36: break
            r = rd(f + LEAD)
            st.append((ft(f), ft(f) + 1, [r[0]]))
            st.append((ft(f) + 1, ft(f) + 2, [r[1]]))
        st.append((ft(1) + 1, ft(1) + 2, [[f"v_add_u32 v{vA1}, s32, v{vB1}", f"s_add_u32 s32, s32, {SLOT}",
                                      f"s_cmp_eq_u32 s32, {4*SLOT}", "s_cselect_b32 s32, 0, s32"]]))
        st.append((ft(20), ft(20) + 1, [f"v_add_u32 v{vA0}, s32, v{vB0}"]))
        if kind == "first":
            rest = [xn_load(f) for f in range(NPRE, 72)]
            st.append((ft(0) + 2, ft(10), rest))
            dm = [wq_piece(1, p) for p in range(9)] + [wq_piece(2, p) for p in range(9)]
            dm += [[Inst("s_lshl_b32 s40, s3, 12"), Inst(f"s_add_u32 m0, s40, {SPARE}"), Inst("s_add_u32 s47, s55, s40"),
                    Inst(f"buffer_load_dwordx4 v{vLANE16}, s[16:19], s47 offen lds", "kv0")]]
            dm += [Inst(f"buffer_load_dwordx4 v{vLANE16}, s[16:19], s47 offen offset:{p*1024} lds", "kv0") for p in range(1, 4)]
            st.append((ft(10), ft(24), dm))
            st.append((ft(30), ft(30) + 1, [[WaitTag(["dma"], 9), "s_barrier"]]))
            st.append((ft(31), ft(36), [wq_piece(3, p) for p in range(9)]))
        else:
            st.append((ft(2) + 1, ft(2) + 2, [stamp_l((26, "s28")) + [WaitTag(["dma"], 9), "s_barrier"] + stamp_l((36, "s28"))]))
            if kind == "loop":
                pre = ["s_cmp_lg_u32 s28, 5", "s_cbranch_scc1 K1_p1", C("s_mov_b32 s29, s54"), "K1_p1:",
                       "s_cmp_lg_u32 s28, 6", "s_cbranch_scc1 K1_p2",
                       C("s_mov_b32 s12, s24"), C("s_mov_b32 s13, s25"), C(f"s_mov_b32 s14, {WS_SIZE}"),
                       C("s_mov_b32 s30, 1024"), C(f"v_mov_b32 v{vDMA}, v{vLANE16}"),
                       C("s_add_u32 s29, s55, s46"), C("s_add_u32 s29, s29, 16384"), C(f"s_mov_b32 s58, {32768}"), "K1_p2:"]
            else:
                pre = []
            pre += ["s_sub_u32 s47, s29, s30", "s_add_u32 s29, s29, s58"]
            st.append((ft(3), ft(3) + 1, [pre]))
            st.append((ft(4), ft(30), [cur_piece(p) for p in range(9)]))
            st.append((ft(31), ft(31) + 1, [[f"s_add_u32 s31, s31, {SLOT}", f"s_cmp_ge_u32 s31, {4*SLOT}",
                                           "s_cselect_b32 s31, s46, s31"]]))
            st.append((ft(1) + 2, ft(17), epi_b((0, 1, 2, 3))))
            if kind == "loop":
                sw = ["s_add_u32 s36, s36, 1024", "s_cmp_lg_u32 s28, 4", "s_cbranch_scc1 K1_p3",
                      C("s_mov_b32 s33, 1.0"), C("s_mov_b32 s34, 0"), C("s_mov_b32 s36, s56"), "K1_p3:"]
            else:
                sw = ["s_mov_b32 s36, s57"]
                ql = [Inst(f"buffer_load_dwordx4 {vr(Q + (u*4+s)*4)}, v{vST[u]}, s[16:19], s37 offen offset:{s*1024}", "q")
                      for u in range(4) for s in range(4)]
                st.append((ft(3) + 1, ft(20), ql))
            st.append((ft(18), ft(18) + 1, [sw]))
        st.append((ft(19) + 2 if nu == 4 else ft(22), ft(35), epi_a(us)))
        e(interleave(mf, st))

    e("s_mov_b32 s58, 64")
    k.begin(name="stage0"); stage("first")
    stamp(2)
    k.begin(loop=7, name="gemm_loop")
    e(".p2align 3"); e("K1_gloop:")
    e(stamp_l((16, "s28")))
    stage("loop")
    e("s_add_u32 s28, s28, 1"); e("s_cmp_lt_u32 s28, 8"); e("s_cbranch_scc1 K1_gloop")
    k.begin(name="special")
    stamp(3)
    stage("special")
    e(epi_b((0, 1)))
    stamp(4)
    S = 16
    P = 192
    NEGM = 200
    L = 216
    W = 224
    def KF(b, f): return ar(128 + b * 32 + f * 4)
    def VF(b, f): return ar(192 + b * 32 + f * 4)
    def O(dt, u): return (dt * 4 + u) * 4
    def qk(u, b, zero=False):
        out = []
        for s in range(4):
            for kt in range(2):
                c = vr(S + 8 * u + 4 * kt)
                cin = c if s else ("0" if zero else vr(NEGM + 4 * u))
                out.append(f"{MF} {c}, {KF(b, kt*4+s)}, {vr(Q + (u*4+s)*4)}, {cin}")
        return out
    def pv(u, b, pb):
        return [f"{MF} {ar(O(dt, u))}, {VF(b, dt)}, {vr(P + 4*pb)}, {ar(O(dt, u))}" for dt in range(8)]
    def softmax_groups(u, pb):
        g = []
        for i in range(4):
            a = S + 8 * u + 2 * i
            g.append([[f"v_exp_f32 v{a}, v{a}"], [f"v_exp_f32 v{a+1}, v{a+1}"],
                      [f"v_add_f32 v{L+u}, v{L+u}, v{a}", f"v_add_f32 v{L+4+u}, v{L+4+u}, v{a+1}"],
                      [f"v_cvt_pk_bf16_f32 v{P+4*pb+i}, v{a}, v{a+1}"]])
        return g
    def xlane(op, r, t):
        return [f"v_mov_b32 v{t}, v{r}", f"v_permlane32_swap_b32 v{t}, v{r}", f"{op} v{r}, v{r}, v{t}",
                f"v_mov_b32 v{t}, v{r}", f"v_permlane16_swap_b32 v{t}, v{r}", f"{op} v{r}, v{r}, v{t}"]
    k.begin(name="attn_pro")
    e(f"v_add_u32 v{vTMP}, {SPARE}, v{vLANE16}")
    for f in range(8): e(f"ds_read_b128 {KF(0, f)}, v{vTMP} offset:{f*1024}")
    for f in range(8): e(f"ds_read_b128 {VF(0, f)}, v{vTMP} offset:{8192 + f*1024}")
    mf = []
    for u in range(4): mf += qk(u, 0, zero=True)
    e(interleave(mf, [(0, 32, [f"v_accvgpr_write_b32 a{i}, 0" for i in range(128)])]))
    for u in range(4):
        s0 = S + 8 * u; m = W + u
        e(f"v_max3_f32 v{m}, v{s0}, v{s0+1}, v{s0+2}"); e(f"v_max3_f32 v{m}, v{m}, v{s0+3}, v{s0+4}")
        e(f"v_max3_f32 v{m}, v{m}, v{s0+5}, v{s0+6}"); e(f"v_max_f32 v{m}, v{m}, v{s0+7}")
    xl = [xlane("v_max_f32", W + u, W + 4 + u) for u in range(4)]
    for i in range(6):
        for u in range(4): e(xl[u][i])
    for u in range(4):
        for i in range(4): e(f"v_sub_f32 v{NEGM+4*u+i}, 0, v{W+u}")
    for u in range(2):
        for i in range(8): e(f"v_sub_f32 v{S+8*u+i}, v{S+8*u+i}, v{W+u}")
    for i in range(8): e(f"v_mov_b32 v{L+i}, 0")
    for g in softmax_groups(0, 0):
        for x in g: e(x)
    e("s_lshl_b32 s40, s3, 10")
    e("s_sub_u32 s29, s29, s40"); e("s_sub_u32 s31, s31, s40"); e("s_sub_u32 s46, s46, s40")
    e("s_mov_b32 s28, 0")
    stamp(5)

    def attn_iter(last):
        mf = []; st = []
        for sl in range(8):
            n_par = (sl // 4) & 1
            u = sl % 4
            base = len(mf)
            t2 = sl + 2
            if not (last and sl >= 6):
                mf += qk(t2 % 4, (t2 // 4) & 1)
            mf += pv(u, n_par, sl & 1)
            n = len(mf) - base
            if not (last and sl == 7):
                flat = [x for g in softmax_groups((sl + 1) % 4, (sl + 1) & 1) for x in g]
                st.append((base, base + n, flat))
            half = sl // 4
            if not (last and half == 1):
                nb = (half + 1) & 1
                for i in range(4):
                    f = (u & 1) * 4 + i
                    if u < 2: r = f"ds_read_b128 {KF(nb, f)}, v{vL} offset:{half*16384 + f*1024}"
                    else: r = f"ds_read_b128 {VF(nb, f)}, v{vL} offset:{half*16384 + 8192 + f*1024}"
                    pos = base + 3 + 4 * i if u != 1 else base + 1 + 2 * i
                    st.append((pos, pos + 1, [r]))
            if not last:
                if sl == 1:
                    st.append((base + 11, base + 12, [[WaitTag(["dma"], 8), "s_barrier"]]))
                if sl == 2:
                    st.append((base + 1, base + 2, [["s_cmp_ge_u32 s28, 5", "s_cselect_b32 s14, 0, s14"]]))
                if 2 <= sl <= 5:
                    for h in range(2):
                        p = (sl - 2) * 2 + h
                        grp = []
                        if p % 4 == 0:
                            grp += [f"s_add_u32 m0, s31, {p*1024}", f"s_add_u32 s47, s29, {p*1024}"]
                        grp.append(Inst(f"buffer_load_dwordx4 v{vLANE16}, s[12:15], s47 offen offset:{(p%4)*1024} lds", "dma"))
                        st.append((base + 5 + 8 * h, base + 6 + 8 * h, [grp]))
                if sl == 6:
                    st.append((base + 5, base + 6, [["s_add_u32 s29, s29, 32768", f"s_add_u32 s31, s31, {SLOT}",
                                                     f"s_cmp_ge_u32 s31, {4*SLOT}", "s_cselect_b32 s31, s46, s31"]]))
                    st.append((base + 9, base + 10, [[f"s_add_u32 s32, s32, {SLOT}", f"s_cmp_eq_u32 s32, {4*SLOT}",
                                                      "s_cselect_b32 s32, 0, s32"]]))
        e(f"v_add_u32 v{vL}, s32, v{vLANE16}")
        e(interleave(mf, st))
    k.begin(loop=7, name="attn_loop")
    e(".p2align 3"); e("K1_aloop:")
    e(stamp_l((48, "s28")))
    attn_iter(False)
    e("s_add_u32 s28, s28, 1"); e("s_cmp_lt_u32 s28, 7"); e("s_cbranch_scc1 K1_aloop")
    k.begin(name="attn_last")
    attn_iter(True)
    stamp(6)
    k.begin(name="attn_epi")
    for u in range(4): e(f"v_add_f32 v{L+u}, v{L+u}, v{L+4+u}")
    xl = [xlane("v_add_f32", L + u, W + 4 + u) for u in range(4)]
    for i in range(6):
        for u in range(4): e(xl[u][i])
    e(f"v_add_f32 v{W+1}, v{L}, v{L+1}"); e(f"v_add_f32 v{W+2}, v{L+2}, v{L+3}"); e(f"v_add_f32 v{W}, v{W+1}, v{W+2}")
    e(f"v_cmp_nge_f32 vcc, {f32bits(2.0**30):#x}, v{W}")
    e("s_cbranch_vccnz K1_slow")
    e("K1_epi:")
    for u in range(4): e(f"v_rcp_f32 v{L+u}, v{L+u}")
    for i in range(4):
        for u in range(4):
            t = 16 + ((i * 4 + u) % 4) * 12
            for r in range(8): e(f"v_accvgpr_read_b32 v{t+r}, a{O(2*i + r//4, u) + r%4}")
            for r in range(8): e(f"v_mul_f32 v{t+r}, v{t+r}, v{L+u}")
            for r in range(4): e(f"v_cvt_pk_bf16_f32 v{t+8+r}, v{t+2*r}, v{t+2*r+1}")
            e(f"buffer_store_dwordx4 {vr(t+8)}, v{vST[u]}, s[16:19], s37 offen offset:{i*1024}{STFLAGS}")
    if stamps:
        stamp(7)
        e("s_waitcnt vmcnt(0)")
        stamp(8)
        e("s_lshl_b32 s40, s2, 2"); e("s_add_u32 s40, s40, s3"); e("s_lshl_b32 s40, s40, 8"); e(f"s_add_u32 s40, s40, {200<<20}")
        e(f"v_lshrrev_b32 v2, 2, v{vLANE16}")
        e(f"buffer_store_dword v127, v2, s[16:19], s40 offen")
    e("K1_end:")
    e("s_endpgm")
    M = W + 8; AL = W + 12; TT = W + 16
    k.begin(name="slow_pre")
    e("K1_slow:")
    e("s_waitcnt vmcnt(0) lgkmcnt(0)"); e("s_nop 15")
    for i in range(128): e(f"v_accvgpr_write_b32 a{i}, 0")
    for u in range(4): e(f"v_mov_b32 v{L+u}, 0"); e(f"v_mov_b32 v{M+u}, 0xff7fffff")
    e("s_mov_b32 s28, 0"); e("s_mov_b32 s47, s55")
    k.begin(loop=16, name="slow_loop")
    e("K1_sloop:")
    for q in range(4):
        for f in range(4):
            ff = q * 4 + f
            d = KF(0, ff) if ff < 8 else VF(0, ff - 8)
            e(f"buffer_load_dwordx4 {d}, v{vLANE16}, s[16:19], s47 offen offset:{f*1024}")
        e("s_add_u32 s47, s47, 4096")
    for u in range(4):
        e(qk(u, 0, zero=True))
        s0 = S + 8 * u; m = W + u
        e(f"v_max3_f32 v{m}, v{s0}, v{s0+1}, v{s0+2}"); e(f"v_max3_f32 v{m}, v{m}, v{s0+3}, v{s0+4}")
        e(f"v_max3_f32 v{m}, v{m}, v{s0+5}, v{s0+6}"); e(f"v_max3_f32 v{m}, v{m}, v{s0+7}, v{M+u}")
        e(xlane("v_max_f32", m, W + 4))
        e(f"v_sub_f32 v{AL}, v{M+u}, v{m}"); e(f"v_exp_f32 v{AL}, v{AL}"); e(f"v_mov_b32 v{M+u}, v{m}")
        e(f"v_mul_f32 v{L+u}, v{L+u}, v{AL}")
        for i in range(8):
            e(f"v_sub_f32 v{s0+i}, v{s0+i}, v{m}"); e(f"v_exp_f32 v{s0+i}, v{s0+i}")
        for i in range(8): e(f"v_add_f32 v{L+u}, v{L+u}, v{s0+i}")
        for i in range(4): e(f"v_cvt_pk_bf16_f32 v{P+i}, v{s0+2*i}, v{s0+2*i+1}")
        for dt in range(8):
            for r in range(4): e(f"v_accvgpr_read_b32 v{TT+r}, a{O(dt,u)+r}")
            for r in range(4): e(f"v_mul_f32 v{TT+r}, v{TT+r}, v{AL}")
            for r in range(4): e(f"v_accvgpr_write_b32 a{O(dt,u)+r}, v{TT+r}")
        e(pv(u, 0, 0))
    e("s_add_u32 s28, s28, 1"); e("s_cmp_lt_u32 s28, 16"); e("s_cbranch_scc1 K1_sloop")
    k.begin(name="slow_post")
    for u in range(4): e(xlane("v_add_f32", L + u, W + 4))
    e("s_nop 15")
    e("s_branch K1_epi")
    return kstart(name) + k.finish(), kdesc(name, 512, 256), (name, 256, 256, 163840)
```

```python
from lib import *
from common import *
import math

SLOT = 36864
MF = "v_mfma_f32_16x16x32_bf16"

def gen_k2(name="k2_kernel", stamps=False, opt=None):
    opt = opt or {}
    k = Kernel(name)
    e = k.e
    vLANE16, vB, vA, vT0, vT1 = 1, 2, 3, 4, 5
    vD = list(range(6, 15))
    ACC = 16
    AF = 88; NF = 9; LEAD = 6
    def acc(nt, u): return ACC + (nt * 2 + u) * 4
    def BF(b, s, u): return ar(((b * 4 + s) * 2 + u) * 4)
    def stamp_l(i):
        if not stamps: return []
        return ["s_memtime s[90:91]", "s_waitcnt lgkmcnt(0)", f"v_writelane_b32 v127, s90, {i}"]
    e("s_cmp_ge_u32 s2, 256"); e("s_cbranch_scc1 K2_end")
    e("s_load_dwordx2 s[4:5], s[0:1], 32")
    e("s_load_dwordx2 s[6:7], s[0:1], 56")
    e("s_load_dwordx2 s[24:25], s[0:1], 80")
    e("s_load_dwordx2 s[60:61], s[0:1], 0")
    e("s_load_dwordx2 s[62:63], s[0:1], 64")
    e(stamp_l(0))
    e("v_lshrrev_b32 v124, 6, v0")
    e("v_and_b32 v125, 63, v0")
    e("v_readfirstlane_b32 s3, v124")
    e(f"v_lshlrev_b32 v{vLANE16}, 4, v125")
    e("s_bfe_u32 s26, s2, 0x20001")
    e("s_and_b32 s27, s2, 1"); e("s_lshl_b32 s27, s27, 3"); e("s_lshr_b32 s40, s2, 5"); e("s_add_u32 s27, s27, s40")
    e("s_bfe_u32 s35, s2, 0x20003")
    for p in range(9):
        e(f"v_add_u32 v124, {64*p}, v125")
        e(f"v_mul_u32_u24 v126, 3641, v124"); e("v_lshrrev_b32 v126, 16, v126")
        e(f"v_mul_u32_u24 v{vD[p]}, {1152 - 18*16}, v126")
        e(f"v_lshl_add_u32 v{vD[p]}, v124, 4, v{vD[p]}")
        if p % 4: e(f"v_subrev_u32 v{vD[p]}, {(p%4)*1024}, v{vD[p]}")
    e("v_lshrrev_b32 v124, 2, v125"); e(f"v_mul_u32_u24 v{vB}, 288, v124")
    e("v_and_b32 v124, 3, v125"); e(f"v_lshl_add_u32 v{vB}, v124, 3, v{vB}")
    e(f"v_mov_b32 v{vA}, v{vB}")
    e("s_waitcnt lgkmcnt(0)")
    e("s_cmp_lt_u32 s26, 2")
    e("s_cselect_b32 s8, s4, s6"); e("s_cselect_b32 s9, s5, s7"); e(f"s_cselect_b32 s10, {4096*1152}, {4096*1152}")
    e(f"s_mov_b32 s41, {4608*1152}"); e("s_cselect_b32 s10, s10, s41"); e("s_mov_b32 s11, 0x20000")
    e("s_cselect_b32 s38, 8, 9")
    e("s_cselect_b32 s42, 64, 72")
    e("s_cselect_b32 s43, 0, 128")
    e("s_and_b32 s44, s26, 1"); e("s_mul_i32 s44, s44, s42")
    e("s_add_u32 s43, s43, s44")
    e(srd(12, 24, WS_SIZE)); e(srd(16, 24, WS_SIZE))
    if opt.get("nodma"): e("s_mov_b32 s10, 0")
    if opt.get("nob"): e("s_mov_b32 s14, 0")
    e("s_add_u32 s29, s44, s3"); e(f"s_mul_i32 s29, s29, {32*1152}"); e("s_mul_i32 s40, s35, 288"); e("s_add_u32 s29, s29, s40")
    e("s_mul_i32 s46, s3, 9216"); e("s_mov_b32 s31, s46")
    e("s_lshl_b32 s40, s27, 3"); e("s_lshl_b32 s41, s3, 1"); e("s_add_u32 s40, s40, s41")
    e("s_mov_b32 s39, s40")
    e("s_mul_i32 s40, s40, 272"); e("s_add_u32 s40, s40, s43"); e("s_lshl_b32 s36, s40, 10"); e(f"s_add_u32 s36, s36, {WS_ACT}")
    e(f"s_add_u32 s37, s36, {272*1024}")
    def piece(p):
        g = []
        if p % 4 == 0: g.append(Inst(f"s_add_u32 m0, s31, {p*1024}"))
        g.append(Inst(f"buffer_load_dwordx4 v{vD[p]}, s[8:11], s29 offen offset:{(p%4)*1024} lds", "dma"))
        return g
    adv_dma = [f"s_add_u32 s29, s29, {128*1152}", f"s_add_u32 s31, s31, {SLOT}", f"s_cmp_ge_u32 s31, {4*SLOT}", "s_cselect_b32 s31, s46, s31"]
    def bload(b, s, u):
        return Inst(f"buffer_load_dwordx4 {BF(b, s, u)}, v{vLANE16}, s[12:15], s{36+u} offen offset:{s*1024}", "b")
    adv_b = ["s_add_u32 s36, s36, 4096", "s_add_u32 s37, s37, 4096"]
    for stg in range(3):
        for p in range(9): e(piece(p))
        e(adv_dma)
        if stg < 2:
            for s in range(4):
                for u in range(2): e(bload(stg, s, u))
            e(adv_b)
    for i in range(72): e(f"v_mov_b32 v{ACC+i}, 0")
    e("s_mov_b32 s32, 0"); e("s_mov_b32 s28, 0")
    e("s_sub_u32 s45, s38, 1")
    k.wait_tags("dma", skip=18)
    e("s_barrier")
    e(stamp_l(1))
    def rd(f):
        s, nt = (f % 36) // 9, f % 9
        b = AF + (f % NF) * 4
        o = s * 9216 + nt * 32
        return [Inst(f"ds_read_b64_tr_b16 {vr(b,2)}, v{vA} offset:{o}"), Inst(f"ds_read_b64_tr_b16 {vr(b+2,2)}, v{vA} offset:{o+4608}")]
    for f in range(LEAD): e(rd(f))

    def stage(b):
        mf = []; st = []
        for f in range(36):
            s, nt = f // 9, f % 9
            for u in range(2):
                c = vr(acc(nt, u))
                mf.append(f"{MF} {c}, {vr(AF + (f % NF)*4)}, {BF(b, s, u)}, {c}")
        for f in range(36):
            r = rd(f + LEAD)
            if f + LEAD == 36:
                st.append((2*f, 2*f + 1, [[f"v_add_u32 v{vA}, s32, v{vB}", r[0]]]))
            else:
                st.append((2*f, 2*f + 1, [r[0]]))
            st.append((2*f + 1, 2*f + 2, [r[1]]))
        st.append((3, 4, [[WaitTag(["dma"], 9), "s_barrier"]]))
        st.append((5, 6, [[f"s_add_u32 s32, s32, {SLOT}", f"s_cmp_eq_u32 s32, {4*SLOT}", "s_cselect_b32 s32, 0, s32"]]))
        if b == 0:
            st.append((6, 7, [["s_cmp_ge_u32 s28, s45", "s_cselect_b32 s10, 0, s10", "s_cselect_b32 s14, 0, s14"]]))
        else:
            st.append((6, 7, [["s_add_u32 s40, s28, 1", "s_cmp_ge_u32 s40, s45", "s_cselect_b32 s10, 0, s10"]]))
        st.append((8, 66, [piece(p) for p in range(9)]))
        st.append((68, 69, [adv_dma]))
        for s in range(4):
            for u in range(2):
                pos = min(71, (s + 1) * 18 - 1 + 2 * u) if s < 3 else 71
                st.append((pos, pos + 1, [bload(b, s, u)]))
        st.append((71, 72, [adv_b]))
        e(interleave(mf, st))
    k.begin(loop=8, name="k2_loop")
    e(".p2align 3"); e("K2_loop:")
    stage(0); stage(1)
    e("s_add_u32 s28, s28, 1"); e("s_cmp_lt_u32 s28, s38"); e("s_cbranch_scc1 K2_loop")
    k.begin(name="k2_epi")
    e("s_waitcnt vmcnt(0) lgkmcnt(0)")
    e(stamp_l(2))
    e("s_lshl_b32 s40, s27, 2"); e("s_add_u32 s40, s40, s35")
    e("s_lshl_b32 s47, s40, 7"); e(f"s_add_u32 s47, s47, {WS_FLAG}")
    e("s_mul_i32 s48, s40, 294912"); e("s_mul_i32 s41, s3, 18432"); e("s_add_u32 s48, s48, s41"); e(f"s_add_u32 s48, s48, {WS_PART}")
    e("s_mul_i32 s41, s26, 73728"); e("s_add_u32 s49, s48, s41")
    def st_part(u):
        out = []
        for nt in range(9):
            i = u * 9 + nt
            if nt % 4 == 0: out.append(f"s_add_u32 s50, s49, {i*1024}")
            out.append(f"buffer_store_dwordx4 {vr(acc(nt, u))}, v{vLANE16}, s[16:19], s50 offen offset:{(nt%4)*1024} sc1")
        return out
    e("s_cmp_eq_u32 s26, 2"); e("s_cbranch_scc1 K2_s1")
    e(st_part(0))
    e("K2_s1:")
    e("s_cmp_eq_u32 s26, 3"); e("s_cbranch_scc1 K2_s2")
    e(st_part(1))
    e("K2_s2:")
    e("s_waitcnt vmcnt(0)")
    e("s_barrier")
    e(stamp_l(3))
    e("v_mov_b32 v124, 1"); e("s_lshl_b32 s41, s26, 2"); e("v_mov_b32 v125, s41")
    e("s_cmp_lg_u32 s3, 0"); e("s_cbranch_scc1 K2_nf")
    e("s_mov_b64 exec, 1")
    e("buffer_store_dword v124, v125, s[16:19], s47 offen sc1")
    e("s_mov_b64 exec, -1")
    e("K2_nf:")
    e("s_cmp_lt_u32 s26, 2"); e("s_cbranch_scc1 K2_fin")
    e("s_cmp_eq_u32 s26, 2"); e("s_cbranch_scc1 K2_m0")
    for nt in range(9):
        for r in range(4): e(f"v_mov_b32 v{acc(nt,0)+r}, v{acc(nt,1)+r}")
    e("K2_m0:")
    e(srd(8, 60, 2048 * 1152)); e(srd(12, 62, 2048 * 1152))
    e("s_sub_u32 s41, s26, 2"); e("s_add_u32 s42, s39, s41"); e(f"s_mul_i32 s42, s42, {16*1152}")
    e("s_mul_i32 s43, s35, 288"); e("s_add_u32 s42, s42, s43")
    e(f"v_lshrrev_b32 v124, 4, v{vLANE16}")
    e("v_and_b32 v125, 15, v124"); e(f"v_mul_u32_u24 v{vT0}, 1152, v125")
    e("v_lshrrev_b32 v125, 4, v124"); e(f"v_lshl_add_u32 v{vT0}, v125, 3, v{vT0}")
    XR = 88
    for nt in range(9): e(f"buffer_load_dwordx2 {vr(XR+2*nt,2)}, v{vT0}, s[8:11], s42 offen offset:{nt*32}")
    e("v_mov_b32 v125, 0")
    e("s_cmp_lg_u32 s3, 0"); e("s_cbranch_scc1 K2_pd")
    e("K2_poll:")
    e("buffer_load_dwordx4 v[120:123], v125, s[16:19], s47 offen sc1")
    e("s_waitcnt vmcnt(0)")
    e("v_and_b32 v120, v120, v121"); e("v_and_b32 v122, v122, v123"); e("v_and_b32 v120, v120, v122")
    e("s_nop 0")
    e("v_readfirstlane_b32 s50, v120")
    e("s_nop 3")
    e("s_cmp_eq_u32 s50, 1"); e("s_cbranch_scc1 K2_pd")
    e("s_sleep 2")
    e("s_branch K2_poll")
    e("K2_pd:")
    e("s_barrier")
    e(stamp_l(4))
    e("s_mul_i32 s41, s41, 9216"); e("s_add_u32 s48, s48, s41")
    e("s_xor_b32 s43, s26, 1"); e("s_mul_i32 s43, s43, 73728")
    PR = 128
    for src in range(3):
        for nt in range(9):
            if nt % 4 == 0:
                if src < 2: e(f"s_add_u32 s50, s48, {src*73728 + nt*1024}")
                else: e("s_add_u32 s50, s48, s43"); e(f"s_add_u32 s50, s50, {nt*1024}")
            e(f"buffer_load_dwordx4 {vr(PR + (src*9+nt)*4)}, v{vLANE16}, s[16:19], s50 offen offset:{(nt%4)*1024} sc1")
    NL2E = f32bits(-math.log2(math.e))
    e(f"s_mov_b32 s51, {NL2E:#x}")
    for nt in range(9):
        g = acc(nt, 0); s0 = PR + nt * 4; s1 = PR + (9 + nt) * 4; g1 = PR + (18 + nt) * 4
        t = 108
        for r in range(4): e(f"v_add_f32 v{s0+r}, v{s0+r}, v{s1+r}")
        for r in range(4): e(f"v_add_f32 v{g+r}, v{g+r}, v{g1+r}")
        def round2(a):
            e(f"v_cvt_pk_bf16_f32 v{t}, v{a}, v{a+1}"); e(f"v_cvt_pk_bf16_f32 v{t+1}, v{a+2}, v{a+3}")
            e(f"v_lshlrev_b32 v{a}, 16, v{t}"); e(f"v_and_b32 v{a+1}, 0xffff0000, v{t}")
            e(f"v_lshlrev_b32 v{a+2}, 16, v{t+1}"); e(f"v_and_b32 v{a+3}, 0xffff0000, v{t+1}")
        round2(s0); round2(g)
        for r in range(4): e(f"v_mul_f32 v{s1+r}, s51, v{g+r}")
        for r in range(4): e(f"v_exp_f32 v{s1+r}, v{s1+r}")
        for r in range(4): e(f"v_add_f32 v{s1+r}, 1.0, v{s1+r}")
        for r in range(4): e(f"v_rcp_f32 v{s1+r}, v{s1+r}")
        for r in range(4): e(f"v_mul_f32 v{g+r}, v{g+r}, v{s1+r}")
        round2(g)
        for r in range(4): e(f"v_mul_f32 v{g+r}, v{g+r}, v{s0+r}")
        round2(g)
        x = XR + 2 * nt
        e(f"v_lshlrev_b32 v{s1}, 16, v{x}"); e(f"v_and_b32 v{s1+1}, 0xffff0000, v{x}")
        e(f"v_lshlrev_b32 v{s1+2}, 16, v{x+1}"); e(f"v_and_b32 v{s1+3}, 0xffff0000, v{x+1}")
        for r in range(4): e(f"v_add_f32 v{g+r}, v{g+r}, v{s1+r}")
        e(f"v_cvt_pk_bf16_f32 v{x}, v{g}, v{g+1}"); e(f"v_cvt_pk_bf16_f32 v{x+1}, v{g+2}, v{g+3}")
        e(f"buffer_store_dwordx2 {vr(x,2)}, v{vT0}, s[12:15], s42 offen offset:{nt*32}")
    e("K2_fin:")
    if stamps:
        e(stamp_l(5)); e("s_waitcnt vmcnt(0)"); e(stamp_l(6))
        e("s_lshl_b32 s40, s2, 2"); e("s_add_u32 s40, s40, s3"); e("s_lshl_b32 s40, s40, 8"); e(f"s_add_u32 s40, s40, {201<<20}")
        e(f"v_lshrrev_b32 v2, 2, v{vLANE16}")
        e(f"buffer_store_dword v127, v2, s[16:19], s40 offen")
    e("K2_end:")
    e("s_endpgm")
    return kstart(name) + k.finish(), kdesc(name, 320, 256), (name, 256, 256, 4 * SLOT)
```

```python
import re

REG_RE = re.compile(r"^(-|\|)?(abs\()?([vas])(?:(\d+)|\[(\d+):(\d+)\])\)?\|?$")

def regs_of(tok):
    tok = tok.strip()
    m = REG_RE.match(tok)
    if m:
        f = m.group(3)
        if m.group(4) is not None:
            return [(f, int(m.group(4)))]
        return [(f, i) for i in range(int(m.group(5)), int(m.group(6)) + 1)]
    if tok == "vcc": return [("s", 106), ("s", 107)]
    if tok == "vcc_lo": return [("s", 106)]
    if tok == "vcc_hi": return [("s", 107)]
    if tok == "exec": return [("s", 126), ("s", 127)]
    if tok == "exec_lo": return [("s", 126)]
    if tok == "exec_hi": return [("s", 127)]
    if tok == "m0": return [("s", 124)]
    return []

TRANS = ("v_exp_f32", "v_log_f32", "v_rcp_f32", "v_rsq_f32", "v_sqrt_f32", "v_sin_f32", "v_cos_f32")
M0 = ("s", 124)
VCC = [("s", 106), ("s", 107)]

class Inst:
    __slots__ = ("text", "mn", "kind", "rd", "wr", "tag", "srcA", "srcB", "srcC", "passes", "dpp", "comment", "wide", "sdata")
    def __init__(self, text, tag=None):
        self.text = text.strip()
        self.tag = tag
        self.srcA = self.srcB = self.srcC = ()
        self.passes = 0
        self.wide = False
        self.sdata = ()
        t = self.text.split(";")[0].strip()
        if t.endswith(":") or t.startswith("."):
            self.mn = t; self.kind = "label" if t.endswith(":") else "dir"; self.rd = set(); self.wr = set(); self.dpp = False
            return
        sp = t.split(None, 1)
        mn = self.mn = sp[0]
        rest = sp[1] if len(sp) > 1 else ""
        ops = []; cur = ""; depth = 0
        for ch in rest:
            if ch in "[(": depth += 1
            if ch in "])": depth -= 1
            if ch == "," and depth == 0:
                ops.append(cur.strip()); cur = ""
            else:
                cur += ch
        if cur.strip(): ops.append(cur.strip())
        mods = ""
        if ops:
            last = ops[-1].split(None, 1)
            ops[-1] = last[0]
            mods = last[1] if len(last) > 1 else ""
        R = [regs_of(o) for o in ops]
        self.dpp = ("row_" in mods or "quad_perm" in mods or "wave_" in mods or "_dpp" in mn)
        rd = set(); wr = set()
        def allr(lst):
            s = set()
            for x in lst: s.update(x)
            return s
        if mn.startswith("v_mfma"):
            self.kind = "mfma"
            wr = set(R[0]); rd = allr(R[1:])
            self.srcA, self.srcB, self.srcC = tuple(R[1]), tuple(R[2]), tuple(R[3])
            self.passes = 4 if "16x16x32" in mn else 8 if "32x32x16" in mn else None
            assert self.passes
        elif mn.startswith("ds_read") or mn.startswith("ds_bpermute") or mn.startswith("ds_swizzle"):
            self.kind = "ds_read"; wr = set(R[0]); rd = allr(R[1:])
        elif mn.startswith("ds_write"):
            self.kind = "ds_write"; rd = allr(R)
        elif mn.startswith("buffer_load") or mn.startswith("global_load"):
            if re.search(r"\blds\b", mods) or "_lds_" in mn:
                self.kind = "dma"; rd = allr(R) | {M0}
            else:
                self.kind = "vload"; wr = set(R[0]); rd = allr(R[1:])
        elif mn.startswith("buffer_store") or mn.startswith("global_store"):
            self.kind = "vstore"; rd = allr(R)
            self.wide = mn.endswith("x4") or mn.endswith("x3")
            self.sdata = tuple(R[0] if mn.startswith("buffer") else R[1])
        elif mn.startswith("buffer_atomic") or mn.startswith("global_atomic"):
            rd = allr(R)
            if re.search(r"\bsc0\b", mods):
                self.kind = "vload"; wr = set(R[0])
            else:
                self.kind = "vstore"
        elif mn.startswith("buffer_wbl2") or mn.startswith("buffer_inv"):
            self.kind = "vstore"
        elif mn.startswith("s_load") or mn.startswith("s_memtime") or mn.startswith("s_memrealtime"):
            self.kind = "smem"; wr = set(R[0]); rd = allr(R[1:])
        elif mn == "s_waitcnt": self.kind = "wait"
        elif mn == "s_nop": self.kind = "nop"
        elif mn == "s_barrier": self.kind = "barrier"
        elif mn.startswith("s_cbranch") or mn == "s_branch" or mn == "s_endpgm":
            self.kind = "branch"
            if "vcc" in mn: rd = set(VCC)
        elif mn in ("s_setprio", "s_sleep"): self.kind = "salu"
        elif mn.startswith("s_cmp") or mn.startswith("s_bitcmp"):
            self.kind = "salu"; rd = allr(R)
        elif mn.startswith("s_"):
            self.kind = "salu"; wr = set(R[0]); rd = allr(R[1:])
            if mn in ("s_addk_i32", "s_mulk_i32"): rd |= wr
            if "saveexec" in mn: wr |= {("s", 126), ("s", 127)}
        elif mn.startswith("v_"):
            self.kind = "trans" if mn.replace("_e32", "").replace("_e64", "") in TRANS else "valu"
            if mn.startswith("v_permlane") and "swap" in mn or mn.startswith("v_swap"):
                wr = allr(R); rd = allr(R)
            elif mn.startswith("v_add_co") or mn.startswith("v_sub_co") or mn.startswith("v_addc_co") or mn.startswith("v_subb_co"):
                wr = set(R[0]) | set(R[1]); rd = allr(R[2:])
            else:
                wr = set(R[0]); rd = allr(R[1:])
                if mn.startswith("v_writelane") or mn.startswith("v_fmac") or mn.startswith("v_dot2c") or mn.startswith("v_mac") or self.dpp or "sdwa" in mn:
                    rd |= wr
                if mn.startswith("v_cmpx"): wr |= {("s", 126), ("s", 127)}
        else:
            raise ValueError("unknown instruction: " + text)
        self.rd = rd; self.wr = wr
    def is_valu(self): return self.kind in ("valu", "trans")
    def is_vmem(self): return self.kind in ("vload", "vstore", "dma")
    def is_ds(self): return self.kind in ("ds_read", "ds_write")
    def states(self):
        if self.kind in ("label", "dir") or self.tag == "cond": return 0
        if self.kind == "nop": return int(self.text.split()[1], 0) + 1
        return 1

class WaitTag:
    kind = "waittag"
    def __init__(self, tags, skip=0): self.tags = set(tags); self.skip = skip

class Seg:
    def __init__(self, insts, loop=0, name=""):
        self.insts = insts; self.loop = loop; self.name = name

class Kernel:
    def __init__(self, name):
        self.name = name
        self.segs = []
        self.cur = None
        self.tail = []
        self.begin()
    def begin(self, loop=0, name=""):
        self.cur = Seg([], loop, name); self.segs.append(self.cur)
    def e(self, text, tag=None):
        if isinstance(text, (Inst, WaitTag)):
            self.cur.insts.append(text); return
        if isinstance(text, (list, tuple)):
            for t in text: self.e(t, tag)
            return
        for line in text.split("\n"):
            if line.strip(): self.cur.insts.append(Inst(line, tag))
    def wait_tags(self, *tags, skip=0): self.cur.insts.append(WaitTag(tags, skip))

    def traces(self):
        out = []
        for reps in (1, 2, 4):
            tr = []
            for si, s in enumerate(self.segs):
                n = min(reps, s.loop) if s.loop else 1
                for it in range(n):
                    for ii in range(len(s.insts)): tr.append((si, ii, it))
            out.append(tr)
        return out

    def solve_waits(self):
        W = {}
        changed = True
        trs = self.traces()
        while changed:
            changed = False
            for tr in trs:
                ntag = {}; tagcount = {}
                vq = []
                lq = []
                for (si, ii, it) in tr:
                    ins = self.segs[si].insts[ii]
                    key = (si, ii)
                    needv = needl = None
                    if ins.kind == "waittag":
                        lim = ntag.get(tuple(sorted(ins.tags)), None)
                        cnt = sum(tagcount.get(t, 0) for t in ins.tags)
                        for p in range(len(vq) - 1, -1, -1):
                            if vq[p][1] in ins.tags:
                                newer = sum(1 for q in range(p + 1, len(vq)) if vq[q][1] in ins.tags)
                                if newer >= ins.skip:
                                    needv = len(vq) - 1 - p; break
                    elif ins.kind == "wait":
                        m = re.search(r"vmcnt\((\d+)\)", ins.text)
                        if m: vq = vq[len(vq) - int(m.group(1)):] if int(m.group(1)) < len(vq) else vq
                        if m and int(m.group(1)) == 0: vq = []
                        m = re.search(r"lgkmcnt\((\d+)\)", ins.text)
                        if m:
                            n = int(m.group(1))
                            lq = [] if n == 0 else (lq[len(lq) - n:] if n < len(lq) else lq)
                        continue
                    elif ins.kind not in ("label", "dir"):
                        touch = ins.rd | ins.wr
                        for p in range(len(vq) - 1, -1, -1):
                            if vq[p][0] & touch:
                                needv = len(vq) - 1 - p; break
                        for p in range(len(lq) - 1, -1, -1):
                            if lq[p][0] & touch:
                                needl = len(lq) - 1 - p
                                if any(x[1] for x in lq): needl = 0
                                break
                    w = W.setdefault(key, [None, None])
                    if needv is not None and (w[0] is None or needv < w[0]): w[0] = needv; changed = True
                    if needl is not None and (w[1] is None or needl < w[1]): w[1] = needl; changed = True
                    if w[0] is not None and w[0] < len(vq): vq = vq[len(vq) - w[0]:] if w[0] else []
                    if w[1] is not None and w[1] < len(lq): lq = lq[len(lq) - w[1]:] if w[1] else []
                    if ins.kind == "branch" and ins.mn == "s_endpgm":
                        vq = []; lq = []
                    if ins.kind in ("vload", "vstore", "dma"):
                        vq.append((set(ins.wr), ins.tag))
                        assert len(vq) <= 63, f"vmcnt overflow at {ins.text} in {self.segs[si].name}"
                    elif ins.kind in ("ds_read", "ds_write"):
                        lq.append((set(ins.wr), False))
                        if len(lq) > 15: lq = lq[-15:] if False else lq
                    elif ins.kind == "smem":
                        lq.append((set(ins.wr), True))
        return W

    def apply_waits(self):
        W = self.solve_waits()
        for si, s in enumerate(self.segs):
            new = []
            for ii, ins in enumerate(s.insts):
                w = W.get((si, ii), [None, None])
                parts = []
                if w[0] is not None: parts.append(f"vmcnt({min(w[0], 63)})")
                if w[1] is not None: parts.append(f"lgkmcnt({min(w[1], 15)})")
                if parts: new.append(Inst("s_waitcnt " + " ".join(parts)))
                if ins.kind != "waittag": new.append(ins)
            s.insts = new

    @staticmethod
    def need_states(p, c):
        n = 0
        pv = {r for r in p.wr if r[0] in "va"}
        ps = {r for r in p.wr if r[0] == "s"}
        if p.kind == "mfma":
            full = {4: 8, 8: 12}[p.passes]
            if c.kind == "mfma":
                if pv & (set(c.srcA) | set(c.srcB)): n = max(n, full)
                if pv & set(c.srcC):
                    if set(c.srcC) == pv and c.passes == p.passes: pass
                    else: n = max(n, p.passes + 2)
                elif pv & c.wr: n = max(n, p.passes + 2)
            elif c.is_valu() or c.is_vmem() or c.is_ds():
                if pv & (c.rd | c.wr): n = max(n, full)
            if c.is_valu() and set(p.srcC) & c.wr: n = max(n, {4: 3, 8: 7}[p.passes])
        if p.is_valu():
            if c.kind == "mfma" and pv & c.rd: n = max(n, 2)
            if c.is_valu():
                if pv & c.rd:
                    if c.mn.startswith("v_permlane") or c.dpp: n = max(n, 2)
                    if c.mn.startswith("v_readlane") or c.mn.startswith("v_readfirstlane"): n = max(n, 1)
                    if p.kind == "trans" and c.kind != "trans": n = max(n, 1)
                    if "sdwa" in p.mn or "op_sel" in p.text: n = max(n, 1)
                if ps & c.rd or (ps & set(VCC) and c.mn.startswith("v_cndmask")):
                    n = max(n, 4 if c.mn.startswith(("v_readlane", "v_writelane")) else 2)
                if ("s", 126) in ps: n = max(n, 5 if c.dpp else 4)
            if c.is_vmem() and ps & c.rd: n = max(n, 5)
            if c.kind == "mfma" and ("s", 126) in ps: n = max(n, 4)
            if c.kind in ("salu", "branch") and ps & c.rd: n = max(n, 1)
            if p.kind == "trans" and (c.is_vmem() or c.is_ds()) and pv & c.rd: n = max(n, 1)
        if p.kind == "salu" and M0 in p.wr and c.kind == "dma": n = max(n, 1)
        if p.kind == "vstore" and p.wide and set(p.sdata) & c.wr:
            n = max(n, 2 if c.is_valu() else 1)
        return n

    def apply_hazards(self, verbose=True):
        total = 0
        while True:
            pad = {}
            for tr in self.traces():
                hist = []
                pos = 0
                for (si, ii, it) in tr:
                    c = self.segs[si].insts[ii]
                    if c.kind in ("label", "dir"): continue
                    need = 0
                    for (p, ppos) in hist:
                        dist = pos - ppos
                        if dist >= 20: continue
                        n = self.need_states(p, c)
                        if n > dist: need = max(need, n - dist)
                    if need: pad[(si, ii)] = max(pad.get((si, ii), 0), need)
                    pos += need
                    pos += c.states()
                    hist.append((c, pos))
                    if len(hist) > 24: hist.pop(0)
            if not pad: break
            for si, s in enumerate(self.segs):
                new = []
                for ii, ins in enumerate(s.insts):
                    n = pad.get((si, ii), 0)
                    if n:
                        total += n
                        if verbose and s.loop: print(f"  [{self.name}/{s.name}] s_nop {n-1} before: {ins.text}")
                        new.append(Inst(f"s_nop {n-1}"))
                    new.append(ins)
                s.insts = new
        return total

    def finish(self, verbose=True):
        self.apply_waits()
        self.apply_hazards(verbose)
        lines = []
        for s in self.segs:
            if s.name: lines.append(f"; ---- {s.name}")
            for i in s.insts:
                lines.append(i.text if i.kind in ("label", "dir") else "    " + i.text)
        lines += self.tail
        return lines

def interleave(mfmas, streams):
    n = len(mfmas)
    slots = [[] for _ in range(n)]
    for (a, b, ins) in streams:
        m = len(ins)
        for i, x in enumerate(ins):
            slots[min(n - 1, a + (i * (b - a)) // m)].append(x)
    out = []
    for i in range(n):
        out.append(mfmas[i])
        for x in slots[i]:
            if isinstance(x, list): out += x
            else: out.append(x)
    return out

def header(launches):
    L = []
    for (k, g, b, lds) in launches:
        L.append(f"; @launch kernel={k} grid=({g},1,1) block=({b},1,1) lds={lds}")
    L.append('.amdgcn_target "amdgcn-amd-amdhsa--gfx950"')
    L.append(".text")
    return L

def kstart(name):
    return [f".globl {name}", ".p2align 8", f".type {name},@function", f"{name}:"]

def kdesc(name, vgpr, accum, sgpr=102):
    return [f".amdhsa_kernel {name}", f"  .amdhsa_next_free_vgpr {vgpr}", f"  .amdhsa_next_free_sgpr {sgpr}",
            f"  .amdhsa_accum_offset {accum}", "  .amdhsa_group_segment_fixed_size 0", "  .amdhsa_kernarg_size 88",
            "  .amdhsa_user_sgpr_count 2", "  .amdhsa_user_sgpr_kernarg_segment_ptr 1",
            "  .amdhsa_system_sgpr_workgroup_id_x 1", "  .amdhsa_float_denorm_mode_32 3", ".end_amdhsa_kernel"]
```

```python
import sys, os
sys.path.insert(0, os.path.dirname(os.path.abspath(__file__)))
from lib import *
from k0 import gen_k0
from k1 import gen_k1
def build(out, which="012", stamps=False, opt=None):
    ks = []
    if "0" in which: ks.append(gen_k0())
    if "1" in which: ks.append(gen_k1(stamps=stamps, opt=opt))
    if "2" in which:
        from k2 import gen_k2
        ks.append(gen_k2(stamps=stamps, opt=opt))
    L = header([x[2] for x in ks])
    for x in ks: L += x[0]
    L += ['.section .rodata,"a"']
    for x in ks: L += [".p2align 6"] + x[1]
    open(out, "w").write("\n".join(L) + "\n")
if __name__ == "__main__":
    out = sys.argv[1]
    opt = {}
    for a in sys.argv[3:]:
        if "=" in a:
            kk, vv = a.split("=", 1)
            try: vv = int(vv)
            except ValueError: vv = " " + vv.replace("+", " ")
            opt[kk] = vv
    build(out, sys.argv[2] if len(sys.argv) > 2 else "012", "stamps" in sys.argv, opt)
```

```python
WS_XN   = 0
WS_FLAG = 3 << 20
FL_LN   = WS_FLAG
FL_KV   = WS_FLAG + 0x10000
FL_P2   = WS_FLAG + 0x20000
FL_EX   = WS_FLAG + 0x40000
WS_KVP  = 4 << 20
WS_ACT  = 16 << 20
WS_PART = 64 << 20
WS_SIZE = 268435456
def srd(d, lo, nbytes):
    return [f"s_mov_b32 s{d}, s{lo}", f"s_mov_b32 s{d+1}, s{lo+1}", f"s_mov_b32 s{d+2}, {nbytes}", f"s_mov_b32 s{d+3}, 0x20000"]
def vr(b, n=4): return f"v[{b}:{b+n-1}]"
def ar(b, n=4): return f"a[{b}:{b+n-1}]"
def f32bits(x):
    import struct
    return struct.unpack("<I", struct.pack("<f", x))[0]
```

```python
from lib import *
from common import *

def gen_k0(name="k0_kernel", opt=None):
    opt = opt or {}
    k = Kernel(name)
    e = k.e
    e("s_cmp_ge_u32 s2, 256"); e("s_cbranch_scc1 K0_end")
    e("s_load_dwordx2 s[4:5], s[0:1], 0")
    e("s_load_dwordx4 s[24:27], s[0:1], 8")
    e("s_load_dwordx2 s[6:7], s[0:1], 80")
    e("s_load_dwordx2 s[36:37], s[0:1], 24")
    e("s_load_dwordx2 s[38:39], s[0:1], 48")
    e("s_load_dwordx2 s[48:49], s[0:1], 32")
    e("s_load_dwordx2 s[50:51], s[0:1], 56")
    e("v_lshrrev_b32 v1, 6, v0")
    e("v_and_b32 v2, 63, v0")
    e("v_readfirstlane_b32 s3, v1")
    e("v_and_b32 v3, 15, v2")
    e("v_lshrrev_b32 v4, 4, v2")
    e("s_waitcnt lgkmcnt(0)")
    e(srd(8, 4, 2048 * 1152))
    e(srd(12, 6, WS_SIZE))
    e(srd(16, 24, 8388608))
    e(srd(20, 26, 8388608))
    e("s_lshr_b32 s28, s2, 4")
    e("s_and_b32 s29, s2, 15")
    e("s_lshl_b32 s30, s28, 19")
    e("s_lshl_b32 s31, s29, 13")
    e("s_add_u32 s30, s30, s31")
    e(f"s_add_u32 s30, s30, {1536*256}")
    e("s_lshl_b32 s31, s2, 14")
    e(f"s_add_u32 s31, s31, {WS_KVP}")
    e("v_lshlrev_b32 v5, 4, v2")
    e("s_cmp_eq_u32 s3, 2"); e("s_cbranch_scc1 K0_k")
    e("s_cmp_eq_u32 s3, 3"); e("s_cbranch_scc1 K0_v")
    k.begin(name="ln")
    e("s_lshl_b32 s32, s2, 3"); e("s_lshl_b32 s33, s3, 2"); e("s_add_u32 s32, s32, s33")
    e("v_add_u32 v6, s32, v4")
    e("v_mul_u32_u24 v7, 1152, v6")
    e("v_lshl_add_u32 v7, v3, 4, v7")
    for r in range(32, 36): e(f"v_mov_b32 v{r}, 0")
    for q in range(4):
        e(f"buffer_load_dwordx4 {vr(16+4*q)}, v7, s[8:11], 0 offen offset:{q*256}")
    e("s_mov_b32 exec_lo, 0x00ff00ff"); e("s_mov_b32 exec_hi, 0x00ff00ff")
    e(f"buffer_load_dwordx4 {vr(32)}, v7, s[8:11], 0 offen offset:1024")
    e("s_mov_b64 exec, -1")
    e("v_lshrrev_b32 v8, 4, v6"); e("v_mul_u32_u24 v8, 18432, v8")
    e("v_lshrrev_b32 v9, 2, v3"); e("v_lshl_add_u32 v8, v9, 10, v8")
    e("v_and_b32 v9, 3, v3"); e("v_lshl_add_u32 v8, v9, 8, v8")
    e("v_and_b32 v9, 15, v6"); e("v_lshl_add_u32 v8, v9, 4, v8")
    F = 40
    for d in range(20):
        e(f"v_lshlrev_b32 v{F+2*d}, 16, v{16+d}")
        e(f"v_and_b32 v{F+2*d+1}, 0xffff0000, v{16+d}")
    for a in range(4): e(f"v_add_f32 v{10+a}, v{F+a}, v{F+4+a}")
    for d in range(8, 40): e(f"v_add_f32 v{10+d%4}, v{10+d%4}, v{F+d}")
    def red(r):
        e(f"v_add_f32 v{r}, v{r}, v{r+1}"); e(f"v_add_f32 v{r+2}, v{r+2}, v{r+3}"); e(f"v_add_f32 v{r}, v{r}, v{r+2}")
        for sh in (8, 4, 2, 1):
            e(f"v_add_f32_dpp v{r}, v{r}, v{r} row_ror:{sh} row_mask:0xf bank_mask:0xf")
    red(10)
    e(f"v_mul_f32 v10, {f32bits(1.0/576):#x}, v10")
    e("v_cvt_pk_bf16_f32 v14, v10, v10"); e("v_lshlrev_b32 v14, 16, v14")
    for a in range(4): e(f"v_mov_b32 v{80+a}, 0")
    for d in range(40):
        if d == 32:
            e("s_mov_b32 exec_lo, 0x00ff00ff"); e("s_mov_b32 exec_hi, 0x00ff00ff")
        e(f"v_sub_f32 v{84+d%4}, v{F+d}, v10")
        e(f"v_fmac_f32 v{80+d%4}, v{84+d%4}, v{84+d%4}")
    e("s_mov_b64 exec, -1")
    e("s_nop 4")
    red(80)
    e(f"v_mul_f32 v80, {f32bits(1.0/576):#x}, v80")
    def rbf(r): e(f"v_cvt_pk_bf16_f32 v{r}, v{r}, v{r}"); e(f"v_lshlrev_b32 v{r}, 16, v{r}")
    rbf(80)
    e(f"v_add_f32 v80, {f32bits(1e-5):#x}, v80"); rbf(80)
    e("v_sqrt_f32 v80, v80"); rbf(80)
    e("v_rcp_f32 v81, v80")
    e("v_fma_f32 v82, -v80, v81, 2.0"); e("v_mul_f32 v81, v81, v82")
    for d in range(20):
        a, b = F + 2 * d, F + 2 * d + 1
        e(f"v_sub_f32 v{a}, v{a}, v14"); e(f"v_sub_f32 v{b}, v{b}, v14")
        e(f"v_cvt_pk_bf16_f32 v{16+d}, v{a}, v{b}")
    for d in range(20):
        a, b = F + 2 * d, F + 2 * d + 1
        e(f"v_lshlrev_b32 v{a}, 16, v{16+d}"); e(f"v_and_b32 v{b}, 0xffff0000, v{16+d}")
        e(f"v_mul_f32 v{a}, v{a}, v81"); e(f"v_mul_f32 v{b}, v{b}, v81")
        e(f"v_cvt_pk_bf16_f32 v{16+d}, v{a}, v{b}")
        if d % 4 == 3:
            q = d // 4
            e(f"s_mov_b32 s34, {WS_XN + q*4096}")
            if q == 4:
                e("s_mov_b32 exec_lo, 0x00ff00ff"); e("s_mov_b32 exec_hi, 0x00ff00ff")
            e(f"buffer_store_dwordx4 {vr(16+4*q)}, v8, s[12:15], s34 offen")
    e("s_endpgm")
    k.begin(name="krelayout")
    e("K0_k:")
    e("v_lshlrev_b32 v6, 8, v3"); e("v_lshl_add_u32 v6, v4, 3, v6")
    e("s_add_u32 s32, s30, 4096")
    for kt in range(2):
        for s in range(4):
            f = kt * 4 + s
            so = "s30" if kt == 0 else "s32"
            e(f"buffer_load_dwordx2 {vr(16+4*f,2)}, v6, s[16:19], {so} offen offset:{s*64}")
            e(f"buffer_load_dwordx2 {vr(18+4*f,2)}, v6, s[16:19], {so} offen offset:{s*64+32}")
    if opt.get("pf", 1):
        e(srd(40, 36, 576 * 8192)); e(srd(44, 38, 576 * 9216))
        e("v_lshlrev_b32 v10, 7, v2")
        e("s_mul_i32 s33, s2, 18432"); e("s_mul_i32 s34, s2, 20736")
        for i in range(3):
            if i == 2: e("s_mov_b64 exec, 0xffff")
            e(f"buffer_load_dword v{50+i}, v10, s[40:43], s33 offen"); e("s_add_u32 s33, s33, 8192")
        e("s_mov_b64 exec, -1")
        for i in range(3):
            if i == 2: e("s_mov_b32 exec_hi, 3")
            e(f"buffer_load_dword v{54+i}, v10, s[44:47], s34 offen"); e("s_add_u32 s34, s34, 8192")
        e("s_mov_b64 exec, -1")
    e("v_mov_b32 v8, 0"); e("v_lshlrev_b32 v9, 2, v2")
    e("s_lshl_b32 s33, s2, 6"); e(f"s_add_u32 s33, s33, {WS_FLAG}")
    e("s_mov_b64 exec, 0xffff")
    e("buffer_store_dword v8, v9, s[12:15], s33 offen")
    e("s_mov_b64 exec, -1")
    e("s_add_u32 s32, s31, 4096")
    for f in range(8):
        so = "s31" if f < 4 else "s32"
        e(f"buffer_store_dwordx4 {vr(16+4*f)}, v5, s[12:15], {so} offen offset:{(f%4)*1024}")
    e("s_endpgm")
    k.begin(name="vrelayout")
    e("K0_v:")
    e("s_add_u32 s32, s30, 4096")
    e("s_mov_b32 m0, 0")
    for p in range(4): e(f"buffer_load_dwordx4 v5, s[20:23], s30 offen offset:{p*1024} lds", "dma")
    e("s_mov_b32 m0, 4096")
    for p in range(4): e(f"buffer_load_dwordx4 v5, s[20:23], s32 offen offset:{p*1024} lds", "dma")
    if opt.get("pf", 1) >= 2:
        e(srd(40, 48, 576 * 8192)); e(srd(44, 50, 576 * 9216))
        e("v_lshlrev_b32 v10, 7, v2")
        e("s_mul_i32 s33, s2, 18432"); e("s_mul_i32 s34, s2, 20736")
        for i in range(3):
            if i == 2: e("s_mov_b64 exec, 0xffff")
            e(f"buffer_load_dword v{50+i}, v10, s[40:43], s33 offen"); e("s_add_u32 s33, s33, 8192")
        e("s_mov_b64 exec, -1")
        for i in range(3):
            if i == 2: e("s_mov_b32 exec_hi, 3")
            e(f"buffer_load_dword v{54+i}, v10, s[44:47], s34 offen"); e("s_add_u32 s34, s34, 8192")
        e("s_mov_b64 exec, -1")
    e("v_lshrrev_b32 v6, 2, v3"); e("v_lshl_add_u32 v6, v4, 2, v6"); e("v_lshlrev_b32 v6, 8, v6")
    e("v_and_b32 v7, 3, v3"); e("v_lshl_add_u32 v6, v7, 3, v6")
    e("s_add_u32 s31, s31, 8192"); e("s_add_u32 s32, s31, 4096")
    k.wait_tags("dma")
    for dt in range(8):
        e(f"ds_read_b64_tr_b16 {vr(16+4*dt,2)}, v6 offset:{dt*32}")
        e(f"ds_read_b64_tr_b16 {vr(18+4*dt,2)}, v6 offset:{dt*32+4096}")
    for f in range(8):
        so = "s31" if f < 4 else "s32"
        e(f"buffer_store_dwordx4 {vr(16+4*f)}, v5, s[12:15], {so} offen offset:{(f%4)*1024}")
    e("K0_end:")
    e("s_endpgm")
    return kstart(name) + k.finish(), kdesc(name, 96, 96, 64), (name, 256, 256, 8192)
```

```python
from lib import *
from lib import _mk
from common import *
import math

SLOT = 36864
SPARE = 4 * SLOT
MF = "v_mfma_f32_16x16x32_bf16"
QSCALE = math.log2(math.e) / math.sqrt(128.0)
SPIN_MAX = 100000
KNAME = "recurrent_scan__sliding_block_cached__dense_activation_relu__prompt_kernel"

def flat(l): return [x for y in l for x in y]

def gen_kf(name=KNAME, stamps=False, opt=None):
    opt = opt or {}
    k = Kernel(name)
    k.cur.name = 'p0a'
    e = k.e
    vL16, vDQ, vD1, vS0, vP5, vZ, vTOK, vL, vT = 1, 2, 3, 4, 5, 6, 7, 8, 9
    vST = [10, 11, 12, 13]
    vT2 = 14; STV = 15
    XV = 16; QA = 48; AF = 176; NF = 6; LEAD = 4
    FA = 200; T = 232; vB = 248
    vXN = [232, 233, 234, 235]; vKO, vVO = 254, 255
    B1, B3, B5, B7 = 64, 96, 128, 160
    def X(u, s):
        h, idx = u >> 1, s * 2 + (u & 1)
        return ar(h * 128 + idx * 4) if idx < 32 else vr(XV + h * 16 + (idx - 32) * 4)
    def qa(nt, u): return QA + (nt * 4 + u) * 4
    def Qf(u, s): return vr(qa(2 * s, u))
    def fa(a, u): return FA + a * 16 + u * 4
    def stamp(i):
        if not stamps: return []
        return ["s_memtime s[98:99]", "s_waitcnt lgkmcnt(0)", f"v_writelane_b32 v{STV}, s98, {i}",
                "s_memrealtime s[98:99]", "s_waitcnt lgkmcnt(0)", f"v_writelane_b32 v{STV}, s98, {32+i}"]
    def mst(i):
        if not (stamps and opt.get("fine")): return ["s_nop 0"] if False else []
        return ["s_memtime s[98:99]", "s_waitcnt lgkmcnt(0)", "s_nop 0", f"v_writelane_b32 v{STV}, s98, {i}"]
    def C(t): return Inst(t, "cond")
    uid = [0]
    def lab(p): uid[0] += 1; return f"KF_{p}{uid[0]}"
    def flag_store(sreg, nl, voff, allw=False):
        lb = lab("nf")
        m = ["s_mov_b64 exec, %#x" % ((1 << nl) - 1)] if nl < 32 else ["s_mov_b32 exec_hi, 0"]
        body = m + [f"buffer_store_dword v{vTOK}, v{voff}, s[16:19], {sreg} offen sc1", "s_mov_b64 exec, -1"]
        if allw: return body
        return ["s_cmp_lg_u32 s3, 0", f"s_cbranch_scc1 {lb}"] + [C(x) for x in body] + [f"{lb}:"]
    ool = []
    def spin(load, regs, ret=None):
        lb = lab("sp"); dn = ret or lab("sd")
        out = ["s_mov_b32 s73, 0", f"{lb}:", load, "s_waitcnt vmcnt(0)"] + cmpf(regs)
        out += ["s_add_u32 s73, s73, 1", f"s_cmp_ge_u32 s73, {SPIN_MAX}", f"s_cbranch_scc1 {dn}", f"s_cbranch_vccz {dn}", "s_sleep 2", f"s_branch {lb}"]
        if not ret: out.append(f"{dn}:")
        return out
    def cmpf(regs):
        out = []
        if len(regs) > 1:
            out += [f"v_xor_b32 v{r}, v{r}, v{vTOK}" for r in regs]
            out += [f"v_or_b32 v{regs[0]}, v{regs[0]}, v{r}" for r in regs[1:]]
            out += [f"v_cmp_ne_u32 vcc, 0, v{regs[0]}"]
        else:
            out += [f"v_cmp_ne_u32 vcc, v{regs[0]}, v{vTOK}"]
        return out
    def check(load, regs):
        a, b = lab("ck"), lab("cr")
        ool.append([f"{a}:"] + spin(load, regs, b))
        return cmpf(regs), ["s_nop 0", f"s_cbranch_vccnz {a}", f"{b}:"]
    def xlane(op, r, t, both=True):
        o = [f"v_mov_b32 v{t}, v{r}", f"v_permlane32_swap_b32 v{t}, v{r}", f"{op} v{r}, v{r}, v{t}"] if both else []
        return o + [f"v_mov_b32 v{t}, v{r}", f"v_permlane16_swap_b32 v{t}, v{r}", f"{op} v{r}, v{r}, v{t}"]
    def ident(ID, t0, t1):
        o = [f"v_lshrrev_b32 v{t0}, 4, v{vL16}", f"v_and_b32 v{t1}, 15, v{t0}", f"v_lshrrev_b32 v{t0}, 4, v{t0}", f"v_lshlrev_b32 v{t0}, 3, v{t0}",
             f"v_sub_u32 v{t0}, v{t1}, v{t0}", f"v_and_b32 v{t1}, 1, v{t0}", f"v_lshlrev_b32 v{t1}, 4, v{t1}", f"v_mov_b32 v{ID}, 0x3f80",
             f"v_lshlrev_b32 v{t1}, v{t1}, v{ID}", f"v_ashrrev_i32 v{t0}, 1, v{t0}"]
        for h in range(2):
            for r in range(4):
                o.append([f"v_cmp_eq_i32 vcc, {r - 8*h}, v{t0}", "s_nop 1", f"v_cndmask_b32 v{ID+4*h+r}, 0, v{t1}, vcc"])
        return o
    def tr_mf(D, A, ID): return [f"{MF} {vr(D + (h*2+r)*4)}, {vr(A + 4*r)}, {vr(ID + 4*h)}, 0" for h in range(2) for r in range(2)]
    def tr_cvt(o, D, h): return [f"v_cvt_pk_bf16_f32 v{o+2*r+q}, v{D+(h*2+r)*4+2*q}, v{D+(h*2+r)*4+2*q+1}" for r in range(2) for q in range(2)]

    e("s_cmp_ge_u32 s2, 256"); e("s_cbranch_scc1 KF_end")
    if opt.get("scr"):
        e("s_and_b32 s4, s2, 7"); e("s_bfe_u32 s5, s2, 0x30003"); e("s_andn2_b32 s2, s2, 63"); e("s_lshl_b32 s4, s4, 3"); e("s_or_b32 s2, s2, s4"); e("s_or_b32 s2, s2, s5")
    e("s_load_dwordx16 s[40:55], s[0:1], 0")
    e("s_load_dwordx4 s[56:59], s[0:1], 64")
    e("s_load_dwordx2 s[60:61], s[0:1], 80")
    e("s_memrealtime s[38:39]")
    e("v_lshrrev_b32 v20, 6, v0")
    e("v_and_b32 v21, 63, v0")
    e("v_readfirstlane_b32 s3, v20")
    e("s_and_b32 s64, s2, 7"); e("s_bfe_u32 s65, s2, 0x20003")
    e("s_lshl_b32 s62, s64, 2"); e("s_add_u32 s62, s62, s65")
    e("s_lshr_b32 s63, s2, 5")
    e("s_lshl_b32 s66, s63, 5"); e("s_add_u32 s66, s66, s62")
    e("v_lshrrev_b32 v22, 5, v0"); e("v_mul_u32_u24 v22, 1152, v22")
    e("v_and_b32 v23, 31, v21"); e("v_lshl_add_u32 v22, v23, 4, v22")
    e("s_mul_i32 s67, s66, 9216")
    for r in range(56, 60): e(f"v_mov_b32 v{r}, 0")
    e(f"v_mov_b32 v{vZ}, 0")
    e(f"v_lshlrev_b32 v{vL16}, 4, v21")
    e("s_waitcnt lgkmcnt(0)")
    e(srd(32, 40, 2048 * 1152))
    e(f"buffer_load_dwordx4 {vr(48)}, v22, s[32:35], s67 offen")
    e(f"buffer_load_dwordx4 {vr(52)}, v22, s[32:35], s67 offen offset:512")
    e("s_mov_b32 exec_lo, 0xff"); e("s_mov_b32 exec_hi, 0xff")
    e(f"buffer_load_dwordx4 {vr(56)}, v22, s[32:35], s67 offen offset:1024")
    e("s_mov_b64 exec, -1")
    e(stamp(0))
    e(srd(8, 46, 576 * 8192)); e(srd(20, 58, 256))
    e("s_or_b32 s77, s2, s3"); e("s_cbranch_scc1 KF_w0")
    e(C("s_or_b32 s38, s38, 1")); e(C("v_mov_b32 v28, s38")); e(C("s_mov_b64 exec, 1"))
    e(C(f"buffer_store_dword v28, v{vZ}, s[20:23], 0 offen sc1")); e(C("s_mov_b64 exec, -1"))
    e("KF_w0:")
    e(srd(16, 60, WS_SIZE)); e(srd(12, 52, 576 * 9216)); e(srd(24, 42, 8388608)); e(srd(28, 44, 8388608))
    e("v_lshrrev_b32 v28, 1, v21"); e("v_and_b32 v29, 1, v21"); e("v_lshlrev_b32 v29, 7, v29")
    e("v_lshl_add_u32 v34, v28, 13, v29"); e("v_mul_u32_u24 v35, 9216, v28"); e("v_add_u32 v35, v35, v29"); e("v_mul_u32_u24 v33, 9216, v21")
    e("s_lshl_b32 s77, s63, 2"); e("s_add_u32 s77, s77, s3"); e(f"s_mul_i32 s4, s77, {18*8192}"); e(f"s_mul_i32 s5, s77, {18*9216}")
    e("s_lshr_b32 s70, s62, 1"); e("s_and_b32 s71, s62, 1")
    e("s_lshl_b32 s6, s70, 6"); e("s_add_u32 s6, s6, s5"); e("s_add_u32 s6, s6, 8192")
    e("s_lshl_b32 s79, s62, 8"); e("s_add_u32 s4, s4, s79"); e("s_add_u32 s5, s5, s79")
    wq_touch = ["s_mov_b32 exec_hi, 15", Inst("buffer_load_dword v31, v34, s[8:11], s4 offen", "tch"), "s_mov_b64 exec, -1"]
    w1_touch = ["s_mov_b32 exec_hi, 15", Inst("buffer_load_dword v31, v35, s[12:15], s5 offen", "tch"),
                "s_mov_b64 exec, 0x3ffff", Inst("buffer_load_dword v31, v33, s[12:15], s6 offen", "tch"), "s_mov_b64 exec, -1"]
    ORD = opt.get("ord", 1)
    if ORD == 0: e(wq_touch)
    e("v_and_b32 v24, 15, v21"); e("v_lshrrev_b32 v25, 4, v21")
    e(f"v_lshlrev_b32 v{vKO}, 8, v24"); e(f"v_lshl_add_u32 v{vVO}, v25, 4, v{vKO}"); e(f"v_lshl_add_u32 v{vKO}, v25, 3, v{vKO}")
    e("v_lshrrev_b32 v28, 5, v21"); e("v_lshlrev_b32 v29, 1, v28"); e("v_and_b32 v30, 3, v21"); e("v_xor_b32 v29, v29, v30")
    e("v_lshlrev_b32 v29, 4, v29"); e("v_lshrrev_b32 v32, 2, v21")
    e(f"v_lshl_add_u32 v{vDQ}, v32, 13, v29")
    e(f"v_mul_u32_u24 v{vD1}, 9216, v32"); e(f"v_add_u32 v{vD1}, v{vD1}, v29")
    e(f"v_mul_u32_u24 v{vP5}, 288, v32"); e(f"v_lshl_add_u32 v{vP5}, v30, 3, v{vP5}")
    e("v_bfe_u32 v32, v21, 2, 2"); e("v_lshlrev_b32 v32, 6, v32"); e("v_lshl_add_u32 v32, v30, 3, v32")
    e("v_and_b32 v26, 1, v25"); e("v_lshl_add_u32 v32, v26, 5, v32")
    e(f"v_lshl_add_u32 v{vS0}, v25, 9, v32")
    e("v_lshl_add_u32 v32, v26, 9, v32"); e(f"v_lshl_add_u32 v{vB}, v28, 12, v32"); e(f"v_xor_b32 v{vB+1}, 32, v{vB}")
    for r in range(2, 6): e(f"v_add_u32 v{vB+r}, 0x10000, v{vB+r-2}")
    e("s_lshl_b32 s69, s63, 4"); e("s_lshl_b32 s78, s3, 2"); e("s_add_u32 s69, s69, s78"); e("s_lshl_b32 s78, s71, 1")
    for u in range(4):
        e(f"s_xor_b32 s79, s78, {u}"); e("s_add_u32 s79, s79, s69")
        e("s_mul_i32 s80, s79, 18432"); e(f"v_add_u32 v{vXN[u]}, s80, v{vL16}")
        e(f"s_mul_i32 s80, s79, {272*1024}"); e(f"v_add_u32 v{vST[u]}, s80, v{vL16}")
    e("v_lshrrev_b32 v36, 5, v0"); e("v_and_b32 v37, 7, v21"); e("v_xor_b32 v36, v36, v37"); e("v_lshlrev_b32 v36, 4, v36")
    e("v_lshl_add_u32 v36, v23, 7, v36"); e(f"v_add_u32 v36, {SPARE}, v36")
    e("v_lshrrev_b32 v38, 3, v21"); e("v_xor_b32 v39, v38, v37"); e("v_lshlrev_b32 v39, 4, v39"); e("v_lshl_add_u32 v39, v38, 7, v39"); e(f"v_add_u32 v39, {SPARE}, v39")
    e("v_lshlrev_b32 v38, 8, v38"); e("v_lshl_add_u32 v38, v37, 4, v38")
    e("s_lshl_b32 s72, s63, 1"); e("s_add_u32 s72, s72, s71")
    e("s_lshl_b32 s73, s70, 19"); e("s_lshl_b32 s74, s72, 13"); e("s_add_u32 s73, s73, s74"); e(f"s_add_u32 s73, s73, {1536*256}")
    e("s_lshl_b32 s74, s3, 6"); e("s_add_u32 s87, s73, s74"); e("s_add_u32 s88, s87, 4096")
    e("s_lshr_b32 s74, s3, 1"); e("s_lshl_b32 s74, s74, 12"); e("s_add_u32 s73, s73, s74")
    e("s_and_b32 s74, s3, 1"); e("s_lshl_b32 s74, s74, 7"); e("s_add_u32 s89, s73, s74")
    e("s_lshl_b32 s82, s70, 18"); e(f"s_add_u32 s82, s82, {WS_KVP}")
    e("s_lshl_b32 s93, s72, 14"); e("s_add_u32 s93, s93, s82"); e("s_lshl_b32 s78, s3, 11"); e("s_add_u32 s93, s93, s78"); e("s_add_u32 s95, s93, 8192")
    e("s_lshl_b32 s90, s70, 7"); e(f"s_add_u32 s90, s90, {FL_KV}"); e("s_lshl_b32 s91, s72, 2"); e("s_add_u32 s91, s91, s90")
    e(f"s_mul_i32 s77, s3, {144*9216}"); e("s_lshl_b32 s79, s62, 8"); e("s_add_u32 s79, s79, s77")
    e("s_lshl_b32 s80, s70, 6"); e("s_add_u32 s80, s80, s77"); e("s_add_u32 s80, s80, 8192")
    e("s_mul_i32 s81, s3, 9216")
    e("s_lshl_b32 s83, s62, 12"); e(f"s_add_u32 s83, s83, {WS_ACT}"); e(f"s_add_u32 s84, s83, {128*1024}")
    e("s_lshl_b32 s85, s70, 10"); e(f"s_add_u32 s85, s85, {WS_ACT + 256*1024}")
    e(f"s_mov_b32 s86, {f32bits(QSCALE):#x}")
    e("s_lshl_b32 s37, s62, 8"); e("s_lshl_b32 s67, s3, 6"); e("s_add_u32 s37, s37, s67"); e("s_lshl_b32 s67, s3, 10")
    for i in range(5): e(f"s_mov_b32 s{74+i}, {WS_XN + i*4096}")
    e("s_lshr_b32 s7, s66, 1"); e("s_mul_i32 s7, s7, 18432"); e("s_lshl_b32 s72, s71, 7"); e("s_add_u32 s7, s7, s72")
    e("s_lshl_b32 s36, s63, 12"); e("s_lshl_b32 s72, s62, 2"); e("s_add_u32 s36, s36, s72"); e(f"s_add_u32 s36, s36, {FL_LN}")
    Fv = 64
    for d in range(12):
        e(f"v_lshlrev_b32 v{Fv+2*d}, 16, v{48+d}"); e(f"v_and_b32 v{Fv+2*d+1}, 0xffff0000, v{48+d}")
    e(f"buffer_load_dword v{vTOK}, v{vZ}, s[20:23], 0 offen sc1", "tch")
    if ORD == 1: e(wq_touch)
    e(stamp(1))
    def pk(op, d, a, b): return f"{op} {vr(d,2)}, {vr(a,2)}, {vr(b,2)}"
    e(pk("v_pk_add_f32", 40, Fv, Fv + 2)); e(pk("v_pk_add_f32", 42, Fv + 4, Fv + 6))
    for d in range(8, 24, 2): e(pk("v_pk_add_f32", 40 + (d & 2), 40 + (d & 2), Fv + d))
    def red(r):
        e(pk("v_pk_add_f32", r, r, r + 2)); e(f"v_add_f32 v{r}, v{r}, v{r+1}")
        for sh in (8, 4, 2, 1): e(f"v_add_f32_dpp v{r}, v{r}, v{r} row_ror:{sh} row_mask:0xf bank_mask:0xf")
        e(xlane("v_add_f32", r, r + 1, both=False))
    red(40)
    e(f"v_mul_f32 v40, {f32bits(-1.0/576):#x}, v40"); e("v_mov_b32 v41, v40")
    e("v_cvt_pk_bf16_f32 v44, v40, v40"); e("v_lshlrev_b32 v44, 16, v44"); e("v_mov_b32 v45, v44")
    for d in range(0, 24, 2):
        if d == 16: e("s_mov_b32 exec_lo, 0xff"); e("s_mov_b32 exec_hi, 0xff")
        t = 92 + (d & 2); a = 88 + (d & 2)
        e(pk("v_pk_add_f32", t, Fv + d, 40))
        if d < 4: e(pk("v_pk_mul_f32", a, t, t))
        else: e(f"v_pk_fma_f32 {vr(a,2)}, {vr(t,2)}, {vr(t,2)}, {vr(a,2)}")
    e("s_mov_b64 exec, -1")
    for d in range(0, 24, 2):
        e(pk("v_pk_add_f32", Fv + d, Fv + d, 44)); e(f"v_cvt_pk_bf16_f32 v{48+d//2}, v{Fv+d}, v{Fv+d+1}")
    red(88)
    def rbf(r): e(f"v_cvt_pk_bf16_f32 v{r}, v{r}, v{r}"); e(f"v_lshlrev_b32 v{r}, 16, v{r}")
    e(f"v_mul_f32 v88, {f32bits(1.0/576):#x}, v88"); rbf(88)
    e(f"v_add_f32 v88, {f32bits(1e-5):#x}, v88"); rbf(88)
    e("v_sqrt_f32 v88, v88")
    for d in range(12):
        e(f"v_lshlrev_b32 v{Fv+2*d}, 16, v{48+d}"); e(f"v_and_b32 v{Fv+2*d+1}, 0xffff0000, v{48+d}")
        if d == 0: rbf(88)
        if d == 1: e("v_rcp_f32 v90, v88")
        if d == 2: e("v_fma_f32 v91, -v88, v90, 2.0")
        if d == 3: e("v_mul_f32 v90, v90, v91"); e("v_mov_b32 v91, v90")
    for d in range(12):
        e(pk("v_pk_mul_f32", Fv + 2 * d, Fv + 2 * d, 90)); e(f"v_cvt_pk_bf16_f32 v{48+d}, v{Fv+2*d}, v{Fv+2*d+1}")
        if d % 4 == 3:
            if d == 11: e("s_mov_b32 exec_lo, 0xff"); e("s_mov_b32 exec_hi, 0xff")
            e(f"ds_write_b128 v36, {vr(48 + d - 3)} offset:{(d//4)*4096}")
    e("s_mov_b64 exec, -1")
    e("s_waitcnt lgkmcnt(0)")
    e("s_barrier")
    e(stamp(2))
    e("s_cmp_lg_u32 s3, 0"); e("s_cbranch_scc1 KF_x123")
    w0 = [f"ds_read_b128 {vr(136+4*q)}, v39 offset:{q*1024}" for q in range(9)]
    for q in range(9):
        w0 += [f"s_waitcnt lgkmcnt({8-q})", f"buffer_store_dwordx4 {vr(136+4*q)}, v38, s[16:19], s7 offen offset:{(q%2)*2048} sc1"]
        if q % 2: w0 += ["s_add_u32 s7, s7, 4096"]
    w0 += ["v_lshlrev_b32 v38, 7, v21", "s_mov_b32 s73, 0"] + mst(62) + ["KF_tk:", "s_waitcnt vmcnt(0)", f"v_cmp_eq_u32 vcc, 0, v{vTOK}",
           "s_add_u32 s73, s73, 1", f"s_cmp_ge_u32 s73, {SPIN_MAX}",
           "s_cbranch_scc1 KF_tkd", "s_cbranch_vccz KF_tkd", f"buffer_load_dword v{vTOK}, v{vZ}, s[20:23], 0 offen sc1", "s_branch KF_tk", "KF_tkd:"]
    w0 += mst(63) + flag_store("s36", 32, 38, allw=True)
    w0 += [f"v_mov_b32 v39, {SPARE + 12288}", f"ds_write_b32 v39, v{vTOK}"]
    for x in w0: e(x if x.endswith(":") else C(x))
    e("KF_x123:")
    if ORD == 3: e("s_barrier")
    if ORD >= 2: e(wq_touch)
    def wq_piece(b):
        return [[f"s_add_u32 m0, s67, {b*4096}", f"s_add_u32 s68, s37, {b*131072}"],
                Inst(f"buffer_load_dwordx4 v{vDQ}, s[8:11], s68 offen lds", "wq")]
    NPW = opt.get("npw", 12); XD = opt.get("xd", 2); XEND = opt.get("xend", 9)
    e(srd(20, 60, WS_SIZE))
    for b in range(NPW): e(wq_piece(b))
    if opt.get("w1pf", 1) == 2: e(w1_touch)
    e(stamp(3))
    e("s_cmp_lg_u32 s3, 0"); e("s_cbranch_scc1 KF_y123")
    pl = ["v_lshlrev_b32 v38, 2, v23", "s_lshl_b32 s72, s66, 7", f"s_add_u32 s72, s72, {FL_LN}"]
    pl += spin("buffer_load_dword v39, v38, s[16:19], s72 offen sc1", [39])
    for x in pl: e(x if x.endswith(":") else C(x))
    e("KF_y123:")
    k.wait_tags("wq", skip=NPW - 12)
    e("s_waitcnt lgkmcnt(0)")
    e("s_barrier")
    e(stamp(4))
    def xn_load(u, s):
        return Inst(f"buffer_load_dwordx4 {X(u, s)}, v{vXN[u]}, s[16:19], s{74 + s//4} offen offset:{(s%4)*1024} sc1", "xn")
    for s in range(XD):
        for u in range(4): e(xn_load(u, s))
    if opt.get("w1pf", 1) == 1: e(w1_touch)
    e(f"v_mov_b32 v39, {SPARE + 12288}"); e(f"ds_read_b32 v{vTOK}, v39")

    k.begin(name="gemm")
    class Frags:
        def __init__(s, af): s.mf = []; s.fr = []; s.af = af
        def add(s, vbase, off, ms, d2=256):
            b = s.af + (len(s.fr) % NF) * 4
            s.fr.append((len(s.mf), len(ms), [f"ds_read_b64_tr_b16 {vr(b,2)}, v{vbase} offset:{off}",
                                              f"ds_read_b64_tr_b16 {vr(b+2,2)}, v{vbase} offset:{off+d2}"], vr(b)))
            s.mf += [m.replace("@A", vr(b)) for m in ms]
        def sched(s, wrap=False):
            sc = Sched(s.mf); fr = s.fr; N = len(fr)
            for f in range(N):
                g0, n, _, _ = fr[f]
                if f + LEAD < N or wrap:
                    sc.put(g0, fr[(f + LEAD) % N][2][0]); sc.put(g0 + 1, fr[(f + LEAD) % N][2][1])
                if (f + 1 < N or wrap) and (n == 4 or f % 2 == 0):
                    sc.put(g0 + 1, WaitRegs(*([fr[(f + 1) % N][3]] + ([fr[f + 2][3]] if n == 2 and f + 2 < N else []))))
            return sc
    G = Frags(AF); pos = {}
    KL, VL, VD, VO, ID = 200, 208, 216, 232, 240
    KVS = opt.get("kvs", 15)
    for s in range(18):
        pos["Q", s] = len(G.mf)
        if s == KVS: G.mf += tr_mf(VD, VL, ID)
        for nt in range(8):
            G.add(vB + 2 * (s // 8) + (nt & 1), (s % 8) * 8192 + (nt >> 1) * 1024,
                  [f"{MF} {vr(qa(nt,u))}, @A, {X(u,s)}, {'0' if s == 0 else vr(qa(nt,u))}" for u in range(4)])
    S = lambda u: (B1 if u < 2 else B3) + (u & 1) * 8
    def KF(b, f): return ar(128 + b * 32 + f * 4)
    def VF(b, f): return ar(192 + b * 32 + f * 4)
    K0F = lambda f: vr(B5 + f * 4) if f < 4 else vr(B7 + (f - 4) * 4)
    NEGM = B5; P = B7; L = XV + 16; FL = XV + 24
    def qk(u, kf, zero=False):
        out = []
        for s in range(4):
            for kt in range(2):
                c = vr(S(u) + 4 * kt)
                out.append(f"{MF} {c}, {kf(kt*4+s)}, {Qf(u, s)}, {c if s else ('0' if zero else vr(NEGM + 4*u))}")
        return out
    sb = lambda st, a: vB + (st & 1) * 2 + a
    for st in range(5):
        us = (0, 1) if st == 4 else (0, 1, 2, 3)
        for f in range(36):
            a, s = f // 18, f % 18
            pos["F", st, f] = len(G.mf)
            if st == 3 and f == 8:
                pos["QK0"] = len(G.mf)
                for u in range(4): G.mf += qk(u, K0F, zero=True)
                pos["QK0e"] = len(G.mf)
            G.add(sb(st, a), s * 2048, [f"{MF} {vr(fa(a,u))}, @A, {X(u,s)}, {'0' if s == 0 else vr(fa(a,u))}" for u in us])
    END = len(G.mf)
    for f in range(LEAD): e(G.fr[f][2])
    sc = G.sched()
    F = lambda st, f: pos["F", st, f]
    Qp = lambda s: pos["Q", s] if s < 18 else F(0, 0)
    def bar(g, *w): sc.put(g, list(w) + ["s_barrier"])
    bar(Qp(5) + 2, WaitTag(["wq"], 0))
    bar(Qp(9) + 2)
    bar(Qp(14) + 2, WaitTag(["dma"], 9))
    bar(F(0, 0) + 6, WaitTag(["dma"], 9))
    bar(F(0, 18) + 2, WaitTag(["kvst"], 0))
    bar(F(1, 0) + 6, WaitTag(["dma"], 9))
    bar(F(2, 0) + 6, WaitTag(["dma"], 9))
    bar(F(3, 0) + 6, WaitTag(["dma", "kv0"], 9))
    bar(F(4, 2), WaitTag(["dma"], 9))
    for s in range(17): sc.add([WaitRegs(*[X(u, s + 1) for u in range(4)])], Qp(s + 1) - 4, Qp(s + 1), spread=False)
    xp = sc.add([xn_load(u, s) for s in range(XD, 18) for u in range(4)], 2, Qp(XEND))
    for i, g in enumerate(xp): assert g < Qp(XD + i // 4) - 24, (i, g)
    sc.add(flat([wq_piece(b) for b in range(NPW, 36)]), 2, Qp(4) + 8)
    def w1_piece(st, p):
        base = "s80" if st == 4 else "s79"; col = 0 if st == 4 else st * 64
        return [[f"s_add_u32 m0, s81, {(st % 4)*SLOT + p*1024}", f"s_add_u32 s68, {base}, {col + p*16*9216}"],
                Inst(f"buffer_load_dwordx4 v{vD1}, s[12:15], s68 offen lds", "dma")]
    def lin_pieces(ldsb, ldsoff, src, srcoff, n=9, tag="dma"):
        out = []
        for p in range(n):
            if p % 4 == 0: out.append([f"s_add_u32 m0, {ldsb}, {ldsoff + p*1024}", f"s_add_u32 s68, {src}, {srcoff + p*1024}"])
            out.append(Inst(f"buffer_load_dwordx4 v{vL16}, s[20:23], s68 offen offset:{(p%4)*1024} sc1 lds", tag))
        return out
    sc.add(flat([w1_piece(0, p) for p in range(9)]), Qp(opt.get("f0at", 6)), Qp(9))
    kvl = []
    for f in range(2):
        kvl += [f"buffer_load_dwordx2 {vr(KL+4*f,2)}, v{vKO}, s[24:27], s89 offen offset:{f*64}", f"buffer_load_dwordx2 {vr(KL+2+4*f,2)}, v{vKO}, s[24:27], s89 offen offset:{f*64+32}"]
    kvl += [f"buffer_load_dwordx4 {vr(VL)}, v{vVO}, s[28:31], s87 offen", f"buffer_load_dwordx4 {vr(VL+4)}, v{vVO}, s[28:31], s88 offen"]
    sc.add(kvl, Qp(XEND) + 3, Qp(XEND + 1))
    sc.add(flat([w1_piece(1, p) for p in range(9)]), Qp(XEND + 1), Qp(14))
    sc.add(ident(ID, vT, vL), Qp(XEND + 1), Qp(KVS - 1))
    sc.add([WaitRegs(vr(VL), vr(VL + 4))], Qp(KVS) - 3, Qp(KVS), spread=False)
    kst = [Inst(f"buffer_store_dwordx4 {vr(KL+4*f)}, v{vL16}, s[16:19], s93 offen offset:{f*1024} sc1", "kvst") for f in range(2)]
    for h in range(2):
        kst += tr_cvt(VO + 4 * h, VD, h) + [Inst(f"buffer_store_dwordx4 {vr(VO+4*h)}, v{vL16}, s[16:19], s95 offen offset:{h*1024} sc1", "kvst")]
    sc.add(kst, Qp(KVS) + 6, Qp(KVS + 1) + 16)
    sc.add(flat([w1_piece(2, p) for p in range(9)]), Qp(14) + 3, Qp(17) + 24)
    sc.add(flat([w1_piece(3, p) for p in range(9)]), F(0, 2), F(0, 17))
    sc.add([flag_store("s91", 1, vZ)], F(0, 18) + 3, F(0, 18) + 8)
    sc.add(flat([w1_piece(4, p) for p in range(9)]), F(1, 2), F(1, 26))
    kvld = f"buffer_load_dword v{vT2}, v{vT}, s[16:19], s90 offen sc1"
    sc.add([f"v_bfe_u32 v{vT}, v{vL16}, 4, 4", f"v_lshlrev_b32 v{vT}, 2, v{vT}", kvld], F(1, 26), F(1, 30))
    c1, c2 = check(kvld, [vT2])
    sc.add([c1 + c2], F(2, 2), F(2, 3))
    kv0 = [["s_lshl_b32 s72, s3, 12", "s_add_u32 s70, s82, s72"]] + lin_pieces("s72", SPARE, "s70", 0, 4, "kv0") + [["s_add_u32 s92, s82, s81"]]
    sc.add(kv0 + lin_pieces("s81", 1 * SLOT, "s92", 16384), F(2, 3), F(2, 30))
    sc.add(lin_pieces("s81", 2 * SLOT, "s92", 16384 + 32768), F(3, 2), F(3, 30))
    sc.add(lin_pieces("s81", 3 * SLOT, "s92", 16384 + 65536), F(4, 3), F(4, 30))
    sc.add([f"v_mov_b32 v{vB}, v{vS0}", f"v_xor_b32 v{vB+1}, 32, v{vS0}"], Qp(16), Qp(17))
    for st in range(1, 5):
        sc.add([f"v_add_u32 v{sb(st,0)}, {(st % 4)*SLOT}, v{vS0}", f"v_xor_b32 v{sb(st,1)}, 32, v{sb(st,0)}"], F(st - 1, 4), F(st - 1, 20))
    def epi_a(us): return flat([[f"v_cvt_pk_bf16_f32 v{T+4*u}, v{fa(0,u)}, v{fa(0,u)+1}", f"v_cvt_pk_bf16_f32 v{T+4*u+1}, v{fa(0,u)+2}, v{fa(0,u)+3}",
                                 f"v_pk_max_i16 v{T+4*u}, v{T+4*u}, 0", f"v_pk_max_i16 v{T+4*u+1}, v{T+4*u+1}, 0"] for u in us])
    def epi_b(st, us):
        so, off = ("s85", 0) if st == 4 else ("s84", st * 1024)
        return flat([[f"v_cvt_pk_bf16_f32 v{T+4*u+2}, v{fa(1,u)}, v{fa(1,u)+1}", f"v_cvt_pk_bf16_f32 v{T+4*u+3}, v{fa(1,u)+2}, v{fa(1,u)+3}",
                      f"v_pk_max_i16 v{T+4*u+2}, v{T+4*u+2}, 0", f"v_pk_max_i16 v{T+4*u+3}, v{T+4*u+3}, 0",
                      Inst(f"buffer_store_dwordx4 {vr(T+4*u)}, v{vST[u]}, s[16:19], {so} offen offset:{off} sc1", "st")] for u in us])
    for st in range(5):
        us = (0, 1) if st == 4 else (0, 1, 2, 3)
        sc.add(epi_a(us), F(st, 20 if st < 4 else 22), F(st, 34))
        if st: sc.add(epi_b(st - 1, (0, 1, 2, 3)), F(st, 2 if st < 4 else 4), F(st, 16))
    qe = []
    for s in range(4):
        for u in range(4):
            a, b = qa(2 * s, u), qa(2 * s + 1, u)
            qe += [f"v_mul_f32 v{r}, s86, v{r}" for r in list(range(a, a + 4)) + list(range(b, b + 4))]
            qe += [f"v_cvt_pk_bf16_f32 v{a}, v{a}, v{a+1}", f"v_cvt_pk_bf16_f32 v{a+1}, v{a+2}, v{a+3}",
                   f"v_cvt_pk_bf16_f32 v{a+2}, v{b}, v{b+1}", f"v_cvt_pk_bf16_f32 v{a+3}, v{b+2}, v{b+3}"]
    sc.add(qe, F(0, 1), F(2, 30), spread=False)
    sc.add([f"v_add_u32 v{vL}, {SPARE}, v{vL16}"], F(2, 30), F(2, 34))
    sc.add([f"ds_read_b128 {K0F(f)}, v{vL} offset:{f*1024}" for f in range(8)], F(3, 1) + 3, F(3, 7))
    sc.add([WaitRegs(*[K0F(f) for f in range(8)])], pos["QK0"] - 2, pos["QK0"], spread=False)
    M = lambda u: NEGM + 4 * u
    pa = []
    for u in range(4):
        s0 = S(u); m = M(u)
        pa += [f"v_max3_f32 v{m}, v{s0}, v{s0+1}, v{s0+2}", f"v_max3_f32 v{m}, v{m}, v{s0+3}, v{s0+4}",
               f"v_max3_f32 v{m}, v{m}, v{s0+5}, v{s0+6}", f"v_max_f32 v{m}, v{m}, v{s0+7}"]
    xl = [xlane("v_max_f32", M(u), M(u) + 1) for u in range(4)]
    for i in range(6): pa += [xl[u][i] for u in range(4)]
    for u in range(4):
        pa += [f"v_sub_f32 v{S(u)+i}, v{S(u)+i}, v{M(u)}" for i in range(8)] + [f"v_sub_f32 v{M(u)+i}, 0, v{M(u)}" for i in (3, 2, 1, 0)]
    for u in range(4): pa += [f"v_exp_f32 v{S(u)+i}, v{S(u)+i}" for i in range(8)]
    for u in range(4): pa += [f"v_cvt_pk_bf16_f32 v{P+4*u+i}, v{S(u)+2*i}, v{S(u)+2*i+1}" for i in range(4)]
    pp = sc.add(pa, pos["QK0e"] + 3, F(4, 6), spread=False)
    pl = []
    for u in range(4):
        s0 = S(u)
        pl += [f"v_add_f32 v{L+u}, v{s0}, v{s0+2}", f"v_add_f32 v{L+4+u}, v{s0+1}, v{s0+3}"]
        pl += [f"v_add_f32 v{L+u+4*(i&1)}, v{L+u+4*(i&1)}, v{s0+i}" for i in range(4, 8)]
    sc.add(pl, max(F(4, 1), pp[-1] + 1), END)
    sc.add([f"ds_read_b128 {VF(0, f)}, v{vL} offset:{8192 + f*1024}" for f in range(8)], F(4, 32), END, spread=False, mind=1)
    if stamps and opt.get("fine"):
        for i, g in enumerate([Qp(1), Qp(3), Qp(5), Qp(5) + 4, Qp(7), Qp(9), Qp(11), Qp(13), Qp(15), Qp(17), F(0, 0), F(0, 18), F(1, 0), F(2, 0), F(2, 6), F(3, 0), pos["QK0"], F(4, 0)]):
            sc.gap[g] = sc.gap[g] + [_mk(x) for x in mst(14 + i)]
    e(sc.flat())
    e(stamp(5))

    def O(dt, u): return (dt * 4 + u) * 4
    def pv(u, b, pb, zero=False):
        return [f"{MF} {ar(O(dt, u))}, {VF(b, dt)}, {vr(P + 4*pb)}, {'0' if zero else ar(O(dt, u))}" for dt in range(8)]
    vD = list(range(16, 25)); vDW = list(range(176, 185)); vTW = 185
    def softmax(u):
        s0 = S(u); sm = []
        for i in range(4):
            a = s0 + 2 * i
            sm += [f"v_exp_f32 v{a}, v{a}", f"v_exp_f32 v{a+1}, v{a+1}"]
            if i: sm += [f"v_add_f32 v{L+u}, v{L+u}, v{a-2}", f"v_add_f32 v{L+4+u}, v{L+4+u}, v{a-1}", f"v_cvt_pk_bf16_f32 v{P+4*u+i-1}, v{a-2}, v{a-1}"]
        return sm + [f"v_cvt_pk_bf16_f32 v{P+4*u+3}, v{s0+6}, v{s0+7}", f"v_add_f32 v{L+u}, v{L+u}, v{s0+6}", f"v_add_f32 v{L+4+u}, v{L+4+u}, v{s0+7}"]
    def ring_dma():
        dm = []
        for p in range(9):
            if p % 4 == 0: dm.append([f"s_add_u32 m0, s94, {p*1024}"])
            dm.append(Inst(f"buffer_load_dwordx4 v{vD[p]}, s[20:23], s92 offen offset:{(p%4)*1024} sc1 lds", "dma"))
        return dm + [["s_add_u32 s92, s92, s97"], [f"s_add_u32 s94, s94, {SLOT}"], [f"s_cmp_ge_u32 s94, {4*SLOT}", "s_cselect_b32 s94, s81, s94"]]
    adv_rd = [[f"s_add_u32 s96, s96, {SLOT}"], [f"s_cmp_eq_u32 s96, {4*SLOT}", "s_cselect_b32 s96, 0, s96"]]
    hfl = f"buffer_load_dword v{FL}, v{vT}, s[16:19], s84 offen sc1"
    def attn_iter(kind):
        first, last = kind == "first", kind == "last"
        mf = []; base = []
        for sl in range(8):
            base.append(len(mf))
            t2 = sl + 2; kb = (t2 // 4) & 1
            if not (last and sl >= 6) and not (first and sl < 2): mf += qk(t2 % 4, lambda f: KF(kb, f))
            mf += pv(sl % 4, (sl // 4) & 1, sl % 4, zero=(first and sl < 4))
        base.append(len(mf))
        sc = Sched(mf)
        for sl in range(8):
            u, half = sl % 4, sl // 4
            n = base[sl + 1] - base[sl]
            if not (last and half == 1):
                nb = (half + 1) & 1
                for i in range(4):
                    f = (u & 1) * 4 + i
                    d, o = (KF(nb, f), 0) if u < 2 else (VF(nb, f), 8192)
                    g = f if n == 8 else base[sl] + (3 + 4 * i if u != 1 else (2, 3, 6, 7)[i])
                    sc.put(g, f"ds_read_b128 {d}, v{vL} offset:{half*16384 + o + f*1024}")
            if u == 1 and not (last and half == 1):
                sc.put(base[sl + 1] - (3 if n == 16 else 1), WaitRegs(*[KF((half + 1) & 1, f) for f in range(8)]))
            if u == 0 and n == 16: sc.put(base[sl] + 5, WaitRegs(*[VF(half & 1, f) for f in range(8)]))
        gb = base[1] + 11
        sc.put(gb, [WaitTag(["dma"] if first else ["dma", "st"], 9), "s_barrier"])
        dm = ring_dma() + adv_rd
        if kind == "loop" and opt.get("wt", 1):
            dm += [[Inst("s_mov_b64 exec, 0x3fff"), Inst(f"buffer_load_dword v{vTW+1}, v{vTW}, s[24:27], s89 offen", "tch"), Inst("s_mov_b64 exec, -1")],
                   [f"s_add_u32 s89, s89, {1792*128}"]]
        if last: dm = [hfl] + dm
        if first:
            sc.add([f"v_add_u32 v{vD[p]}, {(p - p % 4)*1024}, v{vL16}" for p in range(9)], 1, gb, spread=False)
            sc.add(epi_b(4, (0, 1)), 6, gb)
        sc.add(dm, gb + 1, base[8] - 2)
        for sl in range(8):
            if (last and sl == 7) or (first and sl < 3): continue
            hi = base[sl + 1] + (4 if sl < 7 and not (last and sl >= 5) else 0)
            sc.add(softmax((sl + 1) % 4), base[sl], hi, spread=False)
        if first:
            dw = [f"v_lshrrev_b32 v{vT2}, 4, v{vL16}", f"v_lshlrev_b32 v{vTW}, 3, v{vL16}"]
            for p in range(9):
                r = vDW[p]
                dw += [f"v_add_u32 v{vT}, {64*p}, v{vT2}", f"v_mul_u32_u24 v{r}, 3641, v{vT}", f"v_lshrrev_b32 v{r}, 16, v{r}",
                       f"v_mul_u32_u24 v{r}, {1152 - 288}, v{r}", f"v_lshl_add_u32 v{r}, v{vT}, 4, v{r}"]
                if p % 4: dw.append(f"v_subrev_u32 v{r}, {(p%4)*1024}, v{r}")
            sc.add(dw, 1, base[8], spread=False)
            ids = [["s_cmp_lt_u32 s64, 4", "s_cselect_b32 s24, s48, s54", "s_cselect_b32 s25, s49, s55"],
                   [f"s_mov_b32 s26, {4096*1152}", "s_cmp_lt_u32 s64, 4", f"s_cselect_b32 s26, s26, {4608*1152}"],
                   ["s_cmp_lt_u32 s64, 4", "s_cselect_b32 s72, 32, 36", "s_cselect_b32 s5, 0, 1"],
                   ["s_and_b32 s73, s64, 3", "s_mul_i32 s7, s73, s72"],
                   ["s_lshl_b32 s6, s5, 7", "s_add_u32 s6, s6, s7"], [f"s_mul_i32 s7, s7, {32*1152}"],
                   ["s_lshr_b32 s72, s2, 3", "s_lshl_b32 s72, s72, 2"], ["s_add_u32 s72, s72, s3", f"s_mul_i32 s72, s72, {14*128}"], ["s_add_u32 s89, s7, s72"]]
            sc.add(ids, base[3], base[7])
        e(f"v_add_u32 v{vL}, s96, v{vL16}")
        e(sc.flat())
    k.begin(name="attn_first")
    e(f"s_add_u32 s92, s92, {16384 + 3*32768}"); e("s_mov_b32 s97, 32768")
    e("s_mov_b32 s94, s81"); e(f"s_mov_b32 s96, {SLOT}")
    e("s_mov_b32 s4, 1"); e("s_mov_b32 s101, 0x24")
    attn_iter("first")
    k.begin(loop=6, name="attn_loop")
    e(".p2align 3"); e("KF_aloop:")
    if stamps and opt.get("fine"):
        e(["s_memtime s[98:99]", "s_add_u32 s100, s4, 55", "s_lshl_b32 s100, s100, 4", f"v_cmp_eq_u32 vcc, s100, v{vL16}",
           "s_waitcnt lgkmcnt(0)", "v_mov_b32 v47, s98", f"v_cndmask_b32 v{STV}, v{STV}, v47, vcc"])
    e("s_bitcmp1_b32 s101, s4"); e("s_cbranch_scc1 KF_ool"); e("KF_oolr:")
    attn_iter("loop")
    e("s_add_u32 s4, s4, 1"); e("s_cmp_lt_u32 s4, 7"); e("s_cbranch_scc1 KF_aloop")
    ool.append(["KF_ool:", "s_cmp_eq_u32 s4, 5", "s_cbranch_scc1 KF_sw",
                "s_lshl_b32 s72, s63, 14", "s_lshl_b32 s73, s3, 7", "s_add_u32 s72, s72, s73", f"s_add_u32 s72, s72, {FL_P2}",
                "s_lshl_b32 s73, s62, 2", "s_add_u32 s91, s72, s73", "s_add_u32 s91, s91, 8192", f"v_lshlrev_b32 v{vT2}, 5, v{vL16}"] +
               flag_store("s91", 16, vT2, allw=True) +
               ["s_lshr_b32 s73, s62, 3", "s_lshl_b32 s73, s73, 11", "s_add_u32 s90, s72, s73", "s_and_b32 s73, s62, 7", "s_lshl_b32 s73, s73, 2",
                "s_add_u32 s90, s90, s73",
                "s_lshl_b32 s73, s62, 9", "s_add_u32 s84, s72, s73",
                "s_movk_i32 s73, 0x70", "s_cmp_eq_u32 s5, 0", "s_cselect_b32 s73, s73, 0x1f0", f"v_and_b32 v{vT}, s73, v{vL16}", f"v_lshrrev_b32 v{vT}, 2, v{vT}",
                "s_branch KF_oolr",
                "KF_sw:",
                "s_mov_b32 s20, s24", "s_mov_b32 s21, s25", "s_mov_b32 s22, s26"] + [f"v_mov_b32 v{vD[p]}, v{vDW[p]}" for p in range(9)] +
               [f"s_mov_b32 s97, {128*1152}", f"s_mul_i32 s92, s3, {32*1152}", "s_add_u32 s92, s92, s7", "s_mul_i32 s72, s65, 288", "s_add_u32 s92, s92, s72",
                "s_lshl_b32 s79, s6, 10", f"s_add_u32 s79, s79, {WS_ACT}",
                "s_mov_b32 s28, s60", "s_mov_b32 s29, s61", "s_cmp_eq_u32 s5, 0", "s_cselect_b32 s30, 0, s18",
                "s_branch KF_oolr"])
    k.begin(name="attn_last")
    attn_iter("last")
    e(stamp(6))
    W = 216
    for u in range(4): e(f"v_add_f32 v{L+u}, v{L+u}, v{L+4+u}")
    xl = [xlane("v_add_f32", L + u, W + 4 + u) for u in range(4)]
    for i in range(6):
        for u in range(4): e(xl[u][i])
    e(f"v_add_f32 v{W+1}, v{L}, v{L+1}"); e(f"v_add_f32 v{W+2}, v{L+2}, v{L+3}"); e(f"v_add_f32 v{W}, v{W+1}, v{W+2}")
    e(f"v_cmp_nge_f32 vcc, {f32bits(2.0**30):#x}, v{W}")
    e("s_cbranch_vccnz KF_slow")
    e("KF_epi:")
    k.begin(name="oepi")
    ACC = 48; A2 = 192
    def acc(nt, u): return ACC + (nt * 4 + u) * 4
    def BF(b, s, u): return ar(128 + ((b * 4 + s) * 4 + u) * 4)
    def bload(b, s, u):
        return Inst(f"buffer_load_dwordx4 {BF(b, s, u)}, v{vST[u]}, s[28:31], s79 offen offset:{s*1024} sc1", "b")
    adv_b = "s_add_u32 s79, s79, 4096"
    for u in range(4): e(f"v_rcp_f32 v{L+u}, v{L+u}")
    e(WaitRegs(f"v{FL}"))
    e("s_cmp_eq_u32 s5, 0"); e("s_cbranch_scc1 KF_nock")
    c1, c2 = check(hfl, [FL])
    for x in c1 + c2: e(x if x.endswith(":") else C(x))
    e("KF_nock:")
    n = 0
    for i in range(4):
        for u in range(4):
            t = W + (n % 3) * 12
            for r in range(8): e(f"v_accvgpr_read_b32 v{t+r}, a{O(2*i + r//4, u) + r%4}")
            for r in range(0, 8, 2): e(f"v_pk_mul_f32 {vr(t+r,2)}, {vr(t+r,2)}, {vr(L + (u & 2),2)} op_sel:[0,{u&1}] op_sel_hi:[1,{u&1}]")
            for r in range(4): e(f"v_cvt_pk_bf16_f32 v{t+8+r}, v{t+2*r}, v{t+2*r+1}")
            e(f"buffer_store_dwordx4 {vr(t+8)}, v{vST[u]}, s[16:19], s83 offen offset:{i*1024} sc1", "st")
            e(bload(1, (n // 4), n % 4))
            for r in range(ACC + n * 10, min(ACC + 144, ACC + n * 10 + 10), 2): e(f"v_mov_b64 {vr(r,2)}, 0")
            n += 1
    e(f"v_add_u32 v{vL}, s96, v{vP5}")
    P5 = {}
    for b in range(2):
        G = Frags(A2)
        for s in range(4):
            for nt in range(9):
                G.add(vL, s * 9216 + nt * 32, [f"{MF} {vr(acc(nt,u))}, @A, {BF(b,s,u)}, {vr(acc(nt,u))}" for u in range(4)], 4608)
        P5[b] = G
    for f in range(LEAD): e(P5[0].fr[f][2])
    e(stamp(7))
    e("s_cmp_eq_u32 s5, 0"); e("s_cbranch_scc1 KF_spre")
    k.begin(name="g_pre")
    e(adv_b)
    for s in range(3):
        for u in range(4): e(bload(0, s, u))
    e("s_mov_b32 s4, 0")
    e(WaitRegs(*[BF(1, 0, u) for u in range(4)]))
    e(stamp(8))
    e("s_branch KF_mid")
    k.begin(name="s_pre")
    e("KF_spre:")
    e("s_waitcnt vmcnt(0)")
    e(flag_store("s90", 4, vT2, allw=True))
    e("s_mov_b32 s30, s18")
    e(spin(hfl, [FL]))
    for b in range(2):
        for s in range(4 - b):
            for u in range(4): e(bload(b, s, u))
        if b == 0: e(adv_b)
    e("s_mov_b32 s4, 1")
    e(WaitRegs(*[BF(0, 0, u) for u in range(4)]))
    e(stamp(8))
    e("s_branch KF_top2")

    def stage2(b):
        G = P5[b]; sc = G.sched(wrap=True)
        sc.put(4 * (36 - LEAD) - 1, f"v_add_u32 v{vL}, s96, v{vP5}")
        sc.put(6, [WaitTag(["dma"], 9), "s_barrier"])
        for s in range(4):
            nb, ns = (b, s + 1) if s < 3 else (b ^ 1, 0)
            sc.add([WaitRegs(*[BF(nb, ns, u) for u in range(4)])], 36 * s + 32, 36 * s + 36, spread=False)
        misc = list(adv_rd)
        if b == 1: misc += [["s_cmp_ge_u32 s4, 3", "s_cselect_b32 s22, 0, s22"]]
        sc.add(misc, 7, 12, spread=False)
        for s in range(3): sc.add([bload(b, s, u) for u in range(4)], 36 * (s + 1), 36 * (s + 1) + 24)
        sc.add([bload(b ^ 1, 3, u) for u in range(4)] + [adv_b], 2, 30)
        sc.add(ring_dma(), 12, 140)
        e(sc.flat())
    k.begin(loop=3, name="L0")
    e(".p2align 3"); e("KF_loop2:")
    e("s_cmp_eq_u32 s4, 1"); e("s_cbranch_scc1 KF_ht"); e("KF_top2:")
    stage2(0)
    k.begin(loop=3, name="L1")
    e("KF_mid:")
    stage2(1)
    e("s_add_u32 s4, s4, 1"); e("s_cmp_lt_u32 s4, 4"); e("s_cbranch_scc1 KF_loop2")
    ool.append(["KF_ht:", "s_waitcnt vmcnt(25)"] + flag_store("s90", 4, vT2, allw=True) + ["s_branch KF_top2"])

    k.begin(name="final")
    e(stamp(9))
    order = [(0, s, nt) for s in range(2) for nt in range(9)]
    order += [(b, s, nt) for nt in range(9) for b in range(2) for s in range(4) if (b, s) not in ((0, 0), (0, 1))]
    G = Frags(A2); done = {}
    vL2 = vT
    for (b, s, nt) in order:
        G.add(vL2 if b else vL, s * 9216 + nt * 32, [f"{MF} {vr(acc(nt,u))}, @A, {BF(b,s,u)}, {vr(acc(nt,u))}" for u in range(4)], 4608)
        done[nt] = len(G.mf)
    sc = G.sched(); NG = len(G.mf)
    sc.put(6, [WaitTag(["dma"], 0), "s_barrier"])
    sc.add([bload(1, 3, u) for u in range(4)], 2, 20)
    sc.add(adv_rd + [f"v_add_u32 v{vL2}, s96, v{vP5}"], 7, 16, spread=False)
    sc.add([WaitRegs(*[BF(0, 1, u) for u in range(4)])], 32, 36, spread=False)
    sc.add([WaitRegs(*[BF(1, 3, u) for u in range(4)])], 68, 72, spread=False)
    SEL = 26; XRr = 36; vX = 25; vL8 = 46
    ad = [["s_lshl_b32 s72, s63, 2", "s_add_u32 s72, s72, s65"], ["s_lshl_b32 s72, s72, 2", "s_add_u32 s72, s72, s3"],
          ["s_mul_i32 s78, s72, 163840", f"s_add_u32 s78, s78, {WS_PART}"], ["s_mul_i32 s73, s64, 5120", "s_add_u32 s74, s78, s73"],
          ["s_add_u32 s75, s74, 40960", "s_add_u32 s76, s74, 81920"], ["s_add_u32 s77, s74, 122880"],
          ["s_and_b32 s82, s64, 3", "s_mul_i32 s73, s82, 40960"], ["s_add_u32 s78, s78, s73", "s_lshl_b32 s73, s5, 11"], ["s_add_u32 s85, s78, s73"],
          ["s_lshl_b32 s73, s71, 1", "s_xor_b32 s82, s82, s73"], ["s_add_u32 s82, s82, s69", f"s_mul_i32 s83, s82, {16*1152}"],
          ["s_mul_i32 s73, s65, 288", "s_add_u32 s83, s83, s73"], ["s_lshl_b32 s73, s5, 7", "s_add_u32 s83, s83, s73"],
          ["s_mov_b32 s12, s56", "s_mov_b32 s13, s57"], [f"s_mov_b32 s14, {2048*1152}"],
          [f"s_add_u32 s84, s84, {FL_EX - FL_P2}", "s_lshl_b32 s73, s64, 11"], ["s_sub_u32 s90, s84, s73", "s_lshl_b32 s73, s64, 2"], ["s_add_u32 s90, s90, s73"],
          [f"s_mov_b32 s88, {f32bits(-math.log2(math.e)):#x}", "s_mov_b32 s89, 0xffff0000"]]
    ap = sc.add(ad, 16, 70)
    va = [f"v_bfe_u32 v{vX}, v{vL16}, 4, 4", f"v_lshrrev_b32 v{vT2}, 8, v{vL16}", f"v_bfe_u32 v{vL8}, v{vL16}, 6, 2",
          [f"v_cmp_eq_u32 vcc, v{vL8}, v{vT2}", f"v_mov_b32 v{SEL}, 0x3f80", f"v_and_b32 v{vL8}, 16, v{vL16}", f"v_lshlrev_b32 v{SEL}, v{vL8}, v{SEL}",
           f"v_cndmask_b32 v{SEL}, 0, v{SEL}, vcc"],
          [f"v_and_b32 v{vL8}, 32, v{vL16}", f"v_cmp_eq_u32 vcc, 0, v{vL8}", "s_nop 1", f"v_cndmask_b32 v{SEL+2}, 0, v{SEL}, vcc", f"v_cndmask_b32 v{SEL+3}, v{SEL}, 0, vcc"],
          f"v_mov_b32 v{SEL}, 0", f"v_mov_b32 v{SEL+1}, 0", f"v_mov_b32 v{SEL+4}, 0", f"v_mov_b32 v{SEL+5}, 0",
          f"v_mul_u32_u24 v{vX}, 1152, v{vX}", f"v_lshl_add_u32 v{vX}, v{vT2}, 3, v{vX}",
          f"v_lshrrev_b32 v{vL8}, 1, v{vL16}", f"v_add_u32 v{vL8}, 4096, v{vL8}", f"v_lshlrev_b32 v{vT2}, 7, v{vL16}",
          f"v_bfe_u32 v{vB}, v{vL16}, 4, 3", f"v_lshlrev_b32 v{vB}, 2, v{vB}"]
    sc.add(va, 16, 70)
    sc.add([f"buffer_load_dwordx2 {vr(XRr+2*t,2)}, v{vX}, s[32:35], s83 offen offset:{t*32}" for t in range(5)], 74, 110)
    tail = []
    for c in range(5):
        pkx = []
        for u in range(4):
            a = acc(2 * c, u)
            pkx += [f"v_cvt_pk_bf16_f32 v{a}, v{a}, v{a+1}", f"v_cvt_pk_bf16_f32 v{a+1}, v{a+2}, v{a+3}"]
            if c < 4:
                b = acc(2 * c + 1, u)
                pkx += [f"v_cvt_pk_bf16_f32 v{a+2}, v{b}, v{b+1}", f"v_cvt_pk_bf16_f32 v{a+3}, v{b+2}, v{b+3}",
                        f"buffer_store_dwordx4 {vr(a)}, v{vL16}, s[16:19], s{74+u} offen offset:{c*1024} sc1"]
            else:
                pkx += [f"buffer_store_dwordx2 {vr(a,2)}, v{vL8}, s[16:19], s{74+u} offen sc1"]
        if c < 4: sc.add(pkx, done[2 * c + 1] + 4, min(NG, done[2 * c + 1] + 48))
        else: tail = pkx
    e(sc.flat())
    e(tail)
    RB = 48
    for src in range(8): e(f"v_mov_b64 {vr(RB + src*12 + 10, 2)}, 0")
    e(stamp(10))
    e("s_waitcnt vmcnt(0)")
    e(flag_store("s90", 8, vT2, allw=True))
    e(spin(f"buffer_load_dword v{vB+1}, v{vB}, s[16:19], s84 offen sc1", [vB + 1]))
    e(stamp(11))
    order8 = [4, 5, 6, 7, 0, 1, 2, 3]
    for src in order8:
        e(f"s_add_u32 s86, s85, {src*5120}")
        for c in range(2): e(f"buffer_load_dwordx4 {vr(RB + src*12 + 4*c)}, v{vL16}, s[16:19], s86 offen offset:{c*1024} sc1")
    e("s_cmp_eq_u32 s5, 0"); e("s_cselect_b32 s30, 0, s18"); e("s_cselect_b32 s10, 0, s14"); e("s_mov_b32 s8, s56"); e("s_mov_b32 s9, s57")
    for src in order8:
        e(f"s_add_u32 s86, s78, {src*5120}")
        e(f"buffer_load_dwordx2 {vr(RB + src*12 + 8, 2)}, v{vL8}, s[28:31], s86 offen sc1")
    Gs = lambda t: 160 + 4 * t
    Ss = lambda t: 180 + 4 * t
    def redm(src, t):
        d = vr((Gs if src >= 4 else Ss)(t)); first = src in (0, 4)
        return f"{MF} {d}, {vr(SEL + (0 if t & 1 else 2))}, {vr(RB + src*12 + 4*(t >> 1))}, {'0' if first else d}"
    t0 = 200
    def round2(a):
        return [f"v_cvt_pk_bf16_f32 v{t0}, v{a}, v{a+1}", f"v_cvt_pk_bf16_f32 v{t0+1}, v{a+2}, v{a+3}",
                f"v_lshlrev_b32 v{a}, 16, v{t0}", f"v_and_b32 v{a+1}, s89, v{t0}", f"v_lshlrev_b32 v{a+2}, 16, v{t0+1}", f"v_and_b32 v{a+3}, s89, v{t0+1}"]
    def gate(t):
        g = Gs(t); g1 = 204
        return round2(g) + [f"v_mul_f32 v{g1+r}, s88, v{g+r}" for r in range(4)] + [f"v_exp_f32 v{g1+r}, v{g1+r}" for r in range(4)] + \
               [f"v_add_f32 v{g1+r}, 1.0, v{g1+r}" for r in range(4)] + [f"v_rcp_f32 v{g1+r}, v{g1+r}" for r in range(4)] + \
               [pk("v_pk_mul_f32", g + r, g + r, g1 + r) for r in (0, 2)] + round2(g)
    def fin(t):
        g = Gs(t); s0 = Ss(t); x = XRr + 2 * t; g1 = 204
        return round2(s0) + [pk("v_pk_mul_f32", g + r, g + r, s0 + r) for r in (0, 2)] + round2(g) + \
               [f"v_lshlrev_b32 v{g1}, 16, v{x}", f"v_and_b32 v{g1+1}, s89, v{x}", f"v_lshlrev_b32 v{g1+2}, 16, v{x+1}", f"v_and_b32 v{g1+3}, s89, v{x+1}"] + \
               [pk("v_pk_add_f32", g + r, g + r, g1 + r) for r in (0, 2)] + \
               [f"v_cvt_pk_bf16_f32 v{x}, v{g}, v{g+1}", f"v_cvt_pk_bf16_f32 v{x+1}, v{g+2}, v{g+3}",
                f"buffer_store_dwordx2 {vr(x,2)}, v{vX}, s[{'8:11' if t == 4 else '12:15'}], s83 offen offset:{t*32}"]
    for src in order8[:4]:
        for t in range(4): e(redm(src, t))
    for t in range(2): e(gate(t))
    for src in order8[4:]:
        for t in range(4): e(redm(src, t))
    for src in order8: e(redm(src, 4))
    for t in range(2, 4): e(gate(t))
    for t in range(4): e(fin(t))
    e("s_cmp_eq_u32 s5, 0"); e("s_cbranch_scc1 KF_fin")
    e(gate(4)); e(fin(4))
    e("KF_fin:")
    if stamps:
        e(stamp(12)); e("s_waitcnt vmcnt(0)"); e(stamp(13))
        e("s_lshl_b32 s72, s2, 2"); e("s_add_u32 s72, s72, s3"); e("s_lshl_b32 s72, s72, 8"); e(f"s_add_u32 s72, s72, {200<<20}")
        e(f"v_lshrrev_b32 v2, 2, v{vL16}")
        e(f"buffer_store_dword v{STV}, v2, s[16:19], s72 offen")
    e("KF_end:")
    e("s_endpgm")

    for i, blk in enumerate(ool):
        k.begin(name=f"ool{i}")
        e(blk); e("s_endpgm")
    Mx = W + 8; AL = W + 12; TT = W + 16
    k.begin(name="slow_pre")
    e("KF_slow:")
    e("s_waitcnt vmcnt(0) lgkmcnt(0)"); e("s_nop 15")
    for i in range(128): e(f"v_accvgpr_write_b32 a{i}, 0")
    for u in range(4): e(f"v_mov_b32 v{L+u}, 0"); e(f"v_mov_b32 v{Mx+u}, 0xff7fffff")
    e("s_mov_b32 s72, 0"); e("s_mov_b32 s68, s82")
    k.begin(loop=16, name="slow_loop")
    e("KF_sloop:")
    for q in range(4):
        for f in range(4):
            ff = q * 4 + f
            e(f"buffer_load_dwordx4 {KF(1, ff) if ff < 8 else VF(1, ff - 8)}, v{vL16}, s[16:19], s68 offen offset:{f*1024} sc1")
        e("s_add_u32 s68, s68, 4096")
    for u in range(4):
        e(qk(u, lambda f: KF(1, f), zero=True))
        s0 = S(u); m = W + u
        e(f"v_max3_f32 v{m}, v{s0}, v{s0+1}, v{s0+2}"); e(f"v_max3_f32 v{m}, v{m}, v{s0+3}, v{s0+4}")
        e(f"v_max3_f32 v{m}, v{m}, v{s0+5}, v{s0+6}"); e(f"v_max3_f32 v{m}, v{m}, v{s0+7}, v{Mx+u}")
        e(xlane("v_max_f32", m, W + 4))
        e(f"v_sub_f32 v{AL}, v{Mx+u}, v{m}"); e(f"v_exp_f32 v{AL}, v{AL}"); e(f"v_mov_b32 v{Mx+u}, v{m}")
        e(f"v_mul_f32 v{L+u}, v{L+u}, v{AL}")
        for i in range(8):
            e(f"v_sub_f32 v{s0+i}, v{s0+i}, v{m}"); e(f"v_exp_f32 v{s0+i}, v{s0+i}")
        for i in range(8): e(f"v_add_f32 v{L+u}, v{L+u}, v{s0+i}")
        for i in range(4): e(f"v_cvt_pk_bf16_f32 v{P+i}, v{s0+2*i}, v{s0+2*i+1}")
        for dt in range(8):
            for r in range(4): e(f"v_accvgpr_read_b32 v{TT+r}, a{O(dt,u)+r}")
            for r in range(4): e(f"v_mul_f32 v{TT+r}, v{TT+r}, v{AL}")
            for r in range(4): e(f"v_accvgpr_write_b32 a{O(dt,u)+r}, v{TT+r}")
        e(pv(u, 1, 0))
    e("s_add_u32 s72, s72, 1"); e("s_cmp_lt_u32 s72, 16"); e("s_cbranch_scc1 KF_sloop")
    k.begin(name="slow_post")
    e("s_nop 15")
    for u in range(4): e(xlane("v_add_f32", L + u, W + 4))
    e("s_nop 15")
    e("s_branch KF_epi")
    pre = ["p0a", "gemm", "attn_first"]
    k.paths = []
    for na in (1, 2, 4):
        for nl in (1, 2, 3):
            mid = pre + ["attn_loop"] * na + ["attn_last", "oepi"]
            if na > 1 and nl > 1 and (na, nl) != (4, 3): continue
            k.paths.append(mid + ["s_pre"] + ["L0", "L1"] * nl + ["final"])
            k.paths.append(mid + ["g_pre", "L1"] + ["L0", "L1"] * nl + ["final"])
    return kstart(name) + k.finish(), kdesc(name, 512, 256), (name, 256, 256, 163840)
```

```python
import re

REG_RE = re.compile(r"^(-|\|)?(abs\()?([vas])(?:(\d+)|\[(\d+):(\d+)\])\)?\|?$")

def regs_of(tok):
    tok = tok.strip()
    m = REG_RE.match(tok)
    if m:
        f = m.group(3)
        if m.group(4) is not None:
            return [(f, int(m.group(4)))]
        return [(f, i) for i in range(int(m.group(5)), int(m.group(6)) + 1)]
    if tok == "vcc": return [("s", 106), ("s", 107)]
    if tok == "vcc_lo": return [("s", 106)]
    if tok == "vcc_hi": return [("s", 107)]
    if tok == "exec": return [("s", 126), ("s", 127)]
    if tok == "exec_lo": return [("s", 126)]
    if tok == "exec_hi": return [("s", 127)]
    if tok == "m0": return [("s", 124)]
    return []

TRANS = ("v_exp_f32", "v_log_f32", "v_rcp_f32", "v_rsq_f32", "v_sqrt_f32", "v_sin_f32", "v_cos_f32")
M0 = ("s", 124)
VCC = [("s", 106), ("s", 107)]

class Inst:
    __slots__ = ("text", "mn", "kind", "rd", "wr", "tag", "srcA", "srcB", "srcC", "passes", "dpp", "comment", "wide", "sdata")
    def __init__(self, text, tag=None):
        self.text = text.strip()
        self.tag = tag
        self.srcA = self.srcB = self.srcC = ()
        self.passes = 0
        self.wide = False
        self.sdata = ()
        t = self.text.split(";")[0].strip()
        if t.endswith(":") or t.startswith("."):
            self.mn = t; self.kind = "label" if t.endswith(":") else "dir"; self.rd = set(); self.wr = set(); self.dpp = False
            return
        sp = t.split(None, 1)
        mn = self.mn = sp[0]
        rest = sp[1] if len(sp) > 1 else ""
        ops = []; cur = ""; depth = 0
        for ch in rest:
            if ch in "[(": depth += 1
            if ch in "])": depth -= 1
            if ch == "," and depth == 0:
                ops.append(cur.strip()); cur = ""
            else:
                cur += ch
        if cur.strip(): ops.append(cur.strip())
        mods = ""
        if ops:
            last = ops[-1].split(None, 1)
            ops[-1] = last[0]
            mods = last[1] if len(last) > 1 else ""
        R = [regs_of(o) for o in ops]
        self.dpp = ("row_" in mods or "quad_perm" in mods or "wave_" in mods or "_dpp" in mn)
        rd = set(); wr = set()
        def allr(lst):
            s = set()
            for x in lst: s.update(x)
            return s
        if mn.startswith("v_mfma"):
            self.kind = "mfma"
            wr = set(R[0]); rd = allr(R[1:])
            self.srcA, self.srcB, self.srcC = tuple(R[1]), tuple(R[2]), tuple(R[3])
            self.passes = 4 if "16x16x32" in mn else 8 if "32x32x16" in mn else None
            assert self.passes
        elif mn.startswith("ds_read") or mn.startswith("ds_bpermute") or mn.startswith("ds_swizzle"):
            self.kind = "ds_read"; wr = set(R[0]); rd = allr(R[1:])
        elif mn.startswith("ds_write"):
            self.kind = "ds_write"; rd = allr(R)
        elif mn.startswith("buffer_load") or mn.startswith("global_load"):
            if re.search(r"\blds\b", mods) or "_lds_" in mn:
                self.kind = "dma"; rd = allr(R) | {M0}
            else:
                self.kind = "vload"; wr = set(R[0]); rd = allr(R[1:])
        elif mn.startswith("buffer_store") or mn.startswith("global_store"):
            self.kind = "vstore"; rd = allr(R)
            self.wide = mn.endswith("x4") or mn.endswith("x3")
            self.sdata = tuple(R[0] if mn.startswith("buffer") else R[1])
        elif mn.startswith("buffer_atomic") or mn.startswith("global_atomic"):
            rd = allr(R)
            if re.search(r"\bsc0\b", mods):
                self.kind = "vload"; wr = set(R[0])
            else:
                self.kind = "vstore"
        elif mn.startswith("buffer_wbl2") or mn.startswith("buffer_inv"):
            self.kind = "vstore"
        elif mn.startswith("s_load") or mn.startswith("s_memtime") or mn.startswith("s_memrealtime"):
            self.kind = "smem"; wr = set(R[0]); rd = allr(R[1:])
        elif mn == "s_waitcnt": self.kind = "wait"
        elif mn == "s_nop": self.kind = "nop"
        elif mn == "s_barrier": self.kind = "barrier"
        elif mn.startswith("s_cbranch") or mn == "s_branch" or mn == "s_endpgm":
            self.kind = "branch"
            if "vcc" in mn: rd = set(VCC)
        elif mn in ("s_setprio", "s_sleep"): self.kind = "salu"
        elif mn.startswith("s_cmp") or mn.startswith("s_bitcmp"):
            self.kind = "salu"; rd = allr(R)
        elif mn.startswith("s_"):
            self.kind = "salu"; wr = set(R[0]); rd = allr(R[1:])
            if mn in ("s_addk_i32", "s_mulk_i32"): rd |= wr
            if "saveexec" in mn: wr |= {("s", 126), ("s", 127)}
        elif mn.startswith("v_"):
            self.kind = "trans" if mn.replace("_e32", "").replace("_e64", "") in TRANS else "valu"
            if mn.startswith("v_permlane") and "swap" in mn or mn.startswith("v_swap"):
                wr = allr(R); rd = allr(R)
            elif mn.startswith("v_add_co") or mn.startswith("v_sub_co") or mn.startswith("v_addc_co") or mn.startswith("v_subb_co"):
                wr = set(R[0]) | set(R[1]); rd = allr(R[2:])
            else:
                wr = set(R[0]); rd = allr(R[1:])
                if mn.startswith("v_writelane") or mn.startswith("v_fmac") or mn.startswith("v_dot2c") or mn.startswith("v_mac") or self.dpp or "sdwa" in mn:
                    rd |= wr
                if mn.startswith("v_cmpx"): wr |= {("s", 126), ("s", 127)}
        else:
            raise ValueError("unknown instruction: " + text)
        if tag == "tch": wr = set()
        self.rd = rd; self.wr = wr
    def is_valu(self): return self.kind in ("valu", "trans")
    def is_vmem(self): return self.kind in ("vload", "vstore", "dma")
    def is_ds(self): return self.kind in ("ds_read", "ds_write")
    def states(self):
        if self.kind in ("label", "dir") or self.tag == "cond": return 0
        if self.kind == "nop": return int(self.text.split()[1], 0) + 1
        return 1

class WaitTag:
    kind = "waittag"
    def __init__(self, tags, skip=0): self.tags = set(tags); self.skip = skip

class WaitRegs:
    kind = "waitregs"
    def __init__(self, *toks):
        self.rd = set(); self.wr = set()
        for t in toks: self.rd.update(regs_of(t))

class Seg:
    def __init__(self, insts, loop=0, name=""):
        self.insts = insts; self.loop = loop; self.name = name

class Kernel:
    def __init__(self, name):
        self.name = name
        self.segs = []
        self.cur = None
        self.tail = []
        self.begin()
    def begin(self, loop=0, name=""):
        self.cur = Seg([], loop, name); self.segs.append(self.cur)
    def e(self, text, tag=None):
        if isinstance(text, (Inst, WaitTag, WaitRegs)):
            self.cur.insts.append(text); return
        if isinstance(text, (list, tuple)):
            for t in text: self.e(t, tag)
            return
        for line in text.split("\n"):
            if line.strip(): self.cur.insts.append(Inst(line, tag))
    def wait_tags(self, *tags, skip=0): self.cur.insts.append(WaitTag(tags, skip))

    def traces(self):
        out = []
        if getattr(self, "paths", None):
            idx = {}
            for si, s in enumerate(self.segs):
                assert s.name not in idx, s.name
                idx[s.name] = si
            seen = set()
            for path in self.paths:
                tr = []
                for nm in path:
                    si = idx[nm]; seen.add(si)
                    tr += [(si, ii, 0) for ii in range(len(self.segs[si].insts))]
                out.append(tr)
            for si, s in enumerate(self.segs):
                if si not in seen:
                    out.append([(si, ii, 0) for _ in range(3 if s.loop else 1) for ii in range(len(s.insts))])
            return out
        for reps in (1, 2, 4):
            tr = []
            for si, s in enumerate(self.segs):
                n = min(reps, s.loop) if s.loop else 1
                for it in range(n):
                    for ii in range(len(s.insts)): tr.append((si, ii, it))
            out.append(tr)
        return out

    def solve_waits(self):
        W = {}
        changed = True
        trs = self.traces()
        while changed:
            changed = False
            for tr in trs:
                ntag = {}; tagcount = {}
                vq = []
                lq = []
                for (si, ii, it) in tr:
                    ins = self.segs[si].insts[ii]
                    key = (si, ii)
                    needv = needl = None
                    if ins.kind == "waittag":
                        lim = ntag.get(tuple(sorted(ins.tags)), None)
                        cnt = sum(tagcount.get(t, 0) for t in ins.tags)
                        for p in range(len(vq) - 1, -1, -1):
                            if vq[p][1] in ins.tags:
                                newer = sum(1 for q in range(p + 1, len(vq)) if vq[q][1] in ins.tags)
                                if newer >= ins.skip:
                                    needv = len(vq) - 1 - p; break
                    elif ins.kind == "wait":
                        if ins.tag == "cond": continue
                        m = re.search(r"vmcnt\((\d+)\)", ins.text)
                        if m: vq = vq[len(vq) - int(m.group(1)):] if int(m.group(1)) < len(vq) else vq
                        if m and int(m.group(1)) == 0: vq = []
                        m = re.search(r"lgkmcnt\((\d+)\)", ins.text)
                        if m:
                            n = int(m.group(1))
                            lq = [] if n == 0 else (lq[len(lq) - n:] if n < len(lq) else lq)
                        continue
                    elif ins.kind not in ("label", "dir"):
                        touch = ins.rd | ins.wr
                        for p in range(len(vq) - 1, -1, -1):
                            if vq[p][0] & touch:
                                needv = len(vq) - 1 - p; break
                        for p in range(len(lq) - 1, -1, -1):
                            if lq[p][0] & touch:
                                needl = len(lq) - 1 - p
                                if any(x[1] for x in lq): needl = 0
                                break
                    w = W.setdefault(key, [None, None])
                    if needv is not None and (w[0] is None or needv < w[0]): w[0] = needv; changed = True
                    if needl is not None and (w[1] is None or needl < w[1]): w[1] = needl; changed = True
                    if getattr(ins, "tag", None) == "cond": continue
                    if w[0] is not None and w[0] < len(vq): vq = vq[len(vq) - w[0]:] if w[0] else []
                    if w[1] is not None and w[1] < len(lq): lq = lq[len(lq) - w[1]:] if w[1] else []
                    if ins.kind == "branch" and ins.mn == "s_endpgm":
                        vq = []; lq = []
                    if ins.kind in ("vload", "vstore", "dma"):
                        vq.append((set(ins.wr), ins.tag))
                        assert len(vq) <= 63, f"vmcnt overflow at {ins.text} in {self.segs[si].name}"
                    elif ins.kind in ("ds_read", "ds_write"):
                        lq.append((set(ins.wr), False))
                        if len(lq) > 15: lq = lq[-15:] if False else lq
                    elif ins.kind == "smem":
                        lq.append((set(ins.wr), True))
        return W

    def apply_waits(self):
        W = self.solve_waits()
        for si, s in enumerate(self.segs):
            new = []
            for ii, ins in enumerate(s.insts):
                w = W.get((si, ii), [None, None])
                parts = []
                if w[0] is not None: parts.append(f"vmcnt({min(w[0], 63)})")
                if w[1] is not None: parts.append(f"lgkmcnt({min(w[1], 15)})")
                if parts: new.append(Inst("s_waitcnt " + " ".join(parts), "cond" if getattr(ins, "tag", None) == "cond" else None))
                if ins.kind not in ("waittag", "waitregs"): new.append(ins)
            s.insts = new

    @staticmethod
    def need_states(p, c):
        n = 0
        pv = {r for r in p.wr if r[0] in "va"}
        ps = {r for r in p.wr if r[0] == "s"}
        if p.kind == "mfma":
            full = {4: 8, 8: 12}[p.passes]
            if c.kind == "mfma":
                if pv & (set(c.srcA) | set(c.srcB)): n = max(n, full)
                if pv & set(c.srcC):
                    if set(c.srcC) == pv and c.passes == p.passes: pass
                    else: n = max(n, p.passes + 2)
                elif pv & c.wr: n = max(n, p.passes + 2)
            elif c.is_valu() or c.is_vmem() or c.is_ds():
                if pv & (c.rd | c.wr): n = max(n, full)
            if c.is_valu() and set(p.srcC) & c.wr: n = max(n, {4: 3, 8: 7}[p.passes])
        if p.is_valu():
            if c.kind == "mfma" and pv & c.rd: n = max(n, 2)
            if c.is_valu():
                if pv & c.rd:
                    if c.mn.startswith("v_permlane") or c.dpp: n = max(n, 2)
                    if c.mn.startswith("v_readlane") or c.mn.startswith("v_readfirstlane"): n = max(n, 1)
                    if p.kind == "trans" and c.kind != "trans": n = max(n, 1)
                    if "sdwa" in p.mn or "op_sel" in p.text: n = max(n, 1)
                if ps & c.rd or (ps & set(VCC) and c.mn.startswith("v_cndmask")):
                    n = max(n, 4 if c.mn.startswith(("v_readlane", "v_writelane")) else 2)
                if ("s", 126) in ps: n = max(n, 5 if c.dpp else 4)
            if c.is_vmem() and ps & c.rd: n = max(n, 5)
            if c.kind == "mfma" and ("s", 126) in ps: n = max(n, 4)
            if c.kind in ("salu", "branch") and ps & c.rd: n = max(n, 1)
            if p.kind == "trans" and (c.is_vmem() or c.is_ds()) and pv & c.rd: n = max(n, 1)
        if p.kind == "salu" and M0 in p.wr and c.kind == "dma": n = max(n, 1)
        if p.kind == "vstore" and p.wide and set(p.sdata) & c.wr:
            n = max(n, 2 if c.is_valu() else 1)
        return n

    def apply_hazards(self, verbose=True):
        total = 0
        while True:
            pad = {}
            for tr in self.traces():
                hist = []
                pos = 0
                for (si, ii, it) in tr:
                    c = self.segs[si].insts[ii]
                    if c.kind in ("label", "dir"): continue
                    need = 0
                    for (p, ppos) in hist:
                        dist = pos - ppos
                        if dist >= 20: continue
                        n = self.need_states(p, c)
                        if n > dist: need = max(need, n - dist)
                    if need: pad[(si, ii)] = max(pad.get((si, ii), 0), need)
                    pos += need
                    pos += c.states()
                    hist.append((c, pos))
                    if len(hist) > 24: hist.pop(0)
            if not pad: break
            for si, s in enumerate(self.segs):
                new = []
                for ii, ins in enumerate(s.insts):
                    n = pad.get((si, ii), 0)
                    if n:
                        total += n
                        if verbose and (s.loop or s.name.startswith(("gemm", "attn_f", "attn_l"))) and "slow" not in s.name: print(f"  [{s.name}] s_nop {n-1} before: {ins.text}")
                        new.append(Inst(f"s_nop {n-1}"))
                    new.append(ins)
                s.insts = new
        return total

    def finish(self, verbose=True):
        self.apply_waits()
        self.apply_hazards(verbose)
        lines = []
        for s in self.segs:
            if verbose:
                c, n = est_cycles(s.insts)
                if n: print(f"  [{s.name}] {n} mfma, est {c} cycles ({c/n:.2f}/mfma), {len(s.insts)} instrs")
            if s.name: lines.append(f"; ---- {s.name}")
            for i in s.insts:
                lines.append(i.text if i.kind in ("label", "dir") else "    " + i.text)
        lines += self.tail
        return lines

def interleave(mfmas, streams):
    n = len(mfmas)
    slots = [[] for _ in range(n)]
    for (a, b, ins) in streams:
        m = len(ins)
        for i, x in enumerate(ins):
            slots[min(n - 1, a + (i * (b - a)) // m)].append(x)
    out = []
    for i in range(n):
        out.append(mfmas[i])
        for x in slots[i]:
            if isinstance(x, list): out += x
            else: out.append(x)
    return out

def header(launches):
    L = []
    for (k, g, b, lds) in launches:
        if len(launches) == 1 and k.startswith("recurrent"):
            L.append(f"; @launch grid=({g},1,1) block=({b},1,1) lds={lds}"); continue
        L.append(f"; @launch kernel={k} grid=({g},1,1) block=({b},1,1) lds={lds}")
    L.append('.amdgcn_target "amdgcn-amd-amdhsa--gfx950"')
    L.append(".text")
    return L

def kstart(name):
    return [f".globl {name}", ".p2align 8", f".type {name},@function", f"{name}:"]

def kdesc(name, vgpr, accum, sgpr=102):
    return [f".amdhsa_kernel {name}", f"  .amdhsa_next_free_vgpr {vgpr}", f"  .amdhsa_next_free_sgpr {sgpr}",
            f"  .amdhsa_accum_offset {accum}", "  .amdhsa_group_segment_fixed_size 0", "  .amdhsa_kernarg_size 88",
            "  .amdhsa_user_sgpr_count 2", "  .amdhsa_user_sgpr_kernarg_segment_ptr 1",
            "  .amdhsa_system_sgpr_workgroup_id_x 1", "  .amdhsa_float_denorm_mode_32 3", ".end_amdhsa_kernel"]


def _mk(x):
    return x if isinstance(x, (Inst, WaitTag, WaitRegs)) else Inst(x)

def gap_cost(items):
    t = 4; prev_valu = False
    for i in items:
        k = i.kind
        if k in ("label", "dir"): continue
        if k in ("valu", "trans"):
            t = max(t, 8) + (8 if k == "trans" else 4); prev_valu = True; continue
        pen = 4 if prev_valu else 0
        if k == "ds_read": t += 8 + pen
        elif k in ("vload", "dma"): t += 12 + pen
        elif k in ("vstore", "ds_write"): t += 24 + pen
        elif k == "branch": t += 14
        elif k == "barrier": t += 12
        elif k == "nop": t += 4 * i.states()
        else: t += 4
        prev_valu = False
    return t

class Sched:
    def __init__(self, mfmas):
        self.mf = [_mk(m) for m in mfmas]
        self.gap = [[] for _ in mfmas]
    @staticmethod
    def _isv(i): return i.kind in ("valu", "trans")
    def _ins(self, g, grp, after=None):
        cur = self.gap[g]
        if self._isv(grp[0]): return cur + grp
        p = len(cur)
        for i, x in enumerate(cur):
            if self._isv(x): p = i; break
        if after is not None:
            for i, x in enumerate(cur):
                if x is after: p = max(p, i + 1)
        return cur[:p] + grp + cur[p:]
    def cost(self, g): return gap_cost(self.gap[g])
    def put(self, g, grp, after=None):
        grp = [_mk(x) for x in (grp if isinstance(grp, (list, tuple)) else [grp])]
        self.gap[g] = self._ins(g, grp, after)
        return g
    def add(self, items, lo, hi, spread=True, mind=0, look=6):
        n = len(items); last = lo; prev = None
        hi = min(hi, len(self.mf)); pos = []
        for i, it in enumerate(items):
            grp = [_mk(x) for x in (it if isinstance(it, (list, tuple)) else [it])]
            tgt = lo + (i * (hi - lo)) // n
            start = max(tgt if spread else lo, last + mind if i else lo)
            start = min(start, hi - 1)
            limit = min(hi, max(start + 1, lo + ((i + 1) * (hi - lo) + n - 1) // n))
            best = None
            for g in range(start, limit):
                inc = max(16, gap_cost(self._ins(g, grp, prev))) - max(16, self.cost(g))
                if best is None or inc < best[0]: best = (inc, g)
                if inc == 0 or g - start >= look: break
            g = best[1]
            self.gap[g] = self._ins(g, grp, prev); last = g; prev = grp[-1]; pos.append(g)
        return pos
    def flat(self):
        out = []
        for m, a in zip(self.mf, self.gap): out += [m] + a
        return out
    def cycles(self): return sum(max(16, self.cost(g)) for g in range(len(self.mf)))

def est_cycles(insts):
    tot = 0; cur = None; n = 0
    for i in insts:
        if i.kind == "mfma":
            if cur is not None: tot += max(16, gap_cost(cur))
            cur = []; n += 1
        elif cur is not None: cur.append(i)
    if cur is not None: tot += max(16, gap_cost(cur))
    return tot, n
```

```python
import sys, os
sys.path.insert(0, os.path.dirname(os.path.abspath(__file__)))
from lib import *
from k0 import gen_k0
from k1 import gen_k1
def build(out, which="012", stamps=False, opt=None):
    ks = []
    if "0" in which: ks.append(gen_k0(opt=opt))
    if "f" in which:
        from kf import gen_kf
        ks.append(gen_kf(stamps=stamps, opt=opt))
    if "1" in which: ks.append(gen_k1(stamps=stamps, opt=opt))
    if "2" in which:
        from k2 import gen_k2
        ks.append(gen_k2(stamps=stamps, opt=opt))
    L = header([x[2] for x in ks])
    for x in ks: L += x[0]
    L += ['.section .rodata,"a"']
    for x in ks: L += [".p2align 6"] + x[1]
    open(out, "w").write("\n".join(L) + "\n")
if __name__ == "__main__":
    out = sys.argv[1]
    opt = {}
    for a in sys.argv[3:]:
        if "=" in a:
            kk, vv = a.split("=", 1)
            try: vv = int(vv)
            except ValueError: vv = " " + vv.replace("+", " ")
            opt[kk] = vv
    build(out, sys.argv[2] if len(sys.argv) > 2 else "012", "stamps" in sys.argv, opt)
```

```python
from lib import *
from lib import _mk
from common import *
import math

SLOT = 36864
SPARE = 4 * SLOT
MF = "v_mfma_f32_16x16x32_bf16"
QSCALE = math.log2(math.e) / math.sqrt(128.0)
SPIN_MAX = 100000
KNAME = "recurrent_scan__sliding_block_cached__dense_activation_relu__prompt_kernel"

def flat(l): return [x for y in l for x in y]

def gen_kf(name=KNAME, stamps=False, opt=None):
    opt = opt or {}
    k = Kernel(name)
    k.cur.name = 'p0a'
    e = k.e
    vL16, vDQ, vD1, vS0, vP5, vZ, vTOK, vL, vT = 1, 2, 3, 4, 5, 6, 7, 8, 9
    vST = [10, 11, 12, 13]
    vT2 = 14; STV = 15
    XV = 16; QA = 48; AF = 176; NF = 6; LEAD = 4
    FA = 200; T = 232; vB = 248
    vXN = [232, 233, 234, 235]; vKO, vVO = 254, 255
    B1, B3, B5, B7 = 64, 96, 128, 160
    def X(u, s):
        h, idx = u >> 1, s * 2 + (u & 1)
        return ar(h * 128 + idx * 4) if idx < 32 else vr(XV + h * 16 + (idx - 32) * 4)
    def qa(nt, u): return QA + (nt * 4 + u) * 4
    def Qf(u, s): return vr(qa(2 * s, u))
    def fa(a, u): return FA + a * 16 + u * 4
    def stamp(i):
        if not stamps: return []
        return ["s_memtime s[98:99]", "s_waitcnt lgkmcnt(0)", f"v_writelane_b32 v{STV}, s98, {i}",
                "s_memrealtime s[98:99]", "s_waitcnt lgkmcnt(0)", f"v_writelane_b32 v{STV}, s98, {32+i}"]
    def mst(i):
        if not (stamps and opt.get("fine")): return ["s_nop 0"] if False else []
        return ["s_memtime s[98:99]", "s_waitcnt lgkmcnt(0)", "s_nop 0", f"v_writelane_b32 v{STV}, s98, {i}"]
    def C(t): return Inst(t, "cond")
    uid = [0]
    def lab(p): uid[0] += 1; return f"KF_{p}{uid[0]}"
    def flag_store(sreg, nl, voff, allw=False):
        lb = lab("nf")
        m = ["s_mov_b64 exec, %#x" % ((1 << nl) - 1)] if nl < 32 else ["s_mov_b32 exec_hi, 0"]
        body = m + [f"buffer_store_dword v{vTOK}, v{voff}, s[16:19], {sreg} offen sc1", "s_mov_b64 exec, -1"]
        if allw: return body
        return ["s_cmp_lg_u32 s3, 0", f"s_cbranch_scc1 {lb}"] + [C(x) for x in body] + [f"{lb}:"]
    ool = []
    def spin(load, regs, ret=None):
        lb = lab("sp"); dn = ret or lab("sd")
        out = ["s_mov_b32 s73, 0", f"{lb}:", load, "s_waitcnt vmcnt(0)"] + cmpf(regs)
        out += ["s_add_u32 s73, s73, 1", f"s_cmp_ge_u32 s73, {SPIN_MAX}", f"s_cbranch_scc1 {dn}", f"s_cbranch_vccz {dn}", "s_sleep 2", f"s_branch {lb}"]
        if not ret: out.append(f"{dn}:")
        return out
    def cmpf(regs):
        out = []
        if len(regs) > 1:
            out += [f"v_xor_b32 v{r}, v{r}, v{vTOK}" for r in regs]
            out += [f"v_or_b32 v{regs[0]}, v{regs[0]}, v{r}" for r in regs[1:]]
            out += [f"v_cmp_ne_u32 vcc, 0, v{regs[0]}"]
        else:
            out += [f"v_cmp_ne_u32 vcc, v{regs[0]}, v{vTOK}"]
        return out
    def check(load, regs):
        a, b = lab("ck"), lab("cr")
        ool.append([f"{a}:"] + spin(load, regs, b))
        return cmpf(regs), ["s_nop 0", f"s_cbranch_vccnz {a}", f"{b}:"]
    def xlane(op, r, t, both=True):
        o = [f"v_mov_b32 v{t}, v{r}", f"v_permlane32_swap_b32 v{t}, v{r}", f"{op} v{r}, v{r}, v{t}"] if both else []
        return o + [f"v_mov_b32 v{t}, v{r}", f"v_permlane16_swap_b32 v{t}, v{r}", f"{op} v{r}, v{r}, v{t}"]
    def ident(ID, t0, t1):
        o = [f"v_lshrrev_b32 v{t0}, 4, v{vL16}", f"v_and_b32 v{t1}, 15, v{t0}", f"v_lshrrev_b32 v{t0}, 4, v{t0}", f"v_lshlrev_b32 v{t0}, 3, v{t0}",
             f"v_sub_u32 v{t0}, v{t1}, v{t0}", f"v_and_b32 v{t1}, 1, v{t0}", f"v_lshlrev_b32 v{t1}, 4, v{t1}", f"v_mov_b32 v{ID}, 0x3f80",
             f"v_lshlrev_b32 v{t1}, v{t1}, v{ID}", f"v_ashrrev_i32 v{t0}, 1, v{t0}"]
        for h in range(2):
            for r in range(4):
                o.append([f"v_cmp_eq_i32 vcc, {r - 8*h}, v{t0}", "s_nop 1", f"v_cndmask_b32 v{ID+4*h+r}, 0, v{t1}, vcc"])
        return o
    def tr_mf(D, A, ID): return [f"{MF} {vr(D + (h*2+r)*4)}, {vr(A + 4*r)}, {vr(ID + 4*h)}, 0" for h in range(2) for r in range(2)]
    def tr_cvt(o, D, h): return [f"v_cvt_pk_bf16_f32 v{o+2*r+q}, v{D+(h*2+r)*4+2*q}, v{D+(h*2+r)*4+2*q+1}" for r in range(2) for q in range(2)]

    e("s_cmp_ge_u32 s2, 256"); e("s_cbranch_scc1 KF_end")
    if opt.get("scr"):
        e("s_and_b32 s4, s2, 7"); e("s_bfe_u32 s5, s2, 0x30003"); e("s_andn2_b32 s2, s2, 63"); e("s_lshl_b32 s4, s4, 3"); e("s_or_b32 s2, s2, s4"); e("s_or_b32 s2, s2, s5")
    e("s_load_dwordx16 s[40:55], s[0:1], 0")
    e("s_load_dwordx4 s[56:59], s[0:1], 64")
    e("s_load_dwordx2 s[60:61], s[0:1], 80")
    e("s_memrealtime s[38:39]")
    e("v_lshrrev_b32 v20, 6, v0")
    e("v_and_b32 v21, 63, v0")
    e("v_readfirstlane_b32 s3, v20")
    e("s_and_b32 s64, s2, 7"); e("s_bfe_u32 s65, s2, 0x20003")
    e("s_lshl_b32 s62, s64, 2"); e("s_add_u32 s62, s62, s65")
    e("s_lshr_b32 s63, s2, 5")
    e("s_lshl_b32 s66, s63, 5"); e("s_add_u32 s66, s66, s62")
    e("v_lshrrev_b32 v22, 5, v0"); e("v_mul_u32_u24 v22, 1152, v22")
    e("v_and_b32 v23, 31, v21"); e("v_lshl_add_u32 v22, v23, 4, v22")
    e("s_mul_i32 s67, s66, 9216")
    for r in range(56, 60): e(f"v_mov_b32 v{r}, 0")
    e(f"v_mov_b32 v{vZ}, 0")
    e(f"v_lshlrev_b32 v{vL16}, 4, v21")
    e("s_waitcnt lgkmcnt(0)")
    e(srd(32, 40, 2048 * 1152))
    e(f"buffer_load_dwordx4 {vr(48)}, v22, s[32:35], s67 offen")
    e(f"buffer_load_dwordx4 {vr(52)}, v22, s[32:35], s67 offen offset:512")
    e("s_mov_b32 exec_lo, 0xff"); e("s_mov_b32 exec_hi, 0xff")
    e(f"buffer_load_dwordx4 {vr(56)}, v22, s[32:35], s67 offen offset:1024")
    e("s_mov_b64 exec, -1")
    e(stamp(0))
    e(srd(8, 46, 576 * 8192)); e(srd(20, 58, 256))
    e("s_or_b32 s77, s2, s3"); e("s_cbranch_scc1 KF_w0")
    e(C("s_or_b32 s38, s38, 1")); e(C("v_mov_b32 v28, s38")); e(C("s_mov_b64 exec, 1"))
    e(C(f"buffer_store_dword v28, v{vZ}, s[20:23], 0 offen sc1")); e(C("s_mov_b64 exec, -1"))
    e("KF_w0:")
    e(srd(16, 60, WS_SIZE)); e(srd(12, 52, 576 * 9216)); e(srd(24, 42, 8388608)); e(srd(28, 44, 8388608))
    e("v_lshrrev_b32 v28, 1, v21"); e("v_and_b32 v29, 1, v21"); e("v_lshlrev_b32 v29, 7, v29")
    e("v_lshl_add_u32 v34, v28, 13, v29"); e("v_mul_u32_u24 v35, 9216, v28"); e("v_add_u32 v35, v35, v29"); e("v_mul_u32_u24 v33, 9216, v21")
    e("s_lshl_b32 s77, s63, 2"); e("s_add_u32 s77, s77, s3"); e(f"s_mul_i32 s4, s77, {18*8192}"); e(f"s_mul_i32 s5, s77, {18*9216}")
    e("s_lshr_b32 s70, s62, 1"); e("s_and_b32 s71, s62, 1")
    e("s_lshl_b32 s6, s70, 6"); e("s_add_u32 s6, s6, s5"); e("s_add_u32 s6, s6, 8192")
    e("s_lshl_b32 s79, s62, 8"); e("s_add_u32 s4, s4, s79"); e("s_add_u32 s5, s5, s79")
    wq_touch = ["s_mov_b32 exec_hi, 15", Inst("buffer_load_dword v31, v34, s[8:11], s4 offen", "tch"), "s_mov_b64 exec, -1"]
    w1_touch = ["s_mov_b32 exec_hi, 15", Inst("buffer_load_dword v31, v35, s[12:15], s5 offen", "tch"),
                "s_mov_b64 exec, 0x3ffff", Inst("buffer_load_dword v31, v33, s[12:15], s6 offen", "tch"), "s_mov_b64 exec, -1"]
    ORD = opt.get("ord", 1)
    if ORD == 0: e(wq_touch)
    e("v_and_b32 v24, 15, v21"); e("v_lshrrev_b32 v25, 4, v21")
    e(f"v_lshlrev_b32 v{vKO}, 8, v24"); e(f"v_lshl_add_u32 v{vVO}, v25, 4, v{vKO}"); e(f"v_lshl_add_u32 v{vKO}, v25, 3, v{vKO}")
    e("v_lshrrev_b32 v28, 5, v21"); e("v_lshlrev_b32 v29, 1, v28"); e("v_and_b32 v30, 3, v21"); e("v_xor_b32 v29, v29, v30")
    e("v_lshlrev_b32 v29, 4, v29"); e("v_lshrrev_b32 v32, 2, v21")
    e(f"v_lshl_add_u32 v{vDQ}, v32, 13, v29")
    e(f"v_mul_u32_u24 v{vD1}, 9216, v32"); e(f"v_add_u32 v{vD1}, v{vD1}, v29")
    e(f"v_mul_u32_u24 v{vP5}, 288, v32"); e(f"v_lshl_add_u32 v{vP5}, v30, 3, v{vP5}")
    e("v_bfe_u32 v32, v21, 2, 2"); e("v_lshlrev_b32 v32, 6, v32"); e("v_lshl_add_u32 v32, v30, 3, v32")
    e("v_and_b32 v26, 1, v25"); e("v_lshl_add_u32 v32, v26, 5, v32")
    e(f"v_lshl_add_u32 v{vS0}, v25, 9, v32")
    e("v_lshl_add_u32 v32, v26, 9, v32"); e(f"v_lshl_add_u32 v{vB}, v28, 12, v32"); e(f"v_xor_b32 v{vB+1}, 32, v{vB}")
    for r in range(2, 6): e(f"v_add_u32 v{vB+r}, 0x10000, v{vB+r-2}")
    e("s_lshl_b32 s69, s63, 4"); e("s_lshl_b32 s78, s3, 2"); e("s_add_u32 s69, s69, s78"); e("s_lshl_b32 s78, s71, 1")
    for u in range(4):
        e(f"s_xor_b32 s79, s78, {u}"); e("s_add_u32 s79, s79, s69")
        e("s_mul_i32 s80, s79, 18432"); e(f"v_add_u32 v{vXN[u]}, s80, v{vL16}")
        e(f"s_mul_i32 s80, s79, {272*1024}"); e(f"v_add_u32 v{vST[u]}, s80, v{vL16}")
    e("v_lshrrev_b32 v36, 5, v0"); e("v_and_b32 v37, 7, v21"); e("v_xor_b32 v36, v36, v37"); e("v_lshlrev_b32 v36, 4, v36")
    e("v_lshl_add_u32 v36, v23, 7, v36"); e(f"v_add_u32 v36, {SPARE}, v36")
    e("v_lshrrev_b32 v38, 3, v21"); e("v_xor_b32 v39, v38, v37"); e("v_lshlrev_b32 v39, 4, v39"); e("v_lshl_add_u32 v39, v38, 7, v39"); e(f"v_add_u32 v39, {SPARE}, v39")
    e("v_lshlrev_b32 v38, 8, v38"); e("v_lshl_add_u32 v38, v37, 4, v38")
    e("s_lshl_b32 s72, s63, 1"); e("s_add_u32 s72, s72, s71")
    e("s_lshl_b32 s73, s70, 19"); e("s_lshl_b32 s74, s72, 13"); e("s_add_u32 s73, s73, s74"); e(f"s_add_u32 s73, s73, {1536*256}")
    e("s_lshl_b32 s74, s3, 6"); e("s_add_u32 s87, s73, s74"); e("s_add_u32 s88, s87, 4096")
    e("s_lshr_b32 s74, s3, 1"); e("s_lshl_b32 s74, s74, 12"); e("s_add_u32 s73, s73, s74")
    e("s_and_b32 s74, s3, 1"); e("s_lshl_b32 s74, s74, 7"); e("s_add_u32 s89, s73, s74")
    e("s_lshl_b32 s82, s70, 18"); e(f"s_add_u32 s82, s82, {WS_KVP}")
    e("s_lshl_b32 s93, s72, 14"); e("s_add_u32 s93, s93, s82"); e("s_lshl_b32 s78, s3, 11"); e("s_add_u32 s93, s93, s78"); e("s_add_u32 s95, s93, 8192")
    e("s_lshl_b32 s90, s70, 7"); e(f"s_add_u32 s90, s90, {FL_KV}"); e("s_lshl_b32 s91, s72, 2"); e("s_add_u32 s91, s91, s90")
    e(f"s_mul_i32 s77, s3, {144*9216}"); e("s_lshl_b32 s79, s62, 8"); e("s_add_u32 s79, s79, s77")
    e("s_lshl_b32 s80, s70, 6"); e("s_add_u32 s80, s80, s77"); e("s_add_u32 s80, s80, 8192")
    e("s_mul_i32 s81, s3, 9216")
    e("s_lshl_b32 s83, s62, 12"); e(f"s_add_u32 s83, s83, {WS_ACT}"); e(f"s_add_u32 s84, s83, {128*1024}")
    e("s_lshl_b32 s85, s70, 10"); e(f"s_add_u32 s85, s85, {WS_ACT + 256*1024}")
    e(f"s_mov_b32 s86, {f32bits(QSCALE):#x}")
    e("s_lshl_b32 s37, s62, 8"); e("s_lshl_b32 s67, s3, 6"); e("s_add_u32 s37, s37, s67"); e("s_lshl_b32 s67, s3, 10")
    for i in range(5): e(f"s_mov_b32 s{74+i}, {WS_XN + i*4096}")
    e("s_lshr_b32 s7, s66, 1"); e("s_mul_i32 s7, s7, 18432"); e("s_lshl_b32 s72, s71, 7"); e("s_add_u32 s7, s7, s72")
    e("s_lshl_b32 s36, s63, 12"); e("s_lshl_b32 s72, s62, 2"); e("s_add_u32 s36, s36, s72"); e(f"s_add_u32 s36, s36, {FL_LN}")
    Fv = 64
    for d in range(12):
        e(f"v_lshlrev_b32 v{Fv+2*d}, 16, v{48+d}"); e(f"v_and_b32 v{Fv+2*d+1}, 0xffff0000, v{48+d}")
    e(f"buffer_load_dword v{vTOK}, v{vZ}, s[20:23], 0 offen sc1", "tch")
    if ORD == 1: e(wq_touch)
    e(stamp(1))
    def pk(op, d, a, b): return f"{op} {vr(d,2)}, {vr(a,2)}, {vr(b,2)}"
    e(pk("v_pk_add_f32", 40, Fv, Fv + 2)); e(pk("v_pk_add_f32", 42, Fv + 4, Fv + 6))
    for d in range(8, 24, 2): e(pk("v_pk_add_f32", 40 + (d & 2), 40 + (d & 2), Fv + d))
    def red(r):
        e(pk("v_pk_add_f32", r, r, r + 2)); e(f"v_add_f32 v{r}, v{r}, v{r+1}")
        for sh in (8, 4, 2, 1): e(f"v_add_f32_dpp v{r}, v{r}, v{r} row_ror:{sh} row_mask:0xf bank_mask:0xf")
        e(xlane("v_add_f32", r, r + 1, both=False))
    red(40)
    e(f"v_mul_f32 v40, {f32bits(-1.0/576):#x}, v40"); e("v_mov_b32 v41, v40")
    e("v_cvt_pk_bf16_f32 v44, v40, v40"); e("v_lshlrev_b32 v44, 16, v44"); e("v_mov_b32 v45, v44")
    for d in range(0, 24, 2):
        if d == 16: e("s_mov_b32 exec_lo, 0xff"); e("s_mov_b32 exec_hi, 0xff")
        t = 92 + (d & 2); a = 88 + (d & 2)
        e(pk("v_pk_add_f32", t, Fv + d, 40))
        if d < 4: e(pk("v_pk_mul_f32", a, t, t))
        else: e(f"v_pk_fma_f32 {vr(a,2)}, {vr(t,2)}, {vr(t,2)}, {vr(a,2)}")
    e("s_mov_b64 exec, -1")
    for d in range(0, 24, 2):
        e(pk("v_pk_add_f32", Fv + d, Fv + d, 44)); e(f"v_cvt_pk_bf16_f32 v{48+d//2}, v{Fv+d}, v{Fv+d+1}")
    red(88)
    def rbf(r): e(f"v_cvt_pk_bf16_f32 v{r}, v{r}, v{r}"); e(f"v_lshlrev_b32 v{r}, 16, v{r}")
    e(f"v_mul_f32 v88, {f32bits(1.0/576):#x}, v88"); rbf(88)
    e(f"v_add_f32 v88, {f32bits(1e-5):#x}, v88"); rbf(88)
    e("v_sqrt_f32 v88, v88")
    for d in range(12):
        e(f"v_lshlrev_b32 v{Fv+2*d}, 16, v{48+d}"); e(f"v_and_b32 v{Fv+2*d+1}, 0xffff0000, v{48+d}")
        if d == 0: rbf(88)
        if d == 1: e("v_rcp_f32 v90, v88")
        if d == 2: e("v_fma_f32 v91, -v88, v90, 2.0")
        if d == 3: e("v_mul_f32 v90, v90, v91"); e("v_mov_b32 v91, v90")
    for d in range(12):
        e(pk("v_pk_mul_f32", Fv + 2 * d, Fv + 2 * d, 90)); e(f"v_cvt_pk_bf16_f32 v{48+d}, v{Fv+2*d}, v{Fv+2*d+1}")
        if d % 4 == 3:
            if d == 11: e("s_mov_b32 exec_lo, 0xff"); e("s_mov_b32 exec_hi, 0xff")
            e(f"ds_write_b128 v36, {vr(48 + d - 3)} offset:{(d//4)*4096}")
    e("s_mov_b64 exec, -1")
    e("s_waitcnt lgkmcnt(0)")
    e("s_barrier")
    e(stamp(2))
    e("s_cmp_lg_u32 s3, 0"); e("s_cbranch_scc1 KF_x123")
    w0 = [f"ds_read_b128 {vr(136+4*q)}, v39 offset:{q*1024}" for q in range(9)]
    for q in range(9):
        w0 += [f"s_waitcnt lgkmcnt({8-q})", f"buffer_store_dwordx4 {vr(136+4*q)}, v38, s[16:19], s7 offen offset:{(q%2)*2048} sc1"]
        if q % 2: w0 += ["s_add_u32 s7, s7, 4096"]
    w0 += ["v_lshlrev_b32 v38, 7, v21", "s_mov_b32 s73, 0"] + mst(62) + ["KF_tk:", "s_waitcnt vmcnt(0)", f"v_cmp_eq_u32 vcc, 0, v{vTOK}",
           "s_add_u32 s73, s73, 1", f"s_cmp_ge_u32 s73, {SPIN_MAX}",
           "s_cbranch_scc1 KF_tkd", "s_cbranch_vccz KF_tkd", f"buffer_load_dword v{vTOK}, v{vZ}, s[20:23], 0 offen sc1", "s_branch KF_tk", "KF_tkd:"]
    w0 += mst(63) + flag_store("s36", 32, 38, allw=True)
    w0 += [f"v_mov_b32 v39, {SPARE + 12288}", f"ds_write_b32 v39, v{vTOK}"]
    for x in w0: e(x if x.endswith(":") else C(x))
    e("KF_x123:")
    if ORD == 3: e("s_barrier")
    if ORD >= 2: e(wq_touch)
    def wq_piece(b):
        return [[f"s_add_u32 m0, s67, {b*4096}", f"s_add_u32 s68, s37, {b*131072}"],
                Inst(f"buffer_load_dwordx4 v{vDQ}, s[8:11], s68 offen lds", "wq")]
    NPW = opt.get("npw", 12); XD = opt.get("xd", 2); XEND = opt.get("xend", 9)
    e(srd(20, 60, WS_SIZE))
    for b in range(NPW): e(wq_piece(b))
    if opt.get("w1pf", 1) == 2: e(w1_touch)
    e(stamp(3))
    e("s_cmp_lg_u32 s3, 0"); e("s_cbranch_scc1 KF_y123")
    pl = ["v_lshlrev_b32 v38, 2, v23", "s_lshl_b32 s72, s66, 7", f"s_add_u32 s72, s72, {FL_LN}"]
    pl += spin("buffer_load_dword v39, v38, s[16:19], s72 offen sc1", [39])
    for x in pl: e(x if x.endswith(":") else C(x))
    e("KF_y123:")
    k.wait_tags("wq", skip=NPW - 12)
    e("s_waitcnt lgkmcnt(0)")
    e("s_barrier")
    e(stamp(4))
    def xn_load(u, s):
        return Inst(f"buffer_load_dwordx4 {X(u, s)}, v{vXN[u]}, s[16:19], s{74 + s//4} offen offset:{(s%4)*1024} sc1", "xn")
    for s in range(XD):
        for u in range(4): e(xn_load(u, s))
    if opt.get("w1pf", 1) == 1: e(w1_touch)
    e(f"v_mov_b32 v39, {SPARE + 12288}"); e(f"ds_read_b32 v{vTOK}, v39")

    k.begin(name="gemm")
    class Frags:
        def __init__(s, af): s.mf = []; s.fr = []; s.af = af
        def add(s, vbase, off, ms, d2=256):
            b = s.af + (len(s.fr) % NF) * 4
            s.fr.append((len(s.mf), len(ms), [f"ds_read_b64_tr_b16 {vr(b,2)}, v{vbase} offset:{off}",
                                              f"ds_read_b64_tr_b16 {vr(b+2,2)}, v{vbase} offset:{off+d2}"], vr(b)))
            s.mf += [m.replace("@A", vr(b)) for m in ms]
        def sched(s, wrap=False):
            sc = Sched(s.mf); fr = s.fr; N = len(fr)
            for f in range(N):
                g0, n, _, _ = fr[f]
                if f + LEAD < N or wrap:
                    sc.put(g0, fr[(f + LEAD) % N][2][0]); sc.put(g0 + 1, fr[(f + LEAD) % N][2][1])
                if (f + 1 < N or wrap) and (n == 4 or f % 2 == 0):
                    sc.put(g0 + 1, WaitRegs(*([fr[(f + 1) % N][3]] + ([fr[f + 2][3]] if n == 2 and f + 2 < N else []))))
            return sc
    G = Frags(AF); pos = {}
    KL, VL, VD, VO, ID = 200, 208, 216, 232, 240
    KVS = opt.get("kvs", 15)
    for s in range(18):
        pos["Q", s] = len(G.mf)
        if s == KVS: G.mf += tr_mf(VD, VL, ID)
        for nt in range(8):
            G.add(vB + 2 * (s // 8) + (nt & 1), (s % 8) * 8192 + (nt >> 1) * 1024,
                  [f"{MF} {vr(qa(nt,u))}, @A, {X(u,s)}, {'0' if s == 0 else vr(qa(nt,u))}" for u in range(4)])
    S = lambda u: (B1 if u < 2 else B3) + (u & 1) * 8
    def KF(b, f): return ar(128 + b * 32 + f * 4)
    def VF(b, f): return ar(192 + b * 32 + f * 4)
    K0F = lambda f: vr(B5 + f * 4) if f < 4 else vr(B7 + (f - 4) * 4)
    NEGM = B5; P = B7; L = XV + 16; FL = XV + 24
    def qk(u, kf, zero=False):
        out = []
        for s in range(4):
            for kt in range(2):
                c = vr(S(u) + 4 * kt)
                out.append(f"{MF} {c}, {kf(kt*4+s)}, {Qf(u, s)}, {c if s else ('0' if zero else vr(NEGM + 4*u))}")
        return out
    sb = lambda st, a: vB + (st & 1) * 2 + a
    for st in range(5):
        us = (0, 1) if st == 4 else (0, 1, 2, 3)
        for f in range(36):
            a, s = f // 18, f % 18
            pos["F", st, f] = len(G.mf)
            if st == 3 and f == 8:
                pos["QK0"] = len(G.mf)
                for u in range(4): G.mf += qk(u, K0F, zero=True)
                pos["QK0e"] = len(G.mf)
            G.add(sb(st, a), s * 2048, [f"{MF} {vr(fa(a,u))}, @A, {X(u,s)}, {'0' if s == 0 else vr(fa(a,u))}" for u in us])
    END = len(G.mf)
    for f in range(LEAD): e(G.fr[f][2])
    sc = G.sched()
    F = lambda st, f: pos["F", st, f]
    Qp = lambda s: pos["Q", s] if s < 18 else F(0, 0)
    def bar(g, *w): sc.put(g, list(w) + ["s_barrier"])
    bar(Qp(5) + 2, WaitTag(["wq"], 0))
    bar(Qp(9) + 2)
    bar(Qp(14) + 2, WaitTag(["dma"], 9))
    bar(F(0, 0) + 6, WaitTag(["dma"], 9))
    bar(F(0, 18) + 2, WaitTag(["kvst"], 0))
    bar(F(1, 0) + 6, WaitTag(["dma"], 9))
    bar(F(2, 0) + 6, WaitTag(["dma"], 9))
    bar(F(3, 0) + 6, WaitTag(["dma", "kv0"], 9))
    bar(F(4, 2), WaitTag(["dma"], 9))
    for s in range(17): sc.add([WaitRegs(*[X(u, s + 1) for u in range(4)])], Qp(s + 1) - 4, Qp(s + 1), spread=False)
    xp = sc.add([xn_load(u, s) for s in range(XD, 18) for u in range(4)], 2, Qp(XEND))
    for i, g in enumerate(xp): assert g < Qp(XD + i // 4) - 24, (i, g)
    sc.add(flat([wq_piece(b) for b in range(NPW, 36)]), 2, Qp(4) + 8)
    def w1_piece(st, p):
        base = "s80" if st == 4 else "s79"; col = 0 if st == 4 else st * 64
        return [[f"s_add_u32 m0, s81, {(st % 4)*SLOT + p*1024}", f"s_add_u32 s68, {base}, {col + p*16*9216}"],
                Inst(f"buffer_load_dwordx4 v{vD1}, s[12:15], s68 offen lds", "dma")]
    def lin_pieces(ldsb, ldsoff, src, srcoff, n=9, tag="dma"):
        out = []
        for p in range(n):
            if p % 4 == 0: out.append([f"s_add_u32 m0, {ldsb}, {ldsoff + p*1024}", f"s_add_u32 s68, {src}, {srcoff + p*1024}"])
            out.append(Inst(f"buffer_load_dwordx4 v{vL16}, s[20:23], s68 offen offset:{(p%4)*1024} sc1 lds", tag))
        return out
    sc.add(flat([w1_piece(0, p) for p in range(9)]), Qp(opt.get("f0at", 6)), Qp(9))
    kvl = []
    for f in range(2):
        kvl += [f"buffer_load_dwordx2 {vr(KL+4*f,2)}, v{vKO}, s[24:27], s89 offen offset:{f*64}", f"buffer_load_dwordx2 {vr(KL+2+4*f,2)}, v{vKO}, s[24:27], s89 offen offset:{f*64+32}"]
    kvl += [f"buffer_load_dwordx4 {vr(VL)}, v{vVO}, s[28:31], s87 offen", f"buffer_load_dwordx4 {vr(VL+4)}, v{vVO}, s[28:31], s88 offen"]
    sc.add(kvl, Qp(XEND) + 3, Qp(XEND + 1))
    sc.add(flat([w1_piece(1, p) for p in range(9)]), Qp(XEND + 1), Qp(14))
    sc.add(ident(ID, vT, vL), Qp(XEND + 1), Qp(KVS - 1))
    sc.add([WaitRegs(vr(VL), vr(VL + 4))], Qp(KVS) - 3, Qp(KVS), spread=False)
    kst = [Inst(f"buffer_store_dwordx4 {vr(KL+4*f)}, v{vL16}, s[16:19], s93 offen offset:{f*1024} sc1", "kvst") for f in range(2)]
    for h in range(2):
        kst += tr_cvt(VO + 4 * h, VD, h) + [Inst(f"buffer_store_dwordx4 {vr(VO+4*h)}, v{vL16}, s[16:19], s95 offen offset:{h*1024} sc1", "kvst")]
    sc.add(kst, Qp(KVS) + 6, Qp(KVS + 1) + 16)
    sc.add(flat([w1_piece(2, p) for p in range(9)]), Qp(14) + 3, Qp(17) + 24)
    sc.add(flat([w1_piece(3, p) for p in range(9)]), F(0, 2), F(0, 17))
    sc.add([flag_store("s91", 1, vZ)], F(0, 18) + 3, F(0, 18) + 8)
    sc.add(flat([w1_piece(4, p) for p in range(9)]), F(1, 2), F(1, 26))
    kvld = f"buffer_load_dword v{vT2}, v{vT}, s[16:19], s90 offen sc1"
    sc.add([f"v_bfe_u32 v{vT}, v{vL16}, 4, 4", f"v_lshlrev_b32 v{vT}, 2, v{vT}", kvld], F(1, 26), F(1, 30))
    c1, c2 = check(kvld, [vT2])
    sc.add([c1 + c2], F(2, 2), F(2, 3))
    kv0 = [["s_lshl_b32 s72, s3, 12", "s_add_u32 s70, s82, s72"]] + lin_pieces("s72", SPARE, "s70", 0, 4, "kv0") + [["s_add_u32 s92, s82, s81"]]
    sc.add(kv0 + lin_pieces("s81", 1 * SLOT, "s92", 16384), F(2, 3), F(2, 30))
    sc.add(lin_pieces("s81", 2 * SLOT, "s92", 16384 + 32768), F(3, 2), F(3, 30))
    sc.add(lin_pieces("s81", 3 * SLOT, "s92", 16384 + 65536), F(4, 3), F(4, 30))
    sc.add([f"v_mov_b32 v{vB}, v{vS0}", f"v_xor_b32 v{vB+1}, 32, v{vS0}"], Qp(16), Qp(17))
    for st in range(1, 5):
        sc.add([f"v_add_u32 v{sb(st,0)}, {(st % 4)*SLOT}, v{vS0}", f"v_xor_b32 v{sb(st,1)}, 32, v{sb(st,0)}"], F(st - 1, 4), F(st - 1, 20))
    def epi_a(us): return flat([[f"v_cvt_pk_bf16_f32 v{T+4*u}, v{fa(0,u)}, v{fa(0,u)+1}", f"v_cvt_pk_bf16_f32 v{T+4*u+1}, v{fa(0,u)+2}, v{fa(0,u)+3}",
                                 f"v_pk_max_i16 v{T+4*u}, v{T+4*u}, 0", f"v_pk_max_i16 v{T+4*u+1}, v{T+4*u+1}, 0"] for u in us])
    def epi_b(st, us):
        so, off = ("s85", 0) if st == 4 else ("s84", st * 1024)
        return flat([[f"v_cvt_pk_bf16_f32 v{T+4*u+2}, v{fa(1,u)}, v{fa(1,u)+1}", f"v_cvt_pk_bf16_f32 v{T+4*u+3}, v{fa(1,u)+2}, v{fa(1,u)+3}",
                      f"v_pk_max_i16 v{T+4*u+2}, v{T+4*u+2}, 0", f"v_pk_max_i16 v{T+4*u+3}, v{T+4*u+3}, 0",
                      Inst(f"buffer_store_dwordx4 {vr(T+4*u)}, v{vST[u]}, s[16:19], {so} offen offset:{off} sc1", "st")] for u in us])
    for st in range(5):
        us = (0, 1) if st == 4 else (0, 1, 2, 3)
        sc.add(epi_a(us), F(st, 20 if st < 4 else 22), F(st, 34))
        if st: sc.add(epi_b(st - 1, (0, 1, 2, 3)), F(st, 2 if st < 4 else 4), F(st, 16))
    qe = []
    for s in range(4):
        for u in range(4):
            a, b = qa(2 * s, u), qa(2 * s + 1, u)
            qe += [f"v_mul_f32 v{r}, s86, v{r}" for r in list(range(a, a + 4)) + list(range(b, b + 4))]
            qe += [f"v_cvt_pk_bf16_f32 v{a}, v{a}, v{a+1}", f"v_cvt_pk_bf16_f32 v{a+1}, v{a+2}, v{a+3}",
                   f"v_cvt_pk_bf16_f32 v{a+2}, v{b}, v{b+1}", f"v_cvt_pk_bf16_f32 v{a+3}, v{b+2}, v{b+3}"]
    sc.add(qe, F(0, 1), F(2, 30), spread=False)
    sc.add([f"v_add_u32 v{vL}, {SPARE}, v{vL16}"], F(2, 30), F(2, 34))
    sc.add([f"ds_read_b128 {K0F(f)}, v{vL} offset:{f*1024}" for f in range(8)], F(3, 1) + 3, F(3, 7))
    sc.add([WaitRegs(*[K0F(f) for f in range(8)])], pos["QK0"] - 2, pos["QK0"], spread=False)
    M = lambda u: NEGM + 4 * u
    pa = []
    for u in range(4):
        s0 = S(u); m = M(u)
        pa += [f"v_max3_f32 v{m}, v{s0}, v{s0+1}, v{s0+2}", f"v_max3_f32 v{m}, v{m}, v{s0+3}, v{s0+4}",
               f"v_max3_f32 v{m}, v{m}, v{s0+5}, v{s0+6}", f"v_max_f32 v{m}, v{m}, v{s0+7}"]
    xl = [xlane("v_max_f32", M(u), M(u) + 1) for u in range(4)]
    for i in range(6): pa += [xl[u][i] for u in range(4)]
    for u in range(4):
        pa += [f"v_sub_f32 v{S(u)+i}, v{S(u)+i}, v{M(u)}" for i in range(8)] + [f"v_sub_f32 v{M(u)+i}, 0, v{M(u)}" for i in (3, 2, 1, 0)]
    for u in range(4): pa += [f"v_exp_f32 v{S(u)+i}, v{S(u)+i}" for i in range(8)]
    for u in range(4): pa += [f"v_cvt_pk_bf16_f32 v{P+4*u+i}, v{S(u)+2*i}, v{S(u)+2*i+1}" for i in range(4)]
    pp = sc.add(pa, pos["QK0e"] + 3, F(4, 6), spread=False)
    pl = []
    for u in range(4):
        s0 = S(u)
        pl += [f"v_add_f32 v{L+u}, v{s0}, v{s0+2}", f"v_add_f32 v{L+4+u}, v{s0+1}, v{s0+3}"]
        pl += [f"v_add_f32 v{L+u+4*(i&1)}, v{L+u+4*(i&1)}, v{s0+i}" for i in range(4, 8)]
    sc.add(pl, max(F(4, 1), pp[-1] + 1), END)
    sc.add([f"ds_read_b128 {VF(0, f)}, v{vL} offset:{8192 + f*1024}" for f in range(8)], F(4, 32), END, spread=False, mind=1)
    if stamps and opt.get("fine"):
        for i, g in enumerate([Qp(1), Qp(3), Qp(5), Qp(5) + 4, Qp(7), Qp(9), Qp(11), Qp(13), Qp(15), Qp(17), F(0, 0), F(0, 18), F(1, 0), F(2, 0), F(2, 6), F(3, 0), pos["QK0"], F(4, 0)]):
            sc.gap[g] = sc.gap[g] + [_mk(x) for x in mst(14 + i)]
    e(sc.flat())
    e(stamp(5))

    def O(dt, u): return (dt * 4 + u) * 4
    def pv(u, b, pb, zero=False):
        return [f"{MF} {ar(O(dt, u))}, {VF(b, dt)}, {vr(P + 4*pb)}, {'0' if zero else ar(O(dt, u))}" for dt in range(8)]
    vD = list(range(16, 25)); vDW = list(range(176, 185)); vTW = 185
    def softmax(u):
        s0 = S(u); sm = []
        for i in range(4):
            a = s0 + 2 * i
            sm += [f"v_exp_f32 v{a}, v{a}", f"v_exp_f32 v{a+1}, v{a+1}"]
            if i: sm += [f"v_add_f32 v{L+u}, v{L+u}, v{a-2}", f"v_add_f32 v{L+4+u}, v{L+4+u}, v{a-1}", f"v_cvt_pk_bf16_f32 v{P+4*u+i-1}, v{a-2}, v{a-1}"]
        return sm + [f"v_cvt_pk_bf16_f32 v{P+4*u+3}, v{s0+6}, v{s0+7}", f"v_add_f32 v{L+u}, v{L+u}, v{s0+6}", f"v_add_f32 v{L+4+u}, v{L+4+u}, v{s0+7}"]
    def ring_dma():
        dm = []
        for p in range(9):
            if p % 4 == 0: dm.append([f"s_add_u32 m0, s94, {p*1024}"])
            dm.append(Inst(f"buffer_load_dwordx4 v{vD[p]}, s[20:23], s92 offen offset:{(p%4)*1024} sc1 lds", "dma"))
        return dm + [["s_add_u32 s92, s92, s97"], [f"s_add_u32 s94, s94, {SLOT}"], [f"s_cmp_ge_u32 s94, {4*SLOT}", "s_cselect_b32 s94, s81, s94"]]
    adv_rd = [[f"s_add_u32 s96, s96, {SLOT}"], [f"s_cmp_eq_u32 s96, {4*SLOT}", "s_cselect_b32 s96, 0, s96"]]
    hfl = f"buffer_load_dword v{FL}, v{vT}, s[16:19], s84 offen sc1"
    def attn_iter(kind):
        first, last = kind == "first", kind == "last"
        mf = []; base = []
        for sl in range(8):
            base.append(len(mf))
            t2 = sl + 2; kb = (t2 // 4) & 1
            if not (last and sl >= 6) and not (first and sl < 2): mf += qk(t2 % 4, lambda f: KF(kb, f))
            mf += pv(sl % 4, (sl // 4) & 1, sl % 4, zero=(first and sl < 4))
        base.append(len(mf))
        sc = Sched(mf)
        for sl in range(8):
            u, half = sl % 4, sl // 4
            n = base[sl + 1] - base[sl]
            if not (last and half == 1):
                nb = (half + 1) & 1
                for i in range(4):
                    f = (u & 1) * 4 + i
                    d, o = (KF(nb, f), 0) if u < 2 else (VF(nb, f), 8192)
                    g = f if n == 8 else base[sl] + (3 + 4 * i if u != 1 else (2, 3, 6, 7)[i])
                    sc.put(g, f"ds_read_b128 {d}, v{vL} offset:{half*16384 + o + f*1024}")
            if u == 1 and not (last and half == 1):
                sc.put(base[sl + 1] - (3 if n == 16 else 1), WaitRegs(*[KF((half + 1) & 1, f) for f in range(8)]))
            if u == 0 and n == 16: sc.put(base[sl] + 5, WaitRegs(*[VF(half & 1, f) for f in range(8)]))
        gb = base[1] + 11
        sc.put(gb, [WaitTag(["dma"] if first else ["dma", "st"], 9), "s_barrier"])
        dm = ring_dma() + adv_rd
        if kind == "loop" and opt.get("wt", 1):
            dm += [[Inst("s_mov_b64 exec, 0x3fff"), Inst(f"buffer_load_dword v{vTW+1}, v{vTW}, s[24:27], s89 offen", "tch"), Inst("s_mov_b64 exec, -1")],
                   [f"s_add_u32 s89, s89, {1792*128}"]]
        if last: dm = [hfl] + dm
        if first:
            sc.add([f"v_add_u32 v{vD[p]}, {(p - p % 4)*1024}, v{vL16}" for p in range(9)], 1, gb, spread=False)
            sc.add(epi_b(4, (0, 1)), 6, gb)
        sc.add(dm, gb + 1, base[8] - 2)
        for sl in range(8):
            if (last and sl == 7) or (first and sl < 3): continue
            hi = base[sl + 1] + (4 if sl < 7 and not (last and sl >= 5) else 0)
            sc.add(softmax((sl + 1) % 4), base[sl], hi, spread=False)
        if first:
            dw = [f"v_lshrrev_b32 v{vT2}, 4, v{vL16}", f"v_lshlrev_b32 v{vTW}, 3, v{vL16}"]
            for p in range(9):
                r = vDW[p]
                dw += [f"v_add_u32 v{vT}, {64*p}, v{vT2}", f"v_mul_u32_u24 v{r}, 3641, v{vT}", f"v_lshrrev_b32 v{r}, 16, v{r}",
                       f"v_mul_u32_u24 v{r}, {1152 - 288}, v{r}", f"v_lshl_add_u32 v{r}, v{vT}, 4, v{r}"]
                if p % 4: dw.append(f"v_subrev_u32 v{r}, {(p%4)*1024}, v{r}")
            sc.add(dw, 1, base[8], spread=False)
            ids = [["s_cmp_lt_u32 s64, 4", "s_cselect_b32 s24, s48, s54", "s_cselect_b32 s25, s49, s55"],
                   [f"s_mov_b32 s26, {4096*1152}", "s_cmp_lt_u32 s64, 4", f"s_cselect_b32 s26, s26, {4608*1152}"],
                   ["s_cmp_lt_u32 s64, 4", "s_cselect_b32 s72, 32, 36", "s_cselect_b32 s5, 0, 1"],
                   ["s_and_b32 s73, s64, 3", "s_mul_i32 s7, s73, s72"],
                   ["s_lshl_b32 s6, s5, 7", "s_add_u32 s6, s6, s7"], [f"s_mul_i32 s7, s7, {32*1152}"],
                   ["s_lshr_b32 s72, s2, 3", "s_lshl_b32 s72, s72, 2"], ["s_add_u32 s72, s72, s3", f"s_mul_i32 s72, s72, {14*128}"], ["s_add_u32 s89, s7, s72"]]
            sc.add(ids, base[3], base[7])
        e(f"v_add_u32 v{vL}, s96, v{vL16}")
        e(sc.flat())
    k.begin(name="attn_first")
    e(f"s_add_u32 s92, s92, {16384 + 3*32768}"); e("s_mov_b32 s97, 32768")
    e("s_mov_b32 s94, s81"); e(f"s_mov_b32 s96, {SLOT}")
    e("s_mov_b32 s4, 1"); e("s_mov_b32 s101, 0x24")
    attn_iter("first")
    k.begin(loop=6, name="attn_loop")
    e(".p2align 3"); e("KF_aloop:")
    if stamps and opt.get("fine"):
        e(["s_memtime s[98:99]", "s_add_u32 s100, s4, 55", "s_lshl_b32 s100, s100, 4", f"v_cmp_eq_u32 vcc, s100, v{vL16}",
           "s_waitcnt lgkmcnt(0)", "v_mov_b32 v47, s98", f"v_cndmask_b32 v{STV}, v{STV}, v47, vcc"])
    e("s_bitcmp1_b32 s101, s4"); e("s_cbranch_scc1 KF_ool"); e("KF_oolr:")
    attn_iter("loop")
    e("s_add_u32 s4, s4, 1"); e("s_cmp_lt_u32 s4, 7"); e("s_cbranch_scc1 KF_aloop")
    ool.append(["KF_ool:", "s_cmp_eq_u32 s4, 5", "s_cbranch_scc1 KF_sw",
                "s_lshl_b32 s72, s63, 14", "s_lshl_b32 s73, s3, 7", "s_add_u32 s72, s72, s73", f"s_add_u32 s72, s72, {FL_P2}",
                "s_lshl_b32 s73, s62, 2", "s_add_u32 s91, s72, s73", "s_add_u32 s91, s91, 8192", f"v_lshlrev_b32 v{vT2}, 5, v{vL16}"] +
               flag_store("s91", 16, vT2, allw=True) +
               ["s_lshr_b32 s73, s62, 3", "s_lshl_b32 s73, s73, 11", "s_add_u32 s90, s72, s73", "s_and_b32 s73, s62, 7", "s_lshl_b32 s73, s73, 2",
                "s_add_u32 s90, s90, s73",
                "s_lshl_b32 s73, s62, 9", "s_add_u32 s84, s72, s73",
                "s_movk_i32 s73, 0x70", "s_cmp_eq_u32 s5, 0", "s_cselect_b32 s73, s73, 0x1f0", f"v_and_b32 v{vT}, s73, v{vL16}", f"v_lshrrev_b32 v{vT}, 2, v{vT}",
                "s_branch KF_oolr",
                "KF_sw:",
                "s_mov_b32 s20, s24", "s_mov_b32 s21, s25", "s_mov_b32 s22, s26"] + [f"v_mov_b32 v{vD[p]}, v{vDW[p]}" for p in range(9)] +
               [f"s_mov_b32 s97, {128*1152}", f"s_mul_i32 s92, s3, {32*1152}", "s_add_u32 s92, s92, s7", "s_mul_i32 s72, s65, 288", "s_add_u32 s92, s92, s72",
                "s_lshl_b32 s79, s6, 10", f"s_add_u32 s79, s79, {WS_ACT}",
                "s_mov_b32 s28, s60", "s_mov_b32 s29, s61", "s_cmp_eq_u32 s5, 0", "s_cselect_b32 s30, 0, s18",
                "s_branch KF_oolr"])
    k.begin(name="attn_last")
    attn_iter("last")
    e(stamp(6))
    W = 216
    for u in range(4): e(f"v_add_f32 v{L+u}, v{L+u}, v{L+4+u}")
    xl = [xlane("v_add_f32", L + u, W + 4 + u) for u in range(4)]
    for i in range(6):
        for u in range(4): e(xl[u][i])
    e(f"v_add_f32 v{W+1}, v{L}, v{L+1}"); e(f"v_add_f32 v{W+2}, v{L+2}, v{L+3}"); e(f"v_add_f32 v{W}, v{W+1}, v{W+2}")
    e(f"v_cmp_nge_f32 vcc, {f32bits(2.0**30):#x}, v{W}")
    e("s_cbranch_vccnz KF_slow")
    e("KF_epi:")
    k.begin(name="oepi")
    ACC = 48; A2 = 192
    def acc(nt, u): return ACC + (nt * 4 + u) * 4
    def BF(b, s, u): return ar(128 + ((b * 4 + s) * 4 + u) * 4)
    def bload(b, s, u):
        return Inst(f"buffer_load_dwordx4 {BF(b, s, u)}, v{vST[u]}, s[28:31], s79 offen offset:{s*1024} sc1", "b")
    adv_b = "s_add_u32 s79, s79, 4096"
    for u in range(4): e(f"v_rcp_f32 v{L+u}, v{L+u}")
    e(WaitRegs(f"v{FL}"))
    e("s_cmp_eq_u32 s5, 0"); e("s_cbranch_scc1 KF_nock")
    c1, c2 = check(hfl, [FL])
    for x in c1 + c2: e(x if x.endswith(":") else C(x))
    e("KF_nock:")
    n = 0
    for i in range(4):
        for u in range(4):
            t = W + (n % 3) * 12
            for r in range(8): e(f"v_accvgpr_read_b32 v{t+r}, a{O(2*i + r//4, u) + r%4}")
            for r in range(0, 8, 2): e(f"v_pk_mul_f32 {vr(t+r,2)}, {vr(t+r,2)}, {vr(L + (u & 2),2)} op_sel:[0,{u&1}] op_sel_hi:[1,{u&1}]")
            for r in range(4): e(f"v_cvt_pk_bf16_f32 v{t+8+r}, v{t+2*r}, v{t+2*r+1}")
            e(f"buffer_store_dwordx4 {vr(t+8)}, v{vST[u]}, s[16:19], s83 offen offset:{i*1024} sc1", "st")
            e(bload(1, (n // 4), n % 4))
            for r in range(ACC + n * 10, min(ACC + 144, ACC + n * 10 + 10), 2): e(f"v_mov_b64 {vr(r,2)}, 0")
            n += 1
    e(f"v_add_u32 v{vL}, s96, v{vP5}")
    P5 = {}
    for b in range(2):
        G = Frags(A2)
        for s in range(4):
            for nt in range(9):
                G.add(vL, s * 9216 + nt * 32, [f"{MF} {vr(acc(nt,u))}, @A, {BF(b,s,u)}, {vr(acc(nt,u))}" for u in range(4)], 4608)
        P5[b] = G
    for f in range(LEAD): e(P5[0].fr[f][2])
    e(stamp(7))
    e("s_cmp_eq_u32 s5, 0"); e("s_cbranch_scc1 KF_spre")
    k.begin(name="g_pre")
    e(adv_b)
    for s in range(3):
        for u in range(4): e(bload(0, s, u))
    e("s_mov_b32 s4, 0")
    e(WaitRegs(*[BF(1, 0, u) for u in range(4)]))
    e(stamp(8))
    e("s_branch KF_mid")
    k.begin(name="s_pre")
    e("KF_spre:")
    e("s_waitcnt vmcnt(0)")
    e(flag_store("s90", 4, vT2, allw=True))
    e("s_mov_b32 s30, s18")
    e(spin(hfl, [FL]))
    for b in range(2):
        for s in range(4 - b):
            for u in range(4): e(bload(b, s, u))
        if b == 0: e(adv_b)
    e("s_mov_b32 s4, 1")
    e(WaitRegs(*[BF(0, 0, u) for u in range(4)]))
    e(stamp(8))
    e("s_branch KF_top2")

    def stage2(b):
        G = P5[b]; sc = G.sched(wrap=True)
        sc.put(4 * (36 - LEAD) - 1, f"v_add_u32 v{vL}, s96, v{vP5}")
        sc.put(6, [WaitTag(["dma"], 9), "s_barrier"])
        for s in range(4):
            nb, ns = (b, s + 1) if s < 3 else (b ^ 1, 0)
            sc.add([WaitRegs(*[BF(nb, ns, u) for u in range(4)])], 36 * s + 32, 36 * s + 36, spread=False)
        misc = list(adv_rd)
        if b == 1: misc += [["s_cmp_ge_u32 s4, 3", "s_cselect_b32 s22, 0, s22"]]
        sc.add(misc, 7, 12, spread=False)
        for s in range(3): sc.add([bload(b, s, u) for u in range(4)], 36 * (s + 1), 36 * (s + 1) + 24)
        sc.add([bload(b ^ 1, 3, u) for u in range(4)] + [adv_b], 2, 30)
        sc.add(ring_dma(), 12, 140)
        e(sc.flat())
    k.begin(loop=3, name="L0")
    e(".p2align 3"); e("KF_loop2:")
    e("s_cmp_eq_u32 s4, 1"); e("s_cbranch_scc1 KF_ht"); e("KF_top2:")
    stage2(0)
    k.begin(loop=3, name="L1")
    e("KF_mid:")
    stage2(1)
    e("s_add_u32 s4, s4, 1"); e("s_cmp_lt_u32 s4, 4"); e("s_cbranch_scc1 KF_loop2")
    ool.append(["KF_ht:", "s_waitcnt vmcnt(25)"] + flag_store("s90", 4, vT2, allw=True) + ["s_branch KF_top2"])

    k.begin(name="final")
    e(stamp(9))
    order = [(0, s, nt) for s in range(2) for nt in range(9)]
    order += [(b, s, nt) for nt in range(9) for b in range(2) for s in range(4) if (b, s) not in ((0, 0), (0, 1))]
    G = Frags(A2); done = {}
    vL2 = vT
    for (b, s, nt) in order:
        G.add(vL2 if b else vL, s * 9216 + nt * 32, [f"{MF} {vr(acc(nt,u))}, @A, {BF(b,s,u)}, {vr(acc(nt,u))}" for u in range(4)], 4608)
        done[nt] = len(G.mf)
    sc = G.sched(); NG = len(G.mf)
    sc.put(6, [WaitTag(["dma"], 0), "s_barrier"])
    sc.add([bload(1, 3, u) for u in range(4)], 2, 20)
    sc.add(adv_rd + [f"v_add_u32 v{vL2}, s96, v{vP5}"], 7, 16, spread=False)
    sc.add([WaitRegs(*[BF(0, 1, u) for u in range(4)])], 32, 36, spread=False)
    sc.add([WaitRegs(*[BF(1, 3, u) for u in range(4)])], 68, 72, spread=False)
    SEL = 26; XRr = 36; vX = 25; vL8 = 46
    ad = [["s_lshl_b32 s72, s63, 2", "s_add_u32 s72, s72, s65"], ["s_lshl_b32 s72, s72, 2", "s_add_u32 s72, s72, s3"],
          ["s_mul_i32 s78, s72, 163840", f"s_add_u32 s78, s78, {WS_PART}"], ["s_mul_i32 s73, s64, 5120", "s_add_u32 s74, s78, s73"],
          ["s_add_u32 s75, s74, 40960", "s_add_u32 s76, s74, 81920"], ["s_add_u32 s77, s74, 122880"],
          ["s_and_b32 s82, s64, 3", "s_mul_i32 s73, s82, 40960"], ["s_add_u32 s78, s78, s73", "s_lshl_b32 s73, s5, 11"], ["s_add_u32 s85, s78, s73"],
          ["s_lshl_b32 s73, s71, 1", "s_xor_b32 s82, s82, s73"], ["s_add_u32 s82, s82, s69", f"s_mul_i32 s83, s82, {16*1152}"],
          ["s_mul_i32 s73, s65, 288", "s_add_u32 s83, s83, s73"], ["s_lshl_b32 s73, s5, 7", "s_add_u32 s83, s83, s73"],
          ["s_mov_b32 s12, s56", "s_mov_b32 s13, s57"], [f"s_mov_b32 s14, {2048*1152}"],
          [f"s_add_u32 s84, s84, {FL_EX - FL_P2}", "s_lshl_b32 s73, s64, 11"], ["s_sub_u32 s90, s84, s73", "s_lshl_b32 s73, s64, 2"], ["s_add_u32 s90, s90, s73"],
          [f"s_mov_b32 s88, {f32bits(-math.log2(math.e)):#x}", "s_mov_b32 s89, 0xffff0000"]]
    ap = sc.add(ad, 16, 70)
    va = [f"v_bfe_u32 v{vX}, v{vL16}, 4, 4", f"v_lshrrev_b32 v{vT2}, 8, v{vL16}", f"v_bfe_u32 v{vL8}, v{vL16}, 6, 2",
          [f"v_cmp_eq_u32 vcc, v{vL8}, v{vT2}", f"v_mov_b32 v{SEL}, 0x3f80", f"v_and_b32 v{vL8}, 16, v{vL16}", f"v_lshlrev_b32 v{SEL}, v{vL8}, v{SEL}",
           f"v_cndmask_b32 v{SEL}, 0, v{SEL}, vcc"],
          [f"v_and_b32 v{vL8}, 32, v{vL16}", f"v_cmp_eq_u32 vcc, 0, v{vL8}", "s_nop 1", f"v_cndmask_b32 v{SEL+2}, 0, v{SEL}, vcc", f"v_cndmask_b32 v{SEL+3}, v{SEL}, 0, vcc"],
          f"v_mov_b32 v{SEL}, 0", f"v_mov_b32 v{SEL+1}, 0", f"v_mov_b32 v{SEL+4}, 0", f"v_mov_b32 v{SEL+5}, 0",
          f"v_mul_u32_u24 v{vX}, 1152, v{vX}", f"v_lshl_add_u32 v{vX}, v{vT2}, 3, v{vX}",
          f"v_lshrrev_b32 v{vL8}, 1, v{vL16}", f"v_add_u32 v{vL8}, 4096, v{vL8}", f"v_lshlrev_b32 v{vT2}, 7, v{vL16}",
          f"v_bfe_u32 v{vB}, v{vL16}, 4, 3", f"v_lshlrev_b32 v{vB}, 2, v{vB}"]
    sc.add(va, 16, 70)
    sc.add([f"buffer_load_dwordx2 {vr(XRr+2*t,2)}, v{vX}, s[32:35], s83 offen offset:{t*32}" for t in range(5)], 74, 110)
    tail = []
    for c in range(5):
        pkx = []
        for u in range(4):
            a = acc(2 * c, u)
            pkx += [f"v_cvt_pk_bf16_f32 v{a}, v{a}, v{a+1}", f"v_cvt_pk_bf16_f32 v{a+1}, v{a+2}, v{a+3}"]
            if c < 4:
                b = acc(2 * c + 1, u)
                pkx += [f"v_cvt_pk_bf16_f32 v{a+2}, v{b}, v{b+1}", f"v_cvt_pk_bf16_f32 v{a+3}, v{b+2}, v{b+3}",
                        f"buffer_store_dwordx4 {vr(a)}, v{vL16}, s[16:19], s{74+u} offen offset:{c*1024} sc1"]
            else:
                pkx += [f"buffer_store_dwordx2 {vr(a,2)}, v{vL8}, s[16:19], s{74+u} offen sc1"]
        if c < 4: sc.add(pkx, done[2 * c + 1] + 4, min(NG, done[2 * c + 1] + 48))
        else: tail = pkx
    e(sc.flat())
    e(tail)
    RB = 48
    for src in range(8): e(f"v_mov_b64 {vr(RB + src*12 + 10, 2)}, 0")
    e(stamp(10))
    e("s_waitcnt vmcnt(0)")
    e(flag_store("s90", 8, vT2, allw=True))
    e(spin(f"buffer_load_dword v{vB+1}, v{vB}, s[16:19], s84 offen sc1", [vB + 1]))
    e(stamp(11))
    order8 = [4, 5, 6, 7, 0, 1, 2, 3]
    for src in order8:
        e(f"s_add_u32 s86, s85, {src*5120}")
        for c in range(2): e(f"buffer_load_dwordx4 {vr(RB + src*12 + 4*c)}, v{vL16}, s[16:19], s86 offen offset:{c*1024} sc1")
    e("s_cmp_eq_u32 s5, 0"); e("s_cselect_b32 s30, 0, s18"); e("s_cselect_b32 s10, 0, s14"); e("s_mov_b32 s8, s56"); e("s_mov_b32 s9, s57")
    for src in order8:
        e(f"s_add_u32 s86, s78, {src*5120}")
        e(f"buffer_load_dwordx2 {vr(RB + src*12 + 8, 2)}, v{vL8}, s[28:31], s86 offen sc1")
    Gs = lambda t: 160 + 4 * t
    Ss = lambda t: 180 + 4 * t
    def redm(src, t):
        d = vr((Gs if src >= 4 else Ss)(t)); first = src in (0, 4)
        return f"{MF} {d}, {vr(SEL + (0 if t & 1 else 2))}, {vr(RB + src*12 + 4*(t >> 1))}, {'0' if first else d}"
    t0 = 200
    def round2(a):
        return [f"v_cvt_pk_bf16_f32 v{t0}, v{a}, v{a+1}", f"v_cvt_pk_bf16_f32 v{t0+1}, v{a+2}, v{a+3}",
                f"v_lshlrev_b32 v{a}, 16, v{t0}", f"v_and_b32 v{a+1}, s89, v{t0}", f"v_lshlrev_b32 v{a+2}, 16, v{t0+1}", f"v_and_b32 v{a+3}, s89, v{t0+1}"]
    def gate(t):
        g = Gs(t); g1 = 204
        return round2(g) + [f"v_mul_f32 v{g1+r}, s88, v{g+r}" for r in range(4)] + [f"v_exp_f32 v{g1+r}, v{g1+r}" for r in range(4)] + \
               [f"v_add_f32 v{g1+r}, 1.0, v{g1+r}" for r in range(4)] + [f"v_rcp_f32 v{g1+r}, v{g1+r}" for r in range(4)] + \
               [pk("v_pk_mul_f32", g + r, g + r, g1 + r) for r in (0, 2)] + round2(g)
    def fin(t):
        g = Gs(t); s0 = Ss(t); x = XRr + 2 * t; g1 = 204
        return round2(s0) + [pk("v_pk_mul_f32", g + r, g + r, s0 + r) for r in (0, 2)] + round2(g) + \
               [f"v_lshlrev_b32 v{g1}, 16, v{x}", f"v_and_b32 v{g1+1}, s89, v{x}", f"v_lshlrev_b32 v{g1+2}, 16, v{x+1}", f"v_and_b32 v{g1+3}, s89, v{x+1}"] + \
               [pk("v_pk_add_f32", g + r, g + r, g1 + r) for r in (0, 2)] + \
               [f"v_cvt_pk_bf16_f32 v{x}, v{g}, v{g+1}", f"v_cvt_pk_bf16_f32 v{x+1}, v{g+2}, v{g+3}",
                f"buffer_store_dwordx2 {vr(x,2)}, v{vX}, s[{'8:11' if t == 4 else '12:15'}], s83 offen offset:{t*32}"]
    for src in order8[:4]:
        for t in range(4): e(redm(src, t))
    for t in range(2): e(gate(t))
    for src in order8[4:]:
        for t in range(4): e(redm(src, t))
    for src in order8: e(redm(src, 4))
    for t in range(2, 4): e(gate(t))
    for t in range(4): e(fin(t))
    e("s_cmp_eq_u32 s5, 0"); e("s_cbranch_scc1 KF_fin")
    e(gate(4)); e(fin(4))
    e("KF_fin:")
    if stamps:
        e(stamp(12)); e("s_waitcnt vmcnt(0)"); e(stamp(13))
        e("s_lshl_b32 s72, s2, 2"); e("s_add_u32 s72, s72, s3"); e("s_lshl_b32 s72, s72, 8"); e(f"s_add_u32 s72, s72, {200<<20}")
        e(f"v_lshrrev_b32 v2, 2, v{vL16}")
        e(f"buffer_store_dword v{STV}, v2, s[16:19], s72 offen")
        if opt.get("dbg"):
            e(f"s_cmp_lg_u32 s2, {opt['dbg']}"); e("s_cbranch_scc1 KF_end"); e("s_cmp_lg_u32 s3, 1"); e("s_cbranch_scc1 KF_end")
            e(srd(20, 58, 64)); e(f"v_readlane_b32 s72, v{STV}, 32"); e("v_subrev_u32 v2, 124, v2"); e(f"v_subrev_u32 v{STV}, s72, v{STV}")
            e("s_mov_b32 exec_lo, 0"); e(f"buffer_store_dword v{STV}, v2, s[20:23], 0 offen")
    e("KF_end:")
    e("s_endpgm")

    for i, blk in enumerate(ool):
        k.begin(name=f"ool{i}")
        e(blk); e("s_endpgm")
    Mx = W + 8; AL = W + 12; TT = W + 16
    k.begin(name="slow_pre")
    e("KF_slow:")
    e("s_waitcnt vmcnt(0) lgkmcnt(0)"); e("s_nop 15")
    for i in range(128): e(f"v_accvgpr_write_b32 a{i}, 0")
    for u in range(4): e(f"v_mov_b32 v{L+u}, 0"); e(f"v_mov_b32 v{Mx+u}, 0xff7fffff")
    e("s_mov_b32 s72, 0"); e("s_mov_b32 s68, s82")
    k.begin(loop=16, name="slow_loop")
    e("KF_sloop:")
    for q in range(4):
        for f in range(4):
            ff = q * 4 + f
            e(f"buffer_load_dwordx4 {KF(1, ff) if ff < 8 else VF(1, ff - 8)}, v{vL16}, s[16:19], s68 offen offset:{f*1024} sc1")
        e("s_add_u32 s68, s68, 4096")
    for u in range(4):
        e(qk(u, lambda f: KF(1, f), zero=True))
        s0 = S(u); m = W + u
        e(f"v_max3_f32 v{m}, v{s0}, v{s0+1}, v{s0+2}"); e(f"v_max3_f32 v{m}, v{m}, v{s0+3}, v{s0+4}")
        e(f"v_max3_f32 v{m}, v{m}, v{s0+5}, v{s0+6}"); e(f"v_max3_f32 v{m}, v{m}, v{s0+7}, v{Mx+u}")
        e(xlane("v_max_f32", m, W + 4))
        e(f"v_sub_f32 v{AL}, v{Mx+u}, v{m}"); e(f"v_exp_f32 v{AL}, v{AL}"); e(f"v_mov_b32 v{Mx+u}, v{m}")
        e(f"v_mul_f32 v{L+u}, v{L+u}, v{AL}")
        for i in range(8):
            e(f"v_sub_f32 v{s0+i}, v{s0+i}, v{m}"); e(f"v_exp_f32 v{s0+i}, v{s0+i}")
        for i in range(8): e(f"v_add_f32 v{L+u}, v{L+u}, v{s0+i}")
        for i in range(4): e(f"v_cvt_pk_bf16_f32 v{P+i}, v{s0+2*i}, v{s0+2*i+1}")
        for dt in range(8):
            for r in range(4): e(f"v_accvgpr_read_b32 v{TT+r}, a{O(dt,u)+r}")
            for r in range(4): e(f"v_mul_f32 v{TT+r}, v{TT+r}, v{AL}")
            for r in range(4): e(f"v_accvgpr_write_b32 a{O(dt,u)+r}, v{TT+r}")
        e(pv(u, 1, 0))
    e("s_add_u32 s72, s72, 1"); e("s_cmp_lt_u32 s72, 16"); e("s_cbranch_scc1 KF_sloop")
    k.begin(name="slow_post")
    e("s_nop 15")
    for u in range(4): e(xlane("v_add_f32", L + u, W + 4))
    e("s_nop 15")
    e("s_branch KF_epi")
    pre = ["p0a", "gemm", "attn_first"]
    k.paths = []
    for na in (1, 2, 4):
        for nl in (1, 2, 3):
            mid = pre + ["attn_loop"] * na + ["attn_last", "oepi"]
            if na > 1 and nl > 1 and (na, nl) != (4, 3): continue
            k.paths.append(mid + ["s_pre"] + ["L0", "L1"] * nl + ["final"])
            k.paths.append(mid + ["g_pre", "L1"] + ["L0", "L1"] * nl + ["final"])
    return kstart(name) + k.finish(), kdesc(name, 512, 256), (name, 256, 256, 163840)
```

```python
from lib import *
from lib import _mk
from common import *
import math

SLOT = 36864
SPARE = 4 * SLOT
MF = "v_mfma_f32_16x16x32_bf16"
QSCALE = math.log2(math.e) / math.sqrt(128.0)
SPIN_MAX = 100000
KNAME = "recurrent_scan__sliding_block_cached__dense_activation_relu__prompt_kernel"

def flat(l): return [x for y in l for x in y]

def gen_kf(name=KNAME, stamps=False, opt=None):
    opt = opt or {}
    k = Kernel(name)
    k.cur.name = 'p0a'
    e = k.e
    vL16, vDQ, vD1, vS0, vP5, vZ, vTOK, vL, vT = 1, 2, 3, 4, 5, 6, 7, 8, 9
    vST = [10, 11, 12, 13]
    vT2 = 14; STV = 15
    XV = 16; QA = 48; AF = 176; NF = 6; LEAD = 4
    FA = 200; T = 232; vB = 248
    vXN = [232, 233, 234, 235]; vKO, vVO = 254, 255
    B1, B3, B5, B7 = 64, 96, 128, 160
    def X(u, s):
        h, idx = u >> 1, s * 2 + (u & 1)
        return ar(h * 128 + idx * 4) if idx < 32 else vr(XV + h * 16 + (idx - 32) * 4)
    def qa(nt, u): return QA + (nt * 4 + u) * 4
    def Qf(u, s): return vr(qa(2 * s, u))
    def fa(a, u): return FA + a * 16 + u * 4
    def stamp(i):
        if not stamps: return []
        return ["s_memtime s[98:99]", "s_waitcnt lgkmcnt(0)", f"v_writelane_b32 v{STV}, s98, {i}",
                "s_memrealtime s[98:99]", "s_waitcnt lgkmcnt(0)", f"v_writelane_b32 v{STV}, s98, {32+i}"]
    def mst(i):
        if not (stamps and opt.get("fine")): return ["s_nop 0"] if False else []
        return ["s_memtime s[98:99]", "s_waitcnt lgkmcnt(0)", "s_nop 0", f"v_writelane_b32 v{STV}, s98, {i}"]
    def C(t): return Inst(t, "cond")
    uid = [0]
    def lab(p): uid[0] += 1; return f"KF_{p}{uid[0]}"
    def flag_store(sreg, nl, voff, allw=False):
        lb = lab("nf")
        m = ["s_mov_b64 exec, %#x" % ((1 << nl) - 1)] if nl < 32 else ["s_mov_b32 exec_hi, 0"]
        body = m + [f"buffer_store_dword v{vTOK}, v{voff}, s[16:19], {sreg} offen sc1", "s_mov_b64 exec, -1"]
        if allw: return body
        return ["s_cmp_lg_u32 s3, 0", f"s_cbranch_scc1 {lb}"] + [C(x) for x in body] + [f"{lb}:"]
    ool = []
    def spin(load, regs, ret=None):
        lb = lab("sp"); dn = ret or lab("sd")
        out = ["s_mov_b32 s73, 0", f"{lb}:", load, "s_waitcnt vmcnt(0)"] + cmpf(regs)
        out += ["s_add_u32 s73, s73, 1", f"s_cmp_ge_u32 s73, {SPIN_MAX}", f"s_cbranch_scc1 {dn}", f"s_cbranch_vccz {dn}", "s_sleep 2", f"s_branch {lb}"]
        if not ret: out.append(f"{dn}:")
        return out
    def cmpf(regs):
        out = []
        if len(regs) > 1:
            out += [f"v_xor_b32 v{r}, v{r}, v{vTOK}" for r in regs]
            out += [f"v_or_b32 v{regs[0]}, v{regs[0]}, v{r}" for r in regs[1:]]
            out += [f"v_cmp_ne_u32 vcc, 0, v{regs[0]}"]
        else:
            out += [f"v_cmp_ne_u32 vcc, v{regs[0]}, v{vTOK}"]
        return out
    def check(load, regs):
        a, b = lab("ck"), lab("cr")
        ool.append([f"{a}:"] + spin(load, regs, b))
        return cmpf(regs), ["s_nop 0", f"s_cbranch_vccnz {a}", f"{b}:"]
    def xlane(op, r, t, both=True):
        o = [f"v_mov_b32 v{t}, v{r}", f"v_permlane32_swap_b32 v{t}, v{r}", f"{op} v{r}, v{r}, v{t}"] if both else []
        return o + [f"v_mov_b32 v{t}, v{r}", f"v_permlane16_swap_b32 v{t}, v{r}", f"{op} v{r}, v{r}, v{t}"]
    def ident(ID, t0, t1):
        o = [f"v_lshrrev_b32 v{t0}, 4, v{vL16}", f"v_and_b32 v{t1}, 15, v{t0}", f"v_lshrrev_b32 v{t0}, 4, v{t0}", f"v_lshlrev_b32 v{t0}, 3, v{t0}",
             f"v_sub_u32 v{t0}, v{t1}, v{t0}", f"v_and_b32 v{t1}, 1, v{t0}", f"v_lshlrev_b32 v{t1}, 4, v{t1}", f"v_mov_b32 v{ID}, 0x3f80",
             f"v_lshlrev_b32 v{t1}, v{t1}, v{ID}", f"v_ashrrev_i32 v{t0}, 1, v{t0}"]
        for h in range(2):
            for r in range(4):
                o.append([f"v_cmp_eq_i32 vcc, {r - 8*h}, v{t0}", "s_nop 1", f"v_cndmask_b32 v{ID+4*h+r}, 0, v{t1}, vcc"])
        return o
    def tr_mf(D, A, ID): return [f"{MF} {vr(D + (h*2+r)*4)}, {vr(A + 4*r)}, {vr(ID + 4*h)}, 0" for h in range(2) for r in range(2)]
    def tr_cvt(o, D, h): return [f"v_cvt_pk_bf16_f32 v{o+2*r+q}, v{D+(h*2+r)*4+2*q}, v{D+(h*2+r)*4+2*q+1}" for r in range(2) for q in range(2)]

    e("s_cmp_ge_u32 s2, 256"); e("s_cbranch_scc1 KF_end")
    if opt.get("scr"):
        e("s_and_b32 s4, s2, 7"); e("s_bfe_u32 s5, s2, 0x30003"); e("s_andn2_b32 s2, s2, 63"); e("s_lshl_b32 s4, s4, 3"); e("s_or_b32 s2, s2, s4"); e("s_or_b32 s2, s2, s5")
    e("s_load_dwordx16 s[40:55], s[0:1], 0")
    e("s_load_dwordx4 s[56:59], s[0:1], 64")
    e("s_load_dwordx2 s[60:61], s[0:1], 80")
    e("s_memrealtime s[38:39]")
    e("v_lshrrev_b32 v20, 6, v0")
    e("v_and_b32 v21, 63, v0")
    e("v_readfirstlane_b32 s3, v20")
    e("s_and_b32 s64, s2, 7"); e("s_bfe_u32 s65, s2, 0x20003")
    e("s_lshl_b32 s62, s64, 2"); e("s_add_u32 s62, s62, s65")
    e("s_lshr_b32 s63, s2, 5")
    e("s_lshl_b32 s66, s63, 5"); e("s_add_u32 s66, s66, s62")
    e("v_lshrrev_b32 v22, 5, v0"); e("v_mul_u32_u24 v22, 1152, v22")
    e("v_and_b32 v23, 31, v21"); e("v_lshl_add_u32 v22, v23, 4, v22")
    e("s_mul_i32 s67, s66, 9216")
    for r in range(56, 60): e(f"v_mov_b32 v{r}, 0")
    e(f"v_mov_b32 v{vZ}, 0")
    e(f"v_lshlrev_b32 v{vL16}, 4, v21")
    e("s_waitcnt lgkmcnt(0)")
    e(srd(32, 40, 2048 * 1152))
    e(f"buffer_load_dwordx4 {vr(48)}, v22, s[32:35], s67 offen")
    e(f"buffer_load_dwordx4 {vr(52)}, v22, s[32:35], s67 offen offset:512")
    e("s_mov_b32 exec_lo, 0xff"); e("s_mov_b32 exec_hi, 0xff")
    e(f"buffer_load_dwordx4 {vr(56)}, v22, s[32:35], s67 offen offset:1024")
    e("s_mov_b64 exec, -1")
    e(stamp(0))
    e(srd(8, 46, 576 * 8192)); e(srd(20, 58, 256))
    e("s_or_b32 s77, s2, s3"); e("s_cbranch_scc1 KF_w0")
    e(C("s_or_b32 s38, s38, 1")); e(C("v_mov_b32 v28, s38")); e(C("s_mov_b64 exec, 1"))
    e(C(f"buffer_store_dword v28, v{vZ}, s[20:23], 0 offen sc1")); e(C("s_mov_b64 exec, -1"))
    e("KF_w0:")
    e(srd(16, 60, WS_SIZE)); e(srd(12, 52, 576 * 9216)); e(srd(24, 42, 8388608)); e(srd(28, 44, 8388608))
    e("v_lshrrev_b32 v28, 1, v21"); e("v_and_b32 v29, 1, v21"); e("v_lshlrev_b32 v29, 7, v29")
    e("v_lshl_add_u32 v34, v28, 13, v29"); e("v_mul_u32_u24 v35, 9216, v28"); e("v_add_u32 v35, v35, v29"); e("v_mul_u32_u24 v33, 9216, v21")
    e("s_lshl_b32 s77, s63, 2"); e("s_add_u32 s77, s77, s3"); e(f"s_mul_i32 s4, s77, {18*8192}"); e(f"s_mul_i32 s5, s77, {18*9216}")
    e("s_lshr_b32 s70, s62, 1"); e("s_and_b32 s71, s62, 1")
    e("s_lshl_b32 s6, s70, 6"); e("s_add_u32 s6, s6, s5"); e("s_add_u32 s6, s6, 8192")
    e("s_lshl_b32 s79, s62, 8"); e("s_add_u32 s4, s4, s79"); e("s_add_u32 s5, s5, s79")
    wq_touch = ["s_mov_b32 exec_hi, 15", Inst("buffer_load_dword v31, v34, s[8:11], s4 offen", "tch"), "s_mov_b64 exec, -1"]
    w1_touch = ["s_mov_b32 exec_hi, 15", Inst("buffer_load_dword v31, v35, s[12:15], s5 offen", "tch"),
                "s_mov_b64 exec, 0x3ffff", Inst("buffer_load_dword v31, v33, s[12:15], s6 offen", "tch"), "s_mov_b64 exec, -1"]
    ORD = opt.get("ord", 3)
    CPF = opt.get("codepf", 1)
    code_touch = ["s_getpc_b64 s[68:69]", "KF_pc:", f"s_sub_u32 s96, s68, KF_pc-{name}", "s_subb_u32 s97, s69, 0", f"s_mov_b32 s98, KF_codeend-{name}", "s_mov_b32 s99, 0x20000",
                  "s_lshr_b32 s94, s2, 3", "s_lshl_b32 s94, s94, 2", "s_add_u32 s94, s94, s3", "s_lshl_b32 s94, s94, 9",
                  "v_lshlrev_b32 v27, 7, v21", "s_mov_b64 exec, 15", Inst("buffer_load_dword v31, v27, s[96:99], s94 offen", "tch"), "s_mov_b64 exec, -1"]
    if CPF == 1: e(code_touch)
    if ORD == 0: e(wq_touch)
    e("v_and_b32 v24, 15, v21"); e("v_lshrrev_b32 v25, 4, v21")
    e(f"v_lshlrev_b32 v{vKO}, 8, v24"); e(f"v_lshl_add_u32 v{vVO}, v25, 4, v{vKO}"); e(f"v_lshl_add_u32 v{vKO}, v25, 3, v{vKO}")
    e("v_lshrrev_b32 v28, 5, v21"); e("v_lshlrev_b32 v29, 1, v28"); e("v_and_b32 v30, 3, v21"); e("v_xor_b32 v29, v29, v30")
    e("v_lshlrev_b32 v29, 4, v29"); e("v_lshrrev_b32 v32, 2, v21")
    e(f"v_lshl_add_u32 v{vDQ}, v32, 13, v29")
    e(f"v_mul_u32_u24 v{vD1}, 9216, v32"); e(f"v_add_u32 v{vD1}, v{vD1}, v29")
    e(f"v_mul_u32_u24 v{vP5}, 288, v32"); e(f"v_lshl_add_u32 v{vP5}, v30, 3, v{vP5}")
    e("v_bfe_u32 v32, v21, 2, 2"); e("v_lshlrev_b32 v32, 6, v32"); e("v_lshl_add_u32 v32, v30, 3, v32")
    e("v_and_b32 v26, 1, v25"); e("v_lshl_add_u32 v32, v26, 5, v32")
    e(f"v_lshl_add_u32 v{vS0}, v25, 9, v32")
    e("v_lshl_add_u32 v32, v26, 9, v32"); e(f"v_lshl_add_u32 v{vB}, v28, 12, v32"); e(f"v_xor_b32 v{vB+1}, 32, v{vB}")
    for r in range(2, 6): e(f"v_add_u32 v{vB+r}, 0x10000, v{vB+r-2}")
    e("s_lshl_b32 s69, s63, 4"); e("s_lshl_b32 s78, s3, 2"); e("s_add_u32 s69, s69, s78"); e("s_lshl_b32 s78, s71, 1")
    for u in range(4):
        e(f"s_xor_b32 s79, s78, {u}"); e("s_add_u32 s79, s79, s69")
        e("s_mul_i32 s80, s79, 18432"); e(f"v_add_u32 v{vXN[u]}, s80, v{vL16}")
        e(f"s_mul_i32 s80, s79, {272*1024}"); e(f"v_add_u32 v{vST[u]}, s80, v{vL16}")
    e("v_lshrrev_b32 v36, 5, v0"); e("v_and_b32 v37, 7, v21"); e("v_xor_b32 v36, v36, v37"); e("v_lshlrev_b32 v36, 4, v36")
    e("v_lshl_add_u32 v36, v23, 7, v36"); e(f"v_add_u32 v36, {SPARE}, v36")
    e("v_lshrrev_b32 v38, 3, v21"); e("v_xor_b32 v39, v38, v37"); e("v_lshlrev_b32 v39, 4, v39"); e("v_lshl_add_u32 v39, v38, 7, v39"); e(f"v_add_u32 v39, {SPARE}, v39")
    e("v_lshlrev_b32 v38, 8, v38"); e("v_lshl_add_u32 v38, v37, 4, v38")
    e("s_lshl_b32 s72, s63, 1"); e("s_add_u32 s72, s72, s71")
    e("s_lshl_b32 s73, s70, 19"); e("s_lshl_b32 s74, s72, 13"); e("s_add_u32 s73, s73, s74"); e(f"s_add_u32 s73, s73, {1536*256}")
    e("s_lshl_b32 s74, s3, 6"); e("s_add_u32 s87, s73, s74"); e("s_add_u32 s88, s87, 4096")
    e("s_lshr_b32 s74, s3, 1"); e("s_lshl_b32 s74, s74, 12"); e("s_add_u32 s73, s73, s74")
    e("s_and_b32 s74, s3, 1"); e("s_lshl_b32 s74, s74, 7"); e("s_add_u32 s89, s73, s74")
    e("s_lshl_b32 s82, s70, 18"); e(f"s_add_u32 s82, s82, {WS_KVP}")
    e("s_lshl_b32 s93, s72, 14"); e("s_add_u32 s93, s93, s82"); e("s_lshl_b32 s78, s3, 11"); e("s_add_u32 s93, s93, s78"); e("s_add_u32 s95, s93, 8192")
    e("s_lshl_b32 s90, s70, 7"); e(f"s_add_u32 s90, s90, {FL_KV}"); e("s_lshl_b32 s91, s72, 2"); e("s_add_u32 s91, s91, s90")
    e(f"s_mul_i32 s77, s3, {144*9216}"); e("s_lshl_b32 s79, s62, 8"); e("s_add_u32 s79, s79, s77")
    e("s_lshl_b32 s80, s70, 6"); e("s_add_u32 s80, s80, s77"); e("s_add_u32 s80, s80, 8192")
    e("s_mul_i32 s81, s3, 9216")
    e("s_lshl_b32 s83, s62, 12"); e(f"s_add_u32 s83, s83, {WS_ACT}"); e(f"s_add_u32 s84, s83, {128*1024}")
    e("s_lshl_b32 s85, s70, 10"); e(f"s_add_u32 s85, s85, {WS_ACT + 256*1024}")
    e(f"s_mov_b32 s86, {f32bits(QSCALE):#x}")
    e("s_lshl_b32 s37, s62, 8"); e("s_lshl_b32 s67, s3, 6"); e("s_add_u32 s37, s37, s67"); e("s_lshl_b32 s67, s3, 10")
    for i in range(5): e(f"s_mov_b32 s{74+i}, {WS_XN + i*4096}")
    e("s_lshr_b32 s7, s66, 1"); e("s_mul_i32 s7, s7, 18432"); e("s_lshl_b32 s72, s71, 7"); e("s_add_u32 s7, s7, s72")
    e("s_lshl_b32 s36, s63, 12"); e("s_lshl_b32 s72, s62, 2"); e("s_add_u32 s36, s36, s72"); e(f"s_add_u32 s36, s36, {FL_LN}")
    Fv = 64
    for d in range(12):
        e(f"v_lshlrev_b32 v{Fv+2*d}, 16, v{48+d}"); e(f"v_and_b32 v{Fv+2*d+1}, 0xffff0000, v{48+d}")
    e(f"buffer_load_dword v{vTOK}, v{vZ}, s[20:23], 0 offen sc1", "tch")
    if ORD == 1: e(wq_touch)
    if CPF == 2: e([x.replace("s[68:69]", "s[100:101]").replace("s68", "s100").replace("s69", "s101") if isinstance(x, str) else x for x in code_touch])
    e(stamp(1))
    def pk(op, d, a, b): return f"{op} {vr(d,2)}, {vr(a,2)}, {vr(b,2)}"
    e(pk("v_pk_add_f32", 40, Fv, Fv + 2)); e(pk("v_pk_add_f32", 42, Fv + 4, Fv + 6))
    for d in range(8, 24, 2): e(pk("v_pk_add_f32", 40 + (d & 2), 40 + (d & 2), Fv + d))
    def red(r):
        e(pk("v_pk_add_f32", r, r, r + 2)); e(f"v_add_f32 v{r}, v{r}, v{r+1}")
        for sh in (8, 4, 2, 1): e(f"v_add_f32_dpp v{r}, v{r}, v{r} row_ror:{sh} row_mask:0xf bank_mask:0xf")
        e(xlane("v_add_f32", r, r + 1, both=False))
    red(40)
    e(f"v_mul_f32 v40, {f32bits(-1.0/576):#x}, v40"); e("v_mov_b32 v41, v40")
    e("v_cvt_pk_bf16_f32 v44, v40, v40"); e("v_lshlrev_b32 v44, 16, v44"); e("v_mov_b32 v45, v44")
    for d in range(0, 24, 2):
        if d == 16: e("s_mov_b32 exec_lo, 0xff"); e("s_mov_b32 exec_hi, 0xff")
        t = 92 + (d & 2); a = 88 + (d & 2)
        e(pk("v_pk_add_f32", t, Fv + d, 40))
        if d < 4: e(pk("v_pk_mul_f32", a, t, t))
        else: e(f"v_pk_fma_f32 {vr(a,2)}, {vr(t,2)}, {vr(t,2)}, {vr(a,2)}")
    e("s_mov_b64 exec, -1")
    for d in range(0, 24, 2):
        e(pk("v_pk_add_f32", Fv + d, Fv + d, 44)); e(f"v_cvt_pk_bf16_f32 v{48+d//2}, v{Fv+d}, v{Fv+d+1}")
    red(88)
    def rbf(r): e(f"v_cvt_pk_bf16_f32 v{r}, v{r}, v{r}"); e(f"v_lshlrev_b32 v{r}, 16, v{r}")
    e(f"v_mul_f32 v88, {f32bits(1.0/576):#x}, v88"); rbf(88)
    e(f"v_add_f32 v88, {f32bits(1e-5):#x}, v88"); rbf(88)
    e("v_sqrt_f32 v88, v88")
    for d in range(12):
        e(f"v_lshlrev_b32 v{Fv+2*d}, 16, v{48+d}"); e(f"v_and_b32 v{Fv+2*d+1}, 0xffff0000, v{48+d}")
        if d == 0: rbf(88)
        if d == 1: e("v_rcp_f32 v90, v88")
        if d == 2: e("v_fma_f32 v91, -v88, v90, 2.0")
        if d == 3: e("v_mul_f32 v90, v90, v91"); e("v_mov_b32 v91, v90")
    for d in range(12):
        e(pk("v_pk_mul_f32", Fv + 2 * d, Fv + 2 * d, 90)); e(f"v_cvt_pk_bf16_f32 v{48+d}, v{Fv+2*d}, v{Fv+2*d+1}")
        if d % 4 == 3:
            if d == 11: e("s_mov_b32 exec_lo, 0xff"); e("s_mov_b32 exec_hi, 0xff")
            e(f"ds_write_b128 v36, {vr(48 + d - 3)} offset:{(d//4)*4096}")
    e("s_mov_b64 exec, -1")
    e("s_waitcnt lgkmcnt(0)")
    e("s_barrier")
    e(stamp(2))
    e("s_cmp_lg_u32 s3, 0"); e("s_cbranch_scc1 KF_x123")
    w0 = [f"ds_read_b128 {vr(136+4*q)}, v39 offset:{q*1024}" for q in range(9)]
    for q in range(9):
        w0 += [f"s_waitcnt lgkmcnt({8-q})", f"buffer_store_dwordx4 {vr(136+4*q)}, v38, s[16:19], s7 offen offset:{(q%2)*2048} sc1"]
        if q % 2: w0 += ["s_add_u32 s7, s7, 4096"]
    w0 += ["v_lshlrev_b32 v38, 7, v21", "s_mov_b32 s73, 0"] + mst(62) + ["KF_tk:", "s_waitcnt vmcnt(0)", f"v_cmp_eq_u32 vcc, 0, v{vTOK}",
           "s_add_u32 s73, s73, 1", f"s_cmp_ge_u32 s73, {SPIN_MAX}",
           "s_cbranch_scc1 KF_tkd", "s_cbranch_vccz KF_tkd", f"buffer_load_dword v{vTOK}, v{vZ}, s[20:23], 0 offen sc1", "s_branch KF_tk", "KF_tkd:"]
    w0 += mst(63) + flag_store("s36", 32, 38, allw=True)
    w0 += [f"v_mov_b32 v39, {SPARE + 12288}", f"ds_write_b32 v39, v{vTOK}"]
    for x in w0: e(x if x.endswith(":") else C(x))
    e("KF_x123:")
    if ORD == 3: e("s_barrier")
    if ORD >= 2: e(wq_touch)
    def wq_piece(b):
        return [[f"s_add_u32 m0, s67, {b*4096}", f"s_add_u32 s68, s37, {b*131072}"],
                Inst(f"buffer_load_dwordx4 v{vDQ}, s[8:11], s68 offen lds", "wq")]
    NPW = opt.get("npw", 12); XD = opt.get("xd", 2); XEND = opt.get("xend", 9)
    e(srd(20, 60, WS_SIZE))
    for b in range(NPW): e(wq_piece(b))
    if opt.get("w1pf", 2) == 2: e(w1_touch)
    e(stamp(3))
    e("s_cmp_lg_u32 s3, 0"); e("s_cbranch_scc1 KF_y123")
    pl = ["v_lshlrev_b32 v38, 2, v23", "s_lshl_b32 s72, s66, 7", f"s_add_u32 s72, s72, {FL_LN}"]
    pl += spin("buffer_load_dword v39, v38, s[16:19], s72 offen sc1", [39])
    for x in pl: e(x if x.endswith(":") else C(x))
    e("KF_y123:")
    k.wait_tags("wq", skip=NPW - 12)
    e("s_waitcnt lgkmcnt(0)")
    e("s_barrier")
    e(stamp(4))
    def xn_load(u, s):
        return Inst(f"buffer_load_dwordx4 {X(u, s)}, v{vXN[u]}, s[16:19], s{74 + s//4} offen offset:{(s%4)*1024} sc1", "xn")
    for s in range(XD):
        for u in range(4): e(xn_load(u, s))
    if opt.get("w1pf", 2) == 1: e(w1_touch)
    e(f"v_mov_b32 v39, {SPARE + 12288}"); e(f"ds_read_b32 v{vTOK}, v39")

    k.begin(name="gemm")
    class Frags:
        def __init__(s, af): s.mf = []; s.fr = []; s.af = af
        def add(s, vbase, off, ms, d2=256):
            b = s.af + (len(s.fr) % NF) * 4
            s.fr.append((len(s.mf), len(ms), [f"ds_read_b64_tr_b16 {vr(b,2)}, v{vbase} offset:{off}",
                                              f"ds_read_b64_tr_b16 {vr(b+2,2)}, v{vbase} offset:{off+d2}"], vr(b)))
            s.mf += [m.replace("@A", vr(b)) for m in ms]
        def sched(s, wrap=False):
            sc = Sched(s.mf); fr = s.fr; N = len(fr)
            for f in range(N):
                g0, n, _, _ = fr[f]
                if f + LEAD < N or wrap:
                    sc.put(g0, fr[(f + LEAD) % N][2][0]); sc.put(g0 + 1, fr[(f + LEAD) % N][2][1])
                if (f + 1 < N or wrap) and (n == 4 or f % 2 == 0):
                    sc.put(g0 + 1, WaitRegs(*([fr[(f + 1) % N][3]] + ([fr[f + 2][3]] if n == 2 and f + 2 < N else []))))
            return sc
    G = Frags(AF); pos = {}
    KL, VL, VD, VO, ID = 200, 208, 216, 232, 240
    KVS = opt.get("kvs", 15)
    for s in range(18):
        pos["Q", s] = len(G.mf)
        if s == KVS: G.mf += tr_mf(VD, VL, ID)
        for nt in range(8):
            G.add(vB + 2 * (s // 8) + (nt & 1), (s % 8) * 8192 + (nt >> 1) * 1024,
                  [f"{MF} {vr(qa(nt,u))}, @A, {X(u,s)}, {'0' if s == 0 else vr(qa(nt,u))}" for u in range(4)])
    S = lambda u: (B1 if u < 2 else B3) + (u & 1) * 8
    def KF(b, f): return ar(128 + b * 32 + f * 4)
    def VF(b, f): return ar(192 + b * 32 + f * 4)
    K0F = lambda f: vr(B5 + f * 4) if f < 4 else vr(B7 + (f - 4) * 4)
    NEGM = B5; P = B7; L = XV + 16; FL = XV + 24
    def qk(u, kf, zero=False):
        out = []
        for s in range(4):
            for kt in range(2):
                c = vr(S(u) + 4 * kt)
                out.append(f"{MF} {c}, {kf(kt*4+s)}, {Qf(u, s)}, {c if s else ('0' if zero else vr(NEGM + 4*u))}")
        return out
    sb = lambda st, a: vB + (st & 1) * 2 + a
    for st in range(5):
        us = (0, 1) if st == 4 else (0, 1, 2, 3)
        for f in range(36):
            a, s = f // 18, f % 18
            pos["F", st, f] = len(G.mf)
            if st == 3 and f == 8:
                pos["QK0"] = len(G.mf)
                for u in range(4): G.mf += qk(u, K0F, zero=True)
                pos["QK0e"] = len(G.mf)
            G.add(sb(st, a), s * 2048, [f"{MF} {vr(fa(a,u))}, @A, {X(u,s)}, {'0' if s == 0 else vr(fa(a,u))}" for u in us])
    END = len(G.mf)
    for f in range(LEAD): e(G.fr[f][2])
    sc = G.sched()
    F = lambda st, f: pos["F", st, f]
    Qp = lambda s: pos["Q", s] if s < 18 else F(0, 0)
    def bar(g, *w): sc.put(g, list(w) + ["s_barrier"])
    bar(Qp(5) + 2, WaitTag(["wq"], 0))
    bar(Qp(9) + 2)
    bar(Qp(14) + 2, WaitTag(["dma"], 9))
    bar(F(0, 0) + 6, WaitTag(["dma"], 9))
    bar(F(0, 18) + 2, WaitTag(["kvst"], 0))
    bar(F(1, 0) + 6, WaitTag(["dma"], 9))
    bar(F(2, 0) + 6, WaitTag(["dma"], 9))
    bar(F(3, 0) + 6, WaitTag(["dma", "kv0"], 9))
    bar(F(4, 2), WaitTag(["dma"], 9))
    for s in range(17): sc.add([WaitRegs(*[X(u, s + 1) for u in range(4)])], Qp(s + 1) - 4, Qp(s + 1), spread=False)
    xp = sc.add([xn_load(u, s) for s in range(XD, 18) for u in range(4)], 2, Qp(XEND))
    for i, g in enumerate(xp): assert g < Qp(XD + i // 4) - 24, (i, g)
    sc.add(flat([wq_piece(b) for b in range(NPW, 36)]), 2, Qp(4) + 8)
    def w1_piece(st, p):
        base = "s80" if st == 4 else "s79"; col = 0 if st == 4 else st * 64
        return [[f"s_add_u32 m0, s81, {(st % 4)*SLOT + p*1024}", f"s_add_u32 s68, {base}, {col + p*16*9216}"],
                Inst(f"buffer_load_dwordx4 v{vD1}, s[12:15], s68 offen lds", "dma")]
    def lin_pieces(ldsb, ldsoff, src, srcoff, n=9, tag="dma"):
        out = []
        for p in range(n):
            if p % 4 == 0: out.append([f"s_add_u32 m0, {ldsb}, {ldsoff + p*1024}", f"s_add_u32 s68, {src}, {srcoff + p*1024}"])
            out.append(Inst(f"buffer_load_dwordx4 v{vL16}, s[20:23], s68 offen offset:{(p%4)*1024} sc1 lds", tag))
        return out
    sc.add(flat([w1_piece(0, p) for p in range(9)]), Qp(opt.get("f0at", 6)), Qp(9))
    kvl = []
    for f in range(2):
        kvl += [f"buffer_load_dwordx2 {vr(KL+4*f,2)}, v{vKO}, s[24:27], s89 offen offset:{f*64}", f"buffer_load_dwordx2 {vr(KL+2+4*f,2)}, v{vKO}, s[24:27], s89 offen offset:{f*64+32}"]
    kvl += [f"buffer_load_dwordx4 {vr(VL)}, v{vVO}, s[28:31], s87 offen", f"buffer_load_dwordx4 {vr(VL+4)}, v{vVO}, s[28:31], s88 offen"]
    sc.add(kvl, Qp(XEND) + 3, Qp(XEND + 1))
    sc.add(flat([w1_piece(1, p) for p in range(9)]), Qp(XEND + 1), Qp(14))
    sc.add(ident(ID, vT, vL), Qp(XEND + 1), Qp(KVS - 1))
    sc.add([WaitRegs(vr(VL), vr(VL + 4))], Qp(KVS) - 3, Qp(KVS), spread=False)
    kst = [Inst(f"buffer_store_dwordx4 {vr(KL+4*f)}, v{vL16}, s[16:19], s93 offen offset:{f*1024} sc1", "kvst") for f in range(2)]
    for h in range(2):
        kst += tr_cvt(VO + 4 * h, VD, h) + [Inst(f"buffer_store_dwordx4 {vr(VO+4*h)}, v{vL16}, s[16:19], s95 offen offset:{h*1024} sc1", "kvst")]
    sc.add(kst, Qp(KVS) + 6, Qp(KVS + 1) + 16)
    sc.add(flat([w1_piece(2, p) for p in range(9)]), Qp(14) + 3, Qp(17) + 24)
    sc.add(flat([w1_piece(3, p) for p in range(9)]), F(0, 2), F(0, 17))
    sc.add([flag_store("s91", 1, vZ)], F(0, 18) + 3, F(0, 18) + 8)
    sc.add(flat([w1_piece(4, p) for p in range(9)]), F(1, 2), F(1, 26))
    kvld = f"buffer_load_dword v{vT2}, v{vT}, s[16:19], s90 offen sc1"
    sc.add([f"v_bfe_u32 v{vT}, v{vL16}, 4, 4", f"v_lshlrev_b32 v{vT}, 2, v{vT}", kvld], F(1, 26), F(1, 30))
    c1, c2 = check(kvld, [vT2])
    sc.add([c1 + c2], F(2, 2), F(2, 3))
    kv0 = [["s_lshl_b32 s72, s3, 12", "s_add_u32 s70, s82, s72"]] + lin_pieces("s72", SPARE, "s70", 0, 4, "kv0") + [["s_add_u32 s92, s82, s81"]]
    sc.add(kv0 + lin_pieces("s81", 1 * SLOT, "s92", 16384), F(2, 3), F(2, 30))
    sc.add(lin_pieces("s81", 2 * SLOT, "s92", 16384 + 32768), F(3, 2), F(3, 30))
    sc.add(lin_pieces("s81", 3 * SLOT, "s92", 16384 + 65536), F(4, 3), F(4, 30))
    sc.add([f"v_mov_b32 v{vB}, v{vS0}", f"v_xor_b32 v{vB+1}, 32, v{vS0}"], Qp(16), Qp(17))
    for st in range(1, 5):
        sc.add([f"v_add_u32 v{sb(st,0)}, {(st % 4)*SLOT}, v{vS0}", f"v_xor_b32 v{sb(st,1)}, 32, v{sb(st,0)}"], F(st - 1, 4), F(st - 1, 20))
    def epi_a(us): return flat([[f"v_cvt_pk_bf16_f32 v{T+4*u}, v{fa(0,u)}, v{fa(0,u)+1}", f"v_cvt_pk_bf16_f32 v{T+4*u+1}, v{fa(0,u)+2}, v{fa(0,u)+3}",
                                 f"v_pk_max_i16 v{T+4*u}, v{T+4*u}, 0", f"v_pk_max_i16 v{T+4*u+1}, v{T+4*u+1}, 0"] for u in us])
    def epi_b(st, us):
        so, off = ("s85", 0) if st == 4 else ("s84", st * 1024)
        return flat([[f"v_cvt_pk_bf16_f32 v{T+4*u+2}, v{fa(1,u)}, v{fa(1,u)+1}", f"v_cvt_pk_bf16_f32 v{T+4*u+3}, v{fa(1,u)+2}, v{fa(1,u)+3}",
                      f"v_pk_max_i16 v{T+4*u+2}, v{T+4*u+2}, 0", f"v_pk_max_i16 v{T+4*u+3}, v{T+4*u+3}, 0",
                      Inst(f"buffer_store_dwordx4 {vr(T+4*u)}, v{vST[u]}, s[16:19], {so} offen offset:{off} sc1", "st")] for u in us])
    for st in range(5):
        us = (0, 1) if st == 4 else (0, 1, 2, 3)
        sc.add(epi_a(us), F(st, 20 if st < 4 else 22), F(st, 34))
        if st: sc.add(epi_b(st - 1, (0, 1, 2, 3)), F(st, 2 if st < 4 else 4), F(st, 16))
    qe = []
    for s in range(4):
        for u in range(4):
            a, b = qa(2 * s, u), qa(2 * s + 1, u)
            qe += [f"v_mul_f32 v{r}, s86, v{r}" for r in list(range(a, a + 4)) + list(range(b, b + 4))]
            qe += [f"v_cvt_pk_bf16_f32 v{a}, v{a}, v{a+1}", f"v_cvt_pk_bf16_f32 v{a+1}, v{a+2}, v{a+3}",
                   f"v_cvt_pk_bf16_f32 v{a+2}, v{b}, v{b+1}", f"v_cvt_pk_bf16_f32 v{a+3}, v{b+2}, v{b+3}"]
    sc.add(qe, F(0, 1), F(2, 30), spread=False)
    sc.add([f"v_add_u32 v{vL}, {SPARE}, v{vL16}"], F(2, 30), F(2, 34))
    sc.add([f"ds_read_b128 {K0F(f)}, v{vL} offset:{f*1024}" for f in range(8)], F(3, 1) + 3, F(3, 7))
    sc.add([WaitRegs(*[K0F(f) for f in range(8)])], pos["QK0"] - 2, pos["QK0"], spread=False)
    M = lambda u: NEGM + 4 * u
    pa = []
    for u in range(4):
        s0 = S(u); m = M(u)
        pa += [f"v_max3_f32 v{m}, v{s0}, v{s0+1}, v{s0+2}", f"v_max3_f32 v{m}, v{m}, v{s0+3}, v{s0+4}",
               f"v_max3_f32 v{m}, v{m}, v{s0+5}, v{s0+6}", f"v_max_f32 v{m}, v{m}, v{s0+7}"]
    xl = [xlane("v_max_f32", M(u), M(u) + 1) for u in range(4)]
    for i in range(6): pa += [xl[u][i] for u in range(4)]
    for u in range(4):
        pa += [f"v_sub_f32 v{S(u)+i}, v{S(u)+i}, v{M(u)}" for i in range(8)] + [f"v_sub_f32 v{M(u)+i}, 0, v{M(u)}" for i in (3, 2, 1, 0)]
    for u in range(4): pa += [f"v_exp_f32 v{S(u)+i}, v{S(u)+i}" for i in range(8)]
    for u in range(4): pa += [f"v_cvt_pk_bf16_f32 v{P+4*u+i}, v{S(u)+2*i}, v{S(u)+2*i+1}" for i in range(4)]
    pp = sc.add(pa, pos["QK0e"] + 3, F(4, 6), spread=False)
    pl = []
    for u in range(4):
        s0 = S(u)
        pl += [f"v_add_f32 v{L+u}, v{s0}, v{s0+2}", f"v_add_f32 v{L+4+u}, v{s0+1}, v{s0+3}"]
        pl += [f"v_add_f32 v{L+u+4*(i&1)}, v{L+u+4*(i&1)}, v{s0+i}" for i in range(4, 8)]
    sc.add(pl, max(F(4, 1), pp[-1] + 1), END)
    sc.add([f"ds_read_b128 {VF(0, f)}, v{vL} offset:{8192 + f*1024}" for f in range(8)], F(4, 32), END, spread=False, mind=1)
    if stamps and opt.get("fine"):
        for i, g in enumerate([Qp(1), Qp(3), Qp(5), Qp(5) + 4, Qp(7), Qp(9), Qp(11), Qp(13), Qp(15), Qp(17), F(0, 0), F(0, 18), F(1, 0), F(2, 0), F(2, 6), F(3, 0), pos["QK0"], F(4, 0)]):
            sc.gap[g] = sc.gap[g] + [_mk(x) for x in mst(14 + i)]
    e(sc.flat())
    e(stamp(5))

    def O(dt, u): return (dt * 4 + u) * 4
    def pv(u, b, pb, zero=False):
        return [f"{MF} {ar(O(dt, u))}, {VF(b, dt)}, {vr(P + 4*pb)}, {'0' if zero else ar(O(dt, u))}" for dt in range(8)]
    vD = list(range(16, 25)); vDW = list(range(176, 185)); vTW = 185
    def softmax(u):
        s0 = S(u); sm = []
        for i in range(4):
            a = s0 + 2 * i
            sm += [f"v_exp_f32 v{a}, v{a}", f"v_exp_f32 v{a+1}, v{a+1}"]
            if i: sm += [f"v_add_f32 v{L+u}, v{L+u}, v{a-2}", f"v_add_f32 v{L+4+u}, v{L+4+u}, v{a-1}", f"v_cvt_pk_bf16_f32 v{P+4*u+i-1}, v{a-2}, v{a-1}"]
        return sm + [f"v_cvt_pk_bf16_f32 v{P+4*u+3}, v{s0+6}, v{s0+7}", f"v_add_f32 v{L+u}, v{L+u}, v{s0+6}", f"v_add_f32 v{L+4+u}, v{L+4+u}, v{s0+7}"]
    def ring_dma():
        dm = []
        for p in range(9):
            if p % 4 == 0: dm.append([f"s_add_u32 m0, s94, {p*1024}"])
            dm.append(Inst(f"buffer_load_dwordx4 v{vD[p]}, s[20:23], s92 offen offset:{(p%4)*1024} sc1 lds", "dma"))
        return dm + [["s_add_u32 s92, s92, s97"], [f"s_add_u32 s94, s94, {SLOT}"], [f"s_cmp_ge_u32 s94, {4*SLOT}", "s_cselect_b32 s94, s81, s94"]]
    adv_rd = [[f"s_add_u32 s96, s96, {SLOT}"], [f"s_cmp_eq_u32 s96, {4*SLOT}", "s_cselect_b32 s96, 0, s96"]]
    hfl = f"buffer_load_dword v{FL}, v{vT}, s[16:19], s84 offen sc1"
    def attn_iter(kind):
        first, last = kind == "first", kind == "last"
        mf = []; base = []
        for sl in range(8):
            base.append(len(mf))
            t2 = sl + 2; kb = (t2 // 4) & 1
            if not (last and sl >= 6) and not (first and sl < 2): mf += qk(t2 % 4, lambda f: KF(kb, f))
            mf += pv(sl % 4, (sl // 4) & 1, sl % 4, zero=(first and sl < 4))
        base.append(len(mf))
        sc = Sched(mf)
        for sl in range(8):
            u, half = sl % 4, sl // 4
            n = base[sl + 1] - base[sl]
            if not (last and half == 1):
                nb = (half + 1) & 1
                for i in range(4):
                    f = (u & 1) * 4 + i
                    d, o = (KF(nb, f), 0) if u < 2 else (VF(nb, f), 8192)
                    g = f if n == 8 else base[sl] + (3 + 4 * i if u != 1 else (2, 3, 6, 7)[i])
                    sc.put(g, f"ds_read_b128 {d}, v{vL} offset:{half*16384 + o + f*1024}")
            if u == 1 and not (last and half == 1):
                sc.put(base[sl + 1] - (3 if n == 16 else 1), WaitRegs(*[KF((half + 1) & 1, f) for f in range(8)]))
            if u == 0 and n == 16: sc.put(base[sl] + 5, WaitRegs(*[VF(half & 1, f) for f in range(8)]))
        gb = base[1] + 11
        sc.put(gb, [WaitTag(["dma"] if first else ["dma", "st"], 9), "s_barrier"])
        dm = ring_dma() + adv_rd
        if kind == "loop" and opt.get("wt", 1):
            dm += [[Inst("s_mov_b64 exec, 0x3fff"), Inst(f"buffer_load_dword v{vTW+1}, v{vTW}, s[24:27], s89 offen", "tch"), Inst("s_mov_b64 exec, -1")],
                   [f"s_add_u32 s89, s89, {1792*128}"]]
        if last: dm = [hfl] + dm
        if first:
            sc.add([f"v_add_u32 v{vD[p]}, {(p - p % 4)*1024}, v{vL16}" for p in range(9)], 1, gb, spread=False)
            sc.add(epi_b(4, (0, 1)), 6, gb)
        sc.add(dm, gb + 1, base[8] - 2)
        for sl in range(8):
            if (last and sl == 7) or (first and sl < 3): continue
            hi = base[sl + 1] + (4 if sl < 7 and not (last and sl >= 5) else 0)
            sc.add(softmax((sl + 1) % 4), base[sl], hi, spread=False)
        if first:
            dw = [f"v_lshrrev_b32 v{vT2}, 4, v{vL16}", f"v_lshlrev_b32 v{vTW}, 3, v{vL16}"]
            for p in range(9):
                r = vDW[p]
                dw += [f"v_add_u32 v{vT}, {64*p}, v{vT2}", f"v_mul_u32_u24 v{r}, 3641, v{vT}", f"v_lshrrev_b32 v{r}, 16, v{r}",
                       f"v_mul_u32_u24 v{r}, {1152 - 288}, v{r}", f"v_lshl_add_u32 v{r}, v{vT}, 4, v{r}"]
                if p % 4: dw.append(f"v_subrev_u32 v{r}, {(p%4)*1024}, v{r}")
            sc.add(dw, 1, base[8], spread=False)
            ids = [["s_cmp_lt_u32 s64, 4", "s_cselect_b32 s24, s48, s54", "s_cselect_b32 s25, s49, s55"],
                   [f"s_mov_b32 s26, {4096*1152}", "s_cmp_lt_u32 s64, 4", f"s_cselect_b32 s26, s26, {4608*1152}"],
                   ["s_cmp_lt_u32 s64, 4", "s_cselect_b32 s72, 32, 36", "s_cselect_b32 s5, 0, 1"],
                   ["s_and_b32 s73, s64, 3", "s_mul_i32 s7, s73, s72"],
                   ["s_lshl_b32 s6, s5, 7", "s_add_u32 s6, s6, s7"], [f"s_mul_i32 s7, s7, {32*1152}"],
                   ["s_lshr_b32 s72, s2, 3", "s_lshl_b32 s72, s72, 2"], ["s_add_u32 s72, s72, s3", f"s_mul_i32 s72, s72, {14*128}"], ["s_add_u32 s89, s7, s72"]]
            sc.add(ids, base[3], base[7])
        e(f"v_add_u32 v{vL}, s96, v{vL16}")
        e(sc.flat())
    k.begin(name="attn_first")
    e(f"s_add_u32 s92, s92, {16384 + 3*32768}"); e("s_mov_b32 s97, 32768")
    e("s_mov_b32 s94, s81"); e(f"s_mov_b32 s96, {SLOT}")
    e("s_mov_b32 s4, 1"); e("s_mov_b32 s101, 0x24")
    attn_iter("first")
    k.begin(loop=6, name="attn_loop")
    e(".p2align 3"); e("KF_aloop:")
    if stamps and opt.get("fine"):
        e(["s_memtime s[98:99]", "s_add_u32 s100, s4, 55", "s_lshl_b32 s100, s100, 4", f"v_cmp_eq_u32 vcc, s100, v{vL16}",
           "s_waitcnt lgkmcnt(0)", "v_mov_b32 v47, s98", f"v_cndmask_b32 v{STV}, v{STV}, v47, vcc"])
    e("s_bitcmp1_b32 s101, s4"); e("s_cbranch_scc1 KF_ool"); e("KF_oolr:")
    attn_iter("loop")
    e("s_add_u32 s4, s4, 1"); e("s_cmp_lt_u32 s4, 7"); e("s_cbranch_scc1 KF_aloop")
    ool.append(["KF_ool:", "s_cmp_eq_u32 s4, 5", "s_cbranch_scc1 KF_sw",
                "s_lshl_b32 s72, s63, 14", "s_lshl_b32 s73, s3, 7", "s_add_u32 s72, s72, s73", f"s_add_u32 s72, s72, {FL_P2}",
                "s_lshl_b32 s73, s62, 2", "s_add_u32 s91, s72, s73", "s_add_u32 s91, s91, 8192", f"v_lshlrev_b32 v{vT2}, 5, v{vL16}"] +
               flag_store("s91", 16, vT2, allw=True) +
               ["s_lshr_b32 s73, s62, 3", "s_lshl_b32 s73, s73, 11", "s_add_u32 s90, s72, s73", "s_and_b32 s73, s62, 7", "s_lshl_b32 s73, s73, 2",
                "s_add_u32 s90, s90, s73",
                "s_lshl_b32 s73, s62, 9", "s_add_u32 s84, s72, s73",
                "s_movk_i32 s73, 0x70", "s_cmp_eq_u32 s5, 0", "s_cselect_b32 s73, s73, 0x1f0", f"v_and_b32 v{vT}, s73, v{vL16}", f"v_lshrrev_b32 v{vT}, 2, v{vT}",
                "s_branch KF_oolr",
                "KF_sw:",
                "s_mov_b32 s20, s24", "s_mov_b32 s21, s25", "s_mov_b32 s22, s26"] + [f"v_mov_b32 v{vD[p]}, v{vDW[p]}" for p in range(9)] +
               [f"s_mov_b32 s97, {128*1152}", f"s_mul_i32 s92, s3, {32*1152}", "s_add_u32 s92, s92, s7", "s_mul_i32 s72, s65, 288", "s_add_u32 s92, s92, s72",
                "s_lshl_b32 s79, s6, 10", f"s_add_u32 s79, s79, {WS_ACT}",
                "s_mov_b32 s28, s60", "s_mov_b32 s29, s61", "s_cmp_eq_u32 s5, 0", "s_cselect_b32 s30, 0, s18",
                "s_branch KF_oolr"])
    k.begin(name="attn_last")
    attn_iter("last")
    e(stamp(6))
    W = 216
    for u in range(4): e(f"v_add_f32 v{L+u}, v{L+u}, v{L+4+u}")
    xl = [xlane("v_add_f32", L + u, W + 4 + u) for u in range(4)]
    for i in range(6):
        for u in range(4): e(xl[u][i])
    e(f"v_add_f32 v{W+1}, v{L}, v{L+1}"); e(f"v_add_f32 v{W+2}, v{L+2}, v{L+3}"); e(f"v_add_f32 v{W}, v{W+1}, v{W+2}")
    e(f"v_cmp_nge_f32 vcc, {f32bits(2.0**30):#x}, v{W}")
    e("s_cbranch_vccnz KF_slow")
    e("KF_epi:")
    k.begin(name="oepi")
    ACC = 48; A2 = 192
    def acc(nt, u): return ACC + (nt * 4 + u) * 4
    def BF(b, s, u): return ar(128 + ((b * 4 + s) * 4 + u) * 4)
    def bload(b, s, u):
        return Inst(f"buffer_load_dwordx4 {BF(b, s, u)}, v{vST[u]}, s[28:31], s79 offen offset:{s*1024} sc1", "b")
    adv_b = "s_add_u32 s79, s79, 4096"
    for u in range(4): e(f"v_rcp_f32 v{L+u}, v{L+u}")
    e(WaitRegs(f"v{FL}"))
    e("s_cmp_eq_u32 s5, 0"); e("s_cbranch_scc1 KF_nock")
    c1, c2 = check(hfl, [FL])
    for x in c1 + c2: e(x if x.endswith(":") else C(x))
    e("KF_nock:")
    n = 0
    for i in range(4):
        for u in range(4):
            t = W + (n % 3) * 12
            for r in range(8): e(f"v_accvgpr_read_b32 v{t+r}, a{O(2*i + r//4, u) + r%4}")
            for r in range(0, 8, 2): e(f"v_pk_mul_f32 {vr(t+r,2)}, {vr(t+r,2)}, {vr(L + (u & 2),2)} op_sel:[0,{u&1}] op_sel_hi:[1,{u&1}]")
            for r in range(4): e(f"v_cvt_pk_bf16_f32 v{t+8+r}, v{t+2*r}, v{t+2*r+1}")
            e(f"buffer_store_dwordx4 {vr(t+8)}, v{vST[u]}, s[16:19], s83 offen offset:{i*1024} sc1", "st")
            e(bload(1, (n // 4), n % 4))
            for r in range(ACC + n * 10, min(ACC + 144, ACC + n * 10 + 10), 2): e(f"v_mov_b64 {vr(r,2)}, 0")
            n += 1
    e(f"v_add_u32 v{vL}, s96, v{vP5}")
    P5 = {}
    for b in range(2):
        G = Frags(A2)
        for s in range(4):
            for nt in range(9):
                G.add(vL, s * 9216 + nt * 32, [f"{MF} {vr(acc(nt,u))}, @A, {BF(b,s,u)}, {vr(acc(nt,u))}" for u in range(4)], 4608)
        P5[b] = G
    for f in range(LEAD): e(P5[0].fr[f][2])
    e(stamp(7))
    e("s_cmp_eq_u32 s5, 0"); e("s_cbranch_scc1 KF_spre")
    k.begin(name="g_pre")
    e(adv_b)
    for s in range(3):
        for u in range(4): e(bload(0, s, u))
    e("s_mov_b32 s4, 0")
    e(WaitRegs(*[BF(1, 0, u) for u in range(4)]))
    e(stamp(8))
    e("s_branch KF_mid")
    k.begin(name="s_pre")
    e("KF_spre:")
    e("s_waitcnt vmcnt(0)")
    e(flag_store("s90", 4, vT2, allw=True))
    e("s_mov_b32 s30, s18")
    e(spin(hfl, [FL]))
    for b in range(2):
        for s in range(4 - b):
            for u in range(4): e(bload(b, s, u))
        if b == 0: e(adv_b)
    e("s_mov_b32 s4, 1")
    e(WaitRegs(*[BF(0, 0, u) for u in range(4)]))
    e(stamp(8))
    e("s_branch KF_top2")

    def stage2(b):
        G = P5[b]; sc = G.sched(wrap=True)
        sc.put(4 * (36 - LEAD) - 1, f"v_add_u32 v{vL}, s96, v{vP5}")
        sc.put(6, [WaitTag(["dma"], 9), "s_barrier"])
        for s in range(4):
            nb, ns = (b, s + 1) if s < 3 else (b ^ 1, 0)
            sc.add([WaitRegs(*[BF(nb, ns, u) for u in range(4)])], 36 * s + 32, 36 * s + 36, spread=False)
        misc = list(adv_rd)
        if b == 1: misc += [["s_cmp_ge_u32 s4, 3", "s_cselect_b32 s22, 0, s22"]]
        sc.add(misc, 7, 12, spread=False)
        for s in range(3): sc.add([bload(b, s, u) for u in range(4)], 36 * (s + 1), 36 * (s + 1) + 24)
        sc.add([bload(b ^ 1, 3, u) for u in range(4)] + [adv_b], 2, 30)
        sc.add(ring_dma(), 12, 140)
        e(sc.flat())
    k.begin(loop=3, name="L0")
    e(".p2align 3"); e("KF_loop2:")
    e("s_cmp_eq_u32 s4, 1"); e("s_cbranch_scc1 KF_ht"); e("KF_top2:")
    stage2(0)
    k.begin(loop=3, name="L1")
    e("KF_mid:")
    stage2(1)
    e("s_add_u32 s4, s4, 1"); e("s_cmp_lt_u32 s4, 4"); e("s_cbranch_scc1 KF_loop2")
    ool.append(["KF_ht:", "s_waitcnt vmcnt(25)"] + flag_store("s90", 4, vT2, allw=True) + ["s_branch KF_top2"])

    k.begin(name="final")
    e(stamp(9))
    order = [(0, s, nt) for s in range(2) for nt in range(9)]
    order += [(b, s, nt) for nt in range(9) for b in range(2) for s in range(4) if (b, s) not in ((0, 0), (0, 1))]
    G = Frags(A2); done = {}
    vL2 = vT
    for (b, s, nt) in order:
        G.add(vL2 if b else vL, s * 9216 + nt * 32, [f"{MF} {vr(acc(nt,u))}, @A, {BF(b,s,u)}, {vr(acc(nt,u))}" for u in range(4)], 4608)
        done[nt] = len(G.mf)
    sc = G.sched(); NG = len(G.mf)
    sc.put(6, [WaitTag(["dma"], 0), "s_barrier"])
    sc.add([bload(1, 3, u) for u in range(4)], 2, 20)
    sc.add(adv_rd + [f"v_add_u32 v{vL2}, s96, v{vP5}"], 7, 16, spread=False)
    sc.add([WaitRegs(*[BF(0, 1, u) for u in range(4)])], 32, 36, spread=False)
    sc.add([WaitRegs(*[BF(1, 3, u) for u in range(4)])], 68, 72, spread=False)
    SEL = 26; XRr = 36; vX = 25; vL8 = 46
    ad = [["s_lshl_b32 s72, s63, 2", "s_add_u32 s72, s72, s65"], ["s_lshl_b32 s72, s72, 2", "s_add_u32 s72, s72, s3"],
          ["s_mul_i32 s78, s72, 163840", f"s_add_u32 s78, s78, {WS_PART}"], ["s_mul_i32 s73, s64, 5120", "s_add_u32 s74, s78, s73"],
          ["s_add_u32 s75, s74, 40960", "s_add_u32 s76, s74, 81920"], ["s_add_u32 s77, s74, 122880"],
          ["s_and_b32 s82, s64, 3", "s_mul_i32 s73, s82, 40960"], ["s_add_u32 s78, s78, s73", "s_lshl_b32 s73, s5, 11"], ["s_add_u32 s85, s78, s73"],
          ["s_lshl_b32 s73, s71, 1", "s_xor_b32 s82, s82, s73"], ["s_add_u32 s82, s82, s69", f"s_mul_i32 s83, s82, {16*1152}"],
          ["s_mul_i32 s73, s65, 288", "s_add_u32 s83, s83, s73"], ["s_lshl_b32 s73, s5, 7", "s_add_u32 s83, s83, s73"],
          ["s_mov_b32 s12, s56", "s_mov_b32 s13, s57"], [f"s_mov_b32 s14, {2048*1152}"],
          [f"s_add_u32 s84, s84, {FL_EX - FL_P2}", "s_lshl_b32 s73, s64, 11"], ["s_sub_u32 s90, s84, s73", "s_lshl_b32 s73, s64, 2"], ["s_add_u32 s90, s90, s73"],
          [f"s_mov_b32 s88, {f32bits(-math.log2(math.e)):#x}", "s_mov_b32 s89, 0xffff0000"]]
    ap = sc.add(ad, 16, 70)
    va = [f"v_bfe_u32 v{vX}, v{vL16}, 4, 4", f"v_lshrrev_b32 v{vT2}, 8, v{vL16}", f"v_bfe_u32 v{vL8}, v{vL16}, 6, 2",
          [f"v_cmp_eq_u32 vcc, v{vL8}, v{vT2}", f"v_mov_b32 v{SEL}, 0x3f80", f"v_and_b32 v{vL8}, 16, v{vL16}", f"v_lshlrev_b32 v{SEL}, v{vL8}, v{SEL}",
           f"v_cndmask_b32 v{SEL}, 0, v{SEL}, vcc"],
          [f"v_and_b32 v{vL8}, 32, v{vL16}", f"v_cmp_eq_u32 vcc, 0, v{vL8}", "s_nop 1", f"v_cndmask_b32 v{SEL+2}, 0, v{SEL}, vcc", f"v_cndmask_b32 v{SEL+3}, v{SEL}, 0, vcc"],
          f"v_mov_b32 v{SEL}, 0", f"v_mov_b32 v{SEL+1}, 0", f"v_mov_b32 v{SEL+4}, 0", f"v_mov_b32 v{SEL+5}, 0",
          f"v_mul_u32_u24 v{vX}, 1152, v{vX}", f"v_lshl_add_u32 v{vX}, v{vT2}, 3, v{vX}",
          f"v_lshrrev_b32 v{vL8}, 1, v{vL16}", f"v_add_u32 v{vL8}, 4096, v{vL8}", f"v_lshlrev_b32 v{vT2}, 7, v{vL16}",
          f"v_bfe_u32 v{vB}, v{vL16}, 4, 3", f"v_lshlrev_b32 v{vB}, 2, v{vB}"]
    sc.add(va, 16, 70)
    sc.add([f"buffer_load_dwordx2 {vr(XRr+2*t,2)}, v{vX}, s[32:35], s83 offen offset:{t*32}" for t in range(5)], 74, 110)
    tail = []
    for c in range(5):
        pkx = []
        for u in range(4):
            a = acc(2 * c, u)
            pkx += [f"v_cvt_pk_bf16_f32 v{a}, v{a}, v{a+1}", f"v_cvt_pk_bf16_f32 v{a+1}, v{a+2}, v{a+3}"]
            if c < 4:
                b = acc(2 * c + 1, u)
                pkx += [f"v_cvt_pk_bf16_f32 v{a+2}, v{b}, v{b+1}", f"v_cvt_pk_bf16_f32 v{a+3}, v{b+2}, v{b+3}",
                        f"buffer_store_dwordx4 {vr(a)}, v{vL16}, s[16:19], s{74+u} offen offset:{c*1024} sc1"]
            else:
                pkx += [f"buffer_store_dwordx2 {vr(a,2)}, v{vL8}, s[16:19], s{74+u} offen sc1"]
        if c < 4: sc.add(pkx, done[2 * c + 1] + 4, min(NG, done[2 * c + 1] + 48))
        else: tail = pkx
    e(sc.flat())
    e(tail)
    RB = 48
    for src in range(8): e(f"v_mov_b64 {vr(RB + src*12 + 10, 2)}, 0")
    e(stamp(10))
    e("s_waitcnt vmcnt(0)")
    e(flag_store("s90", 8, vT2, allw=True))
    e(spin(f"buffer_load_dword v{vB+1}, v{vB}, s[16:19], s84 offen sc1", [vB + 1]))
    e(stamp(11))
    order8 = [4, 5, 6, 7, 0, 1, 2, 3]
    for src in order8:
        e(f"s_add_u32 s86, s85, {src*5120}")
        for c in range(2): e(f"buffer_load_dwordx4 {vr(RB + src*12 + 4*c)}, v{vL16}, s[16:19], s86 offen offset:{c*1024} sc1")
    e("s_cmp_eq_u32 s5, 0"); e("s_cselect_b32 s30, 0, s18"); e("s_cselect_b32 s10, 0, s14"); e("s_mov_b32 s8, s56"); e("s_mov_b32 s9, s57")
    for src in order8:
        e(f"s_add_u32 s86, s78, {src*5120}")
        e(f"buffer_load_dwordx2 {vr(RB + src*12 + 8, 2)}, v{vL8}, s[28:31], s86 offen sc1")
    Gs = lambda t: 160 + 4 * t
    Ss = lambda t: 180 + 4 * t
    def redm(src, t):
        d = vr((Gs if src >= 4 else Ss)(t)); first = src in (0, 4)
        return f"{MF} {d}, {vr(SEL + (0 if t & 1 else 2))}, {vr(RB + src*12 + 4*(t >> 1))}, {'0' if first else d}"
    t0 = 200
    def round2(a):
        return [f"v_cvt_pk_bf16_f32 v{t0}, v{a}, v{a+1}", f"v_cvt_pk_bf16_f32 v{t0+1}, v{a+2}, v{a+3}",
                f"v_lshlrev_b32 v{a}, 16, v{t0}", f"v_and_b32 v{a+1}, s89, v{t0}", f"v_lshlrev_b32 v{a+2}, 16, v{t0+1}", f"v_and_b32 v{a+3}, s89, v{t0+1}"]
    def gate(t):
        g = Gs(t); g1 = 204
        return round2(g) + [f"v_mul_f32 v{g1+r}, s88, v{g+r}" for r in range(4)] + [f"v_exp_f32 v{g1+r}, v{g1+r}" for r in range(4)] + \
               [f"v_add_f32 v{g1+r}, 1.0, v{g1+r}" for r in range(4)] + [f"v_rcp_f32 v{g1+r}, v{g1+r}" for r in range(4)] + \
               [pk("v_pk_mul_f32", g + r, g + r, g1 + r) for r in (0, 2)] + round2(g)
    def fin(t):
        g = Gs(t); s0 = Ss(t); x = XRr + 2 * t; g1 = 204
        return round2(s0) + [pk("v_pk_mul_f32", g + r, g + r, s0 + r) for r in (0, 2)] + round2(g) + \
               [f"v_lshlrev_b32 v{g1}, 16, v{x}", f"v_and_b32 v{g1+1}, s89, v{x}", f"v_lshlrev_b32 v{g1+2}, 16, v{x+1}", f"v_and_b32 v{g1+3}, s89, v{x+1}"] + \
               [pk("v_pk_add_f32", g + r, g + r, g1 + r) for r in (0, 2)] + \
               [f"v_cvt_pk_bf16_f32 v{x}, v{g}, v{g+1}", f"v_cvt_pk_bf16_f32 v{x+1}, v{g+2}, v{g+3}",
                f"buffer_store_dwordx2 {vr(x,2)}, v{vX}, s[{'8:11' if t == 4 else '12:15'}], s83 offen offset:{t*32}"]
    for src in order8[:4]:
        for t in range(4): e(redm(src, t))
    for t in range(2): e(gate(t))
    for src in order8[4:]:
        for t in range(4): e(redm(src, t))
    for src in order8: e(redm(src, 4))
    for t in range(2, 4): e(gate(t))
    for t in range(4): e(fin(t))
    e("s_cmp_eq_u32 s5, 0"); e("s_cbranch_scc1 KF_fin")
    e(gate(4)); e(fin(4))
    e("KF_fin:")
    if stamps:
        e(stamp(12)); e("s_waitcnt vmcnt(0)"); e(stamp(13))
        e("s_lshl_b32 s72, s2, 2"); e("s_add_u32 s72, s72, s3"); e("s_lshl_b32 s72, s72, 8"); e(f"s_add_u32 s72, s72, {200<<20}")
        e(f"v_lshrrev_b32 v2, 2, v{vL16}")
        e(f"buffer_store_dword v{STV}, v2, s[16:19], s72 offen")
        if opt.get("dbg"):
            e(f"s_cmp_lg_u32 s2, {opt['dbg']}"); e("s_cbranch_scc1 KF_end"); e("s_cmp_lg_u32 s3, 1"); e("s_cbranch_scc1 KF_end")
            e(srd(20, 58, 64)); e(f"v_readlane_b32 s72, v{STV}, 32"); e("v_subrev_u32 v2, 124, v2"); e(f"v_subrev_u32 v{STV}, s72, v{STV}")
            e("s_mov_b32 exec_lo, 0"); e(f"buffer_store_dword v{STV}, v2, s[20:23], 0 offen")
    e("KF_end:")
    e("s_endpgm")

    for i, blk in enumerate(ool):
        k.begin(name=f"ool{i}")
        e(blk); e("s_endpgm")
    Mx = W + 8; AL = W + 12; TT = W + 16
    k.begin(name="slow_pre")
    e("KF_codeend:")
    e("KF_slow:")
    e("s_waitcnt vmcnt(0) lgkmcnt(0)"); e("s_nop 15")
    for i in range(128): e(f"v_accvgpr_write_b32 a{i}, 0")
    for u in range(4): e(f"v_mov_b32 v{L+u}, 0"); e(f"v_mov_b32 v{Mx+u}, 0xff7fffff")
    e("s_mov_b32 s72, 0"); e("s_mov_b32 s68, s82")
    k.begin(loop=16, name="slow_loop")
    e("KF_sloop:")
    for q in range(4):
        for f in range(4):
            ff = q * 4 + f
            e(f"buffer_load_dwordx4 {KF(1, ff) if ff < 8 else VF(1, ff - 8)}, v{vL16}, s[16:19], s68 offen offset:{f*1024} sc1")
        e("s_add_u32 s68, s68, 4096")
    for u in range(4):
        e(qk(u, lambda f: KF(1, f), zero=True))
        s0 = S(u); m = W + u
        e(f"v_max3_f32 v{m}, v{s0}, v{s0+1}, v{s0+2}"); e(f"v_max3_f32 v{m}, v{m}, v{s0+3}, v{s0+4}")
        e(f"v_max3_f32 v{m}, v{m}, v{s0+5}, v{s0+6}"); e(f"v_max3_f32 v{m}, v{m}, v{s0+7}, v{Mx+u}")
        e(xlane("v_max_f32", m, W + 4))
        e(f"v_sub_f32 v{AL}, v{Mx+u}, v{m}"); e(f"v_exp_f32 v{AL}, v{AL}"); e(f"v_mov_b32 v{Mx+u}, v{m}")
        e(f"v_mul_f32 v{L+u}, v{L+u}, v{AL}")
        for i in range(8):
            e(f"v_sub_f32 v{s0+i}, v{s0+i}, v{m}"); e(f"v_exp_f32 v{s0+i}, v{s0+i}")
        for i in range(8): e(f"v_add_f32 v{L+u}, v{L+u}, v{s0+i}")
        for i in range(4): e(f"v_cvt_pk_bf16_f32 v{P+i}, v{s0+2*i}, v{s0+2*i+1}")
        for dt in range(8):
            for r in range(4): e(f"v_accvgpr_read_b32 v{TT+r}, a{O(dt,u)+r}")
            for r in range(4): e(f"v_mul_f32 v{TT+r}, v{TT+r}, v{AL}")
            for r in range(4): e(f"v_accvgpr_write_b32 a{O(dt,u)+r}, v{TT+r}")
        e(pv(u, 1, 0))
    e("s_add_u32 s72, s72, 1"); e("s_cmp_lt_u32 s72, 16"); e("s_cbranch_scc1 KF_sloop")
    k.begin(name="slow_post")
    e("s_nop 15")
    for u in range(4): e(xlane("v_add_f32", L + u, W + 4))
    e("s_nop 15")
    e("s_branch KF_epi")
    pre = ["p0a", "gemm", "attn_first"]
    k.paths = []
    for na in (1, 2, 4):
        for nl in (1, 2, 3):
            mid = pre + ["attn_loop"] * na + ["attn_last", "oepi"]
            if na > 1 and nl > 1 and (na, nl) != (4, 3): continue
            k.paths.append(mid + ["s_pre"] + ["L0", "L1"] * nl + ["final"])
            k.paths.append(mid + ["g_pre", "L1"] + ["L0", "L1"] * nl + ["final"])
    return kstart(name) + k.finish(), kdesc(name, 512, 256), (name, 256, 256, 163840)
```

```python
from lib import *
from lib import _mk
from common import *
import math

SLOT = 36864
SPARE = 4 * SLOT
MF = "v_mfma_f32_16x16x32_bf16"
QSCALE = math.log2(math.e) / math.sqrt(128.0)
SPIN_MAX = 100000
KNAME = "recurrent_scan__sliding_block_cached__dense_activation_relu__prompt_kernel"

def flat(l): return [x for y in l for x in y]

def gen_kf(name=KNAME, stamps=False, opt=None):
    opt = opt or {}
    k = Kernel(name)
    k.cur.name = 'p0a'
    e = k.e
    vL16, vDQ, vD1, vS0, vP5, vZ, vTOK, vL, vT = 1, 2, 3, 4, 5, 6, 7, 8, 9
    vST = [10, 11, 12, 13]
    vT2 = 14; STV = 15
    XV = 16; QA = 48; AF = 176; NF = 6; LEAD = 4
    FA = 200; T = 232; vB = 248
    vXN = [232, 233, 234, 235]; vKO, vVO = 254, 255
    B1, B3, B5, B7 = 64, 96, 128, 160
    def X(u, s):
        h, idx = u >> 1, s * 2 + (u & 1)
        return ar(h * 128 + idx * 4) if idx < 32 else vr(XV + h * 16 + (idx - 32) * 4)
    def qa(nt, u): return QA + (nt * 4 + u) * 4
    def Qf(u, s): return vr(qa(2 * s, u))
    def fa(a, u): return FA + a * 16 + u * 4
    def stamp(i):
        if not stamps: return []
        return ["s_memtime s[98:99]", "s_waitcnt lgkmcnt(0)", f"v_writelane_b32 v{STV}, s98, {i}",
                "s_memrealtime s[98:99]", "s_waitcnt lgkmcnt(0)", f"v_writelane_b32 v{STV}, s98, {32+i}"]
    def mst(i):
        if not (stamps and opt.get("fine")): return ["s_nop 0"] if False else []
        return ["s_memtime s[98:99]", "s_waitcnt lgkmcnt(0)", "s_nop 0", f"v_writelane_b32 v{STV}, s98, {i}"]
    def C(t): return Inst(t, "cond")
    uid = [0]
    def lab(p): uid[0] += 1; return f"KF_{p}{uid[0]}"
    def flag_store(sreg, nl, voff, allw=False):
        lb = lab("nf")
        m = ["s_mov_b64 exec, %#x" % ((1 << nl) - 1)] if nl < 32 else ["s_mov_b32 exec_hi, 0"]
        body = m + [f"buffer_store_dword v{vTOK}, v{voff}, s[16:19], {sreg} offen sc1", "s_mov_b64 exec, -1"]
        if allw: return body
        return ["s_cmp_lg_u32 s3, 0", f"s_cbranch_scc1 {lb}"] + [C(x) for x in body] + [f"{lb}:"]
    ool = []
    def spin(load, regs, ret=None):
        lb = lab("sp"); dn = ret or lab("sd")
        out = ["s_mov_b32 s73, 0", f"{lb}:", load, "s_waitcnt vmcnt(0)"] + cmpf(regs)
        out += ["s_add_u32 s73, s73, 1", f"s_cmp_ge_u32 s73, {SPIN_MAX}", f"s_cbranch_scc1 {dn}", f"s_cbranch_vccz {dn}", "s_sleep 2", f"s_branch {lb}"]
        if not ret: out.append(f"{dn}:")
        return out
    def cmpf(regs):
        out = []
        if len(regs) > 1:
            out += [f"v_xor_b32 v{r}, v{r}, v{vTOK}" for r in regs]
            out += [f"v_or_b32 v{regs[0]}, v{regs[0]}, v{r}" for r in regs[1:]]
            out += [f"v_cmp_ne_u32 vcc, 0, v{regs[0]}"]
        else:
            out += [f"v_cmp_ne_u32 vcc, v{regs[0]}, v{vTOK}"]
        return out
    def check(load, regs):
        a, b = lab("ck"), lab("cr")
        ool.append([f"{a}:"] + spin(load, regs, b))
        return cmpf(regs), ["s_nop 0", f"s_cbranch_vccnz {a}", f"{b}:"]
    def xlane(op, r, t, both=True):
        o = [f"v_mov_b32 v{t}, v{r}", f"v_permlane32_swap_b32 v{t}, v{r}", f"{op} v{r}, v{r}, v{t}"] if both else []
        return o + [f"v_mov_b32 v{t}, v{r}", f"v_permlane16_swap_b32 v{t}, v{r}", f"{op} v{r}, v{r}, v{t}"]
    def ident(ID, t0, t1):
        o = [f"v_lshrrev_b32 v{t0}, 4, v{vL16}", f"v_and_b32 v{t1}, 15, v{t0}", f"v_lshrrev_b32 v{t0}, 4, v{t0}", f"v_lshlrev_b32 v{t0}, 3, v{t0}",
             f"v_sub_u32 v{t0}, v{t1}, v{t0}", f"v_and_b32 v{t1}, 1, v{t0}", f"v_lshlrev_b32 v{t1}, 4, v{t1}", f"v_mov_b32 v{ID}, 0x3f80",
             f"v_lshlrev_b32 v{t1}, v{t1}, v{ID}", f"v_ashrrev_i32 v{t0}, 1, v{t0}"]
        for h in range(2):
            for r in range(4):
                o.append([f"v_cmp_eq_i32 vcc, {r - 8*h}, v{t0}", "s_nop 1", f"v_cndmask_b32 v{ID+4*h+r}, 0, v{t1}, vcc"])
        return o
    def tr_mf(D, A, ID): return [f"{MF} {vr(D + (h*2+r)*4)}, {vr(A + 4*r)}, {vr(ID + 4*h)}, 0" for h in range(2) for r in range(2)]
    def tr_cvt(o, D, h): return [f"v_cvt_pk_bf16_f32 v{o+2*r+q}, v{D+(h*2+r)*4+2*q}, v{D+(h*2+r)*4+2*q+1}" for r in range(2) for q in range(2)]

    e("s_cmp_ge_u32 s2, 256"); e("s_cbranch_scc1 KF_end")
    if opt.get("scr"):
        e("s_and_b32 s4, s2, 7"); e("s_bfe_u32 s5, s2, 0x30003"); e("s_andn2_b32 s2, s2, 63"); e("s_lshl_b32 s4, s4, 3"); e("s_or_b32 s2, s2, s4"); e("s_or_b32 s2, s2, s5")
    e("s_load_dwordx16 s[40:55], s[0:1], 0")
    e("s_load_dwordx4 s[56:59], s[0:1], 64")
    e("s_load_dwordx2 s[60:61], s[0:1], 80")
    e("s_memrealtime s[38:39]")
    e("v_lshrrev_b32 v20, 6, v0")
    e("v_and_b32 v21, 63, v0")
    e("v_readfirstlane_b32 s3, v20")
    e("s_and_b32 s64, s2, 7"); e("s_bfe_u32 s65, s2, 0x20003")
    e("s_and_b32 s62, s2, 3"); e("s_lshl_b32 s62, s62, 3"); e("s_and_b32 s63, s2, 4"); e("s_add_u32 s62, s62, s63"); e("s_add_u32 s62, s62, s65")
    e("s_lshr_b32 s63, s2, 5")
    e("s_lshl_b32 s66, s63, 5"); e("s_add_u32 s66, s66, s62")
    e("v_lshrrev_b32 v22, 5, v0"); e("v_mul_u32_u24 v22, 1152, v22")
    e("v_and_b32 v23, 31, v21"); e("v_lshl_add_u32 v22, v23, 4, v22")
    e("s_mul_i32 s67, s66, 9216")
    for r in range(56, 60): e(f"v_mov_b32 v{r}, 0")
    e(f"v_mov_b32 v{vZ}, 0")
    e(f"v_lshlrev_b32 v{vL16}, 4, v21")
    e("s_waitcnt lgkmcnt(0)")
    e(srd(32, 40, 2048 * 1152))
    e(f"buffer_load_dwordx4 {vr(48)}, v22, s[32:35], s67 offen")
    e(f"buffer_load_dwordx4 {vr(52)}, v22, s[32:35], s67 offen offset:512")
    e("s_mov_b32 exec_lo, 0xff"); e("s_mov_b32 exec_hi, 0xff")
    e(f"buffer_load_dwordx4 {vr(56)}, v22, s[32:35], s67 offen offset:1024")
    e("s_mov_b64 exec, -1")
    e(stamp(0))
    e(srd(8, 46, 576 * 8192)); e(srd(20, 58, 256))
    e("s_or_b32 s77, s2, s3"); e("s_cbranch_scc1 KF_w0")
    e(C("s_or_b32 s38, s38, 1")); e(C("v_mov_b32 v28, s38")); e(C("s_mov_b64 exec, 1"))
    e(C(f"buffer_store_dword v28, v{vZ}, s[20:23], 0 offen sc1")); e(C("s_mov_b64 exec, -1"))
    e("KF_w0:")
    e(srd(16, 60, WS_SIZE)); e(srd(12, 52, 576 * 9216)); e(srd(24, 42, 8388608)); e(srd(28, 44, 8388608))
    e("v_lshrrev_b32 v28, 1, v21"); e("v_and_b32 v29, 1, v21"); e("v_lshlrev_b32 v29, 7, v29")
    e("v_lshl_add_u32 v34, v28, 13, v29"); e("v_mul_u32_u24 v239, 9216, v21")
    e("s_sub_u32 s77, s3, 1"); e("s_lshl_b32 s77, s77, 3"); e("s_add_u32 s77, s77, s63"); e(f"s_mul_i32 s4, s77, {24*8192}"); e("s_lshl_b32 s5, s63, 2"); e("s_add_u32 s5, s5, s3"); e(f"s_mul_i32 s5, s5, {18*9216}")
    e("s_lshr_b32 s70, s62, 1"); e("s_and_b32 s71, s62, 1")
    e("s_lshl_b32 s6, s70, 6"); e("s_add_u32 s6, s6, s5"); e("s_add_u32 s6, s6, 8192")
    e("s_lshl_b32 s79, s62, 8"); e("s_add_u32 s4, s4, s79"); e("s_add_u32 s5, s5, s79")
    wq_touch = ["s_mov_b32 exec_hi, 0xffff", "buffer_load_dword v31, v34, s[8:11], s4 offen", "s_mov_b64 exec, -1"]
    def w1_touch(i):
        return [Inst("s_mov_b64 exec, 0x3ffff"), Inst(f"buffer_load_dword v238, v239, s[12:15], {('s5','s5','s6')[i]} offen offset:{(0,128,0)[i]}", "tch"), Inst("s_mov_b64 exec, -1")]
    def not_w0(body, maxw=3):
        lb = lab("nw")
        return ["s_sub_u32 s72, s3, 1", f"s_cmp_ge_u32 s72, {maxw}", f"s_cbranch_scc1 {lb}"] + [C(x) for x in body] + [f"{lb}:"]
    ORD = opt.get("ord", 1)
    CPF = opt.get("codepf", 1)
    code_touch = ["s_getpc_b64 s[68:69]", "KF_pc:", f"s_sub_u32 s96, s68, KF_pc-{name}", "s_subb_u32 s97, s69, 0", f"s_mov_b32 s98, KF_codeend-{name}", "s_mov_b32 s99, 0x20000",
                  "s_lshr_b32 s94, s2, 3", "s_lshl_b32 s94, s94, 2", "s_add_u32 s94, s94, s3", "s_mul_i32 s94, s94, 640",
                  "v_lshlrev_b32 v27, 7, v21", "s_mov_b64 exec, 31", Inst("buffer_load_dword v31, v27, s[96:99], s94 offen", "tch"), "s_mov_b64 exec, -1"]
    if CPF == 1: e(code_touch)
    e("v_and_b32 v24, 15, v21"); e("v_lshrrev_b32 v25, 4, v21")
    e(f"v_lshlrev_b32 v{vKO}, 8, v24"); e(f"v_lshl_add_u32 v{vVO}, v25, 4, v{vKO}"); e(f"v_lshl_add_u32 v{vKO}, v25, 3, v{vKO}")
    e("v_lshrrev_b32 v28, 5, v21"); e("v_lshlrev_b32 v29, 1, v28"); e("v_and_b32 v30, 3, v21"); e("v_xor_b32 v29, v29, v30")
    e("v_lshlrev_b32 v29, 4, v29"); e("v_lshrrev_b32 v32, 2, v21")
    e(f"v_lshl_add_u32 v{vDQ}, v32, 13, v29")
    e(f"v_mul_u32_u24 v{vD1}, 9216, v32"); e(f"v_add_u32 v{vD1}, v{vD1}, v29")
    e(f"v_mul_u32_u24 v{vP5}, 288, v32"); e(f"v_lshl_add_u32 v{vP5}, v30, 3, v{vP5}")
    e("v_bfe_u32 v32, v21, 2, 2"); e("v_lshlrev_b32 v32, 6, v32"); e("v_lshl_add_u32 v32, v30, 3, v32")
    e("v_and_b32 v26, 1, v25"); e("v_lshl_add_u32 v32, v26, 5, v32")
    e(f"v_lshl_add_u32 v{vS0}, v25, 9, v32")
    e("v_lshl_add_u32 v32, v26, 9, v32"); e(f"v_lshl_add_u32 v{vB}, v28, 12, v32"); e(f"v_xor_b32 v{vB+1}, 32, v{vB}")
    for r in range(2, 6): e(f"v_add_u32 v{vB+r}, 0x10000, v{vB+r-2}")
    e("s_lshl_b32 s69, s63, 4"); e("s_lshl_b32 s78, s3, 2"); e("s_add_u32 s69, s69, s78"); e("s_lshl_b32 s78, s71, 1")
    for u in range(4):
        e(f"s_xor_b32 s79, s78, {u}"); e("s_add_u32 s79, s79, s69")
        e("s_mul_i32 s80, s79, 18432"); e(f"v_add_u32 v{vXN[u]}, s80, v{vL16}")
        e(f"s_mul_i32 s80, s79, {272*1024}"); e(f"v_add_u32 v{vST[u]}, s80, v{vL16}")
    e("v_lshrrev_b32 v36, 5, v0"); e("v_and_b32 v37, 7, v21"); e("v_xor_b32 v36, v36, v37"); e("v_lshlrev_b32 v36, 4, v36")
    e("v_lshl_add_u32 v36, v23, 7, v36"); e(f"v_add_u32 v36, {SPARE}, v36")
    e("v_lshrrev_b32 v38, 3, v21"); e("v_xor_b32 v39, v38, v37"); e("v_lshlrev_b32 v39, 4, v39"); e("v_lshl_add_u32 v39, v38, 7, v39"); e(f"v_add_u32 v39, {SPARE}, v39")
    e("v_lshlrev_b32 v38, 8, v38"); e("v_lshl_add_u32 v38, v37, 4, v38")
    e("s_lshl_b32 s72, s63, 1"); e("s_add_u32 s72, s72, s71")
    e("s_lshl_b32 s73, s70, 19"); e("s_lshl_b32 s74, s72, 13"); e("s_add_u32 s73, s73, s74"); e(f"s_add_u32 s73, s73, {1536*256}")
    e("s_lshl_b32 s74, s3, 6"); e("s_add_u32 s87, s73, s74"); e("s_add_u32 s88, s87, 4096")
    e("s_lshr_b32 s74, s3, 1"); e("s_lshl_b32 s74, s74, 12"); e("s_add_u32 s73, s73, s74")
    e("s_and_b32 s74, s3, 1"); e("s_lshl_b32 s74, s74, 7"); e("s_add_u32 s89, s73, s74")
    e("s_lshl_b32 s82, s70, 18"); e(f"s_add_u32 s82, s82, {WS_KVP}")
    e("s_lshl_b32 s93, s72, 14"); e("s_add_u32 s93, s93, s82"); e("s_lshl_b32 s78, s3, 11"); e("s_add_u32 s93, s93, s78"); e("s_add_u32 s95, s93, 8192")
    e("s_lshl_b32 s90, s70, 7"); e(f"s_add_u32 s90, s90, {FL_KV}"); e("s_lshl_b32 s91, s72, 2"); e("s_add_u32 s91, s91, s90")
    e(f"s_mul_i32 s77, s3, {144*9216}"); e("s_lshl_b32 s79, s62, 8"); e("s_add_u32 s79, s79, s77")
    e("s_lshl_b32 s80, s70, 6"); e("s_add_u32 s80, s80, s77"); e("s_add_u32 s80, s80, 8192")
    e("s_mul_i32 s81, s3, 9216")
    e("s_lshl_b32 s83, s62, 12"); e(f"s_add_u32 s83, s83, {WS_ACT}"); e(f"s_add_u32 s84, s83, {128*1024}")
    e("s_lshl_b32 s85, s70, 10"); e(f"s_add_u32 s85, s85, {WS_ACT + 256*1024}")
    e(f"s_mov_b32 s86, {f32bits(QSCALE):#x}")
    e("s_lshl_b32 s37, s62, 8"); e("s_lshl_b32 s67, s3, 6"); e("s_add_u32 s37, s37, s67"); e("s_lshl_b32 s67, s3, 10")
    for i in range(5): e(f"s_mov_b32 s{74+i}, {WS_XN + i*4096}")
    e("s_lshr_b32 s7, s66, 1"); e("s_mul_i32 s7, s7, 18432"); e("s_lshl_b32 s72, s71, 7"); e("s_add_u32 s7, s7, s72")
    e("s_lshl_b32 s36, s63, 12"); e("s_lshl_b32 s72, s62, 2"); e("s_add_u32 s36, s36, s72"); e(f"s_add_u32 s36, s36, {FL_LN}")
    Fv = 64
    for d in range(12):
        e(f"v_lshlrev_b32 v{Fv+2*d}, 16, v{48+d}"); e(f"v_and_b32 v{Fv+2*d+1}, 0xffff0000, v{48+d}")
    e(f"buffer_load_dword v{vTOK}, v{vZ}, s[20:23], 0 offen sc1", "tch")
    if ORD == 1: e(not_w0(wq_touch))
    if ORD == 4: e(not_w0(wq_touch, 1))
    if CPF == 2: e([x.replace("s[68:69]", "s[100:101]").replace("s68", "s100").replace("s69", "s101") if isinstance(x, str) else x for x in code_touch])
    e(stamp(1))
    def pk(op, d, a, b): return f"{op} {vr(d,2)}, {vr(a,2)}, {vr(b,2)}"
    e(pk("v_pk_add_f32", 40, Fv, Fv + 2)); e(pk("v_pk_add_f32", 42, Fv + 4, Fv + 6))
    for d in range(8, 24, 2): e(pk("v_pk_add_f32", 40 + (d & 2), 40 + (d & 2), Fv + d))
    def red(r):
        e(pk("v_pk_add_f32", r, r, r + 2)); e(f"v_add_f32 v{r}, v{r}, v{r+1}")
        for sh in (8, 4, 2, 1): e(f"v_add_f32_dpp v{r}, v{r}, v{r} row_ror:{sh} row_mask:0xf bank_mask:0xf")
        e(xlane("v_add_f32", r, r + 1, both=False))
    red(40)
    e(f"v_mul_f32 v40, {f32bits(-1.0/576):#x}, v40"); e("v_mov_b32 v41, v40")
    e("v_cvt_pk_bf16_f32 v44, v40, v40"); e("v_lshlrev_b32 v44, 16, v44"); e("v_mov_b32 v45, v44")
    for d in range(0, 24, 2):
        if d == 16: e("s_mov_b32 exec_lo, 0xff"); e("s_mov_b32 exec_hi, 0xff")
        t = 92 + (d & 2); a = 88 + (d & 2)
        e(pk("v_pk_add_f32", t, Fv + d, 40))
        if d < 4: e(pk("v_pk_mul_f32", a, t, t))
        else: e(f"v_pk_fma_f32 {vr(a,2)}, {vr(t,2)}, {vr(t,2)}, {vr(a,2)}")
    e("s_mov_b64 exec, -1")
    for d in range(0, 24, 2):
        e(pk("v_pk_add_f32", Fv + d, Fv + d, 44)); e(f"v_cvt_pk_bf16_f32 v{48+d//2}, v{Fv+d}, v{Fv+d+1}")
    red(88)
    def rbf(r): e(f"v_cvt_pk_bf16_f32 v{r}, v{r}, v{r}"); e(f"v_lshlrev_b32 v{r}, 16, v{r}")
    e(f"v_mul_f32 v88, {f32bits(1.0/576):#x}, v88"); rbf(88)
    e(f"v_add_f32 v88, {f32bits(1e-5):#x}, v88"); rbf(88)
    e("v_sqrt_f32 v88, v88")
    for d in range(12):
        e(f"v_lshlrev_b32 v{Fv+2*d}, 16, v{48+d}"); e(f"v_and_b32 v{Fv+2*d+1}, 0xffff0000, v{48+d}")
        if d == 0: rbf(88)
        if d == 1: e("v_rcp_f32 v90, v88")
        if d == 2: e("v_fma_f32 v91, -v88, v90, 2.0")
        if d == 3: e("v_mul_f32 v90, v90, v91"); e("v_mov_b32 v91, v90")
    for d in range(12):
        e(pk("v_pk_mul_f32", Fv + 2 * d, Fv + 2 * d, 90)); e(f"v_cvt_pk_bf16_f32 v{48+d}, v{Fv+2*d}, v{Fv+2*d+1}")
        if d % 4 == 3:
            if d == 11: e("s_mov_b32 exec_lo, 0xff"); e("s_mov_b32 exec_hi, 0xff")
            e(f"ds_write_b128 v36, {vr(48 + d - 3)} offset:{(d//4)*4096}")
    e("s_mov_b64 exec, -1")
    e("s_waitcnt lgkmcnt(0)")
    e("s_barrier")
    e(stamp(2))
    e("s_cmp_lg_u32 s3, 0"); e("s_cbranch_scc1 KF_x123")
    w0 = [f"ds_read_b128 {vr(136+4*q)}, v39 offset:{q*1024}" for q in range(9)]
    for q in range(9):
        w0 += [f"s_waitcnt lgkmcnt({8-q})", f"buffer_store_dwordx4 {vr(136+4*q)}, v38, s[16:19], s7 offen offset:{(q%2)*2048} sc1"]
        if q % 2: w0 += ["s_add_u32 s7, s7, 4096"]
    w0 += ["v_lshlrev_b32 v38, 7, v21", "s_mov_b32 s73, 0"] + mst(62) + ["KF_tk:", "s_waitcnt vmcnt(0)", f"v_cmp_eq_u32 vcc, 0, v{vTOK}",
           "s_add_u32 s73, s73, 1", f"s_cmp_ge_u32 s73, {SPIN_MAX}",
           "s_cbranch_scc1 KF_tkd", "s_cbranch_vccz KF_tkd", f"buffer_load_dword v{vTOK}, v{vZ}, s[20:23], 0 offen sc1", "s_branch KF_tk", "KF_tkd:"]
    w0 += mst(63) + flag_store("s36", 32, 38, allw=True)
    w0 += [f"v_mov_b32 v39, {SPARE + 12288}", f"ds_write_b32 v39, v{vTOK}"]
    for x in w0: e(x if x.endswith(":") else C(x))
    e("KF_x123:")
    if ORD >= 3: e("s_barrier")
    def wq_piece(b):
        return [[f"s_add_u32 m0, s67, {b*4096}", f"s_add_u32 s68, s37, {b*131072}"],
                Inst(f"buffer_load_dwordx4 v{vDQ}, s[8:11], s68 offen lds", "wq")]
    NPW = opt.get("npw", 36); XD = opt.get("xd", 3); XEND = opt.get("xend", 8)
    e(srd(20, 60, WS_SIZE))
    e("s_cmp_lg_u32 s3, 0"); e("s_cbranch_scc1 KF_y123")
    pl = ["v_lshlrev_b32 v38, 2, v23", "s_lshl_b32 s72, s66, 7", f"s_add_u32 s72, s72, {FL_LN}"]
    pl += spin("buffer_load_dword v39, v38, s[16:19], s72 offen sc1", [39]) + ["s_branch KF_y0", "KF_y123:"]
    if ORD >= 2: pl += wq_touch
    pl += ["s_sub_u32 s72, s3, 1", "s_lshl_b32 s94, s62, 8", "KF_wql:", "s_lshl_b32 m0, s72, 10", "s_lshr_b32 s73, s72, 2", "s_lshl_b32 s73, s73, 17",
           "s_and_b32 s68, s72, 3", "s_lshl_b32 s68, s68, 6", "s_add_u32 s68, s68, s73", "s_add_u32 s68, s68, s94",
           f"buffer_load_dwordx4 v{vDQ}, s[8:11], s68 offen lds", "s_add_u32 s72, s72, 3", f"s_cmp_lt_u32 s72, {NPW*4}", "s_cbranch_scc1 KF_wql"]
    pl += [f"s_waitcnt vmcnt({(NPW - 12) * 4 // 3})", "KF_y0:"]
    for x in pl: e(x if x.endswith(":") else C(x))
    e(stamp(3))
    e("s_waitcnt lgkmcnt(0)")
    e("s_barrier")
    e(stamp(4))
    def xn_load(u, s):
        return Inst(f"buffer_load_dwordx4 {X(u, s)}, v{vXN[u]}, s[16:19], s{74 + s//4} offen offset:{(s%4)*1024} sc1", "xn")
    for s in range(XD):
        for u in range(4): e(xn_load(u, s))
    e(f"v_mov_b32 v39, {SPARE + 12288}"); e(f"ds_read_b32 v{vTOK}, v39")

    k.begin(name="gemm")
    class Frags:
        def __init__(s, af): s.mf = []; s.fr = []; s.af = af
        def add(s, vbase, off, ms, d2=256):
            b = s.af + (len(s.fr) % NF) * 4
            s.fr.append((len(s.mf), len(ms), [f"ds_read_b64_tr_b16 {vr(b,2)}, v{vbase} offset:{off}",
                                              f"ds_read_b64_tr_b16 {vr(b+2,2)}, v{vbase} offset:{off+d2}"], vr(b)))
            s.mf += [m.replace("@A", vr(b)) for m in ms]
        def sched(s, wrap=False):
            sc = Sched(s.mf); fr = s.fr; N = len(fr)
            for f in range(N):
                g0, n, _, _ = fr[f]
                if f + LEAD < N or wrap:
                    sc.put(g0, fr[(f + LEAD) % N][2][0]); sc.put(g0 + 1, fr[(f + LEAD) % N][2][1])
                if (f + 1 < N or wrap) and (n == 4 or f % 2 == 0):
                    sc.put(g0 + 1, WaitRegs(*([fr[(f + 1) % N][3]] + ([fr[f + 2][3]] if n == 2 and f + 2 < N else []))))
            return sc
    G = Frags(AF); pos = {}
    KL, VL, VD, VO, ID = 200, 208, 216, 232, 240
    KVS = opt.get("kvs", 17)
    for s in range(18):
        pos["Q", s] = len(G.mf)
        if s == KVS: G.mf += tr_mf(VD, VL, ID)
        for nt in range(8):
            G.add(vB + 2 * (s // 8) + (nt & 1), (s % 8) * 8192 + (nt >> 1) * 1024,
                  [f"{MF} {vr(qa(nt,u))}, @A, {X(u,s)}, {'0' if s == 0 else vr(qa(nt,u))}" for u in range(4)])
    S = lambda u: (B1 if u < 2 else B3) + (u & 1) * 8
    def KF(b, f): return ar(128 + b * 32 + f * 4)
    def VF(b, f): return ar(192 + b * 32 + f * 4)
    K0F = lambda f: vr(B5 + f * 4) if f < 4 else vr(B7 + (f - 4) * 4)
    NEGM = B5; P = B7; L = XV + 16; FL = XV + 24
    def qk(u, kf, zero=False):
        out = []
        for s in range(4):
            for kt in range(2):
                c = vr(S(u) + 4 * kt)
                out.append(f"{MF} {c}, {kf(kt*4+s)}, {Qf(u, s)}, {c if s else ('0' if zero else vr(NEGM + 4*u))}")
        return out
    sb = lambda st, a: vB + (st & 1) * 2 + a
    for st in range(5):
        us = (0, 1) if st == 4 else (0, 1, 2, 3)
        for f in range(36):
            a, s = f // 18, f % 18
            pos["F", st, f] = len(G.mf)
            if st == 3 and f == 8:
                pos["QK0"] = len(G.mf)
                for u in range(4): G.mf += qk(u, K0F, zero=True)
                pos["QK0e"] = len(G.mf)
            G.add(sb(st, a), s * 2048, [f"{MF} {vr(fa(a,u))}, @A, {X(u,s)}, {'0' if s == 0 else vr(fa(a,u))}" for u in us])
    END = len(G.mf)
    for f in range(LEAD): e(G.fr[f][2])
    sc = G.sched()
    F = lambda st, f: pos["F", st, f]
    Qp = lambda s: pos["Q", s] if s < 18 else F(0, 0)
    def bar(g, *w): sc.put(g, list(w) + ["s_barrier"])
    WQB = min(NPW // 2 - 1, 8)
    bar(Qp(5) + 2)
    bar(Qp(WQB) + 6, WaitTag(["wq"], 0))
    bar(Qp(14) + 2)
    bar(Qp(17) + 2, WaitTag(["f0"], 0))
    bar(F(0, 0) + 6)
    bar(F(0, 24) + 2, WaitTag(["kvst", "f1"], 0))
    bar(F(1, 0) + 6)
    bar(F(1, 24) + 2, WaitTag(["dma"], 18))
    bar(F(2, 0) + 6, WaitTag(["dma"], 9))
    bar(F(3, 0) + 6, WaitTag(["dma", "kv0"], 9))
    bar(F(4, 2), WaitTag(["dma"], 9))
    for s in range(17): sc.add([WaitRegs(*[X(u, s + 1) for u in range(4)])], Qp(s + 1) - 4, Qp(s + 1), spread=False)
    xp = sc.add([xn_load(u, s) for s in range(XD, 18) for u in range(4)], 2, Qp(XEND))
    for i, g in enumerate(xp): assert g < Qp(XD + i // 4) - 24, (i, g)
    sc.add(flat([wq_piece(b) for b in range(NPW, 36)]), 2, Qp(WQB - 1) + 8)
    def w1_piece(st, p):
        base = "s80" if st == 4 else "s79"; col = 0 if st == 4 else st * 64
        return [[f"s_add_u32 m0, s81, {(st % 4)*SLOT + p*1024}", f"s_add_u32 s68, {base}, {col + p*16*9216}"],
                Inst(f"buffer_load_dwordx4 v{vD1}, s[12:15], s68 offen lds", ("f0", "f1", "dma", "dma", "dma")[st])]
    def lin_pieces(ldsb, ldsoff, src, srcoff, n=9, tag="dma"):
        out = []
        for p in range(n):
            if p % 4 == 0: out.append([f"s_add_u32 m0, {ldsb}, {ldsoff + p*1024}", f"s_add_u32 s68, {src}, {srcoff + p*1024}"])
            out.append(Inst(f"buffer_load_dwordx4 v{vL16}, s[20:23], s68 offen offset:{(p%4)*1024} sc1 lds", tag))
        return out
    F0AT = opt.get("f0at", 13)
    sc.add(flat([w1_piece(0, p) for p in range(9)]), max(Qp(F0AT), Qp(WQB) + 7), Qp(opt.get("f0end", 16)))
    kvl = []
    for f in range(2):
        kvl += [f"buffer_load_dwordx2 {vr(KL+4*f,2)}, v{vKO}, s[24:27], s89 offen offset:{f*64}", f"buffer_load_dwordx2 {vr(KL+2+4*f,2)}, v{vKO}, s[24:27], s89 offen offset:{f*64+32}"]
    kvl += [f"buffer_load_dwordx4 {vr(VL)}, v{vVO}, s[28:31], s87 offen", f"buffer_load_dwordx4 {vr(VL+4)}, v{vVO}, s[28:31], s88 offen"]
    T1, T2, T3, T4 = opt.get("t1", 8), opt.get("t2", 8), opt.get("t3", 8), opt.get("t4", 8)
    sc.add([w1_touch(0)], Qp(T1), Qp(T1) + 8)
    sc.add(kvl[4:], Qp(T2), Qp(T2) + 16)
    sc.add(kvl[:4], Qp(T3), Qp(T3) + 24)
    sc.add([w1_touch(1), w1_touch(2)], Qp(T4), Qp(T4) + 24)
    sc.add(flat([w1_piece(1, p) for p in range(9)]), max(Qp(14) + 3, Qp(opt.get("f0end", 16))), F(0, 2))
    sc.add(ident(ID, vT, vL), Qp(10), Qp(KVS - 1))
    sc.add([WaitRegs(vr(VL), vr(VL + 4))], Qp(KVS) - 3, Qp(KVS), spread=False)
    kst = [Inst(f"buffer_store_dwordx4 {vr(KL+4*f)}, v{vL16}, s[16:19], s93 offen offset:{f*1024} sc1", "kvst") for f in range(2)]
    for h in range(2):
        kst += tr_cvt(VO + 4 * h, VD, h) + [Inst(f"buffer_store_dwordx4 {vr(VO+4*h)}, v{vL16}, s[16:19], s95 offen offset:{h*1024} sc1", "kvst")]
    sc.add(kst, Qp(KVS) + 6, Qp(KVS + 1) - 2)
    sc.add(flat([w1_piece(2, p) for p in range(9)] + [w1_piece(3, p) for p in range(9)]), F(0, 2), F(0, 35))
    sc.add([flag_store("s91", 1, vZ)], F(0, 24) + 3, F(0, 24) + 8)
    sc.add(flat([w1_piece(4, p) for p in range(9)]), F(1, 2), F(1, 22))
    kvld = f"buffer_load_dword v{vT2}, v{vT}, s[16:19], s90 offen sc1"
    sc.add([f"v_bfe_u32 v{vT}, v{vL16}, 4, 4", f"v_lshlrev_b32 v{vT}, 2, v{vT}", kvld], F(1, 28), F(1, 32))
    c1, c2 = check(kvld, [vT2])
    sc.add([c1 + c2], F(2, 2), F(2, 3))
    kv0 = [["s_lshl_b32 s72, s3, 12", "s_add_u32 s70, s82, s72"]] + lin_pieces("s72", SPARE, "s70", 0, 4, "kv0") + [["s_add_u32 s92, s82, s81"]]
    sc.add(kv0 + lin_pieces("s81", 1 * SLOT, "s92", 16384), F(2, 3), F(2, 30))
    sc.add(lin_pieces("s81", 2 * SLOT, "s92", 16384 + 32768), F(3, 2), F(3, 30))
    sc.add(lin_pieces("s81", 3 * SLOT, "s92", 16384 + 65536), F(4, 3), F(4, 30))
    sc.add([f"v_mov_b32 v{vB}, v{vS0}", f"v_xor_b32 v{vB+1}, 32, v{vS0}"], Qp(16), Qp(17))
    for st in range(1, 5):
        sc.add([f"v_add_u32 v{sb(st,0)}, {(st % 4)*SLOT}, v{vS0}", f"v_xor_b32 v{sb(st,1)}, 32, v{sb(st,0)}"], F(st - 1, 4), F(st - 1, 20))
    def epi_a(us): return flat([[f"v_cvt_pk_bf16_f32 v{T+4*u}, v{fa(0,u)}, v{fa(0,u)+1}", f"v_cvt_pk_bf16_f32 v{T+4*u+1}, v{fa(0,u)+2}, v{fa(0,u)+3}",
                                 f"v_pk_max_i16 v{T+4*u}, v{T+4*u}, 0", f"v_pk_max_i16 v{T+4*u+1}, v{T+4*u+1}, 0"] for u in us])
    def epi_b(st, us):
        so, off = ("s85", 0) if st == 4 else ("s84", st * 1024)
        return flat([[f"v_cvt_pk_bf16_f32 v{T+4*u+2}, v{fa(1,u)}, v{fa(1,u)+1}", f"v_cvt_pk_bf16_f32 v{T+4*u+3}, v{fa(1,u)+2}, v{fa(1,u)+3}",
                      f"v_pk_max_i16 v{T+4*u+2}, v{T+4*u+2}, 0", f"v_pk_max_i16 v{T+4*u+3}, v{T+4*u+3}, 0",
                      Inst(f"buffer_store_dwordx4 {vr(T+4*u)}, v{vST[u]}, s[16:19], {so} offen offset:{off} sc1", "st")] for u in us])
    for st in range(5):
        us = (0, 1) if st == 4 else (0, 1, 2, 3)
        sc.add(epi_a(us), F(st, 20 if st < 4 else 22), F(st, 34))
        if st: sc.add(epi_b(st - 1, (0, 1, 2, 3)), F(st, 2 if st < 4 else 4), F(st, 16))
    qe = []
    for s in range(4):
        for u in range(4):
            a, b = qa(2 * s, u), qa(2 * s + 1, u)
            qe += [f"v_mul_f32 v{r}, s86, v{r}" for r in list(range(a, a + 4)) + list(range(b, b + 4))]
            qe += [f"v_cvt_pk_bf16_f32 v{a}, v{a}, v{a+1}", f"v_cvt_pk_bf16_f32 v{a+1}, v{a+2}, v{a+3}",
                   f"v_cvt_pk_bf16_f32 v{a+2}, v{b}, v{b+1}", f"v_cvt_pk_bf16_f32 v{a+3}, v{b+2}, v{b+3}"]
    sc.add(qe, F(0, 1), F(2, 30), spread=False)
    sc.add([f"v_add_u32 v{vL}, {SPARE}, v{vL16}"], F(2, 30), F(2, 34))
    sc.add([f"ds_read_b128 {K0F(f)}, v{vL} offset:{f*1024}" for f in range(8)], F(3, 1) + 3, F(3, 7))
    sc.add([WaitRegs(*[K0F(f) for f in range(8)])], pos["QK0"] - 2, pos["QK0"], spread=False)
    M = lambda u: NEGM + 4 * u
    pa = []
    for u in range(4):
        s0 = S(u); m = M(u)
        pa += [f"v_max3_f32 v{m}, v{s0}, v{s0+1}, v{s0+2}", f"v_max3_f32 v{m}, v{m}, v{s0+3}, v{s0+4}",
               f"v_max3_f32 v{m}, v{m}, v{s0+5}, v{s0+6}", f"v_max_f32 v{m}, v{m}, v{s0+7}"]
    xl = [xlane("v_max_f32", M(u), M(u) + 1) for u in range(4)]
    for i in range(6): pa += [xl[u][i] for u in range(4)]
    for u in range(4):
        pa += [f"v_sub_f32 v{S(u)+i}, v{S(u)+i}, v{M(u)}" for i in range(8)] + [f"v_sub_f32 v{M(u)+i}, 0, v{M(u)}" for i in (3, 2, 1, 0)]
    for u in range(4): pa += [f"v_exp_f32 v{S(u)+i}, v{S(u)+i}" for i in range(8)]
    for u in range(4): pa += [f"v_cvt_pk_bf16_f32 v{P+4*u+i}, v{S(u)+2*i}, v{S(u)+2*i+1}" for i in range(4)]
    pp = sc.add(pa, pos["QK0e"] + 3, F(4, 6), spread=False)
    pl = []
    for u in range(4):
        s0 = S(u)
        pl += [f"v_add_f32 v{L+u}, v{s0}, v{s0+2}", f"v_add_f32 v{L+4+u}, v{s0+1}, v{s0+3}"]
        pl += [f"v_add_f32 v{L+u+4*(i&1)}, v{L+u+4*(i&1)}, v{s0+i}" for i in range(4, 8)]
    sc.add(pl, max(F(4, 1), pp[-1] + 1), END)
    sc.add([f"ds_read_b128 {VF(0, f)}, v{vL} offset:{8192 + f*1024}" for f in range(8)], F(4, 32), END, spread=False, mind=1)
    if stamps and opt.get("fine"):
        for i, g in enumerate([Qp(1), Qp(3), Qp(5), Qp(5) + 4, Qp(7), Qp(9), Qp(11), Qp(13), Qp(15), Qp(17), F(0, 0), F(0, 18), F(1, 0), F(2, 0), F(2, 6), F(3, 0), pos["QK0"], F(4, 0)]):
            sc.gap[g] = sc.gap[g] + [_mk(x) for x in mst(14 + i)]
    e(sc.flat())
    e(stamp(5))

    def O(dt, u): return (dt * 4 + u) * 4
    def pv(u, b, pb, zero=False):
        return [f"{MF} {ar(O(dt, u))}, {VF(b, dt)}, {vr(P + 4*pb)}, {'0' if zero else ar(O(dt, u))}" for dt in range(8)]
    vD = list(range(16, 25)); vDW = list(range(176, 185)); vTW = 185
    def softmax(u):
        s0 = S(u); sm = []
        for i in range(4):
            a = s0 + 2 * i
            sm += [f"v_exp_f32 v{a}, v{a}", f"v_exp_f32 v{a+1}, v{a+1}"]
            if i: sm += [f"v_add_f32 v{L+u}, v{L+u}, v{a-2}", f"v_add_f32 v{L+4+u}, v{L+4+u}, v{a-1}", f"v_cvt_pk_bf16_f32 v{P+4*u+i-1}, v{a-2}, v{a-1}"]
        return sm + [f"v_cvt_pk_bf16_f32 v{P+4*u+3}, v{s0+6}, v{s0+7}", f"v_add_f32 v{L+u}, v{L+u}, v{s0+6}", f"v_add_f32 v{L+4+u}, v{L+4+u}, v{s0+7}"]
    def ring_dma():
        dm = [["s_xor_b32 s92, s88, s85"], ["s_mul_i32 s92, s92, s97"], ["s_add_u32 s92, s92, s93"]]
        for p in range(9):
            if p % 4 == 0: dm.append([f"s_add_u32 m0, s94, {p*1024}"])
            dm.append(Inst(f"buffer_load_dwordx4 v{vD[p]}, s[20:23], s92 offen offset:{(p%4)*1024} sc1 lds", "dma"))
        return dm + [["s_add_u32 s88, s88, 1"], [f"s_add_u32 s94, s94, {SLOT}"], [f"s_cmp_ge_u32 s94, {4*SLOT}", "s_cselect_b32 s94, s81, s94"]]
    adv_rd = [[f"s_add_u32 s96, s96, {SLOT}"], [f"s_cmp_eq_u32 s96, {4*SLOT}", "s_cselect_b32 s96, 0, s96"]]
    hfl = f"buffer_load_dword v{FL}, v{vT}, s[16:19], s84 offen sc1"
    def BF(b, s, u): return ar(128 + ((b * 4 + s) * 4 + u) * 4)
    def B1st(s, u): return BF(s >> 1, s & 1, u)
    def bload(dst, s, u):
        return Inst(f"buffer_load_dwordx4 {dst}, v{vST[u]}, s[28:31], s79 offen offset:{s*1024} sc1", "b")
    adv_b = [["s_xor_b32 s79, s87, s85", "s_lshl_b32 s79, s79, 12"], ["s_add_u32 s79, s79, s80", "s_add_u32 s87, s87, 1"]]
    def attn_iter(kind):
        first, last = kind == "first", kind == "last"
        mf = []; base = []
        for sl in range(8):
            base.append(len(mf))
            t2 = sl + 2; kb = (t2 // 4) & 1
            if not (last and sl >= 6) and not (first and sl < 2): mf += qk(t2 % 4, lambda f: KF(kb, f))
            mf += pv(sl % 4, (sl // 4) & 1, sl % 4, zero=(first and sl < 4))
        base.append(len(mf))
        sc = Sched(mf)
        for sl in range(8):
            u, half = sl % 4, sl // 4
            n = base[sl + 1] - base[sl]
            if not (last and half == 1):
                nb = (half + 1) & 1
                for i in range(4):
                    f = (u & 1) * 4 + i
                    d, o = (KF(nb, f), 0) if u < 2 else (VF(nb, f), 8192)
                    g = f if n == 8 else base[sl] + (3 + 4 * i if u != 1 else (2, 3, 6, 7)[i])
                    sc.put(g, f"ds_read_b128 {d}, v{vL} offset:{half*16384 + o + f*1024}")
            if u == 1 and not (last and half == 1):
                sc.put(base[sl + 1] - (3 if n == 16 else 1), WaitRegs(*[KF((half + 1) & 1, f) for f in range(8)]))
            if u == 0 and n == 16: sc.put(base[sl] + 5, WaitRegs(*[VF(half & 1, f) for f in range(8)]))
        gb = base[1] + 11
        sc.put(gb, [WaitTag(["dma"] if first else ["dma", "st"], 9), "s_barrier"])
        dm = ring_dma() + adv_rd
        if kind == "loop" and opt.get("wt", 1):
            dm += [[Inst("s_mov_b64 exec, 0x3fff"), Inst(f"buffer_load_dword v{vTW+1}, v{vTW}, s[24:27], s89 offen", "tch"), Inst("s_mov_b64 exec, -1")],
                   [f"s_add_u32 s89, s89, {1792*128}"]]
            HT = opt.get("ht", 0)
            if HT:
                tl = Inst(f"buffer_load_dword v{vTW+1}, v{vTW}, s[28:31], s95 offen sc1", "tch")
                dm += [[Inst(f"s_mov_b32 exec_hi, {(1 << (HT - 32)) - 1:#x}"), tl, Inst("s_mov_b64 exec, -1")] if HT < 64 else tl, [f"s_add_u32 s95, s95, {HT*128}"]]
        if last:
            for s in range(4): sc.add([bload(B1st(s, u), s, u) for u in range(4)], base[2 + s] + 1, base[3 + s] + 8)
        if first:
            sc.add([f"v_add_u32 v{vD[p]}, {(p - p % 4)*1024}, v{vL16}" for p in range(9)], 1, gb, spread=False)
            sc.add([Inst(x.text.replace("s85", "s36"), x.tag) if isinstance(x, Inst) else x for x in epi_b(4, (0, 1))], 6, gb)
        sc.add(dm, gb + 1, base[8] - 2)
        for sl in range(8):
            if (last and sl == 7) or (first and sl < 3): continue
            hi = base[sl + 1] + (4 if sl < 7 and not (last and sl >= 5) else 0)
            sc.add(softmax((sl + 1) % 4), base[sl], hi, spread=False)
        if first:
            dw = [f"v_lshrrev_b32 v{vT2}, 4, v{vL16}", f"v_lshlrev_b32 v{vTW}, 3, v{vL16}"]
            for p in range(9):
                r = vDW[p]
                dw += [f"v_add_u32 v{vT}, {64*p}, v{vT2}", f"v_mul_u32_u24 v{r}, 3641, v{vT}", f"v_lshrrev_b32 v{r}, 16, v{r}",
                       f"v_mul_u32_u24 v{r}, {1152 - 288}, v{r}", f"v_lshl_add_u32 v{r}, v{vT}, 4, v{r}"]
                if p % 4: dw.append(f"v_subrev_u32 v{r}, {(p%4)*1024}, v{r}")
            sc.add(dw, 1, base[8], spread=False)
            ids = [["s_cmp_lt_u32 s64, 4", "s_cselect_b32 s24, s48, s54", "s_cselect_b32 s25, s49, s55"],
                   [f"s_mov_b32 s26, {4096*1152}", "s_cmp_lt_u32 s64, 4", f"s_cselect_b32 s26, s26, {4608*1152}"],
                   ["s_cmp_lt_u32 s64, 4", "s_cselect_b32 s72, 32, 36", "s_cselect_b32 s5, 0, 1"],
                   ["s_and_b32 s73, s64, 3", "s_mul_i32 s7, s73, s72"],
                   ["s_lshl_b32 s6, s5, 7", "s_add_u32 s6, s6, s7"], [f"s_mul_i32 s7, s7, {32*1152}"],
                   ["s_lshr_b32 s72, s2, 3", "s_lshl_b32 s72, s72, 2"], ["s_add_u32 s72, s72, s3", f"s_mul_i32 s72, s72, {14*128}"], ["s_add_u32 s89, s7, s72"]]
            sc.add(ids, base[3], base[7])
        e(f"v_add_u32 v{vL}, s96, v{vL16}")
        e(sc.flat())
    k.begin(name="attn_first")
    e(f"s_add_u32 s93, s92, {16384 + 3*32768}"); e("s_mov_b32 s97, 32768"); e("s_mov_b32 s88, 0"); e("s_mov_b32 s36, s85"); e("s_mov_b32 s85, 0")
    e("s_mov_b32 s94, s81"); e(f"s_mov_b32 s96, {SLOT}")
    e("s_mov_b32 s4, 1"); e("s_mov_b32 s101, 0x3c"); e("s_mov_b32 s28, s60"); e("s_mov_b32 s29, s61"); e("s_mov_b32 s30, 0")
    attn_iter("first")
    k.begin(loop=6, name="attn_loop")
    e(".p2align 3"); e("KF_aloop:")
    if stamps and opt.get("fine"):
        e(["s_memtime s[98:99]", "s_add_u32 s100, s4, 55", "s_lshl_b32 s100, s100, 4", f"v_cmp_eq_u32 vcc, s100, v{vL16}",
           "s_waitcnt lgkmcnt(0)", "v_mov_b32 v47, s98", f"v_cndmask_b32 v{STV}, v{STV}, v47, vcc"])
    e("s_bitcmp1_b32 s101, s4"); e("s_cbranch_scc1 KF_ool"); e("KF_oolr:")
    attn_iter("loop")
    e("s_add_u32 s4, s4, 1"); e("s_cmp_lt_u32 s4, 7"); e("s_cbranch_scc1 KF_aloop")
    ool.append(["KF_o3:", hfl, "s_branch KF_oolr"])
    ool.append(["KF_o4:", "s_cmp_eq_u32 s5, 0", "s_cbranch_scc1 KF_oolr", "s_add_u32 s72, s69, s65", "s_mul_i32 s72, s72, 272", "s_add_u32 s72, s72, s6",
                "s_lshl_b32 s95, s72, 10", f"s_add_u32 s95, s95, {WS_ACT}", "s_mov_b32 s30, s18", "s_waitcnt vmcnt(9)"] + cmpf([FL]) +
               ["s_nop 0", "s_cbranch_vccz KF_oolr"] + spin(hfl, [FL], "KF_oolr"))
    ool.append(["KF_ool:", "s_cmp_eq_u32 s4, 5", "s_cbranch_scc1 KF_sw", "s_cmp_eq_u32 s4, 3", "s_cbranch_scc1 KF_o3", "s_cmp_eq_u32 s4, 4", "s_cbranch_scc1 KF_o4",
                "s_lshl_b32 s72, s63, 14", "s_lshl_b32 s73, s3, 7", "s_add_u32 s72, s72, s73", f"s_add_u32 s72, s72, {FL_P2}",
                "s_lshl_b32 s73, s62, 2", "s_add_u32 s91, s72, s73", "s_add_u32 s91, s91, 8192", f"v_lshlrev_b32 v{vT2}, 5, v{vL16}"] +
               flag_store("s91", 16, vT2, allw=True) +
               ["s_lshr_b32 s73, s62, 3", "s_lshl_b32 s73, s73, 11", "s_add_u32 s90, s72, s73", "s_and_b32 s73, s62, 7", "s_lshl_b32 s73, s73, 2",
                "s_add_u32 s90, s90, s73",
                "s_lshl_b32 s73, s64, 2", "s_add_u32 s73, s73, s65", "s_lshl_b32 s73, s73, 9", "s_add_u32 s84, s72, s73",
                "s_movk_i32 s73, 0x30", "s_cmp_eq_u32 s5, 0", "s_cselect_b32 s73, s73, 0x1f0", f"v_and_b32 v{vT}, s73, v{vL16}", f"v_lshrrev_b32 v{vT}, 2, v{vT}",
                "s_branch KF_oolr",
                "KF_sw:",
                "s_mov_b32 s20, s24", "s_mov_b32 s21, s25", "s_mov_b32 s22, s26"] + [f"v_mov_b32 v{vD[p]}, v{vDW[p]}" for p in range(9)] +
               [f"s_mov_b32 s97, {128*1152}", f"s_mul_i32 s93, s3, {32*1152}", "s_add_u32 s93, s93, s7", "s_mul_i32 s72, s65, 288", "s_add_u32 s93, s93, s72",
                "s_lshl_b32 s80, s6, 10", f"s_add_u32 s80, s80, {WS_ACT}", "s_mov_b32 s79, s80", "s_mov_b32 s88, 0", "s_mov_b32 s87, 1",
                "s_cmp_eq_u32 s5, 0", "s_cselect_b32 s85, s65, 0",
                "s_branch KF_oolr"])
    k.begin(name="attn_last")
    attn_iter("last")
    e(stamp(6))
    W = 216
    for u in range(4): e(f"v_add_f32 v{L+u}, v{L+u}, v{L+4+u}")
    xl = [xlane("v_add_f32", L + u, W + 4 + u) for u in range(4)]
    for i in range(6):
        for u in range(4): e(xl[u][i])
    e(f"v_add_f32 v{W+1}, v{L}, v{L+1}"); e(f"v_add_f32 v{W+2}, v{L+2}, v{L+3}"); e(f"v_add_f32 v{W}, v{W+1}, v{W+2}")
    e(f"v_cmp_nge_f32 vcc, {f32bits(2.0**30):#x}, v{W}")
    e("s_cbranch_vccnz KF_slow")
    e("KF_epi:")
    k.begin(name="oepi")
    ACC = 48; A2 = 192
    def acc(nt, u): return ACC + (nt * 4 + u) * 4
    e(f"v_add_u32 v{vL}, s96, v{vP5}")
    def mkstage(bf, zero=False):
        G = Frags(A2)
        for s in range(4):
            for nt in range(9):
                G.add(vL, s * 9216 + nt * 32, [f"{MF} {vr(acc(nt,u))}, @A, {bf(s,u)}, {'0' if zero and s == 0 else vr(acc(nt,u))}" for u in range(4)], 4608)
        return G
    P5 = {b: mkstage(lambda s, u, b=b: BF(b, s, u)) for b in range(2)}
    for f in range(LEAD): e(P5[0].fr[f][2])
    for u in range(4): e(f"v_rcp_f32 v{L+u}, v{L+u}")
    OB = lambda i, u: 216 + ((i & 1) * 4 + u) * 4
    def oepi(i, u, t, packed=False):
        o = OB(i, u)
        out = [f"v_accvgpr_read_b32 v{t+r}, a{O(2*i + r//4, u) + r%4}" for r in range(8)]
        if packed: out += [f"v_pk_mul_f32 {vr(t+r,2)}, {vr(t+r,2)}, {vr(L + (u & 2),2)} op_sel:[0,{u&1}] op_sel_hi:[1,{u&1}]" for r in range(0, 8, 2)]
        else: out += [f"v_mul_f32 v{t+r}, v{t+r}, v{L+u}" for r in range(8)]
        out += [f"v_cvt_pk_bf16_f32 v{o+r}, v{t+2*r}, v{t+2*r+1}" for r in range(4)]
        return out + [Inst(f"buffer_store_dwordx4 {vr(o)}, v{vST[u]}, s[16:19], s83 offen offset:{i*1024} sc1", "st")]
    def common(sc):
        sc.put(4 * (36 - LEAD) - 1, f"v_add_u32 v{vL}, s96, v{vP5}")
        sc.put(6, [WaitTag(["dma"], 9), "s_barrier"])
    e(stamp(7))
    e("s_mov_b32 s4, 0"); e("s_mov_b32 s101, s5")
    e("s_cmp_eq_u32 s5, 0"); e("s_cbranch_scc1 KF_spre")
    def BF2(s, u): return ar((s * 4 + u) * 4)
    lastb = [["s_add_u32 s72, s5, 7", "s_xor_b32 s72, s72, s85", "s_lshl_b32 s72, s72, 12", "s_add_u32 s82, s72, s80"]] + \
            [Inst(f"buffer_load_dwordx4 {BF2(s, u)}, v{vST[u]}, s[28:31], s82 offen offset:{s*1024} sc1", "b") for s in range(4) for u in range(4)]
    k.begin(name="g_pre")
    B2nd = lambda s, u: BF(s >> 1, 2 + (s & 1), u)
    NGP = opt.get("ngp", 4)
    maps = [B1st, B2nd, lambda s, u: BF(0, s, u), lambda s, u: BF(1, s, u), lambda s, u: BF(0, s, u)]
    G = mkstage(B1st, zero=True)
    for q in range(1, NGP):
        G1 = mkstage(maps[q]); off = len(G.mf); G.fr += [(g0 + off, n, r, d) for (g0, n, r, d) in G1.fr]; G.mf += G1.mf
    sc = G.sched(wrap=True)
    for q in range(NGP):
        o = 144 * q
        sc.put(o + 4 * (36 - LEAD) - 1, f"v_add_u32 v{vL}, s96, v{vP5}")
        sc.put(o + 6, [WaitTag(["dma"], 9), "s_barrier"])
        sc.add(adv_rd, o + 7, o + 12, spread=False)
    for q in range(4 * NGP): sc.add([WaitRegs(*[maps[(q + 1) // 4]((q + 1) % 4, u) for u in range(4)])], 36 * q + 32, 36 * q + 36, spread=False)
    OEG = opt.get("oeg", 144 * NGP - 80); B2E = opt.get("b2e", 90)
    sc.add(adv_b + [bload(B2nd(s, u), s, u) for s in range(4) for u in range(4)] + adv_b + [["s_add_u32 s86, s79, 4096"]], 0, B2E)
    def bl2(b, s): return [Inst(bload(BF(b, s, u), s, u).text.replace("s79", "s86" if b else "s79"), "b") for u in range(4)]
    sc.add(bl2(0, 0) + bl2(0, 1), 100, 144)
    sc.add(bl2(1, 0) + bl2(1, 1), 146, 190)
    sc.add(bl2(0, 2), 190, 216); sc.add(bl2(0, 3), 216, 250); sc.add(bl2(1, 2) + adv_b, 252, 284)
    for q in range(2, NGP):
        o = 144 * q; bq = q & 1
        for s in range(3): sc.add([bload(BF(bq, s, u), s, u) for u in range(4)], o + 36 * (s + 1), o + 36 * (s + 1) + 24)
        sc.add([bload(BF(bq ^ 1, 3, u), 3, u) for u in range(4)] + adv_b, o + 2, o + 34)
    for q in range(NGP): sc.add(ring_dma(), 144 * q + 12, 144 * q + 140)
    op = sc.add(flat([oepi(i, u, 248) for i in range(4) for u in range(4)]), opt.get("oes", 0), OEG)
    sc.add([[WaitTag(["st"], 0)] + flag_store("s90", 4, vT2, allw=True)], 144 * NGP - 6, 144 * NGP, spread=False)
    e(sc.flat())
    e(stamp(8))
    e("s_branch KF_lb" if NGP == 4 else "s_branch KF_loop2")
    k.begin(name="s_pre")
    e("KF_spre:")
    for u in range(4): e(oepi(0, u, 248 if u & 1 else 40, packed=True))
    G = mkstage(lambda s, u: vr(OB(s, u)), zero=True); sc = G.sched(wrap=True); common(sc)
    sc.add(adv_rd, 7, 12, spread=False)
    for i in range(1, 4): sc.add(flat([oepi(i, u, 248) for u in range(4)]), 36 * (i - 1), 36 * i - 1)
    sc.add(ring_dma(), 108, 143)
    e(sc.flat())
    e(mst(52))
    k.wait_tags("st")
    e(mst(53))
    e(flag_store("s90", 4, vT2, allw=True))
    e("s_mov_b32 s30, s18")
    e(adv_b)
    e(spin(hfl, [FL]))
    e(mst(54))
    for b in (0, 1):
        for s in range(4 - b):
            for u in range(4): e(bload(BF(b, s, u), s, u))
        if b == 0: e(adv_b)
    e(WaitRegs(*[BF(0, 0, u) for u in range(4)]))
    e("s_mov_b32 s4, 0")
    e(stamp(8))

    def stage2(b):
        G = P5[b]; sc = G.sched(wrap=True); common(sc)
        for s in range(4):
            nb, ns = (b, s + 1) if s < 3 else (b ^ 1, 0)
            sc.add([WaitRegs(*[BF(nb, ns, u) for u in range(4)])], 36 * s + 32, 36 * s + 36, spread=False)
        sc.add(adv_rd, 7, 12, spread=False)
        for s in range(3): sc.add([bload(BF(b, s, u), s, u) for u in range(4)], 36 * (s + 1), 36 * (s + 1) + 24)
        sc.add([bload(BF(b ^ 1, 3, u), 3, u) for u in range(4)] + adv_b, 2, 34)
        sc.add(ring_dma(), 12, 140)
        hk = [_mk(x) for x in ("s_cmp_eq_u32 s101, 0", f"s_cbranch_scc1 KF_hk{b}", f"KF_hk{b}r:")]
        sc.add([hk], (106, 30)[b], (112, 35)[b], spread=False)
        fl = sc.flat(); i = fl.index(hk[1])
        cnt[b] = sum(1 for x in (fl[i:] if b == 0 else fl[:i]) if x.kind in ("vload", "vstore", "dma"))
        assert b == 0 or not any(x.kind == "vload" and BF(1, 0, 0) in x.text for x in fl[:i])
        e(fl)
    cnt = {}
    k.begin(loop=2, name="L0")
    e(".p2align 3"); e("KF_loop2:")
    stage2(0)
    k.begin(loop=2, name="L1")
    stage2(1)
    e("s_cmp_eq_u32 s4, 0"); e("s_cbranch_scc1 KF_lb")
    hfl2 = hfl.replace("offen", "offen offset:16")
    ool.append(["KF_hk0:", hfl2, "s_branch KF_hk0r"])
    ool.append(["KF_hk1:", "s_mov_b32 s101, 1", f"s_waitcnt vmcnt({cnt[0] + cnt[1]})"] + cmpf([FL]) +
               ["s_nop 0", "s_cbranch_vccz KF_hk1r"] + spin(hfl2, [FL], "KF_hk1r"))
    ool.append(["KF_lb:"] + lastb + ["s_mov_b32 s4, 2", "s_branch KF_loop2"])

    k.begin(name="final")
    e(stamp(9))
    NPRE = opt.get("npre", 2)
    nts = [8, 0, 1, 2, 3, 4, 5, 6, 7]
    order = [(0, s, nt) for s in range(NPRE) for nt in range(9)]
    order += [(b, s, nt) for nt in nts for b in range(3) for s in range(4) if not (b == 0 and s < NPRE)]
    G = Frags(A2); done = {}
    vLb = [vL, vT, vB + 2]
    for (b, s, nt) in order:
        bf = (lambda u: BF(b, s, u)) if b < 2 else (lambda u: BF2(s, u))
        G.add(vLb[b], s * 9216 + nt * 32, [f"{MF} {vr(acc(nt,u))}, @A, {bf(u)}, {vr(acc(nt,u))}" for u in range(4)], 4608)
        done[nt] = len(G.mf)
    sc = G.sched(); NG = len(G.mf); G0 = 36 * NPRE
    sc.put(G0 - 18, [WaitTag(["dma"], 0), "s_barrier"])
    sc.add([bload(BF(1, 3, u), 3, u) for u in range(4)], 2, 20)
    sc.add(adv_rd + [f"v_add_u32 v{vLb[1]}, s96, v{vP5}"] + adv_rd + [f"v_add_u32 v{vLb[2]}, s96, v{vP5}"], 7, 30, spread=False)
    for s in range(1, NPRE): sc.add([WaitRegs(*[BF(0, s, u) for u in range(4)])], 36 * s - 4, 36 * s, spread=False)
    sc.add([WaitRegs(*[BF(1, 3, u) for u in range(4)])], G0 - 4, G0, spread=False)
    SEL = 26; XRr = 36; vX = 25; vL8 = 46
    ad = [["s_lshl_b32 s72, s63, 2", "s_add_u32 s72, s72, s65"], ["s_lshl_b32 s72, s72, 2", "s_add_u32 s72, s72, s3"],
          ["s_mul_i32 s78, s72, 163840", f"s_add_u32 s78, s78, {WS_PART}"], ["s_mul_i32 s73, s64, 5120", "s_add_u32 s74, s78, s73"],
          ["s_add_u32 s75, s74, 40960", "s_add_u32 s76, s74, 81920"], ["s_add_u32 s77, s74, 122880"],
          ["s_and_b32 s82, s64, 3", "s_mul_i32 s73, s82, 40960"], ["s_add_u32 s78, s78, s73", "s_lshl_b32 s73, s5, 10"], ["s_add_u32 s85, s78, s73"],
          ["s_lshl_b32 s73, s71, 1", "s_xor_b32 s82, s82, s73"], ["s_add_u32 s82, s82, s69", f"s_mul_i32 s83, s82, {16*1152}"],
          ["s_mul_i32 s73, s65, 288", "s_add_u32 s87, s83, s73"], ["s_lshl_b32 s73, s5, 6", "s_add_u32 s83, s87, s73"],
          ["s_mov_b32 s12, s56", "s_mov_b32 s13, s57"], [f"s_mov_b32 s14, {2048*1152}"],
          [f"s_add_u32 s84, s84, {FL_EX - FL_P2}", "s_lshl_b32 s73, s64, 11"], ["s_sub_u32 s90, s84, s73", "s_lshl_b32 s73, s64, 2"], ["s_add_u32 s90, s90, s73"],
          [f"s_mov_b32 s88, {f32bits(-math.log2(math.e)):#x}", "s_mov_b32 s89, 0xffff0000"]]
    sc.add(ad, 30, G0 + 30)
    va = [f"v_bfe_u32 v{vX}, v{vL16}, 4, 4", f"v_lshrrev_b32 v{vT2}, 8, v{vL16}", f"v_bfe_u32 v{vL8}, v{vL16}, 6, 2",
          [f"v_cmp_eq_u32 vcc, v{vL8}, v{vT2}", f"v_mov_b32 v{SEL}, 0x3f80", f"v_and_b32 v{vL8}, 16, v{vL16}", f"v_lshlrev_b32 v{SEL}, v{vL8}, v{SEL}",
           f"v_cndmask_b32 v{SEL}, 0, v{SEL}, vcc"],
          [f"v_and_b32 v{vL8}, 32, v{vL16}", f"v_cmp_eq_u32 vcc, 0, v{vL8}", "s_nop 1", f"v_cndmask_b32 v{SEL+2}, 0, v{SEL}, vcc", f"v_cndmask_b32 v{SEL+3}, v{SEL}, 0, vcc"],
          f"v_mov_b32 v{SEL}, 0", f"v_mov_b32 v{SEL+1}, 0", f"v_mov_b32 v{SEL+4}, 0", f"v_mov_b32 v{SEL+5}, 0",
          f"v_mov_b32 v{SEL+6}, v{SEL+2}", f"v_mov_b32 v{SEL+7}, v{SEL+3}", f"v_mov_b32 v{SEL+8}, v{SEL+2}", f"v_mov_b32 v{SEL+9}, v{SEL+3}",
          f"v_mul_u32_u24 v{vX}, 1152, v{vX}", f"v_lshl_add_u32 v{vX}, v{vT2}, 3, v{vX}",
          f"v_lshrrev_b32 v{vL8}, 1, v{vL16}", f"v_add_u32 v{vL8}, 4096, v{vL8}", f"v_lshlrev_b32 v{vT2}, 7, v{vL16}",
          f"v_bfe_u32 v{vB}, v{vL16}, 4, 3", f"v_lshlrev_b32 v{vB}, 2, v{vB}"]
    sc.add(va, 8, G0 + 30)
    xo = [(0, "s83", 0), (1, "s83", 32), (2, "s83", 128), (3, "s83", 160), (4, "s87", 256)]
    sc.add([f"buffer_load_dwordx2 {vr(XRr+2*t,2)}, v{vX}, s[32:35], {so} offen offset:{o}" for t, so, o in xo], G0 + 32, G0 + 70)
    tail = []; per = done[0] - done[8]
    for c in (4, 0, 1, 2, 3):
        pkx = []
        for u in range(4):
            a = acc(2 * c, u); tg = "p1" if c in (4, 0, 1) else "p2"
            pkx += [f"v_cvt_pk_bf16_f32 v{a}, v{a}, v{a+1}", f"v_cvt_pk_bf16_f32 v{a+1}, v{a+2}, v{a+3}"]
            if c < 4:
                b = acc(2 * c + 1, u)
                pkx += [f"v_cvt_pk_bf16_f32 v{a+2}, v{b}, v{b+1}", f"v_cvt_pk_bf16_f32 v{a+3}, v{b+2}, v{b+3}",
                        Inst(f"buffer_store_dwordx4 {vr(a)}, v{vL16}, s[16:19], s{74+u} offen offset:{c*1024} sc1", tg)]
            else:
                pkx += [Inst(f"buffer_store_dwordx2 {vr(a,2)}, v{vL8}, s[16:19], s{74+u} offen sc1", tg)]
        d = done[8] if c == 4 else done[2 * c + 1]
        if c != 3: sc.add(pkx, d + 4, d + 4 + (per if c == 1 else 2 * per - 8))
        else: tail = pkx
    sc.add([[WaitTag(["p1"], 0)] + flag_store("s90", 8, vT2, allw=True)], done[5] - 2, done[5] + 2)
    fl1 = f"buffer_load_dword v{vB+1}, v{vB}, s[16:19], s84 offen sc1"
    sc.add([fl1], NG - 24, NG - 16)
    e(sc.flat())
    e(tail)
    e(stamp(10))
    c1, c2 = check(fl1, [vB + 1])
    e(c1 + c2)
    e(mst(46))
    RB = 48; RE = 80
    order8 = [4, 5, 6, 7, 0, 1, 2, 3]
    e("s_add_u32 s90, s90, 32"); e("s_add_u32 s84, s84, 32"); e("s_mov_b32 s4, 0")
    e("s_cmp_eq_u32 s5, 0"); e("s_cselect_b32 s30, 0, s18")
    for src in order8:
        e(f"s_add_u32 s86, s78, {src*5120}")
        e(f"buffer_load_dwordx2 {vr(RE + src*2, 2)}, v{vL8}, s[28:31], s86 offen sc1")
    Gs = lambda t: 96 + 4 * t
    Ss = lambda t: 108 + 4 * t
    t0 = 120; g1 = 124
    def round2(a):
        return [f"v_cvt_pk_bf16_f32 v{t0}, v{a}, v{a+1}", f"v_cvt_pk_bf16_f32 v{t0+1}, v{a+2}, v{a+3}",
                f"v_lshlrev_b32 v{a}, 16, v{t0}", f"v_and_b32 v{a+1}, s89, v{t0}", f"v_lshlrev_b32 v{a+2}, 16, v{t0+1}", f"v_and_b32 v{a+3}, s89, v{t0+1}"]
    def gate(t):
        g = Gs(t)
        return round2(g) + [f"v_mul_f32 v{g1+r}, s88, v{g+r}" for r in range(4)] + [f"v_exp_f32 v{g1+r}, v{g1+r}" for r in range(4)] + \
               [f"v_add_f32 v{g1+r}, 1.0, v{g1+r}" for r in range(4)] + [f"v_rcp_f32 v{g1+r}, v{g1+r}" for r in range(4)] + \
               [pk("v_pk_mul_f32", g + r, g + r, g1 + r) for r in (0, 2)] + round2(g)
    def fin(t, x, so, o):
        g = Gs(t); s0 = Ss(t)
        return round2(s0) + [pk("v_pk_mul_f32", g + r, g + r, s0 + r) for r in (0, 2)] + round2(g) + \
               [f"v_lshlrev_b32 v{g1}, 16, v{x}", f"v_and_b32 v{g1+1}, s89, v{x}", f"v_lshlrev_b32 v{g1+2}, 16, v{x+1}", f"v_and_b32 v{g1+3}, s89, v{x+1}"] + \
               [pk("v_pk_add_f32", g + r, g + r, g1 + r) for r in (0, 2)] + \
               [f"v_cvt_pk_bf16_f32 v{s0}, v{g}, v{g+1}", f"v_cvt_pk_bf16_f32 v{s0+1}, v{g+2}, v{g+3}",
                f"buffer_store_dwordx2 {vr(s0,2)}, v{vX}, s[12:15], {so} offen offset:{o}"]
    k.begin(loop=2, name="rnd")
    e("KF_rnd:")
    for src in order8:
        e(f"s_add_u32 s86, s85, {src*5120}")
        e(f"buffer_load_dwordx4 {vr(RB + src*4)}, v{vL16}, s[16:19], s86 offen sc1")
    e("s_cmp_lg_u32 s4, 0"); e("s_cbranch_scc1 KF_r1")
    for x in mst(47) + ["s_waitcnt vmcnt(16)"] + mst(48) + flag_store("s90", 8, vT2, allw=True) + (["s_waitcnt vmcnt(1)"] + mst(49) if mst(0) else []): e(C(x))
    e("KF_r1:")
    e(mst(50))
    if mst(0): e(C("s_waitcnt vmcnt(0)"))
    e(mst(51))
    for src in order8:
        for t in range(2):
            d = vr((Gs if src >= 4 else Ss)(t))
            e(f"{MF} {d}, {vr(SEL + (0 if t else 2))}, {vr(RB + src*4)}, {'0' if src in (0, 4) else d}")
    for t in range(2): e(gate(t))
    for t in range(2): e(fin(t, XRr + 2 * t, "s83", 32 * t))
    e("s_cmp_lg_u32 s4, 0"); e("s_cbranch_scc1 KF_fin")
    e("s_cmp_eq_u32 s5, 0"); e("s_cbranch_scc1 KF_r2")
    ee = [f"{MF} {vr((Gs if q >= 2 else Ss)(2))}, {vr(SEL + 6)}, {vr(RE + q*4)}, {'0' if q % 2 == 0 else vr((Gs if q >= 2 else Ss)(2))}" for q in (2, 3, 0, 1)]
    for x in ee + ["s_nop 7"] + gate(2) + fin(2, XRr + 8, "s87", 256): e(x)
    e("KF_r2:")
    e(f"v_mov_b64 {vr(XRr,2)}, {vr(XRr+4,2)}"); e(f"v_mov_b64 {vr(XRr+2,2)}, {vr(XRr+6,2)}")
    e("s_add_u32 s85, s85, 2048"); e("s_add_u32 s83, s83, 128"); e("s_mov_b32 s4, 1")
    e(stamp(11))
    e(spin(fl1, [vB + 1], "KF_rnd"))
    k.begin(name="fin")
    e("KF_fin:")
    if stamps:
        e(stamp(12)); e("s_waitcnt vmcnt(0)"); e(stamp(13))
        e("s_lshl_b32 s72, s2, 2"); e("s_add_u32 s72, s72, s3"); e("s_lshl_b32 s72, s72, 8"); e(f"s_add_u32 s72, s72, {200<<20}")
        e(f"v_lshrrev_b32 v2, 2, v{vL16}")
        e(f"buffer_store_dword v{STV}, v2, s[16:19], s72 offen")
        if opt.get("dbg"):
            e(f"s_cmp_lg_u32 s2, {opt['dbg']}"); e("s_cbranch_scc1 KF_end"); e("s_cmp_lg_u32 s3, 1"); e("s_cbranch_scc1 KF_end")
            e(srd(20, 58, 64)); e(f"v_readlane_b32 s72, v{STV}, 32"); e("v_subrev_u32 v2, 124, v2"); e(f"v_subrev_u32 v{STV}, s72, v{STV}")
            e("s_mov_b32 exec_lo, 0"); e(f"buffer_store_dword v{STV}, v2, s[20:23], 0 offen")
    e("KF_end:")
    e("s_endpgm")

    for i, blk in enumerate(ool):
        k.begin(name=f"ool{i}")
        e(blk); e("s_endpgm")
    Mx = W + 8; AL = W + 12; TT = W + 16
    k.begin(name="slow_pre")
    e("KF_codeend:")
    e("KF_slow:")
    e("s_waitcnt vmcnt(0) lgkmcnt(0)"); e("s_nop 15")
    for i in range(128): e(f"v_accvgpr_write_b32 a{i}, 0")
    for u in range(4): e(f"v_mov_b32 v{L+u}, 0"); e(f"v_mov_b32 v{Mx+u}, 0xff7fffff")
    e("s_mov_b32 s72, 0"); e("s_mov_b32 s68, s82")
    k.begin(loop=16, name="slow_loop")
    e("KF_sloop:")
    for q in range(4):
        for f in range(4):
            ff = q * 4 + f
            e(f"buffer_load_dwordx4 {KF(1, ff) if ff < 8 else VF(1, ff - 8)}, v{vL16}, s[16:19], s68 offen offset:{f*1024} sc1")
        e("s_add_u32 s68, s68, 4096")
    for u in range(4):
        e(qk(u, lambda f: KF(1, f), zero=True))
        s0 = S(u); m = W + u
        e(f"v_max3_f32 v{m}, v{s0}, v{s0+1}, v{s0+2}"); e(f"v_max3_f32 v{m}, v{m}, v{s0+3}, v{s0+4}")
        e(f"v_max3_f32 v{m}, v{m}, v{s0+5}, v{s0+6}"); e(f"v_max3_f32 v{m}, v{m}, v{s0+7}, v{Mx+u}")
        e(xlane("v_max_f32", m, W + 4))
        e(f"v_sub_f32 v{AL}, v{Mx+u}, v{m}"); e(f"v_exp_f32 v{AL}, v{AL}"); e(f"v_mov_b32 v{Mx+u}, v{m}")
        e(f"v_mul_f32 v{L+u}, v{L+u}, v{AL}")
        for i in range(8):
            e(f"v_sub_f32 v{s0+i}, v{s0+i}, v{m}"); e(f"v_exp_f32 v{s0+i}, v{s0+i}")
        for i in range(8): e(f"v_add_f32 v{L+u}, v{L+u}, v{s0+i}")
        for i in range(4): e(f"v_cvt_pk_bf16_f32 v{P+i}, v{s0+2*i}, v{s0+2*i+1}")
        for dt in range(8):
            for r in range(4): e(f"v_accvgpr_read_b32 v{TT+r}, a{O(dt,u)+r}")
            for r in range(4): e(f"v_mul_f32 v{TT+r}, v{TT+r}, v{AL}")
            for r in range(4): e(f"v_accvgpr_write_b32 a{O(dt,u)+r}, v{TT+r}")
        e(pv(u, 1, 0))
    e("s_add_u32 s72, s72, 1"); e("s_cmp_lt_u32 s72, 16"); e("s_cbranch_scc1 KF_sloop")
    k.begin(name="slow_post")
    e("s_nop 15")
    for u in range(4): e(xlane("v_add_f32", L + u, W + 4))
    e("s_nop 15")
    e("s_branch KF_epi")
    pre = ["p0a", "gemm", "attn_first"]
    k.paths = []
    for na in (1, 2, 4):
        for nl in (1, 2):
            mid = pre + ["attn_loop"] * na + ["attn_last", "oepi"]
            if na > 1 and nl > 1 and (na, nl) != (4, 2): continue
            k.paths.append(mid + ["g_pre"] + ["L0", "L1"] * nl + ["final", "rnd", "rnd", "fin"])
            k.paths.append(mid + ["s_pre"] + ["L0", "L1"] * nl + ["final", "rnd", "rnd", "fin"])
    return kstart(name) + k.finish(), kdesc(name, 512, 256), (name, 256, 256, 163840)
```

```python
from lib import *
from lib import _mk
from common import *
import math

SLOT = 36864
SPARE = 4 * SLOT
MF = "v_mfma_f32_16x16x32_bf16"
QSCALE = math.log2(math.e) / math.sqrt(128.0)
SPIN_MAX = 100000
KNAME = "recurrent_scan__sliding_block_cached__dense_activation_relu__prompt_kernel"

def flat(l): return [x for y in l for x in y]

def gen_kf(name=KNAME, stamps=False, opt=None):
    opt = opt or {}
    k = Kernel(name)
    k.cur.name = 'p0a'
    e = k.e
    vL16, vDQ, vD1, vS0, vP5, vZ, vTOK, vL, vT = 1, 2, 3, 4, 5, 6, 7, 8, 9
    vST = [10, 11, 12, 13]
    vT2 = 14; STV = 15
    XV = 16; QA = 48; AF = 176; NF = 6; LEAD = 4
    FA = 200; T = 232; vB = 248
    vXN = [232, 233, 234, 235]; vKO, vVO = 254, 255
    B1, B3, B5, B7 = 64, 96, 128, 160
    def X(u, s):
        h, idx = u >> 1, s * 2 + (u & 1)
        return ar(h * 128 + idx * 4) if idx < 32 else vr(XV + h * 16 + (idx - 32) * 4)
    def qa(nt, u): return QA + (nt * 4 + u) * 4
    def Qf(u, s): return vr(qa(2 * s, u))
    def fa(a, u): return FA + a * 16 + u * 4
    def stamp(i):
        if not stamps: return []
        return ["s_memtime s[98:99]", "s_waitcnt lgkmcnt(0)", f"v_writelane_b32 v{STV}, s98, {i}",
                "s_memrealtime s[98:99]", "s_waitcnt lgkmcnt(0)", f"v_writelane_b32 v{STV}, s98, {32+i}"]
    def mst(i):
        if not (stamps and opt.get("fine")): return ["s_nop 0"] if False else []
        return ["s_memtime s[98:99]", "s_waitcnt lgkmcnt(0)", "s_nop 0", f"v_writelane_b32 v{STV}, s98, {i}"]
    def C(t): return Inst(t, "cond")
    uid = [0]
    def lab(p): uid[0] += 1; return f"KF_{p}{uid[0]}"
    def flag_store(sreg, nl, voff, allw=False):
        lb = lab("nf")
        m = ["s_mov_b64 exec, %#x" % ((1 << nl) - 1)] if nl < 32 else ["s_mov_b32 exec_hi, 0"]
        body = m + [f"buffer_store_dword v{vTOK}, v{voff}, s[16:19], {sreg} offen sc1", "s_mov_b64 exec, -1"]
        if allw: return body
        return ["s_cmp_lg_u32 s3, 0", f"s_cbranch_scc1 {lb}"] + [C(x) for x in body] + [f"{lb}:"]
    ool = []
    def spin(load, regs, ret=None):
        lb = lab("sp"); dn = ret or lab("sd")
        out = ["s_mov_b32 s73, 0", f"{lb}:", load, "s_waitcnt vmcnt(0)"] + cmpf(regs)
        out += ["s_add_u32 s73, s73, 1", f"s_cmp_ge_u32 s73, {SPIN_MAX}", f"s_cbranch_scc1 {dn}", f"s_cbranch_vccz {dn}", "s_sleep 2", f"s_branch {lb}"]
        if not ret: out.append(f"{dn}:")
        return out
    def cmpf(regs):
        out = []
        if len(regs) > 1:
            out += [f"v_xor_b32 v{r}, v{r}, v{vTOK}" for r in regs]
            out += [f"v_or_b32 v{regs[0]}, v{regs[0]}, v{r}" for r in regs[1:]]
            out += [f"v_cmp_ne_u32 vcc, 0, v{regs[0]}"]
        else:
            out += [f"v_cmp_ne_u32 vcc, v{regs[0]}, v{vTOK}"]
        return out
    def check(load, regs):
        a, b = lab("ck"), lab("cr")
        ool.append([f"{a}:"] + spin(load, regs, b))
        return cmpf(regs), ["s_nop 0", f"s_cbranch_vccnz {a}", f"{b}:"]
    def xlane(op, r, t, both=True):
        o = [f"v_mov_b32 v{t}, v{r}", f"v_permlane32_swap_b32 v{t}, v{r}", f"{op} v{r}, v{r}, v{t}"] if both else []
        return o + [f"v_mov_b32 v{t}, v{r}", f"v_permlane16_swap_b32 v{t}, v{r}", f"{op} v{r}, v{r}, v{t}"]
    def ident(ID, t0, t1):
        o = [f"v_lshrrev_b32 v{t0}, 4, v{vL16}", f"v_and_b32 v{t1}, 15, v{t0}", f"v_lshrrev_b32 v{t0}, 4, v{t0}", f"v_lshlrev_b32 v{t0}, 3, v{t0}",
             f"v_sub_u32 v{t0}, v{t1}, v{t0}", f"v_and_b32 v{t1}, 1, v{t0}", f"v_lshlrev_b32 v{t1}, 4, v{t1}", f"v_mov_b32 v{ID}, 0x3f80",
             f"v_lshlrev_b32 v{t1}, v{t1}, v{ID}", f"v_ashrrev_i32 v{t0}, 1, v{t0}"]
        for h in range(2):
            for r in range(4):
                o.append([f"v_cmp_eq_i32 vcc, {r - 8*h}, v{t0}", "s_nop 1", f"v_cndmask_b32 v{ID+4*h+r}, 0, v{t1}, vcc"])
        return o
    def tr_mf(D, A, ID): return [f"{MF} {vr(D + (h*2+r)*4)}, {vr(A + 4*r)}, {vr(ID + 4*h)}, 0" for h in range(2) for r in range(2)]
    def tr_cvt(o, D, h): return [f"v_cvt_pk_bf16_f32 v{o+2*r+q}, v{D+(h*2+r)*4+2*q}, v{D+(h*2+r)*4+2*q+1}" for r in range(2) for q in range(2)]

    e("s_cmp_ge_u32 s2, 256"); e("s_cbranch_scc1 KF_end")
    if opt.get("scr"):
        e("s_and_b32 s4, s2, 7"); e("s_bfe_u32 s5, s2, 0x30003"); e("s_andn2_b32 s2, s2, 63"); e("s_lshl_b32 s4, s4, 3"); e("s_or_b32 s2, s2, s4"); e("s_or_b32 s2, s2, s5")
    e("s_load_dwordx16 s[40:55], s[0:1], 0")
    e("s_load_dwordx4 s[56:59], s[0:1], 64")
    e("s_load_dwordx2 s[60:61], s[0:1], 80")
    e("s_memrealtime s[38:39]")
    e("v_lshrrev_b32 v20, 6, v0")
    e("v_and_b32 v21, 63, v0")
    e("v_readfirstlane_b32 s3, v20")
    e("s_and_b32 s64, s2, 7"); e("s_bfe_u32 s65, s2, 0x20003")
    e("s_and_b32 s62, s2, 3"); e("s_lshl_b32 s62, s62, 3"); e("s_and_b32 s63, s2, 4"); e("s_add_u32 s62, s62, s63"); e("s_add_u32 s62, s62, s65")
    e("s_lshr_b32 s63, s2, 5")
    e("s_lshl_b32 s66, s63, 5"); e("s_add_u32 s66, s66, s62")
    e("v_lshrrev_b32 v22, 5, v0"); e("v_mul_u32_u24 v22, 1152, v22")
    e("v_and_b32 v23, 31, v21"); e("v_lshl_add_u32 v22, v23, 4, v22")
    e("s_mul_i32 s67, s66, 9216")
    for r in range(56, 60): e(f"v_mov_b32 v{r}, 0")
    e(f"v_mov_b32 v{vZ}, 0")
    e(f"v_lshlrev_b32 v{vL16}, 4, v21")
    e("s_waitcnt lgkmcnt(0)")
    e(srd(32, 40, 2048 * 1152))
    e(f"buffer_load_dwordx4 {vr(48)}, v22, s[32:35], s67 offen")
    e(f"buffer_load_dwordx4 {vr(52)}, v22, s[32:35], s67 offen offset:512")
    e("s_mov_b32 exec_lo, 0xff"); e("s_mov_b32 exec_hi, 0xff")
    e(f"buffer_load_dwordx4 {vr(56)}, v22, s[32:35], s67 offen offset:1024")
    e("s_mov_b64 exec, -1")
    e(stamp(0))
    e(srd(8, 46, 576 * 8192)); e(srd(20, 58, 256))
    e("s_or_b32 s77, s2, s3"); e("s_cbranch_scc1 KF_w0")
    e(C("s_or_b32 s38, s38, 1")); e(C("v_mov_b32 v28, s38")); e(C("s_mov_b64 exec, 1"))
    e(C(f"buffer_store_dword v28, v{vZ}, s[20:23], 0 offen sc1")); e(C("s_mov_b64 exec, -1"))
    e("KF_w0:")
    e(srd(16, 60, WS_SIZE)); e(srd(12, 52, 576 * 9216)); e(srd(24, 42, 8388608)); e(srd(28, 44, 8388608))
    e("v_lshrrev_b32 v28, 1, v21"); e("v_and_b32 v29, 1, v21"); e("v_lshlrev_b32 v29, 7, v29")
    e("v_lshl_add_u32 v34, v28, 13, v29"); e("v_mul_u32_u24 v239, 9216, v21")
    e("s_sub_u32 s77, s3, 1"); e("s_lshl_b32 s77, s77, 3"); e("s_add_u32 s77, s77, s63"); e(f"s_mul_i32 s4, s77, {24*8192}"); e("s_lshl_b32 s5, s63, 2"); e("s_add_u32 s5, s5, s3"); e(f"s_mul_i32 s5, s5, {18*9216}")
    e("s_lshr_b32 s70, s62, 1"); e("s_and_b32 s71, s62, 1")
    e("s_lshl_b32 s6, s70, 6"); e("s_add_u32 s6, s6, s5"); e("s_add_u32 s6, s6, 8192")
    e("s_lshl_b32 s79, s62, 8"); e("s_add_u32 s4, s4, s79"); e("s_add_u32 s5, s5, s79")
    wq_touch = ["s_mov_b32 exec_hi, 0xffff", "buffer_load_dword v31, v34, s[8:11], s4 offen", "s_mov_b64 exec, -1"]
    def w1_touch(i):
        return [Inst("s_mov_b64 exec, 0x3ffff"), Inst(f"buffer_load_dword v0, v239, s[12:15], {('s5','s5','s6')[i]} offen offset:{(0,128,0)[i]}", "tch"), Inst("s_mov_b64 exec, -1")]
    def not_w0(body, maxw=3):
        lb = lab("nw")
        return ["s_sub_u32 s72, s3, 1", f"s_cmp_ge_u32 s72, {maxw}", f"s_cbranch_scc1 {lb}"] + [C(x) for x in body] + [f"{lb}:"]
    ORD = opt.get("ord", 1)
    CPF = opt.get("codepf", 1)
    code_touch = ["s_getpc_b64 s[68:69]", "KF_pc:", f"s_sub_u32 s96, s68, KF_pc-{name}", "s_subb_u32 s97, s69, 0", f"s_mov_b32 s98, KF_codeend-{name}", "s_mov_b32 s99, 0x20000",
                  "s_lshr_b32 s94, s2, 3", "s_lshl_b32 s94, s94, 2", "s_add_u32 s94, s94, s3", "s_mul_i32 s94, s94, 640",
                  "v_lshlrev_b32 v27, 7, v21", "s_mov_b64 exec, 31", Inst("buffer_load_dword v31, v27, s[96:99], s94 offen", "tch"), "s_mov_b64 exec, -1"]
    if CPF == 1: e(code_touch)
    e("v_and_b32 v24, 15, v21"); e("v_lshrrev_b32 v25, 4, v21")
    e(f"v_lshlrev_b32 v{vKO}, 8, v24"); e(f"v_lshl_add_u32 v{vVO}, v25, 4, v{vKO}"); e(f"v_lshl_add_u32 v{vKO}, v25, 3, v{vKO}")
    e("v_lshrrev_b32 v28, 5, v21"); e("v_lshlrev_b32 v29, 1, v28"); e("v_and_b32 v30, 3, v21"); e("v_xor_b32 v29, v29, v30")
    e("v_lshlrev_b32 v29, 4, v29"); e("v_lshrrev_b32 v32, 2, v21")
    e(f"v_lshl_add_u32 v{vDQ}, v32, 13, v29")
    e(f"v_mul_u32_u24 v{vD1}, 9216, v32"); e(f"v_add_u32 v{vD1}, v{vD1}, v29")
    e("v_bfe_u32 v32, v21, 2, 2"); e("v_lshlrev_b32 v32, 6, v32"); e("v_lshl_add_u32 v32, v30, 3, v32")
    e("v_and_b32 v26, 1, v25"); e("v_lshl_add_u32 v32, v26, 5, v32")
    e(f"v_lshl_add_u32 v{vS0}, v25, 9, v32")
    e("v_bfe_u32 v33, v21, 2, 2"); e(f"v_lshlrev_b32 v{vP5}, 10, v25"); e(f"v_lshl_add_u32 v{vP5}, v33, 7, v{vP5}"); e(f"v_lshl_add_u32 v{vP5}, v30, 3, v{vP5}")
    e("v_lshrrev_b32 v33, 1, v33"); e(f"v_lshl_add_u32 v{vP5}, v33, 5, v{vP5}"); e(f"v_lshl_add_u32 v{vP5}, v26, 6, v{vP5}")
    e("v_lshrrev_b32 v33, 3, v21"); e("v_mul_u32_u24 v238, 9216, v33"); e("v_and_b32 v33, 7, v21"); e("v_lshlrev_b32 v35, 1, v26"); e("v_xor_b32 v33, v33, v35")
    e("v_and_b32 v35, 1, v20"); e("v_lshlrev_b32 v35, 2, v35"); e("v_xor_b32 v33, v33, v35"); e("v_lshl_add_u32 v238, v33, 4, v238")
    e("v_lshl_add_u32 v32, v26, 9, v32"); e(f"v_lshl_add_u32 v{vB}, v28, 12, v32"); e(f"v_xor_b32 v{vB+1}, 32, v{vB}")
    for r in range(2, 6): e(f"v_add_u32 v{vB+r}, 0x10000, v{vB+r-2}")
    e("s_lshl_b32 s69, s63, 4"); e("s_lshl_b32 s78, s3, 2"); e("s_add_u32 s69, s69, s78"); e("s_lshl_b32 s78, s71, 1")
    for u in range(4):
        e(f"s_xor_b32 s79, s78, {u}"); e("s_add_u32 s79, s79, s69")
        e("s_mul_i32 s80, s79, 18432"); e(f"v_add_u32 v{vXN[u]}, s80, v{vL16}")
        e(f"s_mul_i32 s80, s79, {272*1024}"); e(f"v_add_u32 v{vST[u]}, s80, v{vL16}")
    e("v_lshrrev_b32 v36, 5, v0"); e("v_and_b32 v37, 7, v21"); e("v_xor_b32 v36, v36, v37"); e("v_lshlrev_b32 v36, 4, v36")
    e("v_lshl_add_u32 v36, v23, 7, v36"); e(f"v_add_u32 v36, {SPARE}, v36")
    e("v_lshrrev_b32 v38, 3, v21"); e("v_xor_b32 v39, v38, v37"); e("v_lshlrev_b32 v39, 4, v39"); e("v_lshl_add_u32 v39, v38, 7, v39"); e(f"v_add_u32 v39, {SPARE}, v39")
    e("v_lshlrev_b32 v38, 8, v38"); e("v_lshl_add_u32 v38, v37, 4, v38")
    e("s_lshl_b32 s72, s63, 1"); e("s_add_u32 s72, s72, s71")
    e("s_lshl_b32 s73, s70, 19"); e("s_lshl_b32 s74, s72, 13"); e("s_add_u32 s73, s73, s74"); e(f"s_add_u32 s73, s73, {1536*256}")
    e("s_lshl_b32 s74, s3, 6"); e("s_add_u32 s87, s73, s74"); e("s_add_u32 s88, s87, 4096")
    e("s_lshr_b32 s74, s3, 1"); e("s_lshl_b32 s74, s74, 12"); e("s_add_u32 s73, s73, s74")
    e("s_and_b32 s74, s3, 1"); e("s_lshl_b32 s74, s74, 7"); e("s_add_u32 s89, s73, s74")
    e("s_lshl_b32 s82, s70, 18"); e(f"s_add_u32 s82, s82, {WS_KVP}")
    e("s_lshl_b32 s93, s72, 14"); e("s_add_u32 s93, s93, s82"); e("s_lshl_b32 s78, s3, 11"); e("s_add_u32 s93, s93, s78"); e("s_add_u32 s95, s93, 8192")
    e("s_lshl_b32 s90, s70, 7"); e(f"s_add_u32 s90, s90, {FL_KV}"); e("s_lshl_b32 s91, s72, 2"); e("s_add_u32 s91, s91, s90")
    e(f"s_mul_i32 s77, s3, {8*9216}"); e("s_lshl_b32 s79, s62, 8"); e("s_add_u32 s79, s79, s77"); e(f"s_mul_i32 s77, s3, {144*9216}")
    e("s_lshl_b32 s80, s70, 6"); e("s_add_u32 s80, s80, s77"); e("s_add_u32 s80, s80, 8192")
    e("s_mul_i32 s81, s3, 9216")
    e("s_lshl_b32 s83, s62, 12"); e(f"s_add_u32 s83, s83, {WS_ACT}"); e(f"s_add_u32 s84, s83, {128*1024}")
    e("s_lshl_b32 s85, s70, 10"); e(f"s_add_u32 s85, s85, {WS_ACT + 256*1024}")
    e(f"s_mov_b32 s86, {f32bits(QSCALE):#x}")
    e("s_lshl_b32 s37, s62, 8"); e("s_lshl_b32 s67, s3, 6"); e("s_add_u32 s37, s37, s67"); e("s_lshl_b32 s67, s3, 10")
    for i in range(5): e(f"s_mov_b32 s{74+i}, {WS_XN + i*4096}")
    e("s_lshr_b32 s7, s66, 1"); e("s_mul_i32 s7, s7, 18432"); e("s_lshl_b32 s72, s71, 7"); e("s_add_u32 s7, s7, s72")
    e("s_lshl_b32 s36, s63, 12"); e("s_lshl_b32 s72, s62, 2"); e("s_add_u32 s36, s36, s72"); e(f"s_add_u32 s36, s36, {FL_LN}")
    Fv = 64
    for d in range(12):
        e(f"v_lshlrev_b32 v{Fv+2*d}, 16, v{48+d}"); e(f"v_and_b32 v{Fv+2*d+1}, 0xffff0000, v{48+d}")
    e(f"buffer_load_dword v{vTOK}, v{vZ}, s[20:23], 0 offen sc1", "tch")
    if ORD == 1: e(not_w0(wq_touch))
    if ORD == 4: e(not_w0(wq_touch, 1))
    if CPF == 2: e([x.replace("s[68:69]", "s[100:101]").replace("s68", "s100").replace("s69", "s101") if isinstance(x, str) else x for x in code_touch])
    e(stamp(1))
    def pk(op, d, a, b): return f"{op} {vr(d,2)}, {vr(a,2)}, {vr(b,2)}"
    e(pk("v_pk_add_f32", 40, Fv, Fv + 2)); e(pk("v_pk_add_f32", 42, Fv + 4, Fv + 6))
    for d in range(8, 24, 2): e(pk("v_pk_add_f32", 40 + (d & 2), 40 + (d & 2), Fv + d))
    def red(r):
        e(pk("v_pk_add_f32", r, r, r + 2)); e(f"v_add_f32 v{r}, v{r}, v{r+1}")
        for sh in (8, 4, 2, 1): e(f"v_add_f32_dpp v{r}, v{r}, v{r} row_ror:{sh} row_mask:0xf bank_mask:0xf")
        e(xlane("v_add_f32", r, r + 1, both=False))
    red(40)
    e(f"v_mul_f32 v40, {f32bits(-1.0/576):#x}, v40"); e("v_mov_b32 v41, v40")
    e("v_cvt_pk_bf16_f32 v44, v40, v40"); e("v_lshlrev_b32 v44, 16, v44"); e("v_mov_b32 v45, v44")
    for d in range(0, 24, 2):
        if d == 16: e("s_mov_b32 exec_lo, 0xff"); e("s_mov_b32 exec_hi, 0xff")
        t = 92 + (d & 2); a = 88 + (d & 2)
        e(pk("v_pk_add_f32", t, Fv + d, 40))
        if d < 4: e(pk("v_pk_mul_f32", a, t, t))
        else: e(f"v_pk_fma_f32 {vr(a,2)}, {vr(t,2)}, {vr(t,2)}, {vr(a,2)}")
    e("s_mov_b64 exec, -1")
    for d in range(0, 24, 2):
        e(pk("v_pk_add_f32", Fv + d, Fv + d, 44)); e(f"v_cvt_pk_bf16_f32 v{48+d//2}, v{Fv+d}, v{Fv+d+1}")
    red(88)
    def rbf(r): e(f"v_cvt_pk_bf16_f32 v{r}, v{r}, v{r}"); e(f"v_lshlrev_b32 v{r}, 16, v{r}")
    e(f"v_mul_f32 v88, {f32bits(1.0/576):#x}, v88"); rbf(88)
    e(f"v_add_f32 v88, {f32bits(1e-5):#x}, v88"); rbf(88)
    e("v_sqrt_f32 v88, v88")
    for d in range(12):
        e(f"v_lshlrev_b32 v{Fv+2*d}, 16, v{48+d}"); e(f"v_and_b32 v{Fv+2*d+1}, 0xffff0000, v{48+d}")
        if d == 0: rbf(88)
        if d == 1: e("v_rcp_f32 v90, v88")
        if d == 2: e("v_fma_f32 v91, -v88, v90, 2.0")
        if d == 3: e("v_mul_f32 v90, v90, v91"); e("v_mov_b32 v91, v90")
    for d in range(12):
        e(pk("v_pk_mul_f32", Fv + 2 * d, Fv + 2 * d, 90)); e(f"v_cvt_pk_bf16_f32 v{48+d}, v{Fv+2*d}, v{Fv+2*d+1}")
        if d % 4 == 3:
            if d == 11: e("s_mov_b32 exec_lo, 0xff"); e("s_mov_b32 exec_hi, 0xff")
            e(f"ds_write_b128 v36, {vr(48 + d - 3)} offset:{(d//4)*4096}")
    e("s_mov_b64 exec, -1")
    e("s_waitcnt lgkmcnt(0)")
    e("s_barrier")
    e(stamp(2))
    e("s_cmp_lg_u32 s3, 0"); e("s_cbranch_scc1 KF_x123")
    w0 = [f"ds_read_b128 {vr(136+4*q)}, v39 offset:{q*1024}" for q in range(9)]
    for q in range(9):
        w0 += [f"s_waitcnt lgkmcnt({8-q})", f"buffer_store_dwordx4 {vr(136+4*q)}, v38, s[16:19], s7 offen offset:{(q%2)*2048} sc1"]
        if q % 2: w0 += ["s_add_u32 s7, s7, 4096"]
    w0 += ["v_lshlrev_b32 v38, 7, v21", "s_mov_b32 s73, 0"] + mst(62) + ["KF_tk:", "s_waitcnt vmcnt(0)", f"v_cmp_eq_u32 vcc, 0, v{vTOK}",
           "s_add_u32 s73, s73, 1", f"s_cmp_ge_u32 s73, {SPIN_MAX}",
           "s_cbranch_scc1 KF_tkd", "s_cbranch_vccz KF_tkd", f"buffer_load_dword v{vTOK}, v{vZ}, s[20:23], 0 offen sc1", "s_branch KF_tk", "KF_tkd:"]
    w0 += mst(63) + flag_store("s36", 32, 38, allw=True)
    w0 += [f"v_mov_b32 v39, {SPARE + 12288}", f"ds_write_b32 v39, v{vTOK}"]
    for x in w0: e(x if x.endswith(":") else C(x))
    e("KF_x123:")
    if ORD >= 3: e("s_barrier")
    def wq_piece(b):
        return [[f"s_add_u32 m0, s67, {b*4096}", f"s_add_u32 s68, s37, {b*131072}"],
                Inst(f"buffer_load_dwordx4 v{vDQ}, s[8:11], s68 offen lds", "wq")]
    NPW = opt.get("npw", 36); XD = opt.get("xd", 3); XEND = opt.get("xend", 8)
    e(srd(20, 60, WS_SIZE))
    e("s_cmp_lg_u32 s3, 0"); e("s_cbranch_scc1 KF_y123")
    pl = ["v_lshlrev_b32 v38, 2, v23", "s_lshl_b32 s72, s66, 7", f"s_add_u32 s72, s72, {FL_LN}"]
    pl += spin("buffer_load_dword v39, v38, s[16:19], s72 offen sc1", [39]) + ["s_branch KF_y0", "KF_y123:"]
    if ORD >= 2: pl += wq_touch
    pl += ["s_sub_u32 s72, s3, 1", "s_lshl_b32 s94, s62, 8", "KF_wql:", "s_lshl_b32 m0, s72, 10", "s_lshr_b32 s73, s72, 2", "s_lshl_b32 s73, s73, 17",
           "s_and_b32 s68, s72, 3", "s_lshl_b32 s68, s68, 6", "s_add_u32 s68, s68, s73", "s_add_u32 s68, s68, s94",
           f"buffer_load_dwordx4 v{vDQ}, s[8:11], s68 offen lds", "s_add_u32 s72, s72, 3", f"s_cmp_lt_u32 s72, {NPW*4}", "s_cbranch_scc1 KF_wql"]
    pl += [f"s_waitcnt vmcnt({(NPW - 12) * 4 // 3})", "KF_y0:"]
    for x in pl: e(x if x.endswith(":") else C(x))
    e(stamp(3))
    e("s_waitcnt lgkmcnt(0)")
    e("s_barrier")
    e(stamp(4))
    def xn_load(u, s):
        return Inst(f"buffer_load_dwordx4 {X(u, s)}, v{vXN[u]}, s[16:19], s{74 + s//4} offen offset:{(s%4)*1024} sc1", "xn")
    for s in range(XD):
        for u in range(4): e(xn_load(u, s))
    e(f"v_mov_b32 v39, {SPARE + 12288}"); e(f"ds_read_b32 v{vTOK}, v39")
    assert NPW == 36
    e(f"v_mov_b32 v{vDQ}, v238")

    k.begin(name="gemm")
    class Frags:
        def __init__(s, af): s.mf = []; s.fr = []; s.af = af
        def add(s, vbase, off, ms, d2=256):
            b = s.af + (len(s.fr) % NF) * 4
            s.fr.append((len(s.mf), len(ms), [f"ds_read_b64_tr_b16 {vr(b,2)}, v{vbase} offset:{off}",
                                              f"ds_read_b64_tr_b16 {vr(b+2,2)}, v{vbase} offset:{off+d2}"], vr(b)))
            s.mf += [m.replace("@A", vr(b)) for m in ms]
        def sched(s, wrap=False):
            sc = Sched(s.mf); fr = s.fr; N = len(fr)
            for f in range(N):
                g0, n, _, _ = fr[f]
                if f + LEAD < N or wrap:
                    sc.put(g0, fr[(f + LEAD) % N][2][0]); sc.put(g0 + 1, fr[(f + LEAD) % N][2][1])
                if (f + 1 < N or wrap) and (n == 4 or f % 2 == 0):
                    sc.put(g0 + 1, WaitRegs(*([fr[(f + 1) % N][3]] + ([fr[f + 2][3]] if n == 2 and f + 2 < N else []))))
            return sc
    G = Frags(AF); pos = {}
    KL, VL, VD, VO, ID = 200, 208, 216, 208, 240
    KVS = opt.get("kvs", 15)
    for s in range(18):
        pos["Q", s] = len(G.mf)
        if s == KVS: G.mf += tr_mf(VD, VL, ID)
        for nt in range(8):
            G.add(vB + 2 * (s // 8) + (nt & 1), (s % 8) * 8192 + (nt >> 1) * 1024,
                  [f"{MF} {vr(qa(nt,u))}, @A, {X(u,s)}, {'0' if s == 0 else vr(qa(nt,u))}" for u in range(4)])
    S = lambda u: (B1 if u < 2 else B3) + (u & 1) * 8
    def KF(b, f): return ar(128 + b * 32 + f * 4)
    def VF(b, f): return ar(192 + b * 32 + f * 4)
    K0F = lambda f: vr(B5 + f * 4) if f < 4 else vr(B7 + (f - 4) * 4)
    NEGM = B5; P = B7; L = XV + 16; FL = XV + 24
    def qk(u, kf, zero=False):
        out = []
        for s in range(4):
            for kt in range(2):
                c = vr(S(u) + 4 * kt)
                out.append(f"{MF} {c}, {kf(kt*4+s)}, {Qf(u, s)}, {c if s else ('0' if zero else vr(NEGM + 4*u))}")
        return out
    sb = lambda st, a: vB + (st & 1) * 2 + a
    for st in range(5):
        us = (0, 1) if st == 4 else (0, 1, 2, 3)
        for f in range(36):
            a, s = f // 18, f % 18
            pos["F", st, f] = len(G.mf)
            if st == 3 and f == 8:
                pos["QK0"] = len(G.mf)
                for u in range(4): G.mf += qk(u, K0F, zero=True)
                pos["QK0e"] = len(G.mf)
            ms = [f"{MF} {vr(fa(a,u))}, @A, {X(u,s)}, {'0' if s == 0 else vr(fa(a,u))}" for u in us]
            if st == 4: G.add(vB + 4 + a, s * 2048, ms)
            else: G.add(vB + 2 * a + (s >= 9), (s % 9) * 4096, ms, 512)
    END = len(G.mf)
    for f in range(LEAD): e(G.fr[f][2])
    sc = G.sched()
    F = lambda st, f: pos["F", st, f]
    Qp = lambda s: pos["Q", s] if s < 18 else F(0, 0)
    def bar(g, *w): sc.put(g, list(w) + ["s_barrier"])
    bar(Qp(5) + 2)
    bar(Qp(10) + 2)
    bar(Qp(17) + 2, WaitTag(["f0"], 0))
    bar(F(0, 4) + 2, WaitTag(["kvst"], 0))
    bar(F(1, 28) + 2, WaitTag(["f1"], 0))
    bar(F(2, 0) + 6)
    bar(F(3, 0) + 6, WaitTag(["kv0"], 0))
    bar(F(3, 28) + 2, WaitTag(["f2", "dma"], 0))
    bar(F(4, 2))
    for s in range(17): sc.add([WaitRegs(*[X(u, s + 1) for u in range(4)])], Qp(s + 1) - 4, Qp(s + 1), spread=False)
    xp = sc.add([xn_load(u, s) for s in range(XD, 18) for u in range(4)], 2, Qp(XEND))
    for i, g in enumerate(xp): assert g < Qp(XD + i // 4) - 24, (i, g)
    def pair_piece(pr, i):
        return [[f"s_add_u32 m0, s67, {pr*2*SLOT + i*4096}", f"s_add_u32 s68, s79, {pr*128 + i*32*9216}"],
                Inst(f"buffer_load_dwordx4 v{vDQ}, s[12:15], s68 offen lds", f"f{pr}")]
    def sp_piece(p):
        return [[f"s_add_u32 m0, s81, {p*1024}", f"s_add_u32 s68, s80, {p*16*9216}"],
                Inst(f"buffer_load_dwordx4 v{vD1}, s[12:15], s68 offen lds", "f2")]
    def lin_pieces(ldsb, ldsoff, src, srcoff, n=9, tag="dma"):
        out = []
        for p in range(n):
            if p % 4 == 0: out.append([f"s_add_u32 m0, {ldsb}, {ldsoff + p*1024}", f"s_add_u32 s68, {src}, {srcoff + p*1024}"])
            out.append(Inst(f"buffer_load_dwordx4 v{vL16}, s[20:23], s68 offen offset:{(p%4)*1024} sc1 lds", tag))
        return out
    F0AT = opt.get("f0at", 12)
    sc.add(flat([pair_piece(0, i) for i in range(18)]), Qp(F0AT), Qp(opt.get("f0end", 16)))
    kvl = []
    for f in range(2):
        kvl += [f"buffer_load_dwordx2 {vr(KL+4*f,2)}, v{vKO}, s[24:27], s89 offen offset:{f*64}", f"buffer_load_dwordx2 {vr(KL+2+4*f,2)}, v{vKO}, s[24:27], s89 offen offset:{f*64+32}"]
    kvl += [f"buffer_load_dwordx4 {vr(VL)}, v{vVO}, s[28:31], s87 offen", f"buffer_load_dwordx4 {vr(VL+4)}, v{vVO}, s[28:31], s88 offen"]
    T1 = opt.get("t1", XEND); T2 = opt.get("t2", 12)
    kvt = [Inst("s_mov_b64 exec, 0xffff"), Inst(f"buffer_load_dword v0, v{vKO}, s[24:27], s89 offen", "tch"),
           Inst(f"buffer_load_dword v0, v{vKO}, s[28:31], s89 offen", "tch"), Inst("s_mov_b64 exec, -1")]
    tlb = []
    if opt.get("tlb", 1):
        tlb = [["s_lshr_b32 s72, s2, 3", "s_lshl_b32 s72, s72, 2", "s_add_u32 s72, s72, s3"],
               [Inst(f"s_mul_i32 s72, s72, {768*1024}"), Inst("s_mov_b64 exec, 1"), Inst(f"buffer_load_dword v0, v{vZ}, s[16:19], s72 offen offset:64 sc1", "tch"), Inst("s_mov_b64 exec, -1")]]
    sc.add([w1_touch(0), kvt] + tlb, Qp(T1), Qp(T1) + 16)
    sc.add(kvl[4:] + kvl[:4], Qp(T2), Qp(T2) + 30)
    sc.add(ident(ID, vT, vL), Qp(10), Qp(KVS - 1))
    sc.add([WaitRegs(vr(VL), vr(VL + 4))], Qp(KVS) - 3, Qp(KVS), spread=False)
    kst = [Inst(f"buffer_store_dwordx4 {vr(KL+4*f)}, v{vL16}, s[16:19], s93 offen offset:{f*1024} sc1", "kvst") for f in range(2)]
    for h in range(2):
        kst += tr_cvt(VO + 4 * h, VD, h) + [Inst(f"buffer_store_dwordx4 {vr(VO+4*h)}, v{vL16}, s[16:19], s95 offen offset:{h*1024} sc1", "kvst")]
    sc.add(kst, Qp(KVS) + 6, Qp(KVS + 1) - 2)
    sc.add([w1_touch(1), w1_touch(2)], Qp(opt.get("t3", 16)) + 8, Qp(opt.get("t3", 16)) + 24)
    sc.add([flag_store("s91", 1, vZ)], F(0, 4) + 3, F(0, 4) + 8)
    sc.add(flat([pair_piece(1, i) for i in range(18)]), F(0, opt.get("f2at", 10)), F(1, 2))
    kvld = f"buffer_load_dword v{vT2}, v{vT}, s[16:19], s90 offen sc1"
    sc.add([f"v_bfe_u32 v{vT}, v{vL16}, 4, 4", f"v_lshlrev_b32 v{vT}, 2, v{vT}", kvld], F(1, 0), F(1, 3))
    c1, c2 = check(kvld, [vT2])
    sc.add([c1 + c2], F(1, 20), F(1, 21))
    kv0 = [["s_lshl_b32 s72, s3, 12", "s_add_u32 s70, s82, s72"]] + lin_pieces("s72", SPARE, "s70", 0, 4, "kv0") + [["s_add_u32 s92, s82, s81"]]
    sc.add(kv0, F(1, 21), F(1, 34))
    sc.add(flat([sp_piece(p) for p in range(9)]) + lin_pieces("s81", 1 * SLOT, "s92", 16384), F(2, 2), F(3, 6))
    sc.add(lin_pieces("s81", 2 * SLOT, "s92", 16384 + 32768), F(4, 3), F(4, 30))
    for st in range(4):
        for a in range(2):
            lo, hi = ((Qp(16), Qp(17)) if st == 0 else (F(st - 1, 16), F(st - 1, 30))) if a == 0 else (F(st, 0), F(st, 12))
            sc.add([f"v_xor_b32 v{vB+2*a}, {((st & 1)*2 + a) * 32}, v{vP5}", f"v_add_u32 v{vB+2*a}, {(st >> 1)*2*SLOT}, v{vB+2*a}",
                    f"v_add_u32 v{vB+2*a+1}, {SLOT}, v{vB+2*a}"], lo, hi)
    sc.add([f"v_mov_b32 v{vB+4}, v{vS0}", f"v_xor_b32 v{vB+5}, 32, v{vS0}"], F(2, 4), F(2, 20))
    sc.add([f"v_lshrrev_b32 v{vP5}, 6, v{vL16}", f"v_mul_u32_u24 v{vP5}, 288, v{vP5}", f"v_bfe_u32 v{vT2}, v{vL16}, 4, 2", f"v_lshl_add_u32 v{vP5}, v{vT2}, 3, v{vP5}"], F(3, 14), F(3, 30))
    ids = [["s_cmp_lt_u32 s64, 4", "s_cselect_b32 s24, s48, s54", "s_cselect_b32 s25, s49, s55"],
           [f"s_mov_b32 s26, {4096*1152}", "s_cmp_lt_u32 s64, 4", f"s_cselect_b32 s26, s26, {4608*1152}"],
           ["s_cmp_lt_u32 s64, 4", "s_cselect_b32 s72, 32, 36", "s_cselect_b32 s5, 0, 1"],
           ["s_and_b32 s73, s64, 3", "s_mul_i32 s7, s73, s72"],
           ["s_lshl_b32 s6, s5, 7", "s_add_u32 s6, s6, s7"], [f"s_mul_i32 s7, s7, {32*1152}"],
           ["s_lshr_b32 s72, s2, 3", "s_lshl_b32 s72, s72, 2"], ["s_add_u32 s72, s72, s3", f"s_mul_i32 s72, s72, {41*128}"], ["s_add_u32 s89, s7, s72"],
           [f"s_add_u32 s88, s89, {41*128*128}"], f"v_lshlrev_b32 v{vKO}, 3, v{vL16}"]
    sc.add(ids, F(0, 8), F(0, 34))
    for so, g in (("s89", F(1, 4)), ("s88", F(3, opt.get("wt2", 10)))):
        sc.add([[Inst("s_mov_b32 exec_hi, 0x1ff"), Inst(f"buffer_load_dword v0, v{vKO}, s[24:27], {so} offen", "tch"), Inst("s_mov_b64 exec, -1")]], g, g + 6)
    def epi_a(us): return flat([[f"v_cvt_pk_bf16_f32 v{T+4*u}, v{fa(0,u)}, v{fa(0,u)+1}", f"v_cvt_pk_bf16_f32 v{T+4*u+1}, v{fa(0,u)+2}, v{fa(0,u)+3}",
                                 f"v_pk_max_i16 v{T+4*u}, v{T+4*u}, 0", f"v_pk_max_i16 v{T+4*u+1}, v{T+4*u+1}, 0"] for u in us])
    def epi_b(st, us):
        so, off = ("s85", 0) if st == 4 else ("s84", st * 1024)
        return flat([[f"v_cvt_pk_bf16_f32 v{T+4*u+2}, v{fa(1,u)}, v{fa(1,u)+1}", f"v_cvt_pk_bf16_f32 v{T+4*u+3}, v{fa(1,u)+2}, v{fa(1,u)+3}",
                      f"v_pk_max_i16 v{T+4*u+2}, v{T+4*u+2}, 0", f"v_pk_max_i16 v{T+4*u+3}, v{T+4*u+3}, 0",
                      Inst(f"buffer_store_dwordx4 {vr(T+4*u)}, v{vST[u]}, s[16:19], {so} offen offset:{off} sc1", "st")] for u in us])
    for st in range(5):
        us = (0, 1) if st == 4 else (0, 1, 2, 3)
        sc.add(epi_a(us), F(st, 20 if st < 4 else 22), F(st, 34))
        if st: sc.add(epi_b(st - 1, (0, 1, 2, 3)), F(st, 2 if st < 4 else 4), F(st, 16))
    qe = []
    for s in range(4):
        for u in range(4):
            a, b = qa(2 * s, u), qa(2 * s + 1, u)
            qe += [f"v_mul_f32 v{r}, s86, v{r}" for r in list(range(a, a + 4)) + list(range(b, b + 4))]
            qe += [f"v_cvt_pk_bf16_f32 v{a}, v{a}, v{a+1}", f"v_cvt_pk_bf16_f32 v{a+1}, v{a+2}, v{a+3}",
                   f"v_cvt_pk_bf16_f32 v{a+2}, v{b}, v{b+1}", f"v_cvt_pk_bf16_f32 v{a+3}, v{b+2}, v{b+3}"]
    qp = sc.add(qe, F(0, 1), F(2, 0), spread=False)
    PR = 21504
    pf = [["s_lshl_b32 s72, s63, 2", "s_add_u32 s72, s72, s65"], ["s_lshl_b32 s72, s72, 2", "s_add_u32 s72, s72, s3"],
          [f"s_mul_i32 s78, s72, {8*PR}", f"s_add_u32 s78, s78, {WS_PART if not opt.get('xp') else 0x70000000}"], [f"s_mul_i32 s73, s64, {PR}", "s_add_u32 s74, s78, s73"],
          ["s_add_u32 s75, s74, 5120", "s_add_u32 s76, s74, 10240"], ["s_add_u32 s77, s74, 15360", "s_mov_b32 s95, s74"]]
    sc.add(pf, F(1, 34), F(2, 4))
    sc.add([f"v_add_u32 v{vL}, {SPARE}, v{vL16}"], F(2, 30), F(2, 34))
    sc.add([f"ds_read_b128 {K0F(f)}, v{vL} offset:{f*1024}" for f in range(8)], F(3, 1) + 3, F(3, 7))
    sc.add([WaitRegs(*[K0F(f) for f in range(8)])], pos["QK0"] - 2, pos["QK0"], spread=False)
    M = lambda u: NEGM + 4 * u
    pa = []
    for u in range(4):
        s0 = S(u); m = M(u)
        pa += [f"v_max3_f32 v{m}, v{s0}, v{s0+1}, v{s0+2}", f"v_max3_f32 v{m}, v{m}, v{s0+3}, v{s0+4}",
               f"v_max3_f32 v{m}, v{m}, v{s0+5}, v{s0+6}", f"v_max_f32 v{m}, v{m}, v{s0+7}"]
    xl = [xlane("v_max_f32", M(u), M(u) + 1) for u in range(4)]
    for i in range(6): pa += [xl[u][i] for u in range(4)]
    for u in range(4):
        pa += [f"v_sub_f32 v{S(u)+i}, v{S(u)+i}, v{M(u)}" for i in range(8)] + [f"v_sub_f32 v{M(u)+i}, 0, v{M(u)}" for i in (3, 2, 1, 0)]
    for u in range(4): pa += [f"v_exp_f32 v{S(u)+i}, v{S(u)+i}" for i in range(8)]
    for u in range(4): pa += [f"v_cvt_pk_bf16_f32 v{P+4*u+i}, v{S(u)+2*i}, v{S(u)+2*i+1}" for i in range(4)]
    pp = sc.add(pa, pos["QK0e"] + 3, F(4, 6), spread=False)
    pl = []
    for u in range(4):
        s0 = S(u)
        pl += [f"v_add_f32 v{L+u}, v{s0}, v{s0+2}", f"v_add_f32 v{L+4+u}, v{s0+1}, v{s0+3}"]
        pl += [f"v_add_f32 v{L+u+4*(i&1)}, v{L+u+4*(i&1)}, v{s0+i}" for i in range(4, 8)]
    sc.add(pl, max(F(4, 1), pp[-1] + 1), END)
    sc.add([f"ds_read_b128 {VF(0, f)}, v{vL} offset:{8192 + f*1024}" for f in range(8)], F(4, 32), END, spread=False, mind=1)
    if stamps and opt.get("fine"):
        for i, g in enumerate([Qp(1), Qp(3), Qp(5), Qp(5) + 4, Qp(7), Qp(9), Qp(11), Qp(13), Qp(15), Qp(17), F(0, 0), F(0, 18), F(1, 0), F(2, 0), F(2, 6), F(3, 0), pos["QK0"], F(4, 0)]):
            sc.gap[g] = sc.gap[g] + [_mk(x) for x in mst(14 + i)]
    e(sc.flat())
    e(stamp(5))

    def O(dt, u): return (dt * 4 + u) * 4
    def pv(u, b, pb, zero=False):
        return [f"{MF} {ar(O(dt, u))}, {VF(b, dt)}, {vr(P + 4*pb)}, {'0' if zero else ar(O(dt, u))}" for dt in range(8)]
    vD = list(range(16, 25)); vDW = list(range(176, 185)); vTW = 185
    def softmax(u):
        s0 = S(u); sm = []
        for i in range(4):
            a = s0 + 2 * i
            sm += [f"v_exp_f32 v{a}, v{a}", f"v_exp_f32 v{a+1}, v{a+1}"]
            if i: sm += [f"v_add_f32 v{L+u}, v{L+u}, v{a-2}", f"v_add_f32 v{L+4+u}, v{L+4+u}, v{a-1}", f"v_cvt_pk_bf16_f32 v{P+4*u+i-1}, v{a-2}, v{a-1}"]
        return sm + [f"v_cvt_pk_bf16_f32 v{P+4*u+3}, v{s0+6}, v{s0+7}", f"v_add_f32 v{L+u}, v{L+u}, v{s0+6}", f"v_add_f32 v{L+4+u}, v{L+4+u}, v{s0+7}"]
    def ring_dma():
        dm = [["s_xor_b32 s92, s88, s85"], ["s_mul_i32 s92, s92, s97"], ["s_add_u32 s92, s92, s93"]]
        for p in range(9):
            if p % 4 == 0: dm.append([f"s_add_u32 m0, s94, {p*1024}"])
            dm.append(Inst(f"buffer_load_dwordx4 v{vD[p]}, s[20:23], s92 offen offset:{(p%4)*1024} sc1 lds", "dma"))
        return dm + [["s_add_u32 s88, s88, 1"], [f"s_add_u32 s94, s94, {SLOT}"], [f"s_cmp_ge_u32 s94, {4*SLOT}", "s_cselect_b32 s94, s81, s94"]]
    adv_rd = [[f"s_add_u32 s96, s96, {SLOT}"], [f"s_cmp_eq_u32 s96, {4*SLOT}", "s_cselect_b32 s96, 0, s96"]]
    hfl = f"buffer_load_dword v{FL}, v{vT}, s[16:19], s84 offen sc1"
    def BF(b, s, u): return ar(128 + ((b * 4 + s) * 4 + u) * 4)
    def B1st(s, u): return BF(s >> 1, s & 1, u)
    def bload(dst, s, u):
        return Inst(f"buffer_load_dwordx4 {dst}, v{vST[u]}, s[28:31], s79 offen offset:{s*1024} sc1", "b")
    adv_b = [["s_xor_b32 s79, s87, s85", "s_lshl_b32 s79, s79, 12"], ["s_add_u32 s79, s79, s80", "s_add_u32 s87, s87, 1"]]
    def attn_iter(kind):
        first, last = kind == "first", kind == "last"
        mf = []; base = []
        for sl in range(8):
            base.append(len(mf))
            t2 = sl + 2; kb = (t2 // 4) & 1
            if not (last and sl >= 6) and not (first and sl < 2): mf += qk(t2 % 4, lambda f: KF(kb, f))
            mf += pv(sl % 4, (sl // 4) & 1, sl % 4, zero=(first and sl < 4))
        base.append(len(mf))
        sc = Sched(mf)
        for sl in range(8):
            u, half = sl % 4, sl // 4
            n = base[sl + 1] - base[sl]
            if not (last and half == 1):
                nb = (half + 1) & 1
                for i in range(4):
                    f = (u & 1) * 4 + i
                    d, o = (KF(nb, f), 0) if u < 2 else (VF(nb, f), 8192)
                    g = f if n == 8 else base[sl] + (3 + 4 * i if u != 1 else (2, 3, 6, 7)[i])
                    sc.put(g, f"ds_read_b128 {d}, v{vL} offset:{half*16384 + o + f*1024}")
            if u == 1 and not (last and half == 1):
                sc.put(base[sl + 1] - (3 if n == 16 else 1), WaitRegs(*[KF((half + 1) & 1, f) for f in range(8)]))
            if u == 0 and n == 16: sc.put(base[sl] + 5, WaitRegs(*[VF(half & 1, f) for f in range(8)]))
        gb = base[1] + 11
        if first:
            gb = base[4] + 1
            sc.add(ring_dma(), 12, gb - 2)
        sc.put(gb, [WaitTag(["dma"] if first else ["dma", "st"], 9), "s_barrier"])
        dm = ring_dma() + adv_rd
        ONES = 188
        if first: sc.add([f"v_mov_b32 v{ONES+r}, -1" for r in range(4)], 1, 12, spread=False)
        if not last:
            sc.add([Inst(f"buffer_store_dwordx4 {vr(ONES)}, v{vL16}, s[16:19], s95 offen offset:{c*1024} sc1", "pf") for c in range(3)] + [["s_add_u32 s95, s95, 3072"]],
                   base[4] + 3 if first else 2, base[8] - 4)
        if last:
            sc.add([f"v_lshlrev_b32 v{ONES}, 7, v{vL16}", [WaitTag(["pf"], 0)] + flag_store("s89", 8, ONES, allw=True)], base[6], base[8])
            for s in range(4): sc.add([bload(B1st(s, u), s, u) for u in range(4)], base[2 + s] + 1, base[3 + s] + 8)
        if first:
            sc.add([f"v_add_u32 v{vD[p]}, {(p - p % 4)*1024}, v{vL16}" for p in range(9)], 1, 12, spread=False)
            sc.add([Inst(x.text.replace("s85", "s36"), x.tag) if isinstance(x, Inst) else x for x in epi_b(4, (0, 1))], 6, gb)
        sc.add(dm, gb + 1, base[8] - 2)
        for sl in range(8):
            if (last and sl == 7) or (first and sl < 3): continue
            hi = base[sl + 1] + (4 if sl < 7 and not (last and sl >= 5) else 0)
            sc.add(softmax((sl + 1) % 4), base[sl], hi, spread=False)
        if first:
            dw = [f"v_lshrrev_b32 v{vT2}, 4, v{vL16}"]
            for p in range(9):
                r = vDW[p]
                dw += [f"v_add_u32 v{vT}, {64*p}, v{vT2}", f"v_mul_u32_u24 v{r}, 3641, v{vT}", f"v_lshrrev_b32 v{r}, 16, v{r}",
                       f"v_mul_u32_u24 v{r}, {1152 - 288}, v{r}", f"v_lshl_add_u32 v{r}, v{vT}, 4, v{r}"]
                if p % 4: dw.append(f"v_subrev_u32 v{r}, {(p%4)*1024}, v{r}")
            dp = sc.add(dw, 1, base[7], spread=False)
            fa_ = [["s_lshl_b32 s72, s63, 14", "s_lshl_b32 s73, s3, 7"], ["s_add_u32 s72, s72, s73", f"s_add_u32 s72, s72, {FL_P2}"],
                   ["s_lshl_b32 s73, s62, 2", "s_add_u32 s91, s72, s73"], ["s_add_u32 s91, s91, 8192"],
                   ["s_lshr_b32 s73, s62, 3", "s_lshl_b32 s73, s73, 11"], ["s_add_u32 s90, s72, s73", "s_and_b32 s73, s62, 7"], ["s_lshl_b32 s73, s73, 2", "s_add_u32 s90, s90, s73"],
                   ["s_lshl_b32 s73, s64, 2", "s_add_u32 s73, s73, s65"], ["s_lshl_b32 s73, s73, 9", "s_add_u32 s84, s72, s73"],
                   [f"s_add_u32 s37, s84, {FL_EX - FL_P2}", "s_lshl_b32 s73, s64, 11"], ["s_sub_u32 s89, s37, s73", "s_lshl_b32 s73, s64, 2"], ["s_add_u32 s89, s89, s73"],
                   ["s_movk_i32 s73, 0x30", "s_cmp_eq_u32 s5, 0", "s_cselect_b32 s73, s73, 0x1f0"]]
            sc.add(fa_, base[3], base[6])
            sc.add([f"v_and_b32 v{vT}, s73, v{vL16}", f"v_lshrrev_b32 v{vT}, 2, v{vT}", f"v_lshlrev_b32 v{vT2}, 5, v{vL16}",
                    [WaitTag(["st"], 0)] + flag_store("s91", 16, vT2, allw=True)], max(base[7], dp[-1] + 1), base[8])
        e(f"v_add_u32 v{vL}, s96, v{vL16}")
        e(sc.flat())
    k.begin(name="attn_first")
    e(f"s_add_u32 s93, s92, {16384 + 2*32768}"); e("s_mov_b32 s97, 32768"); e("s_mov_b32 s88, 0"); e("s_mov_b32 s36, s85"); e("s_mov_b32 s85, 0")
    e(f"s_add_u32 s94, s81, {3*SLOT}"); e(f"s_mov_b32 s96, {SLOT}")
    e("s_mov_b32 s4, 1"); e("s_mov_b32 s28, s60"); e("s_mov_b32 s29, s61"); e("s_mov_b32 s30, 0")
    attn_iter("first")
    k.begin(loop=6, name="attn_loop")
    e(".p2align 3"); e("KF_aloop:")
    if stamps and opt.get("fine"):
        e(["s_memtime s[98:99]", "s_add_u32 s100, s4, 55", "s_lshl_b32 s100, s100, 4", f"v_cmp_eq_u32 vcc, s100, v{vL16}",
           "s_waitcnt lgkmcnt(0)", "v_mov_b32 v47, s98", f"v_cndmask_b32 v{STV}, v{STV}, v47, vcc"])
    e("s_cmp_eq_u32 s4, 5"); e("s_cbranch_scc1 KF_sw"); e("KF_oolr:")
    attn_iter("loop")
    e("s_add_u32 s4, s4, 1"); e("s_cmp_lt_u32 s4, 7"); e("s_cbranch_scc1 KF_aloop")
    ool.append([
                "KF_sw:",
                "s_mov_b32 s20, s24", "s_mov_b32 s21, s25", "s_mov_b32 s22, s26"] + [f"v_mov_b32 v{vD[p]}, v{vDW[p]}" for p in range(9)] +
               [f"s_mov_b32 s97, {128*1152}", f"s_mul_i32 s93, s3, {32*1152}", "s_add_u32 s93, s93, s7", "s_mul_i32 s72, s65, 288", "s_add_u32 s93, s93, s72",
                "s_lshl_b32 s80, s6, 10", f"s_add_u32 s80, s80, {WS_ACT}", "s_mov_b32 s79, s80", "s_mov_b32 s88, 0", "s_mov_b32 s87, 1",
                "s_cmp_eq_u32 s5, 0", "s_cselect_b32 s85, s65, 0", "s_cselect_b32 s30, 0, s18", hfl] + (
               ["s_getpc_b64 s[72:73]", "KF_pc2:", "s_sub_u32 s8, s72, KF_pc2-KF_nock", "s_subb_u32 s9, s73, 0", "s_mov_b32 s10, KF_codeend-KF_nock",
                "s_lshr_b32 s72, s2, 3", "s_lshl_b32 s72, s72, 2", "s_add_u32 s72, s72, s3", "s_mul_i32 s72, s72, 384",
                "s_mov_b64 exec, 7", Inst(f"buffer_load_dword v0, v{vKO}, s[8:11], s72 offen", "tch"), "s_mov_b64 exec, -1"] if opt.get("cpf2", 1) else []) + [
                "s_branch KF_oolr"])
    k.begin(name="attn_last")
    e("s_cmp_eq_u32 s5, 0"); e("s_cbranch_scc1 KF_nock")
    c1, c2 = check(hfl, [FL])
    for x in ["s_waitcnt vmcnt(18)"] + c1 + c2: e(x if x.endswith(":") else C(x))
    e("KF_nock:")
    attn_iter("last")
    e(stamp(6))
    W = 216
    for u in range(4): e(f"v_add_f32 v{L+u}, v{L+u}, v{L+4+u}")
    xl = [xlane("v_add_f32", L + u, W + 4 + u) for u in range(4)]
    for i in range(6):
        for u in range(4): e(xl[u][i])
    e(f"v_add_f32 v{W+1}, v{L}, v{L+1}"); e(f"v_add_f32 v{W+2}, v{L+2}, v{L+3}"); e(f"v_add_f32 v{W}, v{W+1}, v{W+2}")
    e(f"v_cmp_nge_f32 vcc, {f32bits(2.0**30):#x}, v{W}")
    e("s_cbranch_vccnz KF_slow")
    e("KF_epi:")
    k.begin(name="oepi")
    ACC = 48; A2 = 192
    def acc(nt, u): return ACC + (nt * 4 + u) * 4
    e(f"v_add_u32 v{vL}, s96, v{vP5}")
    def mkstage(bf, zero=False):
        G = Frags(A2)
        for s in range(4):
            for nt in range(9):
                G.add(vL, s * 9216 + nt * 32, [f"{MF} {vr(acc(nt,u))}, @A, {bf(s,u)}, {'0' if zero and s == 0 else vr(acc(nt,u))}" for u in range(4)], 4608)
        return G
    P5 = {b: mkstage(lambda s, u, b=b: BF(b, s, u)) for b in range(2)}
    for f in range(LEAD): e(P5[0].fr[f][2])
    for u in range(4): e(f"v_rcp_f32 v{L+u}, v{L+u}")
    if opt.get("xo"): e("s_mov_b32 s83, 0x7fff0000")
    if opt.get("xb"): e("s_mov_b32 s80, 0x70000000")
    if opt.get("xd2"): e("s_mov_b32 s22, 0")
    OB = lambda i, u: 216 + ((i & 1) * 4 + u) * 4
    def oepi(i, u, t, packed=False):
        o = OB(i, u)
        out = [f"v_accvgpr_read_b32 v{t+r}, a{O(2*i + r//4, u) + r%4}" for r in range(8)]
        if packed: out += [f"v_pk_mul_f32 {vr(t+r,2)}, {vr(t+r,2)}, {vr(L + (u & 2),2)} op_sel:[0,{u&1}] op_sel_hi:[1,{u&1}]" for r in range(0, 8, 2)]
        else: out += [f"v_mul_f32 v{t+r}, v{t+r}, v{L+u}" for r in range(8)]
        out += [f"v_cvt_pk_bf16_f32 v{o+r}, v{t+2*r}, v{t+2*r+1}" for r in range(4)]
        return out + [Inst(f"buffer_store_dwordx4 {vr(o)}, v{vST[u]}, s[16:19], s83 offen offset:{i*1024} sc1", "st")]
    def common(sc):
        sc.put(4 * (36 - LEAD) - 1, f"v_add_u32 v{vL}, s96, v{vP5}")
        sc.put(6, [WaitTag(["dma"], 9), "s_barrier"])
    e(stamp(7))
    e("s_mov_b32 s4, 0"); e("s_mov_b32 s101, s5")
    e("s_cmp_eq_u32 s5, 0"); e("s_cbranch_scc1 KF_spre")
    def BF2(s, u): return ar((s * 4 + u) * 4)
    lastb = [["s_add_u32 s72, s5, 7", "s_xor_b32 s72, s72, s85", "s_lshl_b32 s72, s72, 12", "s_add_u32 s82, s72, s80"]] + \
            [Inst(f"buffer_load_dwordx4 {BF2(s, u)}, v{vST[u]}, s[28:31], s82 offen offset:{s*1024} sc1", "b") for s in range(4) for u in range(4)]
    k.begin(name="g_pre")
    B2nd = lambda s, u: BF(s >> 1, 2 + (s & 1), u)
    NGP = opt.get("ngp", 2)
    maps = [B1st, B2nd, lambda s, u: BF(0, s, u), lambda s, u: BF(1, s, u), lambda s, u: BF(0, s, u)]
    G = mkstage(B1st, zero=True)
    for q in range(1, NGP):
        G1 = mkstage(maps[q]); off = len(G.mf); G.fr += [(g0 + off, n, r, d) for (g0, n, r, d) in G1.fr]; G.mf += G1.mf
    sc = G.sched(wrap=True)
    for q in range(NGP):
        o = 144 * q
        sc.put(o + 4 * (36 - LEAD) - 1, f"v_add_u32 v{vL}, s96, v{vP5}")
        sc.put(o + 6, [WaitTag(["dma"], 9), "s_barrier"])
        sc.add(adv_rd, o + 7, o + 12, spread=False)
    for q in range(4 * NGP): sc.add([WaitRegs(*[maps[(q + 1) // 4]((q + 1) % 4, u) for u in range(4)])], 36 * q + 32, 36 * q + 36, spread=False)
    OEG = opt.get("oeg", 200); B2E = opt.get("b2e", 90)
    sc.add(adv_b + [bload(B2nd(s, u), s, u) for s in range(4) for u in range(4)] + adv_b + [["s_add_u32 s86, s79, 4096"]], 0, B2E)
    def bl2(b, s): return [Inst(bload(BF(b, s, u), s, u).text.replace("s79", "s86" if b else "s79"), "b") for u in range(4)]
    sc.add(bl2(0, 0) + bl2(0, 1), 100, 144)
    sc.add(bl2(1, 0) + bl2(1, 1), 146, 190)
    sc.add(bl2(0, 2), 190, 216); sc.add(bl2(0, 3), 216, 250); sc.add(bl2(1, 2) + adv_b, 252, 284)
    for q in range(2, NGP):
        o = 144 * q; bq = q & 1
        for s in range(3): sc.add([bload(BF(bq, s, u), s, u) for u in range(4)], o + 36 * (s + 1), o + 36 * (s + 1) + 24)
        sc.add([bload(BF(bq ^ 1, 3, u), 3, u) for u in range(4)] + adv_b, o + 2, o + 34)
    for q in range(NGP): sc.add(ring_dma(), 144 * q + 12, 144 * q + 140)
    op = sc.add(flat([oepi(i, u, 248) for i in range(4) for u in range(4)]), opt.get("oes", 0), OEG)
    sc.add([[WaitTag(["st"], 0)] + flag_store("s90", 4, vT2, allw=True)], 144 * NGP - 6, 144 * NGP, spread=False)
    e(sc.flat())
    e(stamp(8))
    if NGP == 4: e("s_mov_b32 s4, 1")
    e("s_branch KF_loop2")
    k.begin(name="s_pre")
    e("KF_spre:")
    for u in range(4): e(oepi(0, u, 248 if u & 1 else 40, packed=True))
    G = mkstage(lambda s, u: vr(OB(s, u)), zero=True); sc = G.sched(wrap=True); common(sc)
    sc.add(adv_rd, 7, 12, spread=False)
    for i in range(1, 4): sc.add(flat([oepi(i, u, 248) for u in range(4)]), 36 * (i - 1), 36 * i - 1)
    sc.add(ring_dma(), 108, 143)
    e(sc.flat())
    e(mst(52))
    k.wait_tags("st")
    e(mst(53))
    e(flag_store("s90", 4, vT2, allw=True))
    e("s_mov_b32 s30, s18")
    e(adv_b)
    e(spin(hfl, [FL]))
    e(mst(54))
    for b in (0, 1):
        for s in range(4 - b):
            for u in range(4): e(bload(BF(b, s, u), s, u))
        if b == 0: e(adv_b)
    e(WaitRegs(*[BF(0, 0, u) for u in range(4)]))
    e("s_mov_b32 s4, 0")
    e(stamp(8))

    def stage2(b):
        G = P5[b]; sc = G.sched(wrap=True); common(sc)
        for s in range(4):
            nb, ns = (b, s + 1) if s < 3 else (b ^ 1, 0)
            sc.add([WaitRegs(*[BF(nb, ns, u) for u in range(4)])], 36 * s + 32, 36 * s + 36, spread=False)
        sc.add(adv_rd, 7, 12, spread=False)
        for s in range(3): sc.add([bload(BF(b, s, u), s, u) for u in range(4)], 36 * (s + 1), 36 * (s + 1) + 24)
        sc.add([bload(BF(b ^ 1, 3, u), 3, u) for u in range(4)] + adv_b, 2, 34)
        sc.add(ring_dma(), 12, 140)
        hk = [_mk(x) for x in ("s_cmp_eq_u32 s101, 0", f"s_cbranch_scc1 KF_hk{b}", f"KF_hk{b}r:")]
        sc.add([hk], (106, 30)[b], (112, 35)[b], spread=False)
        fl = sc.flat(); i = fl.index(hk[1])
        cnt[b] = sum(1 for x in (fl[i:] if b == 0 else fl[:i]) if x.kind in ("vload", "vstore", "dma"))
        assert b == 0 or not any(x.kind == "vload" and BF(1, 0, 0) in x.text for x in fl[:i])
        e(fl)
    cnt = {}
    k.begin(loop=2, name="L0")
    e(".p2align 3"); e("KF_loop2:")
    stage2(0)
    k.begin(loop=2, name="L1")
    stage2(1)
    e("s_add_u32 s4, s4, 1"); e("s_cmp_lt_u32 s4, 2"); e("s_cbranch_scc1 KF_loop2")
    hfl2 = hfl.replace("offen", "offen offset:16")
    ool.append(["KF_hk0:", hfl2, "s_branch KF_hk0r"])
    ool.append(["KF_hk1:", "s_mov_b32 s101, 1", f"s_waitcnt vmcnt({cnt[0] + cnt[1]})"] + cmpf([FL]) +
               ["s_nop 0", "s_cbranch_vccz KF_hk1r"] + spin(hfl2, [FL], "KF_hk1r"))

    k.begin(name="final")
    e(stamp(9))
    NPRE = opt.get("npre", 3)
    nts = [8, 0, 1, 2, 3, 4, 5, 6, 7]
    order = [(0, s, nt) for s in range(NPRE) for nt in range(9)]
    order += [(b, s, nt) for nt in nts for b in range(3) for s in range(4) if not (b == 0 and s < NPRE)]
    G = Frags(A2); done = {}
    vLb = [vL, vT, vB + 2]
    for (b, s, nt) in order:
        bf = (lambda u: BF(b, s, u)) if b < 2 else (lambda u: BF2(s, u))
        G.add(vLb[b], s * 9216 + nt * 32, [f"{MF} {vr(acc(nt,u))}, @A, {bf(u)}, {vr(acc(nt,u))}" for u in range(4)], 4608)
        done[nt] = len(G.mf)
    sc = G.sched(); NG = len(G.mf); G0 = 36 * NPRE
    sc.put(G0 - 26, [WaitTag(["dma"], 0), "s_barrier"])
    sc.add([bload(BF(1, 3, u), 3, u) for u in range(4)] + [Inst(x.text.replace("s82", "s86"), "b") if isinstance(x, Inst) else [y.replace("s82", "s86") for y in x] for x in lastb], 2, 50)
    gq = G0 + (8 - NPRE) * 4
    sc.add([WaitRegs(*[BF2(s, u) for s in range(4) for u in range(4)])], gq - 4, gq, spread=False)
    sc.add(adv_rd + [f"v_add_u32 v{vLb[1]}, s96, v{vP5}"] + adv_rd + [f"v_add_u32 v{vLb[2]}, s96, v{vP5}"], 7, 30, spread=False)
    for s in range(1, NPRE): sc.add([WaitRegs(*[BF(0, s, u) for u in range(4)])], 36 * s - 4, 36 * s, spread=False)
    sc.add([WaitRegs(*[BF(1, 3, u) for u in range(4)])], G0 - 4, G0, spread=False)
    SEL = 26; XRr = 36; vX = 25; vL8 = 46
    ad = [
          ["s_and_b32 s82, s64, 3", "s_mul_i32 s73, s82, 5120"], ["s_add_u32 s78, s78, s73", "s_lshl_b32 s73, s5, 10"], ["s_add_u32 s85, s78, s73"],
          ["s_lshl_b32 s73, s71, 1", "s_xor_b32 s82, s82, s73"], ["s_add_u32 s82, s82, s69", f"s_mul_i32 s83, s82, {16*1152}"],
          ["s_mul_i32 s73, s65, 288", "s_add_u32 s87, s83, s73"], ["s_lshl_b32 s73, s5, 6", "s_add_u32 s83, s87, s73"],
          ["s_mov_b32 s12, s56", "s_mov_b32 s13, s57"], [f"s_mov_b32 s14, {2048*1152}"],
          [f"s_mov_b32 s88, {f32bits(-math.log2(math.e)):#x}", "s_mov_b32 s89, 0xffff0000"]]
    sc.add(ad, 50, G0 + 30)
    va = [f"v_bfe_u32 v{vX}, v{vL16}, 4, 4", f"v_lshrrev_b32 v{vT2}, 8, v{vL16}", f"v_bfe_u32 v{vL8}, v{vL16}, 6, 2",
          [f"v_cmp_eq_u32 vcc, v{vL8}, v{vT2}", f"v_mov_b32 v{SEL}, 0x3f80", f"v_and_b32 v{vL8}, 16, v{vL16}", f"v_lshlrev_b32 v{SEL}, v{vL8}, v{SEL}",
           f"v_cndmask_b32 v{SEL}, 0, v{SEL}, vcc"],
          [f"v_and_b32 v{vL8}, 32, v{vL16}", f"v_cmp_eq_u32 vcc, 0, v{vL8}", "s_nop 1", f"v_cndmask_b32 v{SEL+2}, 0, v{SEL}, vcc", f"v_cndmask_b32 v{SEL+3}, v{SEL}, 0, vcc"],
          f"v_mov_b32 v{SEL}, 0", f"v_mov_b32 v{SEL+1}, 0", f"v_mov_b32 v{SEL+4}, 0", f"v_mov_b32 v{SEL+5}, 0",
          f"v_mov_b32 v{SEL+6}, v{SEL+2}", f"v_mov_b32 v{SEL+7}, v{SEL+3}", f"v_mov_b32 v{SEL+8}, v{SEL+2}", f"v_mov_b32 v{SEL+9}, v{SEL+3}",
          f"v_mul_u32_u24 v{vX}, 1152, v{vX}", f"v_lshl_add_u32 v{vX}, v{vT2}, 3, v{vX}",
          f"v_lshrrev_b32 v{vL8}, 1, v{vL16}", f"v_add_u32 v{vL8}, 4096, v{vL8}", f"v_lshlrev_b32 v{vT2}, 7, v{vL16}",
          f"v_bfe_u32 v{vB}, v{vL16}, 4, 3", f"v_lshlrev_b32 v{vB}, 2, v{vB}"]
    sc.add(va, 8, G0 + 30)
    xo = [(0, "s83", 0), (1, "s83", 32), (2, "s83", 128), (3, "s83", 160), (4, "s87", 256)]
    sc.add([f"buffer_load_dwordx2 {vr(XRr+2*t,2)}, v{vX}, s[32:35], {so} offen offset:{o}" for t, so, o in xo], G0 + 32, G0 + 70)
    tail = []; per = done[0] - done[8]
    for c in (4, 0, 1, 2, 3):
        pkx = []
        for u in range(4):
            a = acc(2 * c, u); tg = "p1" if c in (4, 0, 1) else "p2"
            pkx += [f"v_cvt_pk_bf16_f32 v{a}, v{a}, v{a+1}", f"v_cvt_pk_bf16_f32 v{a+1}, v{a+2}, v{a+3}"]
            if c < 4:
                b = acc(2 * c + 1, u)
                pkx += [f"v_cvt_pk_bf16_f32 v{a+2}, v{b}, v{b+1}", f"v_cvt_pk_bf16_f32 v{a+3}, v{b+2}, v{b+3}",
                        Inst(f"buffer_store_dwordx4 {vr(a)}, v{vL16}, s[16:19], s{74+u} offen offset:{c*1024} sc1", tg)]
            else:
                pkx += [Inst(f"buffer_store_dwordx2 {vr(a,2)}, v{vL8}, s[16:19], s{74+u} offen sc1", tg)]
        d = done[8] if c == 4 else done[2 * c + 1]
        if c != 3: sc.add(pkx, d + 4, d + 4 + (per if c == 1 else 2 * per - 8))
        else: tail = pkx
    fl1 = f"buffer_load_dword v{vB+1}, v{vB}, s[16:19], s37 offen sc1"
    sc.add([fl1], G0 + 70, G0 + 80)
    c1, c2 = check(fl1, [vB + 1])
    sc.add([c1 + c2], done[3], done[3] + 3)
    R1 = 48; RE = 80; R2 = 216
    order8 = [4, 5, 6, 7, 0, 1, 2, 3]
    def lds1(): return flat([[[f"s_add_u32 s86, s85, {src*PR}"], f"buffer_load_dwordx4 {vr(R1 + src*4)}, v{vL16}, s[16:19], s86 offen sc1"] for src in order8]) + \
                       flat([[[f"s_add_u32 s86, s78, {src*PR}"], f"buffer_load_dwordx2 {vr(RE + src*2, 2)}, v{vL8}, s[28:31], s86 offen sc1"] for src in order8])
    def lds2(): return flat([[[f"s_add_u32 s86, s85, {src*PR}"], f"buffer_load_dwordx4 {vr(R2 + src*4)}, v{vL16}, s[16:19], s86 offen offset:2048 sc1"] for src in order8])
    def sent(base, n):
        t = 128; o = [f"v_max3_u32 v{t}, v{base}, v{base+1}, v{base+2}", f"v_max3_u32 v{t+1}, v{base+3}, v{base+4}, v{base+5}"]
        for i in range(6, n, 2): o.append(f"v_max3_u32 v{t + (i//2) % 2}, v{t + (i//2) % 2}, v{base+i}, v{base+i+1}")
        return o + [f"v_max_u32 v{t}, v{t}, v{t+1}", f"v_cmp_eq_u32 vcc, -1, v{t}"]
    def poll(name, ld, base, n):
        ool.append([f"{name}x:", "s_add_u32 s4, s4, 1", f"s_cmp_ge_u32 s4, {SPIN_MAX}", f"s_cbranch_scc1 {name}d", f"s_sleep {opt.get('slp', 8)}"] + ld + ["s_waitcnt vmcnt(0)", f"s_branch {name}"])
        return [f"{name}:"] + sent(base, n) + ["s_nop 0", f"s_cbranch_vccnz {name}x", f"{name}d:"]
    sc.add([["s_cmp_eq_u32 s5, 0", "s_cselect_b32 s30, 0, s18", "s_mov_b32 s4, 0"]] + lds1(), done[6] - opt.get("r1e", 8), NG - 4)
    e(sc.flat())
    e(tail)
    e(stamp(10))
    Gs = lambda t: 96 + 4 * t
    Ss = lambda t: 108 + 4 * t
    t0 = 120; g1 = 124
    def round2(a):
        return [f"v_cvt_pk_bf16_f32 v{t0}, v{a}, v{a+1}", f"v_cvt_pk_bf16_f32 v{t0+1}, v{a+2}, v{a+3}",
                f"v_lshlrev_b32 v{a}, 16, v{t0}", f"v_and_b32 v{a+1}, s89, v{t0}", f"v_lshlrev_b32 v{a+2}, 16, v{t0+1}", f"v_and_b32 v{a+3}, s89, v{t0+1}"]
    def gate(t):
        g = Gs(t)
        return round2(g) + [f"v_mul_f32 v{g1+r}, s88, v{g+r}" for r in range(4)] + [f"v_exp_f32 v{g1+r}, v{g1+r}" for r in range(4)] + \
               [f"v_add_f32 v{g1+r}, 1.0, v{g1+r}" for r in range(4)] + [f"v_rcp_f32 v{g1+r}, v{g1+r}" for r in range(4)] + \
               [pk("v_pk_mul_f32", g + r, g + r, g1 + r) for r in (0, 2)] + round2(g)
    def fin(t, x, so, o):
        g = Gs(t); s0 = Ss(t)
        return round2(s0) + [pk("v_pk_mul_f32", g + r, g + r, s0 + r) for r in (0, 2)] + round2(g) + \
               [f"v_lshlrev_b32 v{g1}, 16, v{x}", f"v_and_b32 v{g1+1}, s89, v{x}", f"v_lshlrev_b32 v{g1+2}, 16, v{x+1}", f"v_and_b32 v{g1+3}, s89, v{x+1}"] + \
               [pk("v_pk_add_f32", g + r, g + r, g1 + r) for r in (0, 2)] + \
               [f"v_cvt_pk_bf16_f32 v{s0}, v{g}, v{g+1}", f"v_cvt_pk_bf16_f32 v{s0+1}, v{g+2}, v{g+3}",
                f"buffer_store_dwordx2 {vr(s0,2)}, v{vX}, s[12:15], {so} offen offset:{o}"]
    def redu(R):
        return [f"{MF} {vr((Gs if src >= 4 else Ss)(t))}, {vr(SEL + (0 if t else 2))}, {vr(R + src*4)}, {'0' if src in (0, 4) else vr((Gs if src >= 4 else Ss)(t))}"
                for src in order8 for t in range(2)]
    e(poll("KF_q1", lds1(), R1, 48))
    e(mst(46))
    e(redu(R1))
    e([f"{MF} {vr((Gs if q >= 2 else Ss)(2))}, {vr(SEL + 6)}, {vr(RE + q*4)}, {'0' if q % 2 == 0 else vr((Gs if q >= 2 else Ss)(2))}" for q in (2, 3, 0, 1)])
    e(gate(0))
    e(lds2())
    e(gate(1))
    for t in range(2): e(fin(t, XRr + 2 * t, "s83", 32 * t))
    e("s_cmp_eq_u32 s5, 0"); e("s_cbranch_scc1 KF_r2")
    for x in gate(2) + fin(2, XRr + 8, "s87", 256): e(C(x))
    e("KF_r2:")
    e(stamp(11))
    e(poll("KF_q2", lds2(), R2, 32))
    e(mst(50))
    e(redu(R2))
    for t in range(2): e(gate(t))
    for t in range(2): e(fin(t, XRr + 4 + 2 * t, "s83", 128 + 32 * t))
    k.begin(name="fin")
    e("KF_fin:")
    if stamps:
        e(stamp(12)); e("s_waitcnt vmcnt(0)"); e(stamp(13))
        e("s_lshl_b32 s72, s2, 2"); e("s_add_u32 s72, s72, s3"); e("s_lshl_b32 s72, s72, 8"); e(f"s_add_u32 s72, s72, {200<<20}")
        e(f"v_lshrrev_b32 v2, 2, v{vL16}")
        e(f"buffer_store_dword v{STV}, v2, s[16:19], s72 offen")
        if opt.get("dbg"):
            e(f"s_cmp_lg_u32 s2, {opt['dbg']}"); e("s_cbranch_scc1 KF_end"); e("s_cmp_lg_u32 s3, 1"); e("s_cbranch_scc1 KF_end")
            e(srd(20, 58, 64)); e(f"v_readlane_b32 s72, v{STV}, 32"); e("v_subrev_u32 v2, 124, v2"); e(f"v_subrev_u32 v{STV}, s72, v{STV}")
            e("s_mov_b32 exec_lo, 0"); e(f"buffer_store_dword v{STV}, v2, s[20:23], 0 offen")
    e("KF_end:")
    e("s_endpgm")

    for i, blk in enumerate(ool):
        k.begin(name=f"ool{i}")
        e(blk); e("s_endpgm")
    Mx = W + 8; AL = W + 12; TT = W + 16
    k.begin(name="slow_pre")
    e("KF_codeend:")
    e("KF_slow:")
    e("s_waitcnt vmcnt(0) lgkmcnt(0)"); e("s_nop 15")
    for i in range(128): e(f"v_accvgpr_write_b32 a{i}, 0")
    for u in range(4): e(f"v_mov_b32 v{L+u}, 0"); e(f"v_mov_b32 v{Mx+u}, 0xff7fffff")
    e("s_mov_b32 s72, 0"); e("s_mov_b32 s68, s82")
    k.begin(loop=16, name="slow_loop")
    e("KF_sloop:")
    for q in range(4):
        for f in range(4):
            ff = q * 4 + f
            e(f"buffer_load_dwordx4 {KF(1, ff) if ff < 8 else VF(1, ff - 8)}, v{vL16}, s[16:19], s68 offen offset:{f*1024} sc1")
        e("s_add_u32 s68, s68, 4096")
    for u in range(4):
        e(qk(u, lambda f: KF(1, f), zero=True))
        s0 = S(u); m = W + u
        e(f"v_max3_f32 v{m}, v{s0}, v{s0+1}, v{s0+2}"); e(f"v_max3_f32 v{m}, v{m}, v{s0+3}, v{s0+4}")
        e(f"v_max3_f32 v{m}, v{m}, v{s0+5}, v{s0+6}"); e(f"v_max3_f32 v{m}, v{m}, v{s0+7}, v{Mx+u}")
        e(xlane("v_max_f32", m, W + 4))
        e(f"v_sub_f32 v{AL}, v{Mx+u}, v{m}"); e(f"v_exp_f32 v{AL}, v{AL}"); e(f"v_mov_b32 v{Mx+u}, v{m}")
        e(f"v_mul_f32 v{L+u}, v{L+u}, v{AL}")
        for i in range(8):
            e(f"v_sub_f32 v{s0+i}, v{s0+i}, v{m}"); e(f"v_exp_f32 v{s0+i}, v{s0+i}")
        for i in range(8): e(f"v_add_f32 v{L+u}, v{L+u}, v{s0+i}")
        for i in range(4): e(f"v_cvt_pk_bf16_f32 v{P+i}, v{s0+2*i}, v{s0+2*i+1}")
        for dt in range(8):
            for r in range(4): e(f"v_accvgpr_read_b32 v{TT+r}, a{O(dt,u)+r}")
            for r in range(4): e(f"v_mul_f32 v{TT+r}, v{TT+r}, v{AL}")
            for r in range(4): e(f"v_accvgpr_write_b32 a{O(dt,u)+r}, v{TT+r}")
        e(pv(u, 1, 0))
    e("s_add_u32 s72, s72, 1"); e("s_cmp_lt_u32 s72, 16"); e("s_cbranch_scc1 KF_sloop")
    k.begin(name="slow_post")
    e("s_nop 15")
    for u in range(4): e(xlane("v_add_f32", L + u, W + 4))
    e("s_nop 15")
    e("s_branch KF_epi")
    pre = ["p0a", "gemm", "attn_first"]
    k.paths = []
    for na in (1, 2, 4):
        for nl in (1, 2):
            mid = pre + ["attn_loop"] * na + ["attn_last", "oepi"]
            if na > 1 and nl > 1 and (na, nl) != (4, 2): continue
            k.paths.append(mid + ["g_pre"] + ["L0", "L1"] * nl + ["final", "fin"])
            k.paths.append(mid + ["s_pre"] + ["L0", "L1"] * nl + ["final", "fin"])
    return kstart(name) + k.finish(), kdesc(name, 512, 256), (name, 256, 256, 163840)
```

```python
from lib import *
from lib import _mk
from common import *
import math

SLOT = 36864
SPARE = 4 * SLOT
MF = "v_mfma_f32_16x16x32_bf16"
QSCALE = math.log2(math.e) / math.sqrt(128.0)
SPIN_MAX = 100000
KNAME = "recurrent_scan__sliding_block_cached__dense_activation_relu__prompt_kernel"

def flat(l): return [x for y in l for x in y]

def gen_kf(name=KNAME, stamps=False, opt=None):
    opt = opt or {}
    k = Kernel(name)
    k.cur.name = 'p0a'
    e = k.e
    vL16, vDQ, vD1, vS0, vP5, vZ, vTOK, vL, vT = 1, 2, 3, 4, 5, 6, 7, 8, 9
    vST = [10, 11, 12, 13]
    vT2 = 14; STV = 15
    XV = 16; QA = 48; AF = 176; NF = 6; LEAD = 4
    FA = 200; T = 232; vB = 248
    vXN = [232, 233, 234, 235]; vKO, vVO = 254, 255
    B1, B3, B5, B7 = 64, 96, 128, 160
    def X(u, s):
        h, idx = u >> 1, s * 2 + (u & 1)
        return ar(h * 128 + idx * 4) if idx < 32 else vr(XV + h * 16 + (idx - 32) * 4)
    def qa(nt, u): return QA + (nt * 4 + u) * 4
    def Qf(u, s): return vr(qa(2 * s, u))
    def fa(a, u): return FA + a * 16 + u * 4
    def stamp(i):
        if not stamps: return []
        return ["s_memtime s[98:99]", "s_waitcnt lgkmcnt(0)", f"v_writelane_b32 v{STV}, s98, {i}",
                "s_memrealtime s[98:99]", "s_waitcnt lgkmcnt(0)", f"v_writelane_b32 v{STV}, s98, {32+i}"]
    def mst(i):
        if not (stamps and opt.get("fine")): return ["s_nop 0"] if False else []
        return ["s_memtime s[98:99]", "s_waitcnt lgkmcnt(0)", "s_nop 0", f"v_writelane_b32 v{STV}, s98, {i}"]
    def C(t): return Inst(t, "cond")
    uid = [0]
    def lab(p): uid[0] += 1; return f"KF_{p}{uid[0]}"
    def flag_store(sreg, nl, voff, allw=False):
        lb = lab("nf")
        m = ["s_mov_b64 exec, %#x" % ((1 << nl) - 1)] if nl < 32 else ["s_mov_b32 exec_hi, 0"]
        body = m + [f"buffer_store_dword v{vTOK}, v{voff}, s[16:19], {sreg} offen sc1", "s_mov_b64 exec, -1"]
        if allw: return body
        return ["s_cmp_lg_u32 s3, 0", f"s_cbranch_scc1 {lb}"] + [C(x) for x in body] + [f"{lb}:"]
    ool = []
    def spin(load, regs, ret=None):
        lb = lab("sp"); dn = ret or lab("sd")
        out = ["s_mov_b32 s73, 0", f"{lb}:", load, "s_waitcnt vmcnt(0)"] + cmpf(regs)
        out += ["s_add_u32 s73, s73, 1", f"s_cmp_ge_u32 s73, {SPIN_MAX}", f"s_cbranch_scc1 {dn}", f"s_cbranch_vccz {dn}", "s_sleep 2", f"s_branch {lb}"]
        if not ret: out.append(f"{dn}:")
        return out
    def cmpf(regs):
        out = []
        if len(regs) > 1:
            out += [f"v_xor_b32 v{r}, v{r}, v{vTOK}" for r in regs]
            out += [f"v_or_b32 v{regs[0]}, v{regs[0]}, v{r}" for r in regs[1:]]
            out += [f"v_cmp_ne_u32 vcc, 0, v{regs[0]}"]
        else:
            out += [f"v_cmp_ne_u32 vcc, v{regs[0]}, v{vTOK}"]
        return out
    def check(load, regs):
        a, b = lab("ck"), lab("cr")
        ool.append([f"{a}:"] + spin(load, regs, b))
        return cmpf(regs), ["s_nop 0", f"s_cbranch_vccnz {a}", f"{b}:"]
    def xlane(op, r, t, both=True):
        o = [f"v_mov_b32 v{t}, v{r}", f"v_permlane32_swap_b32 v{t}, v{r}", f"{op} v{r}, v{r}, v{t}"] if both else []
        return o + [f"v_mov_b32 v{t}, v{r}", f"v_permlane16_swap_b32 v{t}, v{r}", f"{op} v{r}, v{r}, v{t}"]
    def ident(ID, t0, t1):
        o = [f"v_lshrrev_b32 v{t0}, 4, v{vL16}", f"v_and_b32 v{t1}, 15, v{t0}", f"v_lshrrev_b32 v{t0}, 4, v{t0}", f"v_lshlrev_b32 v{t0}, 3, v{t0}",
             f"v_sub_u32 v{t0}, v{t1}, v{t0}", f"v_and_b32 v{t1}, 1, v{t0}", f"v_lshlrev_b32 v{t1}, 4, v{t1}", f"v_mov_b32 v{ID}, 0x3f80",
             f"v_lshlrev_b32 v{t1}, v{t1}, v{ID}", f"v_ashrrev_i32 v{t0}, 1, v{t0}"]
        for h in range(2):
            for r in range(4):
                o.append([f"v_cmp_eq_i32 vcc, {r - 8*h}, v{t0}", "s_nop 1", f"v_cndmask_b32 v{ID+4*h+r}, 0, v{t1}, vcc"])
        return o
    def tr_mf(D, A, ID): return [f"{MF} {vr(D + (h*2+r)*4)}, {vr(A + 4*r)}, {vr(ID + 4*h)}, 0" for h in range(2) for r in range(2)]
    def tr_cvt(o, D, h): return [f"v_cvt_pk_bf16_f32 v{o+2*r+q}, v{D+(h*2+r)*4+2*q}, v{D+(h*2+r)*4+2*q+1}" for r in range(2) for q in range(2)]

    e("s_cmp_ge_u32 s2, 256"); e("s_cbranch_scc1 KF_end")
    if opt.get("scr"):
        e("s_and_b32 s4, s2, 7"); e("s_bfe_u32 s5, s2, 0x30003"); e("s_andn2_b32 s2, s2, 63"); e("s_lshl_b32 s4, s4, 3"); e("s_or_b32 s2, s2, s4"); e("s_or_b32 s2, s2, s5")
    e("s_load_dwordx16 s[40:55], s[0:1], 0")
    e("s_load_dwordx4 s[56:59], s[0:1], 64")
    e("s_load_dwordx2 s[60:61], s[0:1], 80")
    e("s_memrealtime s[38:39]")
    if opt.get("cpf0", 0):
        e("s_getpc_b64 s[96:97]"); e(f"s_mov_b32 s98, {opt['cpf0'] * 1024}"); e("s_mov_b32 s99, 0x20000")
        e("v_lshlrev_b32 v27, 7, v0")
        e("buffer_load_dword v31, v27, s[96:99], 0 offen", "tch")
    e("v_lshrrev_b32 v20, 6, v0")
    e("v_and_b32 v21, 63, v0")
    e("v_readfirstlane_b32 s3, v20")
    e("s_and_b32 s64, s2, 7"); e("s_bfe_u32 s65, s2, 0x20003")
    e("s_and_b32 s62, s2, 3"); e("s_lshl_b32 s62, s62, 3"); e("s_and_b32 s63, s2, 4"); e("s_add_u32 s62, s62, s63"); e("s_add_u32 s62, s62, s65")
    e("s_lshr_b32 s63, s2, 5")
    e("s_lshl_b32 s66, s63, 5"); e("s_add_u32 s66, s66, s62")
    e("v_lshrrev_b32 v22, 5, v0"); e("v_mul_u32_u24 v22, 1152, v22")
    e("v_and_b32 v23, 31, v21"); e("v_lshl_add_u32 v22, v23, 4, v22")
    e("s_mul_i32 s67, s66, 9216")
    for r in range(56, 60): e(f"v_mov_b32 v{r}, 0")
    e(f"v_mov_b32 v{vZ}, 0")
    e(f"v_lshlrev_b32 v{vL16}, 4, v21")
    e("s_waitcnt lgkmcnt(0)")
    e(srd(32, 40, 2048 * 1152))
    e(f"buffer_load_dwordx4 {vr(48)}, v22, s[32:35], s67 offen")
    e(f"buffer_load_dwordx4 {vr(52)}, v22, s[32:35], s67 offen offset:512")
    e("s_mov_b32 exec_lo, 0xff"); e("s_mov_b32 exec_hi, 0xff")
    e(f"buffer_load_dwordx4 {vr(56)}, v22, s[32:35], s67 offen offset:1024")
    e("s_mov_b64 exec, -1")
    e(stamp(0))
    e(srd(8, 46, 576 * 8192)); e(srd(20, 58, 256))
    e("s_or_b32 s77, s2, s3"); e("s_cbranch_scc1 KF_w0")
    e(C("s_or_b32 s38, s38, 1")); e(C("v_mov_b32 v28, s38")); e(C("s_mov_b64 exec, 1"))
    e(C(f"buffer_store_dword v28, v{vZ}, s[20:23], 0 offen sc1")); e(C("s_mov_b64 exec, -1"))
    e("KF_w0:")
    e(srd(16, 60, WS_SIZE)); e(srd(12, 52, 576 * 9216)); e(srd(24, 42, 8388608)); e(srd(28, 44, 8388608))
    e("v_lshrrev_b32 v28, 1, v21"); e("v_and_b32 v29, 1, v21"); e("v_lshlrev_b32 v29, 7, v29")
    e("v_lshl_add_u32 v34, v28, 13, v29"); e("v_mul_u32_u24 v239, 9216, v21")
    e("s_sub_u32 s77, s3, 1"); e("s_lshl_b32 s77, s77, 3"); e("s_add_u32 s77, s77, s63"); e(f"s_mul_i32 s4, s77, {24*8192}"); e("s_lshl_b32 s5, s63, 2"); e("s_add_u32 s5, s5, s3"); e(f"s_mul_i32 s5, s5, {18*9216}")
    e("s_lshr_b32 s70, s62, 1"); e("s_and_b32 s71, s62, 1")
    e("s_lshl_b32 s6, s70, 6"); e("s_add_u32 s6, s6, s5"); e("s_add_u32 s6, s6, 8192")
    e("s_lshl_b32 s79, s62, 8"); e("s_add_u32 s4, s4, s79"); e("s_add_u32 s5, s5, s79")
    wq_touch = ["s_mov_b32 exec_hi, 0xffff", "buffer_load_dword v31, v34, s[8:11], s4 offen", "s_mov_b64 exec, -1"]
    def w1_touch(i):
        return [Inst("s_mov_b64 exec, 0x3ffff"), Inst(f"buffer_load_dword v0, v239, s[12:15], {('s5','s5','s6')[i]} offen offset:{(0,128,0)[i]}", "tch"), Inst("s_mov_b64 exec, -1")]
    def not_w0(body, maxw=3):
        lb = lab("nw")
        return ["s_sub_u32 s72, s3, 1", f"s_cmp_ge_u32 s72, {maxw}", f"s_cbranch_scc1 {lb}"] + [C(x) for x in body] + [f"{lb}:"]
    ORD = opt.get("ord", 1)
    CPF = opt.get("codepf", 1)
    code_touch = ["s_getpc_b64 s[68:69]", "KF_pc:", f"s_sub_u32 s96, s68, KF_pc-{name}", "s_subb_u32 s97, s69, 0", f"s_mov_b32 s98, KF_codeend-{name}", "s_mov_b32 s99, 0x20000",
                  "s_lshr_b32 s94, s2, 3", "s_lshl_b32 s94, s94, 2", "s_add_u32 s94, s94, s3", "s_mul_i32 s94, s94, 640",
                  "v_lshlrev_b32 v27, 7, v21", "s_mov_b64 exec, 31", Inst("buffer_load_dword v31, v27, s[96:99], s94 offen", "tch"), "s_mov_b64 exec, -1"]
    if CPF == 1: e(code_touch)
    e("v_and_b32 v24, 15, v21"); e("v_lshrrev_b32 v25, 4, v21")
    e(f"v_lshlrev_b32 v{vKO}, 8, v24"); e(f"v_lshl_add_u32 v{vVO}, v25, 4, v{vKO}"); e(f"v_lshl_add_u32 v{vKO}, v25, 3, v{vKO}")
    e("v_lshrrev_b32 v28, 5, v21"); e("v_lshlrev_b32 v29, 1, v28"); e("v_and_b32 v30, 3, v21"); e("v_xor_b32 v29, v29, v30")
    e("v_lshlrev_b32 v29, 4, v29"); e("v_lshrrev_b32 v32, 2, v21")
    e(f"v_lshl_add_u32 v{vDQ}, v32, 13, v29")
    e(f"v_mul_u32_u24 v{vD1}, 9216, v32"); e(f"v_add_u32 v{vD1}, v{vD1}, v29")
    e("v_bfe_u32 v32, v21, 2, 2"); e("v_lshlrev_b32 v32, 6, v32"); e("v_lshl_add_u32 v32, v30, 3, v32")
    e("v_and_b32 v26, 1, v25"); e("v_lshl_add_u32 v32, v26, 5, v32")
    e(f"v_lshl_add_u32 v{vS0}, v25, 9, v32")
    e("v_bfe_u32 v33, v21, 2, 2"); e(f"v_lshlrev_b32 v{vP5}, 10, v25"); e(f"v_lshl_add_u32 v{vP5}, v33, 7, v{vP5}"); e(f"v_lshl_add_u32 v{vP5}, v30, 3, v{vP5}")
    e("v_lshrrev_b32 v33, 1, v33"); e(f"v_lshl_add_u32 v{vP5}, v33, 5, v{vP5}"); e(f"v_lshl_add_u32 v{vP5}, v26, 6, v{vP5}")
    e("v_lshrrev_b32 v33, 3, v21"); e("v_mul_u32_u24 v238, 9216, v33"); e("v_and_b32 v33, 7, v21"); e("v_lshlrev_b32 v35, 1, v26"); e("v_xor_b32 v33, v33, v35")
    e("v_and_b32 v35, 1, v20"); e("v_lshlrev_b32 v35, 2, v35"); e("v_xor_b32 v33, v33, v35"); e("v_lshl_add_u32 v238, v33, 4, v238")
    e("v_lshl_add_u32 v32, v26, 9, v32"); e(f"v_lshl_add_u32 v{vB}, v28, 12, v32"); e(f"v_xor_b32 v{vB+1}, 32, v{vB}")
    for r in range(2, 6): e(f"v_add_u32 v{vB+r}, 0x10000, v{vB+r-2}")
    e("s_lshl_b32 s69, s63, 4"); e("s_lshl_b32 s78, s3, 2"); e("s_add_u32 s69, s69, s78"); e("s_lshl_b32 s78, s71, 1")
    for u in range(4):
        e(f"s_xor_b32 s79, s78, {u}"); e("s_add_u32 s79, s79, s69")
        e("s_mul_i32 s80, s79, 18432"); e(f"v_add_u32 v{vXN[u]}, s80, v{vL16}")
        e(f"s_mul_i32 s80, s79, {272*1024}"); e(f"v_add_u32 v{vST[u]}, s80, v{vL16}")
    e("v_lshrrev_b32 v36, 5, v0"); e("v_and_b32 v37, 7, v21"); e("v_xor_b32 v36, v36, v37"); e("v_lshlrev_b32 v36, 4, v36")
    e("v_lshl_add_u32 v36, v23, 7, v36"); e(f"v_add_u32 v36, {SPARE}, v36")
    e("v_lshrrev_b32 v38, 3, v21"); e("v_xor_b32 v39, v38, v37"); e("v_lshlrev_b32 v39, 4, v39"); e("v_lshl_add_u32 v39, v38, 7, v39"); e(f"v_add_u32 v39, {SPARE}, v39")
    e("v_lshlrev_b32 v38, 8, v38"); e("v_lshl_add_u32 v38, v37, 4, v38")
    e("s_lshl_b32 s72, s63, 1"); e("s_add_u32 s72, s72, s71")
    e("s_lshl_b32 s73, s70, 19"); e("s_lshl_b32 s74, s72, 13"); e("s_add_u32 s73, s73, s74"); e(f"s_add_u32 s73, s73, {1536*256}")
    e("s_lshl_b32 s74, s3, 6"); e("s_add_u32 s87, s73, s74"); e("s_add_u32 s88, s87, 4096")
    e("s_lshr_b32 s74, s3, 1"); e("s_lshl_b32 s74, s74, 12"); e("s_add_u32 s73, s73, s74")
    e("s_and_b32 s74, s3, 1"); e("s_lshl_b32 s74, s74, 7"); e("s_add_u32 s89, s73, s74")
    e("s_lshl_b32 s82, s70, 18"); e(f"s_add_u32 s82, s82, {WS_KVP}")
    e("s_lshl_b32 s93, s72, 14"); e("s_add_u32 s93, s93, s82"); e("s_lshl_b32 s78, s3, 11"); e("s_add_u32 s93, s93, s78"); e("s_add_u32 s95, s93, 8192")
    e("s_lshl_b32 s90, s70, 7"); e(f"s_add_u32 s90, s90, {FL_KV}"); e("s_lshl_b32 s91, s72, 2"); e("s_add_u32 s91, s91, s90")
    e(f"s_mul_i32 s77, s3, {8*9216}"); e("s_lshl_b32 s79, s62, 8"); e("s_add_u32 s79, s79, s77"); e(f"s_mul_i32 s77, s3, {144*9216}")
    e("s_lshl_b32 s80, s70, 6"); e("s_add_u32 s80, s80, s77"); e("s_add_u32 s80, s80, 8192")
    e("s_mul_i32 s81, s3, 9216")
    e("s_lshl_b32 s83, s62, 12"); e(f"s_add_u32 s83, s83, {WS_ACT}"); e(f"s_add_u32 s84, s83, {128*1024}")
    e("s_lshl_b32 s85, s70, 10"); e(f"s_add_u32 s85, s85, {WS_ACT + 256*1024}")
    e(f"s_mov_b32 s86, {f32bits(QSCALE):#x}")
    e("s_lshl_b32 s37, s62, 8"); e("s_lshl_b32 s67, s3, 6"); e("s_add_u32 s37, s37, s67"); e("s_lshl_b32 s67, s3, 10")
    for i in range(5): e(f"s_mov_b32 s{74+i}, {WS_XN + i*4096}")
    e("s_lshr_b32 s7, s66, 1"); e("s_mul_i32 s7, s7, 18432"); e("s_lshl_b32 s72, s71, 7"); e("s_add_u32 s7, s7, s72")
    e("s_lshl_b32 s36, s63, 12"); e("s_lshl_b32 s72, s62, 2"); e("s_add_u32 s36, s36, s72"); e(f"s_add_u32 s36, s36, {FL_LN}")
    Fv = 64
    for d in range(12):
        e(f"v_lshlrev_b32 v{Fv+2*d}, 16, v{48+d}"); e(f"v_and_b32 v{Fv+2*d+1}, 0xffff0000, v{48+d}")
    e(f"buffer_load_dword v{vTOK}, v{vZ}, s[20:23], 0 offen sc1", "tch")
    if ORD == 1: e(not_w0(wq_touch))
    if ORD == 4: e(not_w0(wq_touch, 1))
    if CPF == 2: e([x.replace("s[68:69]", "s[100:101]").replace("s68", "s100").replace("s69", "s101") if isinstance(x, str) else x for x in code_touch])
    e(stamp(1))
    def pk(op, d, a, b): return f"{op} {vr(d,2)}, {vr(a,2)}, {vr(b,2)}"
    e(pk("v_pk_add_f32", 40, Fv, Fv + 2)); e(pk("v_pk_add_f32", 42, Fv + 4, Fv + 6))
    for d in range(8, 24, 2): e(pk("v_pk_add_f32", 40 + (d & 2), 40 + (d & 2), Fv + d))
    def red(r):
        e(pk("v_pk_add_f32", r, r, r + 2)); e(f"v_add_f32 v{r}, v{r}, v{r+1}")
        for sh in (8, 4, 2, 1): e(f"v_add_f32_dpp v{r}, v{r}, v{r} row_ror:{sh} row_mask:0xf bank_mask:0xf")
        e(xlane("v_add_f32", r, r + 1, both=False))
    red(40)
    e(f"v_mul_f32 v40, {f32bits(-1.0/576):#x}, v40"); e("v_mov_b32 v41, v40")
    e("v_cvt_pk_bf16_f32 v44, v40, v40"); e("v_lshlrev_b32 v44, 16, v44"); e("v_mov_b32 v45, v44")
    for d in range(0, 24, 2):
        if d == 16: e("s_mov_b32 exec_lo, 0xff"); e("s_mov_b32 exec_hi, 0xff")
        t = 92 + (d & 2); a = 88 + (d & 2)
        e(pk("v_pk_add_f32", t, Fv + d, 40))
        if d < 4: e(pk("v_pk_mul_f32", a, t, t))
        else: e(f"v_pk_fma_f32 {vr(a,2)}, {vr(t,2)}, {vr(t,2)}, {vr(a,2)}")
    e("s_mov_b64 exec, -1")
    for d in range(0, 24, 2):
        e(pk("v_pk_add_f32", Fv + d, Fv + d, 44)); e(f"v_cvt_pk_bf16_f32 v{48+d//2}, v{Fv+d}, v{Fv+d+1}")
    red(88)
    def rbf(r): e(f"v_cvt_pk_bf16_f32 v{r}, v{r}, v{r}"); e(f"v_lshlrev_b32 v{r}, 16, v{r}")
    e(f"v_mul_f32 v88, {f32bits(1.0/576):#x}, v88"); rbf(88)
    e(f"v_add_f32 v88, {f32bits(1e-5):#x}, v88"); rbf(88)
    e("v_sqrt_f32 v88, v88")
    for d in range(12):
        e(f"v_lshlrev_b32 v{Fv+2*d}, 16, v{48+d}"); e(f"v_and_b32 v{Fv+2*d+1}, 0xffff0000, v{48+d}")
        if d == 0: rbf(88)
        if d == 1: e("v_rcp_f32 v90, v88")
        if d == 2: e("v_fma_f32 v91, -v88, v90, 2.0")
        if d == 3: e("v_mul_f32 v90, v90, v91"); e("v_mov_b32 v91, v90")
    for d in range(12):
        e(pk("v_pk_mul_f32", Fv + 2 * d, Fv + 2 * d, 90)); e(f"v_cvt_pk_bf16_f32 v{48+d}, v{Fv+2*d}, v{Fv+2*d+1}")
        if d % 4 == 3:
            if d == 11: e("s_mov_b32 exec_lo, 0xff"); e("s_mov_b32 exec_hi, 0xff")
            e(f"ds_write_b128 v36, {vr(48 + d - 3)} offset:{(d//4)*4096}")
    e("s_mov_b64 exec, -1")
    e("s_waitcnt lgkmcnt(0)")
    e("s_barrier")
    e(stamp(2))
    e("s_cmp_lg_u32 s3, 0"); e("s_cbranch_scc1 KF_x123")
    w0 = [f"ds_read_b128 {vr(136+4*q)}, v39 offset:{q*1024}" for q in range(9)]
    for q in range(9):
        w0 += [f"s_waitcnt lgkmcnt({8-q})", f"buffer_store_dwordx4 {vr(136+4*q)}, v38, s[16:19], s7 offen offset:{(q%2)*2048} sc1"]
        if q % 2: w0 += ["s_add_u32 s7, s7, 4096"]
    w0 += ["v_lshlrev_b32 v38, 7, v21", "s_mov_b32 s73, 0"] + mst(62) + ["KF_tk:", "s_waitcnt vmcnt(0)", f"v_cmp_eq_u32 vcc, 0, v{vTOK}",
           "s_add_u32 s73, s73, 1", f"s_cmp_ge_u32 s73, {SPIN_MAX}",
           "s_cbranch_scc1 KF_tkd", "s_cbranch_vccz KF_tkd", f"buffer_load_dword v{vTOK}, v{vZ}, s[20:23], 0 offen sc1", "s_branch KF_tk", "KF_tkd:"]
    w0 += mst(63) + flag_store("s36", 32, 38, allw=True)
    w0 += [f"v_mov_b32 v39, {SPARE + 12288}", f"ds_write_b32 v39, v{vTOK}"]
    for x in w0: e(x if x.endswith(":") else C(x))
    e("KF_x123:")
    if ORD >= 3: e("s_barrier")
    def wq_piece(b):
        return [[f"s_add_u32 m0, s67, {b*4096}", f"s_add_u32 s68, s37, {b*131072}"],
                Inst(f"buffer_load_dwordx4 v{vDQ}, s[8:11], s68 offen lds", "wq")]
    NPW = opt.get("npw", 36); XD = opt.get("xd", 3); XEND = opt.get("xend", 8)
    e(srd(20, 60, WS_SIZE))
    e("s_cmp_lg_u32 s3, 0"); e("s_cbranch_scc1 KF_y123")
    pl = ["v_lshlrev_b32 v38, 2, v23", "s_lshl_b32 s72, s66, 7", f"s_add_u32 s72, s72, {FL_LN}"]
    pl += spin("buffer_load_dword v39, v38, s[16:19], s72 offen sc1", [39]) + ["s_branch KF_y0", "KF_y123:"]
    if ORD >= 2: pl += wq_touch
    pl += ["s_sub_u32 s72, s3, 1", "s_lshl_b32 s94, s62, 8", "KF_wql:", "s_lshl_b32 m0, s72, 10", "s_lshr_b32 s73, s72, 2", "s_lshl_b32 s73, s73, 17",
           "s_and_b32 s68, s72, 3", "s_lshl_b32 s68, s68, 6", "s_add_u32 s68, s68, s73", "s_add_u32 s68, s68, s94",
           f"buffer_load_dwordx4 v{vDQ}, s[8:11], s68 offen lds", "s_add_u32 s72, s72, 3", f"s_cmp_lt_u32 s72, {NPW*4}", "s_cbranch_scc1 KF_wql"]
    pl += [f"s_waitcnt vmcnt({(NPW - 12) * 4 // 3})", "KF_y0:"]
    for x in pl: e(x if x.endswith(":") else C(x))
    e(stamp(3))
    e("s_waitcnt lgkmcnt(0)")
    e("s_barrier")
    e(stamp(4))
    def xn_load(u, s):
        return Inst(f"buffer_load_dwordx4 {X(u, s)}, v{vXN[u]}, s[16:19], s{74 + s//4} offen offset:{(s%4)*1024} sc1", "xn")
    for s in range(XD):
        for u in range(4): e(xn_load(u, s))
    e(f"v_mov_b32 v39, {SPARE + 12288}"); e(f"ds_read_b32 v{vTOK}, v39")
    assert NPW == 36
    e(f"v_mov_b32 v{vDQ}, v238")

    k.begin(name="gemm")
    class Frags:
        def __init__(s, af): s.mf = []; s.fr = []; s.af = af
        def add(s, vbase, off, ms, d2=256):
            b = s.af + (len(s.fr) % NF) * 4
            s.fr.append((len(s.mf), len(ms), [f"ds_read_b64_tr_b16 {vr(b,2)}, v{vbase} offset:{off}",
                                              f"ds_read_b64_tr_b16 {vr(b+2,2)}, v{vbase} offset:{off+d2}"], vr(b)))
            s.mf += [m.replace("@A", vr(b)) for m in ms]
        def sched(s, wrap=False):
            sc = Sched(s.mf); fr = s.fr; N = len(fr)
            for f in range(N):
                g0, n, _, _ = fr[f]
                if f + LEAD < N or wrap:
                    sc.put(g0, fr[(f + LEAD) % N][2][0]); sc.put(g0 + 1, fr[(f + LEAD) % N][2][1])
                if (f + 1 < N or wrap) and (n == 4 or f % 2 == 0):
                    sc.put(g0 + 1, WaitRegs(*([fr[(f + 1) % N][3]] + ([fr[f + 2][3]] if n == 2 and f + 2 < N else []))))
            return sc
    G = Frags(AF); pos = {}
    KL, VL, VD, VO, ID = 200, 208, 216, 208, 240
    KVS = opt.get("kvs", 15)
    for s in range(18):
        pos["Q", s] = len(G.mf)
        if s == KVS: G.mf += tr_mf(VD, VL, ID)
        for nt in range(8):
            G.add(vB + 2 * (s // 8) + (nt & 1), (s % 8) * 8192 + (nt >> 1) * 1024,
                  [f"{MF} {vr(qa(nt,u))}, @A, {X(u,s)}, {'0' if s == 0 else vr(qa(nt,u))}" for u in range(4)])
    S = lambda u: (B1 if u < 2 else B3) + (u & 1) * 8
    def KF(b, f): return ar(128 + b * 32 + f * 4)
    def VF(b, f): return ar(192 + b * 32 + f * 4)
    K0F = lambda f: vr(B5 + f * 4) if f < 4 else vr(B7 + (f - 4) * 4)
    NEGM = B5; P = B7; L = XV + 16; FL = XV + 24
    def qk(u, kf, zero=False):
        out = []
        for s in range(4):
            for kt in range(2):
                c = vr(S(u) + 4 * kt)
                out.append(f"{MF} {c}, {kf(kt*4+s)}, {Qf(u, s)}, {c if s else ('0' if zero else vr(NEGM + 4*u))}")
        return out
    sb = lambda st, a: vB + (st & 1) * 2 + a
    for st in range(5):
        us = (0, 1) if st == 4 else (0, 1, 2, 3)
        for f in range(36):
            a, s = f // 18, f % 18
            pos["F", st, f] = len(G.mf)
            if st == 3 and f == 8:
                pos["QK0"] = len(G.mf)
                for u in range(4): G.mf += qk(u, K0F, zero=True)
                pos["QK0e"] = len(G.mf)
            ms = [f"{MF} {vr(fa(a,u))}, @A, {X(u,s)}, {'0' if s == 0 else vr(fa(a,u))}" for u in us]
            if st == 4: G.add(vB + 4 + a, s * 2048, ms)
            else: G.add(vB + 2 * a + (s >= 9), (s % 9) * 4096, ms, 512)
    END = len(G.mf)
    for f in range(LEAD): e(G.fr[f][2])
    sc = G.sched()
    F = lambda st, f: pos["F", st, f]
    Qp = lambda s: pos["Q", s] if s < 18 else F(0, 0)
    def bar(g, *w): sc.put(g, list(w) + ["s_barrier"])
    bar(Qp(5) + 2)
    bar(Qp(10) + 2)
    bar(Qp(17) + 2, WaitTag(["f0"], 0))
    bar(F(0, 4) + 2, WaitTag(["kvst"], 0))
    bar(F(1, 28) + 2, WaitTag(["f1"], 0))
    bar(F(2, 0) + 6)
    bar(F(3, 0) + 6, WaitTag(["kv0"], 0))
    bar(F(3, 28) + 2, WaitTag(["f2", "dma"], 0))
    bar(F(4, 2))
    for s in range(17): sc.add([WaitRegs(*[X(u, s + 1) for u in range(4)])], Qp(s + 1) - 4, Qp(s + 1), spread=False)
    xp = sc.add([xn_load(u, s) for s in range(XD, 18) for u in range(4)], 2, Qp(XEND))
    for i, g in enumerate(xp): assert g < Qp(XD + i // 4) - 24, (i, g)
    def pair_piece(pr, i):
        return [[f"s_add_u32 m0, s67, {pr*2*SLOT + i*4096}", f"s_add_u32 s68, s79, {pr*128 + i*32*9216}"],
                Inst(f"buffer_load_dwordx4 v{vDQ}, s[12:15], s68 offen lds", f"f{pr}")]
    def sp_piece(p):
        return [[f"s_add_u32 m0, s81, {p*1024}", f"s_add_u32 s68, s80, {p*16*9216}"],
                Inst(f"buffer_load_dwordx4 v{vD1}, s[12:15], s68 offen lds", "f2")]
    def lin_pieces(ldsb, ldsoff, src, srcoff, n=9, tag="dma"):
        out = []
        for p in range(n):
            if p % 4 == 0: out.append([f"s_add_u32 m0, {ldsb}, {ldsoff + p*1024}", f"s_add_u32 s68, {src}, {srcoff + p*1024}"])
            out.append(Inst(f"buffer_load_dwordx4 v{vL16}, s[20:23], s68 offen offset:{(p%4)*1024} sc1 lds", tag))
        return out
    F0AT = opt.get("f0at", 12)
    sc.add(flat([pair_piece(0, i) for i in range(18)]), Qp(F0AT), Qp(opt.get("f0end", 16)))
    kvl = []
    for f in range(2):
        kvl += [f"buffer_load_dwordx2 {vr(KL+4*f,2)}, v{vKO}, s[24:27], s89 offen offset:{f*64}", f"buffer_load_dwordx2 {vr(KL+2+4*f,2)}, v{vKO}, s[24:27], s89 offen offset:{f*64+32}"]
    kvl += [f"buffer_load_dwordx4 {vr(VL)}, v{vVO}, s[28:31], s87 offen", f"buffer_load_dwordx4 {vr(VL+4)}, v{vVO}, s[28:31], s88 offen"]
    T1 = opt.get("t1", XEND); T2 = opt.get("t2", 12)
    kvt = [Inst("s_mov_b64 exec, 0xffff"), Inst(f"buffer_load_dword v0, v{vKO}, s[24:27], s89 offen", "tch"),
           Inst(f"buffer_load_dword v0, v{vKO}, s[28:31], s89 offen", "tch"), Inst("s_mov_b64 exec, -1")]
    tlb = []
    if opt.get("tlb", 0):
        tlb = [["s_lshr_b32 s72, s2, 3", "s_lshl_b32 s72, s72, 2", "s_add_u32 s72, s72, s3"],
               [Inst(f"s_mul_i32 s72, s72, {768*1024}"), Inst("s_mov_b64 exec, 1"), Inst(f"buffer_load_dword v0, v{vZ}, s[16:19], s72 offen offset:64 sc1", "tch"), Inst("s_mov_b64 exec, -1")]]
    sc.add([w1_touch(0), kvt] + tlb, Qp(T1), Qp(T1) + 16)
    sc.add(kvl[4:] + kvl[:4], Qp(T2), Qp(T2) + 30)
    sc.add(ident(ID, vT, vL), Qp(10), Qp(KVS - 1))
    sc.add([WaitRegs(vr(VL), vr(VL + 4))], Qp(KVS) - 3, Qp(KVS), spread=False)
    kst = [Inst(f"buffer_store_dwordx4 {vr(KL+4*f)}, v{vL16}, s[16:19], s93 offen offset:{f*1024} sc1", "kvst") for f in range(2)]
    for h in range(2):
        kst += tr_cvt(VO + 4 * h, VD, h) + [Inst(f"buffer_store_dwordx4 {vr(VO+4*h)}, v{vL16}, s[16:19], s95 offen offset:{h*1024} sc1", "kvst")]
    sc.add(kst, Qp(KVS) + 6, Qp(KVS + 1) - 2)
    sc.add([w1_touch(1), w1_touch(2)], Qp(opt.get("t3", 16)) + 8, Qp(opt.get("t3", 16)) + 24)
    sc.add([flag_store("s91", 1, vZ)], F(0, 4) + 3, F(0, 4) + 8)
    sc.add(flat([pair_piece(1, i) for i in range(18)]), F(0, opt.get("f2at", 10)), F(1, 2))
    kvld = f"buffer_load_dword v{vT2}, v{vT}, s[16:19], s90 offen sc1"
    sc.add([f"v_bfe_u32 v{vT}, v{vL16}, 4, 4", f"v_lshlrev_b32 v{vT}, 2, v{vT}", kvld], F(1, 0), F(1, 3))
    c1, c2 = check(kvld, [vT2])
    sc.add([c1 + c2], F(1, 20), F(1, 21))
    kv0 = [["s_lshl_b32 s72, s3, 12", "s_add_u32 s70, s82, s72"]] + lin_pieces("s72", SPARE, "s70", 0, 4, "kv0") + [["s_add_u32 s92, s82, s81"]]
    sc.add(kv0, F(1, 21), F(1, 34))
    sc.add(flat([sp_piece(p) for p in range(9)]) + lin_pieces("s81", 1 * SLOT, "s92", 16384), F(2, 2), F(3, 6))
    sc.add(lin_pieces("s81", 2 * SLOT, "s92", 16384 + 32768), F(4, 3), F(4, 30))
    for st in range(4):
        for a in range(2):
            lo, hi = ((Qp(16), Qp(17)) if st == 0 else (F(st - 1, 16), F(st - 1, 30))) if a == 0 else (F(st, 0), F(st, 12))
            sc.add([f"v_xor_b32 v{vB+2*a}, {((st & 1)*2 + a) * 32}, v{vP5}", f"v_add_u32 v{vB+2*a}, {(st >> 1)*2*SLOT}, v{vB+2*a}",
                    f"v_add_u32 v{vB+2*a+1}, {SLOT}, v{vB+2*a}"], lo, hi)
    sc.add([f"v_mov_b32 v{vB+4}, v{vS0}", f"v_xor_b32 v{vB+5}, 32, v{vS0}"], F(2, 4), F(2, 20))
    sc.add([f"v_lshrrev_b32 v{vP5}, 6, v{vL16}", f"v_mul_u32_u24 v{vP5}, 288, v{vP5}", f"v_bfe_u32 v{vT2}, v{vL16}, 4, 2", f"v_lshl_add_u32 v{vP5}, v{vT2}, 3, v{vP5}"], F(3, 14), F(3, 30))
    ids = [["s_cmp_lt_u32 s64, 4", "s_cselect_b32 s24, s48, s54", "s_cselect_b32 s25, s49, s55"],
           [f"s_mov_b32 s26, {4096*1152}", "s_cmp_lt_u32 s64, 4", f"s_cselect_b32 s26, s26, {4608*1152}"],
           ["s_cmp_lt_u32 s64, 4", "s_cselect_b32 s72, 32, 36", "s_cselect_b32 s5, 0, 1"],
           ["s_and_b32 s73, s64, 3", "s_mul_i32 s7, s73, s72"],
           ["s_lshl_b32 s6, s5, 7", "s_add_u32 s6, s6, s7"], [f"s_mul_i32 s7, s7, {32*1152}"],
           ["s_lshr_b32 s72, s2, 3", "s_lshl_b32 s72, s72, 2"], ["s_add_u32 s72, s72, s3", f"s_mul_i32 s72, s72, {41*128}"], ["s_add_u32 s89, s7, s72"],
           [f"s_add_u32 s88, s89, {41*128*128}"], f"v_lshlrev_b32 v{vKO}, 3, v{vL16}"]
    sc.add(ids, F(0, 8), F(0, 34))
    for so, g in (("s89", F(1, 4)), ("s88", F(3, opt.get("wt2", 10)))):
        sc.add([[Inst("s_mov_b32 exec_hi, 0x1ff"), Inst(f"buffer_load_dword v0, v{vKO}, s[24:27], {so} offen", "tch"), Inst("s_mov_b64 exec, -1")]], g, g + 6)
    def epi_a(us): return flat([[f"v_cvt_pk_bf16_f32 v{T+4*u}, v{fa(0,u)}, v{fa(0,u)+1}", f"v_cvt_pk_bf16_f32 v{T+4*u+1}, v{fa(0,u)+2}, v{fa(0,u)+3}",
                                 f"v_pk_max_i16 v{T+4*u}, v{T+4*u}, 0", f"v_pk_max_i16 v{T+4*u+1}, v{T+4*u+1}, 0"] for u in us])
    def epi_b(st, us):
        so, off = ("s85", 0) if st == 4 else ("s84", st * 1024)
        return flat([[f"v_cvt_pk_bf16_f32 v{T+4*u+2}, v{fa(1,u)}, v{fa(1,u)+1}", f"v_cvt_pk_bf16_f32 v{T+4*u+3}, v{fa(1,u)+2}, v{fa(1,u)+3}",
                      f"v_pk_max_i16 v{T+4*u+2}, v{T+4*u+2}, 0", f"v_pk_max_i16 v{T+4*u+3}, v{T+4*u+3}, 0",
                      Inst(f"buffer_store_dwordx4 {vr(T+4*u)}, v{vST[u]}, s[16:19], {so} offen offset:{off} sc1", "st")] for u in us])
    for st in range(5):
        us = (0, 1) if st == 4 else (0, 1, 2, 3)
        sc.add(epi_a(us), F(st, 20 if st < 4 else 22), F(st, 34))
        if st: sc.add(epi_b(st - 1, (0, 1, 2, 3)), F(st, 2 if st < 4 else 4), F(st, 16))
    qe = []
    for s in range(4):
        for u in range(4):
            a, b = qa(2 * s, u), qa(2 * s + 1, u)
            qe += [f"v_mul_f32 v{r}, s86, v{r}" for r in list(range(a, a + 4)) + list(range(b, b + 4))]
            qe += [f"v_cvt_pk_bf16_f32 v{a}, v{a}, v{a+1}", f"v_cvt_pk_bf16_f32 v{a+1}, v{a+2}, v{a+3}",
                   f"v_cvt_pk_bf16_f32 v{a+2}, v{b}, v{b+1}", f"v_cvt_pk_bf16_f32 v{a+3}, v{b+2}, v{b+3}"]
    qp = sc.add(qe, F(0, 1), F(2, 0), spread=False)
    PR = 21504
    pf = [["s_lshl_b32 s72, s63, 2", "s_add_u32 s72, s72, s65"], ["s_lshl_b32 s72, s72, 2", "s_add_u32 s72, s72, s3"],
          [f"s_mul_i32 s78, s72, {8*PR}", f"s_add_u32 s78, s78, {WS_PART if not opt.get('xp') else 0x70000000}"], [f"s_mul_i32 s73, s64, {PR}", "s_add_u32 s74, s78, s73"],
          ["s_add_u32 s75, s74, 5120", "s_add_u32 s76, s74, 10240"], ["s_add_u32 s77, s74, 15360", "s_mov_b32 s95, s74"]]
    sc.add(pf, F(1, 34), F(2, 4))
    sc.add([f"v_add_u32 v{vL}, {SPARE}, v{vL16}"], F(2, 30), F(2, 34))
    sc.add([f"ds_read_b128 {K0F(f)}, v{vL} offset:{f*1024}" for f in range(8)], F(3, 1) + 3, F(3, 7))
    sc.add([WaitRegs(*[K0F(f) for f in range(8)])], pos["QK0"] - 2, pos["QK0"], spread=False)
    M = lambda u: NEGM + 4 * u
    pa = []
    for u in range(4):
        s0 = S(u); m = M(u)
        pa += [f"v_max3_f32 v{m}, v{s0}, v{s0+1}, v{s0+2}", f"v_max3_f32 v{m}, v{m}, v{s0+3}, v{s0+4}",
               f"v_max3_f32 v{m}, v{m}, v{s0+5}, v{s0+6}", f"v_max_f32 v{m}, v{m}, v{s0+7}"]
    xl = [xlane("v_max_f32", M(u), M(u) + 1) for u in range(4)]
    for i in range(6): pa += [xl[u][i] for u in range(4)]
    for u in range(4):
        pa += [f"v_sub_f32 v{S(u)+i}, v{S(u)+i}, v{M(u)}" for i in range(8)] + [f"v_sub_f32 v{M(u)+i}, 0, v{M(u)}" for i in (3, 2, 1, 0)]
    for u in range(4): pa += [f"v_exp_f32 v{S(u)+i}, v{S(u)+i}" for i in range(8)]
    for u in range(4): pa += [f"v_cvt_pk_bf16_f32 v{P+4*u+i}, v{S(u)+2*i}, v{S(u)+2*i+1}" for i in range(4)]
    pp = sc.add(pa, pos["QK0e"] + 3, F(4, 6), spread=False)
    pl = []
    for u in range(4):
        s0 = S(u)
        pl += [f"v_add_f32 v{L+u}, v{s0}, v{s0+2}", f"v_add_f32 v{L+4+u}, v{s0+1}, v{s0+3}"]
        pl += [f"v_add_f32 v{L+u+4*(i&1)}, v{L+u+4*(i&1)}, v{s0+i}" for i in range(4, 8)]
    sc.add(pl, max(F(4, 1), pp[-1] + 1), END)
    sc.add([f"ds_read_b128 {VF(0, f)}, v{vL} offset:{8192 + f*1024}" for f in range(8)], F(4, 32), END, spread=False, mind=1)
    if stamps and opt.get("fine"):
        for i, g in enumerate([Qp(1), Qp(3), Qp(5), Qp(5) + 4, Qp(7), Qp(9), Qp(11), Qp(13), Qp(15), Qp(17), F(0, 0), F(0, 18), F(1, 0), F(2, 0), F(2, 6), F(3, 0), pos["QK0"], F(4, 0)]):
            sc.gap[g] = sc.gap[g] + [_mk(x) for x in mst(14 + i)]
    e(sc.flat())
    e(stamp(5))

    def O(dt, u): return (dt * 4 + u) * 4
    def pv(u, b, pb, zero=False):
        return [f"{MF} {ar(O(dt, u))}, {VF(b, dt)}, {vr(P + 4*pb)}, {'0' if zero else ar(O(dt, u))}" for dt in range(8)]
    vD = list(range(16, 25)); vDW = list(range(176, 185)); vTW = 185
    def softmax(u):
        s0 = S(u); sm = []
        for i in range(4):
            a = s0 + 2 * i
            sm += [f"v_exp_f32 v{a}, v{a}", f"v_exp_f32 v{a+1}, v{a+1}"]
            if i: sm += [f"v_add_f32 v{L+u}, v{L+u}, v{a-2}", f"v_add_f32 v{L+4+u}, v{L+4+u}, v{a-1}", f"v_cvt_pk_bf16_f32 v{P+4*u+i-1}, v{a-2}, v{a-1}"]
        return sm + [f"v_cvt_pk_bf16_f32 v{P+4*u+3}, v{s0+6}, v{s0+7}", f"v_add_f32 v{L+u}, v{L+u}, v{s0+6}", f"v_add_f32 v{L+4+u}, v{L+4+u}, v{s0+7}"]
    def ring_dma():
        dm = [["s_xor_b32 s92, s88, s85"], ["s_mul_i32 s92, s92, s97"], ["s_add_u32 s92, s92, s93"]]
        for p in range(9):
            if p % 4 == 0: dm.append([f"s_add_u32 m0, s94, {p*1024}"])
            dm.append(Inst(f"buffer_load_dwordx4 v{vD[p]}, s[20:23], s92 offen offset:{(p%4)*1024} sc1 lds", "dma"))
        return dm + [["s_add_u32 s88, s88, 1"], [f"s_add_u32 s94, s94, {SLOT}"], [f"s_cmp_ge_u32 s94, {4*SLOT}", "s_cselect_b32 s94, s81, s94"]]
    adv_rd = [[f"s_add_u32 s96, s96, {SLOT}"], [f"s_cmp_eq_u32 s96, {4*SLOT}", "s_cselect_b32 s96, 0, s96"]]
    hfl = f"buffer_load_dword v{FL}, v{vT}, s[16:19], s84 offen sc1"
    def BF(b, s, u): return ar(128 + ((b * 4 + s) * 4 + u) * 4)
    def B1st(s, u): return BF(s >> 1, s & 1, u)
    def bload(dst, s, u):
        return Inst(f"buffer_load_dwordx4 {dst}, v{vST[u]}, s[28:31], s79 offen offset:{s*1024} sc1", "b")
    adv_b = [["s_xor_b32 s79, s87, s85", "s_lshl_b32 s79, s79, 12"], ["s_add_u32 s79, s79, s80", "s_add_u32 s87, s87, 1"]]
    def attn_iter(kind):
        first, last = kind == "first", kind == "last"
        mf = []; base = []
        for sl in range(8):
            base.append(len(mf))
            t2 = sl + 2; kb = (t2 // 4) & 1
            if not (last and sl >= 6) and not (first and sl < 2): mf += qk(t2 % 4, lambda f: KF(kb, f))
            mf += pv(sl % 4, (sl // 4) & 1, sl % 4, zero=(first and sl < 4))
        base.append(len(mf))
        sc = Sched(mf)
        for sl in range(8):
            u, half = sl % 4, sl // 4
            n = base[sl + 1] - base[sl]
            if not (last and half == 1):
                nb = (half + 1) & 1
                for i in range(4):
                    f = (u & 1) * 4 + i
                    d, o = (KF(nb, f), 0) if u < 2 else (VF(nb, f), 8192)
                    g = f if n == 8 else base[sl] + (3 + 4 * i if u != 1 else (2, 3, 6, 7)[i])
                    sc.put(g, f"ds_read_b128 {d}, v{vL} offset:{half*16384 + o + f*1024}")
            if u == 1 and not (last and half == 1):
                sc.put(base[sl + 1] - (3 if n == 16 else 1), WaitRegs(*[KF((half + 1) & 1, f) for f in range(8)]))
            if u == 0 and n == 16: sc.put(base[sl] + 5, WaitRegs(*[VF(half & 1, f) for f in range(8)]))
        gb = base[1] + 11
        if first:
            gb = base[4] + 1
            sc.add(ring_dma(), 12, gb - 2)
        sc.put(gb, [WaitTag(["dma"] if first else ["dma", "st"], 9), "s_barrier"])
        dm = ring_dma() + adv_rd
        ONES = 188
        if first: sc.add([f"v_mov_b32 v{ONES+r}, -1" for r in range(4)], 1, 12, spread=False)
        if not last:
            sc.add([Inst(f"buffer_store_dwordx4 {vr(ONES)}, v{vL16}, s[16:19], s95 offen offset:{c*1024} sc1", "pf") for c in range(3)] + [["s_add_u32 s95, s95, 3072"]],
                   base[4] + 3 if first else 2, base[8] - 4)
        if last:
            sc.add([f"v_lshlrev_b32 v{ONES}, 7, v{vL16}", [WaitTag(["pf"], 0)] + flag_store("s89", 8, ONES, allw=True)], base[6], base[8])
            for s in range(4): sc.add([bload(B1st(s, u), s, u) for u in range(4)], base[2 + s] + 1, base[3 + s] + 8)
        if first:
            sc.add([f"v_add_u32 v{vD[p]}, {(p - p % 4)*1024}, v{vL16}" for p in range(9)], 1, 12, spread=False)
            sc.add([Inst(x.text.replace("s85", "s36"), x.tag) if isinstance(x, Inst) else x for x in epi_b(4, (0, 1))], 6, gb)
        sc.add(dm, gb + 1, base[8] - 2)
        for sl in range(8):
            if (last and sl == 7) or (first and sl < 3): continue
            hi = base[sl + 1] + (4 if sl < 7 and not (last and sl >= 5) else 0)
            sc.add(softmax((sl + 1) % 4), base[sl], hi, spread=False)
        if first:
            dw = [f"v_lshrrev_b32 v{vT2}, 4, v{vL16}"]
            for p in range(9):
                r = vDW[p]
                dw += [f"v_add_u32 v{vT}, {64*p}, v{vT2}", f"v_mul_u32_u24 v{r}, 3641, v{vT}", f"v_lshrrev_b32 v{r}, 16, v{r}",
                       f"v_mul_u32_u24 v{r}, {1152 - 288}, v{r}", f"v_lshl_add_u32 v{r}, v{vT}, 4, v{r}"]
                if p % 4: dw.append(f"v_subrev_u32 v{r}, {(p%4)*1024}, v{r}")
            dp = sc.add(dw, 1, base[7], spread=False)
            fa_ = [["s_lshl_b32 s72, s63, 14", "s_lshl_b32 s73, s3, 7"], ["s_add_u32 s72, s72, s73", f"s_add_u32 s72, s72, {FL_P2}"],
                   ["s_lshl_b32 s73, s62, 2", "s_add_u32 s91, s72, s73"], ["s_add_u32 s91, s91, 8192"],
                   ["s_lshr_b32 s73, s62, 3", "s_lshl_b32 s73, s73, 11"], ["s_add_u32 s90, s72, s73", "s_and_b32 s73, s62, 7"], ["s_lshl_b32 s73, s73, 2", "s_add_u32 s90, s90, s73"],
                   ["s_lshl_b32 s73, s64, 2", "s_add_u32 s73, s73, s65"], ["s_lshl_b32 s73, s73, 9", "s_add_u32 s84, s72, s73"],
                   [f"s_add_u32 s37, s84, {FL_EX - FL_P2}", "s_lshl_b32 s73, s64, 11"], ["s_sub_u32 s89, s37, s73", "s_lshl_b32 s73, s64, 2"], ["s_add_u32 s89, s89, s73"],
                   ["s_movk_i32 s73, 0x30", "s_cmp_eq_u32 s5, 0", "s_cselect_b32 s73, s73, 0x1f0"]]
            sc.add(fa_, base[3], base[6])
            sc.add([f"v_and_b32 v{vT}, s73, v{vL16}", f"v_lshrrev_b32 v{vT}, 2, v{vT}", f"v_lshlrev_b32 v{vT2}, 5, v{vL16}",
                    [WaitTag(["st"], 0)] + flag_store("s91", 16, vT2, allw=True)], max(base[7], dp[-1] + 1), base[8])
        e(f"v_add_u32 v{vL}, s96, v{vL16}")
        e(sc.flat())
    k.begin(name="attn_first")
    e(f"s_add_u32 s93, s92, {16384 + 2*32768}"); e("s_mov_b32 s97, 32768"); e("s_mov_b32 s88, 0"); e("s_mov_b32 s36, s85"); e("s_mov_b32 s85, 0")
    e(f"s_add_u32 s94, s81, {3*SLOT}"); e(f"s_mov_b32 s96, {SLOT}")
    e("s_mov_b32 s4, 1"); e("s_mov_b32 s28, s60"); e("s_mov_b32 s29, s61"); e("s_mov_b32 s30, 0")
    attn_iter("first")
    k.begin(loop=6, name="attn_loop")
    e(".p2align 3"); e("KF_aloop:")
    if stamps and opt.get("fine"):
        e(["s_memtime s[98:99]", "s_add_u32 s100, s4, 55", "s_lshl_b32 s100, s100, 4", f"v_cmp_eq_u32 vcc, s100, v{vL16}",
           "s_waitcnt lgkmcnt(0)", "v_mov_b32 v47, s98", f"v_cndmask_b32 v{STV}, v{STV}, v47, vcc"])
    e("s_cmp_eq_u32 s4, 5"); e("s_cbranch_scc1 KF_sw"); e("KF_oolr:")
    attn_iter("loop")
    e("s_add_u32 s4, s4, 1"); e("s_cmp_lt_u32 s4, 7"); e("s_cbranch_scc1 KF_aloop")
    ool.append([
                "KF_sw:",
                "s_mov_b32 s20, s24", "s_mov_b32 s21, s25", "s_mov_b32 s22, s26"] + [f"v_mov_b32 v{vD[p]}, v{vDW[p]}" for p in range(9)] +
               [f"s_mov_b32 s97, {128*1152}", f"s_mul_i32 s93, s3, {32*1152}", "s_add_u32 s93, s93, s7", "s_mul_i32 s72, s65, 288", "s_add_u32 s93, s93, s72",
                "s_lshl_b32 s80, s6, 10", f"s_add_u32 s80, s80, {WS_ACT}", "s_mov_b32 s79, s80", "s_mov_b32 s88, 0", "s_mov_b32 s87, 1",
                "s_cmp_eq_u32 s5, 0", "s_cselect_b32 s85, s65, 0", "s_cselect_b32 s30, 0, s18", hfl] + (
               ["s_getpc_b64 s[72:73]", "KF_pc2:", "s_sub_u32 s8, s72, KF_pc2-KF_nock", "s_subb_u32 s9, s73, 0", "s_mov_b32 s10, KF_codeend-KF_nock",
                "s_lshr_b32 s72, s2, 3", "s_lshl_b32 s72, s72, 2", "s_add_u32 s72, s72, s3", "s_mul_i32 s72, s72, 384",
                "s_mov_b64 exec, 7", Inst(f"buffer_load_dword v0, v{vKO}, s[8:11], s72 offen", "tch"), "s_mov_b64 exec, -1"] if opt.get("cpf2", 1) else []) + [
                "s_branch KF_oolr"])
    k.begin(name="attn_last")
    e("s_cmp_eq_u32 s5, 0"); e("s_cbranch_scc1 KF_nock")
    c1, c2 = check(hfl, [FL])
    for x in ["s_waitcnt vmcnt(18)"] + c1 + c2: e(x if x.endswith(":") else C(x))
    e("KF_nock:")
    attn_iter("last")
    e(stamp(6))
    W = 216
    for u in range(4): e(f"v_add_f32 v{L+u}, v{L+u}, v{L+4+u}")
    xl = [xlane("v_add_f32", L + u, W + 4 + u) for u in range(4)]
    for i in range(6):
        for u in range(4): e(xl[u][i])
    e(f"v_add_f32 v{W+1}, v{L}, v{L+1}"); e(f"v_add_f32 v{W+2}, v{L+2}, v{L+3}"); e(f"v_add_f32 v{W}, v{W+1}, v{W+2}")
    e(f"v_cmp_nge_f32 vcc, {f32bits(2.0**30):#x}, v{W}")
    e("s_cbranch_vccnz KF_slow")
    e("KF_epi:")
    k.begin(name="oepi")
    ACC = 48; A2 = 192
    def acc(nt, u): return ACC + (nt * 4 + u) * 4
    e(f"v_add_u32 v{vL}, s96, v{vP5}")
    def mkstage(bf, zero=False):
        G = Frags(A2)
        for s in range(4):
            for nt in range(9):
                G.add(vL, s * 9216 + nt * 32, [f"{MF} {vr(acc(nt,u))}, @A, {bf(s,u)}, {'0' if zero and s == 0 else vr(acc(nt,u))}" for u in range(4)], 4608)
        return G
    P5 = {b: mkstage(lambda s, u, b=b: BF(b, s, u)) for b in range(2)}
    for f in range(LEAD): e(P5[0].fr[f][2])
    for u in range(4): e(f"v_rcp_f32 v{L+u}, v{L+u}")
    if opt.get("xo"): e("s_mov_b32 s83, 0x7fff0000")
    if opt.get("xb"): e("s_mov_b32 s80, 0x70000000")
    if opt.get("xd2"): e("s_mov_b32 s22, 0")
    OB = lambda i, u: 216 + ((i & 1) * 4 + u) * 4
    def oepi(i, u, t, packed=False):
        o = OB(i, u)
        out = [f"v_accvgpr_read_b32 v{t+r}, a{O(2*i + r//4, u) + r%4}" for r in range(8)]
        if packed: out += [f"v_pk_mul_f32 {vr(t+r,2)}, {vr(t+r,2)}, {vr(L + (u & 2),2)} op_sel:[0,{u&1}] op_sel_hi:[1,{u&1}]" for r in range(0, 8, 2)]
        else: out += [f"v_mul_f32 v{t+r}, v{t+r}, v{L+u}" for r in range(8)]
        out += [f"v_cvt_pk_bf16_f32 v{o+r}, v{t+2*r}, v{t+2*r+1}" for r in range(4)]
        return out + [Inst(f"buffer_store_dwordx4 {vr(o)}, v{vST[u]}, s[16:19], s83 offen offset:{i*1024} sc1", "st")]
    def common(sc):
        sc.put(4 * (36 - LEAD) - 1, f"v_add_u32 v{vL}, s96, v{vP5}")
        sc.put(6, [WaitTag(["dma"], 9), "s_barrier"])
    e(stamp(7))
    e("s_mov_b32 s4, 0"); e("s_mov_b32 s101, s5")
    e("s_cmp_eq_u32 s5, 0"); e("s_cbranch_scc1 KF_spre")
    def BF2(s, u): return ar((s * 4 + u) * 4)
    lastb = [["s_add_u32 s72, s5, 7", "s_xor_b32 s72, s72, s85", "s_lshl_b32 s72, s72, 12", "s_add_u32 s82, s72, s80"]] + \
            [Inst(f"buffer_load_dwordx4 {BF2(s, u)}, v{vST[u]}, s[28:31], s82 offen offset:{s*1024} sc1", "b") for s in range(4) for u in range(4)]
    k.begin(name="g_pre")
    B2nd = lambda s, u: BF(s >> 1, 2 + (s & 1), u)
    NGP = opt.get("ngp", 2)
    maps = [B1st, B2nd, lambda s, u: BF(0, s, u), lambda s, u: BF(1, s, u), lambda s, u: BF(0, s, u)]
    G = mkstage(B1st, zero=True)
    for q in range(1, NGP):
        G1 = mkstage(maps[q]); off = len(G.mf); G.fr += [(g0 + off, n, r, d) for (g0, n, r, d) in G1.fr]; G.mf += G1.mf
    sc = G.sched(wrap=True)
    for q in range(NGP):
        o = 144 * q
        sc.put(o + 4 * (36 - LEAD) - 1, f"v_add_u32 v{vL}, s96, v{vP5}")
        sc.put(o + 6, [WaitTag(["dma"], 9), "s_barrier"])
        sc.add(adv_rd, o + 7, o + 12, spread=False)
    for q in range(4 * NGP): sc.add([WaitRegs(*[maps[(q + 1) // 4]((q + 1) % 4, u) for u in range(4)])], 36 * q + 32, 36 * q + 36, spread=False)
    OEG = opt.get("oeg", 200); B2E = opt.get("b2e", 90)
    sc.add(adv_b + [bload(B2nd(s, u), s, u) for s in range(4) for u in range(4)] + adv_b + [["s_add_u32 s86, s79, 4096"]], 0, B2E)
    def bl2(b, s): return [Inst(bload(BF(b, s, u), s, u).text.replace("s79", "s86" if b else "s79"), "b") for u in range(4)]
    sc.add(bl2(0, 0) + bl2(0, 1), 100, 144)
    sc.add(bl2(1, 0) + bl2(1, 1), 146, 190)
    sc.add(bl2(0, 2), 190, 216); sc.add(bl2(0, 3), 216, 250); sc.add(bl2(1, 2) + adv_b, 252, 284)
    for q in range(2, NGP):
        o = 144 * q; bq = q & 1
        for s in range(3): sc.add([bload(BF(bq, s, u), s, u) for u in range(4)], o + 36 * (s + 1), o + 36 * (s + 1) + 24)
        sc.add([bload(BF(bq ^ 1, 3, u), 3, u) for u in range(4)] + adv_b, o + 2, o + 34)
    for q in range(NGP): sc.add(ring_dma(), 144 * q + 12, 144 * q + 140)
    op = sc.add(flat([oepi(i, u, 248) for i in range(4) for u in range(4)]), opt.get("oes", 0), OEG)
    sc.add([[WaitTag(["st"], 0)] + flag_store("s90", 4, vT2, allw=True)], 144 * NGP - 6, 144 * NGP, spread=False)
    e(sc.flat())
    e(stamp(8))
    if NGP == 4: e("s_mov_b32 s4, 1")
    e("s_branch KF_loop2")
    k.begin(name="s_pre")
    e("KF_spre:")
    for u in range(4): e(oepi(0, u, 248 if u & 1 else 40, packed=True))
    G = mkstage(lambda s, u: vr(OB(s, u)), zero=True); sc = G.sched(wrap=True); common(sc)
    sc.add(adv_rd, 7, 12, spread=False)
    for i in range(1, 4): sc.add(flat([oepi(i, u, 248) for u in range(4)]), 36 * (i - 1), 36 * i - 1)
    sc.add(ring_dma(), 108, 143)
    e(sc.flat())
    e(mst(52))
    k.wait_tags("st")
    e(mst(53))
    e(flag_store("s90", 4, vT2, allw=True))
    e("s_mov_b32 s30, s18")
    e(adv_b)
    e(spin(hfl, [FL]))
    e(mst(54))
    for b in (0, 1):
        for s in range(4 - b):
            for u in range(4): e(bload(BF(b, s, u), s, u))
        if b == 0: e(adv_b)
    e(WaitRegs(*[BF(0, 0, u) for u in range(4)]))
    e("s_mov_b32 s4, 0")
    e(stamp(8))

    def stage2(b):
        G = P5[b]; sc = G.sched(wrap=True); common(sc)
        for s in range(4):
            nb, ns = (b, s + 1) if s < 3 else (b ^ 1, 0)
            sc.add([WaitRegs(*[BF(nb, ns, u) for u in range(4)])], 36 * s + 32, 36 * s + 36, spread=False)
        sc.add(adv_rd, 7, 12, spread=False)
        for s in range(3): sc.add([bload(BF(b, s, u), s, u) for u in range(4)], 36 * (s + 1), 36 * (s + 1) + 24)
        sc.add([bload(BF(b ^ 1, 3, u), 3, u) for u in range(4)] + adv_b, 2, 34)
        sc.add(ring_dma(), 12, 140)
        hk = [_mk(x) for x in ("s_cmp_eq_u32 s101, 0", f"s_cbranch_scc1 KF_hk{b}", f"KF_hk{b}r:")]
        sc.add([hk], (106, 30)[b], (112, 35)[b], spread=False)
        fl = sc.flat(); i = fl.index(hk[1])
        cnt[b] = sum(1 for x in (fl[i:] if b == 0 else fl[:i]) if x.kind in ("vload", "vstore", "dma"))
        assert b == 0 or not any(x.kind == "vload" and BF(1, 0, 0) in x.text for x in fl[:i])
        e(fl)
    cnt = {}
    k.begin(loop=2, name="L0")
    e(".p2align 3"); e("KF_loop2:")
    stage2(0)
    k.begin(loop=2, name="L1")
    stage2(1)
    e("s_add_u32 s4, s4, 1"); e("s_cmp_lt_u32 s4, 2"); e("s_cbranch_scc1 KF_loop2")
    hfl2 = hfl.replace("offen", "offen offset:16")
    ool.append(["KF_hk0:", hfl2, "s_branch KF_hk0r"])
    ool.append(["KF_hk1:", "s_mov_b32 s101, 1", f"s_waitcnt vmcnt({cnt[0] + cnt[1]})"] + cmpf([FL]) +
               ["s_nop 0", "s_cbranch_vccz KF_hk1r"] + spin(hfl2, [FL], "KF_hk1r"))

    k.begin(name="final")
    e(stamp(9))
    NPRE = opt.get("npre", 2)
    nts = [8, 0, 1, 2, 3, 4, 5, 6, 7]
    order = [(0, s, nt) for s in range(NPRE) for nt in range(9)]
    order += [(b, s, nt) for nt in nts for b in range(3) for s in range(4) if not (b == 0 and s < NPRE)]
    G = Frags(A2); done = {}
    vLb = [vL, vT, vB + 2]
    for (b, s, nt) in order:
        bf = (lambda u: BF(b, s, u)) if b < 2 else (lambda u: BF2(s, u))
        G.add(vLb[b], s * 9216 + nt * 32, [f"{MF} {vr(acc(nt,u))}, @A, {bf(u)}, {vr(acc(nt,u))}" for u in range(4)], 4608)
        done[nt] = len(G.mf)
    sc = G.sched(); NG = len(G.mf); G0 = 36 * NPRE
    sc.put(G0 - 26, [WaitTag(["dma"], 0), "s_barrier"])
    sc.add([bload(BF(1, 3, u), 3, u) for u in range(4)] + [Inst(x.text.replace("s82", "s86"), "b") if isinstance(x, Inst) else [y.replace("s82", "s86") for y in x] for x in lastb], 2, 50)
    gq = G0 + (8 - NPRE) * 4
    sc.add([WaitRegs(*[BF2(s, u) for s in range(4) for u in range(4)])], gq - 4, gq, spread=False)
    sc.add(adv_rd + [f"v_add_u32 v{vLb[1]}, s96, v{vP5}"] + adv_rd + [f"v_add_u32 v{vLb[2]}, s96, v{vP5}"], 7, 30, spread=False)
    for s in range(1, NPRE): sc.add([WaitRegs(*[BF(0, s, u) for u in range(4)])], 36 * s - 4, 36 * s, spread=False)
    sc.add([WaitRegs(*[BF(1, 3, u) for u in range(4)])], G0 - 4, G0, spread=False)
    SEL = 26; XRr = 36; vX = 25; vL8 = 46
    ad = [
          ["s_and_b32 s82, s64, 3", "s_mul_i32 s73, s82, 5120"], ["s_add_u32 s78, s78, s73", "s_lshl_b32 s73, s5, 10"], ["s_add_u32 s85, s78, s73"],
          ["s_lshl_b32 s73, s71, 1", "s_xor_b32 s82, s82, s73"], ["s_add_u32 s82, s82, s69", f"s_mul_i32 s83, s82, {16*1152}"],
          ["s_mul_i32 s73, s65, 288", "s_add_u32 s87, s83, s73"], ["s_lshl_b32 s73, s5, 6", "s_add_u32 s83, s87, s73"],
          ["s_mov_b32 s12, s56", "s_mov_b32 s13, s57"], [f"s_mov_b32 s14, {2048*1152}"],
          [f"s_mov_b32 s88, {f32bits(-math.log2(math.e)):#x}", "s_mov_b32 s89, 0xffff0000"]]
    sc.add(ad, 50, G0 + 30)
    va = [f"v_bfe_u32 v{vX}, v{vL16}, 4, 4", f"v_lshrrev_b32 v{vT2}, 8, v{vL16}", f"v_bfe_u32 v{vL8}, v{vL16}, 6, 2",
          [f"v_cmp_eq_u32 vcc, v{vL8}, v{vT2}", f"v_mov_b32 v{SEL}, 0x3f80", f"v_and_b32 v{vL8}, 16, v{vL16}", f"v_lshlrev_b32 v{SEL}, v{vL8}, v{SEL}",
           f"v_cndmask_b32 v{SEL}, 0, v{SEL}, vcc"],
          [f"v_and_b32 v{vL8}, 32, v{vL16}", f"v_cmp_eq_u32 vcc, 0, v{vL8}", "s_nop 1", f"v_cndmask_b32 v{SEL+2}, 0, v{SEL}, vcc", f"v_cndmask_b32 v{SEL+3}, v{SEL}, 0, vcc"],
          f"v_mov_b32 v{SEL}, 0", f"v_mov_b32 v{SEL+1}, 0", f"v_mov_b32 v{SEL+4}, 0", f"v_mov_b32 v{SEL+5}, 0",
          f"v_mov_b32 v{SEL+6}, v{SEL+2}", f"v_mov_b32 v{SEL+7}, v{SEL+3}", f"v_mov_b32 v{SEL+8}, v{SEL+2}", f"v_mov_b32 v{SEL+9}, v{SEL+3}",
          f"v_mul_u32_u24 v{vX}, 1152, v{vX}", f"v_lshl_add_u32 v{vX}, v{vT2}, 3, v{vX}",
          f"v_lshrrev_b32 v{vL8}, 1, v{vL16}", f"v_add_u32 v{vL8}, 4096, v{vL8}", f"v_lshlrev_b32 v{vT2}, 7, v{vL16}",
          f"v_bfe_u32 v{vB}, v{vL16}, 4, 3", f"v_lshlrev_b32 v{vB}, 2, v{vB}"]
    sc.add(va, 8, G0 + 30)
    xo = [(0, "s83", 0), (1, "s83", 32), (2, "s83", 128), (3, "s83", 160), (4, "s87", 256)]
    sc.add([f"buffer_load_dwordx2 {vr(XRr+2*t,2)}, v{vX}, s[32:35], {so} offen offset:{o}" for t, so, o in xo], G0 + 32, G0 + 70)
    tail = []; per = done[0] - done[8]
    for c in (4, 0, 1, 2, 3):
        pkx = []
        for u in range(4):
            a = acc(2 * c, u); tg = "p1" if c in (4, 0, 1) else "p2"
            pkx += [f"v_cvt_pk_bf16_f32 v{a}, v{a}, v{a+1}", f"v_cvt_pk_bf16_f32 v{a+1}, v{a+2}, v{a+3}"]
            if c < 4:
                b = acc(2 * c + 1, u)
                pkx += [f"v_cvt_pk_bf16_f32 v{a+2}, v{b}, v{b+1}", f"v_cvt_pk_bf16_f32 v{a+3}, v{b+2}, v{b+3}",
                        Inst(f"buffer_store_dwordx4 {vr(a)}, v{vL16}, s[16:19], s{74+u} offen offset:{c*1024} sc1", tg)]
            else:
                pkx += [Inst(f"buffer_store_dwordx2 {vr(a,2)}, v{vL8}, s[16:19], s{74+u} offen sc1", tg)]
        d = done[8] if c == 4 else done[2 * c + 1]
        if c != 3: sc.add(pkx, d + 4, d + 4 + (per if c == 1 else 2 * per - 8))
        else: tail = pkx
    fl1 = f"buffer_load_dword v{vB+1}, v{vB}, s[16:19], s37 offen sc1"
    sc.add([fl1], G0 + 70, G0 + 80)
    c1, c2 = check(fl1, [vB + 1])
    sc.add([c1 + c2], done[3], done[3] + 3)
    R1 = 48; RE = 80; R2 = 216
    order8 = [4, 5, 6, 7, 0, 1, 2, 3]
    def lds1(): return flat([[[f"s_add_u32 s86, s85, {src*PR}"], f"buffer_load_dwordx4 {vr(R1 + src*4)}, v{vL16}, s[16:19], s86 offen sc1"] for src in order8]) + \
                       flat([[[f"s_add_u32 s86, s78, {src*PR}"], f"buffer_load_dwordx2 {vr(RE + src*2, 2)}, v{vL8}, s[28:31], s86 offen sc1"] for src in order8])
    def lds2(): return flat([[[f"s_add_u32 s86, s85, {src*PR}"], f"buffer_load_dwordx4 {vr(R2 + src*4)}, v{vL16}, s[16:19], s86 offen offset:2048 sc1"] for src in order8])
    def sent(base, n):
        t = 128; o = [f"v_max3_u32 v{t}, v{base}, v{base+1}, v{base+2}", f"v_max3_u32 v{t+1}, v{base+3}, v{base+4}, v{base+5}"]
        for i in range(6, n, 2): o.append(f"v_max3_u32 v{t + (i//2) % 2}, v{t + (i//2) % 2}, v{base+i}, v{base+i+1}")
        return o + [f"v_max_u32 v{t}, v{t}, v{t+1}", f"v_cmp_eq_u32 vcc, -1, v{t}"]
    def poll(name, ld, base, n):
        ool.append([f"{name}x:", "s_add_u32 s4, s4, 1", f"s_cmp_ge_u32 s4, {SPIN_MAX}", f"s_cbranch_scc1 {name}d", f"s_sleep {opt.get('slp', 2)}"] + ld + ["s_waitcnt vmcnt(0)", f"s_branch {name}"])
        return [f"{name}:"] + sent(base, n) + ["s_nop 0", f"s_cbranch_vccnz {name}x", f"{name}d:"]
    sc.add([["s_cmp_eq_u32 s5, 0", "s_cselect_b32 s30, 0, s18", "s_mov_b32 s4, 0"]] + lds1(), done[6] - opt.get("r1e", 8), NG - 4)
    e(sc.flat())
    e(tail)
    e(stamp(10))
    Gs = lambda t: 96 + 4 * t
    Ss = lambda t: 108 + 4 * t
    t0 = 120; g1 = 124
    def round2(a):
        return [f"v_cvt_pk_bf16_f32 v{t0}, v{a}, v{a+1}", f"v_cvt_pk_bf16_f32 v{t0+1}, v{a+2}, v{a+3}",
                f"v_lshlrev_b32 v{a}, 16, v{t0}", f"v_and_b32 v{a+1}, s89, v{t0}", f"v_lshlrev_b32 v{a+2}, 16, v{t0+1}", f"v_and_b32 v{a+3}, s89, v{t0+1}"]
    def gate(t):
        g = Gs(t)
        return round2(g) + [f"v_mul_f32 v{g1+r}, s88, v{g+r}" for r in range(4)] + [f"v_exp_f32 v{g1+r}, v{g1+r}" for r in range(4)] + \
               [f"v_add_f32 v{g1+r}, 1.0, v{g1+r}" for r in range(4)] + [f"v_rcp_f32 v{g1+r}, v{g1+r}" for r in range(4)] + \
               [pk("v_pk_mul_f32", g + r, g + r, g1 + r) for r in (0, 2)] + round2(g)
    def fin(t, x, so, o):
        g = Gs(t); s0 = Ss(t)
        return round2(s0) + [pk("v_pk_mul_f32", g + r, g + r, s0 + r) for r in (0, 2)] + round2(g) + \
               [f"v_lshlrev_b32 v{g1}, 16, v{x}", f"v_and_b32 v{g1+1}, s89, v{x}", f"v_lshlrev_b32 v{g1+2}, 16, v{x+1}", f"v_and_b32 v{g1+3}, s89, v{x+1}"] + \
               [pk("v_pk_add_f32", g + r, g + r, g1 + r) for r in (0, 2)] + \
               [f"v_cvt_pk_bf16_f32 v{s0}, v{g}, v{g+1}", f"v_cvt_pk_bf16_f32 v{s0+1}, v{g+2}, v{g+3}",
                f"buffer_store_dwordx2 {vr(s0,2)}, v{vX}, s[12:15], {so} offen offset:{o}"]
    def redu(R):
        return [f"{MF} {vr((Gs if src >= 4 else Ss)(t))}, {vr(SEL + (0 if t else 2))}, {vr(R + src*4)}, {'0' if src in (0, 4) else vr((Gs if src >= 4 else Ss)(t))}"
                for src in order8 for t in range(2)]
    e(poll("KF_q1", lds1(), R1, 48))
    e(mst(46))
    e(redu(R1))
    e([f"{MF} {vr((Gs if q >= 2 else Ss)(2))}, {vr(SEL + 6)}, {vr(RE + q*4)}, {'0' if q % 2 == 0 else vr((Gs if q >= 2 else Ss)(2))}" for q in (2, 3, 0, 1)])
    e(gate(0))
    e(lds2())
    e(gate(1))
    for t in range(2): e(fin(t, XRr + 2 * t, "s83", 32 * t))
    e("s_cmp_eq_u32 s5, 0"); e("s_cbranch_scc1 KF_r2")
    for x in gate(2) + fin(2, XRr + 8, "s87", 256): e(C(x))
    e("KF_r2:")
    e(stamp(11))
    e(poll("KF_q2", lds2(), R2, 32))
    e(mst(50))
    e(redu(R2))
    for t in range(2): e(gate(t))
    for t in range(2): e(fin(t, XRr + 4 + 2 * t, "s83", 128 + 32 * t))
    k.begin(name="fin")
    e("KF_fin:")
    if stamps:
        e(stamp(12)); e("s_waitcnt vmcnt(0)"); e(stamp(13))
        e("s_lshl_b32 s72, s2, 2"); e("s_add_u32 s72, s72, s3"); e("s_lshl_b32 s72, s72, 8"); e(f"s_add_u32 s72, s72, {200<<20}")
        e(f"v_lshrrev_b32 v2, 2, v{vL16}")
        e(f"buffer_store_dword v{STV}, v2, s[16:19], s72 offen")
        if opt.get("dbg"):
            e(f"s_cmp_lg_u32 s2, {opt['dbg']}"); e("s_cbranch_scc1 KF_end"); e("s_cmp_lg_u32 s3, 1"); e("s_cbranch_scc1 KF_end")
            e(srd(20, 58, 64)); e(f"v_readlane_b32 s72, v{STV}, 32"); e("v_subrev_u32 v2, 124, v2"); e(f"v_subrev_u32 v{STV}, s72, v{STV}")
            e("s_mov_b32 exec_lo, 0"); e(f"buffer_store_dword v{STV}, v2, s[20:23], 0 offen")
    e("KF_end:")
    e("s_endpgm")

    for i, blk in enumerate(ool):
        k.begin(name=f"ool{i}")
        e(blk); e("s_endpgm")
    Mx = W + 8; AL = W + 12; TT = W + 16
    k.begin(name="slow_pre")
    e("KF_codeend:")
    e("KF_slow:")
    e("s_waitcnt vmcnt(0) lgkmcnt(0)"); e("s_nop 15")
    for i in range(128): e(f"v_accvgpr_write_b32 a{i}, 0")
    for u in range(4): e(f"v_mov_b32 v{L+u}, 0"); e(f"v_mov_b32 v{Mx+u}, 0xff7fffff")
    e("s_mov_b32 s72, 0"); e("s_mov_b32 s68, s82")
    k.begin(loop=16, name="slow_loop")
    e("KF_sloop:")
    for q in range(4):
        for f in range(4):
            ff = q * 4 + f
            e(f"buffer_load_dwordx4 {KF(1, ff) if ff < 8 else VF(1, ff - 8)}, v{vL16}, s[16:19], s68 offen offset:{f*1024} sc1")
        e("s_add_u32 s68, s68, 4096")
    for u in range(4):
        e(qk(u, lambda f: KF(1, f), zero=True))
        s0 = S(u); m = W + u
        e(f"v_max3_f32 v{m}, v{s0}, v{s0+1}, v{s0+2}"); e(f"v_max3_f32 v{m}, v{m}, v{s0+3}, v{s0+4}")
        e(f"v_max3_f32 v{m}, v{m}, v{s0+5}, v{s0+6}"); e(f"v_max3_f32 v{m}, v{m}, v{s0+7}, v{Mx+u}")
        e(xlane("v_max_f32", m, W + 4))
        e(f"v_sub_f32 v{AL}, v{Mx+u}, v{m}"); e(f"v_exp_f32 v{AL}, v{AL}"); e(f"v_mov_b32 v{Mx+u}, v{m}")
        e(f"v_mul_f32 v{L+u}, v{L+u}, v{AL}")
        for i in range(8):
            e(f"v_sub_f32 v{s0+i}, v{s0+i}, v{m}"); e(f"v_exp_f32 v{s0+i}, v{s0+i}")
        for i in range(8): e(f"v_add_f32 v{L+u}, v{L+u}, v{s0+i}")
        for i in range(4): e(f"v_cvt_pk_bf16_f32 v{P+i}, v{s0+2*i}, v{s0+2*i+1}")
        for dt in range(8):
            for r in range(4): e(f"v_accvgpr_read_b32 v{TT+r}, a{O(dt,u)+r}")
            for r in range(4): e(f"v_mul_f32 v{TT+r}, v{TT+r}, v{AL}")
            for r in range(4): e(f"v_accvgpr_write_b32 a{O(dt,u)+r}, v{TT+r}")
        e(pv(u, 1, 0))
    e("s_add_u32 s72, s72, 1"); e("s_cmp_lt_u32 s72, 16"); e("s_cbranch_scc1 KF_sloop")
    k.begin(name="slow_post")
    e("s_nop 15")
    for u in range(4): e(xlane("v_add_f32", L + u, W + 4))
    e("s_nop 15")
    e("s_branch KF_epi")
    pre = ["p0a", "gemm", "attn_first"]
    k.paths = []
    for na in (1, 2, 4):
        for nl in (1, 2):
            mid = pre + ["attn_loop"] * na + ["attn_last", "oepi"]
            if na > 1 and nl > 1 and (na, nl) != (4, 2): continue
            k.paths.append(mid + ["g_pre"] + ["L0", "L1"] * nl + ["final", "fin"])
            k.paths.append(mid + ["s_pre"] + ["L0", "L1"] * nl + ["final", "fin"])
    return kstart(name) + k.finish(), kdesc(name, 512, 256), (name, 256, 256, 163840)
```

```python
from lib import *
from lib import _mk
from common import *
import math

SLOT = 36864
SPARE = 4 * SLOT
MF = "v_mfma_f32_16x16x32_bf16"
QSCALE = math.log2(math.e) / math.sqrt(128.0)
SPIN_MAX = 100000
KNAME = "recurrent_scan__sliding_block_cached__dense_activation_relu__prompt_kernel"

def flat(l): return [x for y in l for x in y]

def gen_kf(name=KNAME, stamps=False, opt=None):
    opt = opt or {}
    k = Kernel(name)
    k.cur.name = 'p0a'
    e = k.e
    vL16, vDQ, vD1, vS0, vP5, vZ, vTOK, vL, vT = 1, 2, 3, 4, 5, 6, 7, 8, 9
    vST = [10, 11, 12, 13]
    vT2 = 14; STV = 15
    XV = 16; QA = 48; AF = 176; NF = 6; LEAD = 4
    FA = 200; T = 232; vB = 248
    vXN = [232, 233, 234, 235]; vKO, vVO = 254, 255
    B1, B3, B5, B7 = 64, 96, 128, 160
    def X(u, s):
        h, idx = u >> 1, s * 2 + (u & 1)
        return ar(h * 128 + idx * 4) if idx < 32 else vr(XV + h * 16 + (idx - 32) * 4)
    def qa(nt, u): return QA + (nt * 4 + u) * 4
    def Qf(u, s): return vr(qa(2 * s, u))
    def fa(a, u): return FA + a * 16 + u * 4
    def stamp(i):
        if not stamps: return []
        return ["s_memtime s[98:99]", "s_waitcnt lgkmcnt(0)", f"v_writelane_b32 v{STV}, s98, {i}",
                "s_memrealtime s[98:99]", "s_waitcnt lgkmcnt(0)", f"v_writelane_b32 v{STV}, s98, {32+i}"]
    def mst(i):
        if not (stamps and opt.get("fine")): return ["s_nop 0"] if False else []
        return ["s_memtime s[98:99]", "s_waitcnt lgkmcnt(0)", "s_nop 0", f"v_writelane_b32 v{STV}, s98, {i}"]
    def C(t): return Inst(t, "cond")
    uid = [0]
    def lab(p): uid[0] += 1; return f"KF_{p}{uid[0]}"
    def flag_store(sreg, nl, voff, allw=False):
        lb = lab("nf")
        m = ["s_mov_b64 exec, %#x" % ((1 << nl) - 1)] if nl < 32 else ["s_mov_b32 exec_hi, 0"]
        body = m + [f"buffer_store_dword v{vTOK}, v{voff}, s[16:19], {sreg} offen sc1", "s_mov_b64 exec, -1"]
        if allw: return body
        return ["s_cmp_lg_u32 s3, 0", f"s_cbranch_scc1 {lb}"] + [C(x) for x in body] + [f"{lb}:"]
    ool = []
    def spin(load, regs, ret=None):
        lb = lab("sp"); dn = ret or lab("sd")
        out = ["s_mov_b32 s73, 0", f"{lb}:", load, "s_waitcnt vmcnt(0)"] + cmpf(regs)
        out += ["s_add_u32 s73, s73, 1", f"s_cmp_ge_u32 s73, {SPIN_MAX}", f"s_cbranch_scc1 {dn}", f"s_cbranch_vccz {dn}", "s_sleep 2", f"s_branch {lb}"]
        if not ret: out.append(f"{dn}:")
        return out
    def cmpf(regs):
        out = []
        if len(regs) > 1:
            out += [f"v_xor_b32 v{r}, v{r}, v{vTOK}" for r in regs]
            out += [f"v_or_b32 v{regs[0]}, v{regs[0]}, v{r}" for r in regs[1:]]
            out += [f"v_cmp_ne_u32 vcc, 0, v{regs[0]}"]
        else:
            out += [f"v_cmp_ne_u32 vcc, v{regs[0]}, v{vTOK}"]
        return out
    def check(load, regs):
        a, b = lab("ck"), lab("cr")
        ool.append([f"{a}:"] + spin(load, regs, b))
        return cmpf(regs), ["s_nop 0", f"s_cbranch_vccnz {a}", f"{b}:"]
    def xlane(op, r, t, both=True):
        o = [f"v_mov_b32 v{t}, v{r}", f"v_permlane32_swap_b32 v{t}, v{r}", f"{op} v{r}, v{r}, v{t}"] if both else []
        return o + [f"v_mov_b32 v{t}, v{r}", f"v_permlane16_swap_b32 v{t}, v{r}", f"{op} v{r}, v{r}, v{t}"]
    def ident(ID, t0, t1):
        o = [f"v_lshrrev_b32 v{t0}, 4, v{vL16}", f"v_and_b32 v{t1}, 15, v{t0}", f"v_lshrrev_b32 v{t0}, 4, v{t0}", f"v_lshlrev_b32 v{t0}, 3, v{t0}",
             f"v_sub_u32 v{t0}, v{t1}, v{t0}", f"v_and_b32 v{t1}, 1, v{t0}", f"v_lshlrev_b32 v{t1}, 4, v{t1}", f"v_mov_b32 v{ID}, 0x3f80",
             f"v_lshlrev_b32 v{t1}, v{t1}, v{ID}", f"v_ashrrev_i32 v{t0}, 1, v{t0}"]
        for h in range(2):
            for r in range(4):
                o.append([f"v_cmp_eq_i32 vcc, {r - 8*h}, v{t0}", "s_nop 1", f"v_cndmask_b32 v{ID+4*h+r}, 0, v{t1}, vcc"])
        return o
    def tr_mf(D, A, ID): return [f"{MF} {vr(D + (h*2+r)*4)}, {vr(A + 4*r)}, {vr(ID + 4*h)}, 0" for h in range(2) for r in range(2)]
    def tr_cvt(o, D, h): return [f"v_cvt_pk_bf16_f32 v{o+2*r+q}, v{D+(h*2+r)*4+2*q}, v{D+(h*2+r)*4+2*q+1}" for r in range(2) for q in range(2)]

    e("s_cmp_ge_u32 s2, 256"); e("s_cbranch_scc1 KF_end")
    if opt.get("scr"):
        e("s_and_b32 s4, s2, 7"); e("s_bfe_u32 s5, s2, 0x30003"); e("s_andn2_b32 s2, s2, 63"); e("s_lshl_b32 s4, s4, 3"); e("s_or_b32 s2, s2, s4"); e("s_or_b32 s2, s2, s5")
    e("s_load_dwordx16 s[40:55], s[0:1], 0")
    e("s_load_dwordx4 s[56:59], s[0:1], 64")
    e("s_load_dwordx2 s[60:61], s[0:1], 80")
    e("s_memrealtime s[38:39]")
    if opt.get("cpf0", 8):
        e("s_getpc_b64 s[96:97]"); e(f"s_mov_b32 s98, {opt.get('cpf0', 8) * 1024}"); e("s_mov_b32 s99, 0x20000")
        e("v_lshlrev_b32 v27, 7, v0")
        e("buffer_load_dword v31, v27, s[96:99], 0 offen", "tch")
    e("v_lshrrev_b32 v20, 6, v0")
    e("v_and_b32 v21, 63, v0")
    e("v_readfirstlane_b32 s3, v20")
    e("s_and_b32 s64, s2, 7"); e("s_bfe_u32 s65, s2, 0x20003")
    e("s_and_b32 s62, s2, 3"); e("s_lshl_b32 s62, s62, 3"); e("s_and_b32 s63, s2, 4"); e("s_add_u32 s62, s62, s63"); e("s_add_u32 s62, s62, s65")
    e("s_lshr_b32 s63, s2, 5")
    e("s_lshl_b32 s66, s63, 5"); e("s_add_u32 s66, s66, s62")
    e("v_lshrrev_b32 v22, 5, v0"); e("v_mul_u32_u24 v22, 1152, v22")
    e("v_and_b32 v23, 31, v21"); e("v_lshl_add_u32 v22, v23, 4, v22")
    e("s_mul_i32 s67, s66, 9216")
    for r in range(56, 60): e(f"v_mov_b32 v{r}, 0")
    e(f"v_mov_b32 v{vZ}, 0")
    e(f"v_lshlrev_b32 v{vL16}, 4, v21")
    e("s_waitcnt lgkmcnt(0)")
    e(srd(32, 40, 2048 * 1152))
    e(f"buffer_load_dwordx4 {vr(48)}, v22, s[32:35], s67 offen")
    e(f"buffer_load_dwordx4 {vr(52)}, v22, s[32:35], s67 offen offset:512")
    e("s_mov_b32 exec_lo, 0xff"); e("s_mov_b32 exec_hi, 0xff")
    e(f"buffer_load_dwordx4 {vr(56)}, v22, s[32:35], s67 offen offset:1024")
    e("s_mov_b64 exec, -1")
    e(stamp(0))
    e(srd(8, 46, 576 * 8192)); e(srd(20, 58, 256))
    e("s_or_b32 s77, s2, s3"); e("s_cbranch_scc1 KF_w0")
    e(C("s_or_b32 s38, s38, 1")); e(C("v_mov_b32 v28, s38")); e(C("s_mov_b64 exec, 1"))
    e(C(f"buffer_store_dword v28, v{vZ}, s[20:23], 0 offen sc1")); e(C("s_mov_b64 exec, -1"))
    e("KF_w0:")
    e(srd(16, 60, WS_SIZE)); e(srd(12, 52, 576 * 9216)); e(srd(24, 42, 8388608)); e(srd(28, 44, 8388608))
    e("v_lshrrev_b32 v28, 1, v21"); e("v_and_b32 v29, 1, v21"); e("v_lshlrev_b32 v29, 7, v29")
    e("v_lshl_add_u32 v34, v28, 13, v29"); e("v_mul_u32_u24 v239, 9216, v21")
    e("s_sub_u32 s77, s3, 1"); e("s_lshl_b32 s77, s77, 3"); e("s_add_u32 s77, s77, s63"); e(f"s_mul_i32 s4, s77, {24*8192}"); e("s_lshl_b32 s5, s63, 2"); e("s_add_u32 s5, s5, s3"); e(f"s_mul_i32 s5, s5, {18*9216}")
    e("s_lshr_b32 s70, s62, 1"); e("s_and_b32 s71, s62, 1")
    e("s_lshl_b32 s6, s70, 6"); e("s_add_u32 s6, s6, s5"); e("s_add_u32 s6, s6, 8192")
    e("s_lshl_b32 s79, s62, 8"); e("s_add_u32 s4, s4, s79"); e("s_add_u32 s5, s5, s79")
    wq_touch = ["s_mov_b32 exec_hi, 0xffff", "buffer_load_dword v31, v34, s[8:11], s4 offen", "s_mov_b64 exec, -1"]
    def w1_touch(i):
        return [Inst("s_mov_b64 exec, 0x3ffff"), Inst(f"buffer_load_dword v0, v239, s[12:15], {('s5','s5','s6')[i]} offen offset:{(0,128,0)[i]}", "tch"), Inst("s_mov_b64 exec, -1")]
    def not_w0(body, maxw=3):
        lb = lab("nw")
        return ["s_sub_u32 s72, s3, 1", f"s_cmp_ge_u32 s72, {maxw}", f"s_cbranch_scc1 {lb}"] + [C(x) for x in body] + [f"{lb}:"]
    ORD = opt.get("ord", 1)
    CPF = opt.get("codepf", 2)
    code_touch = ["s_getpc_b64 s[68:69]", "KF_pc:", f"s_sub_u32 s96, s68, KF_pc-{name}", "s_subb_u32 s97, s69, 0", f"s_mov_b32 s98, KF_codeend-{name}", "s_mov_b32 s99, 0x20000",
                  "s_lshr_b32 s94, s2, 3", "s_lshl_b32 s94, s94, 2", "s_add_u32 s94, s94, s3", "s_mul_i32 s94, s94, 640",
                  "v_lshlrev_b32 v27, 7, v21", "s_mov_b64 exec, 31", Inst("buffer_load_dword v31, v27, s[96:99], s94 offen", "tch"), "s_mov_b64 exec, -1"]
    if CPF == 1: e(code_touch)
    e("v_and_b32 v24, 15, v21"); e("v_lshrrev_b32 v25, 4, v21")
    e(f"v_lshlrev_b32 v{vKO}, 8, v24"); e(f"v_lshl_add_u32 v{vVO}, v25, 4, v{vKO}"); e(f"v_lshl_add_u32 v{vKO}, v25, 3, v{vKO}")
    e("v_lshrrev_b32 v28, 5, v21"); e("v_lshlrev_b32 v29, 1, v28"); e("v_and_b32 v30, 3, v21"); e("v_xor_b32 v29, v29, v30")
    e("v_lshlrev_b32 v29, 4, v29"); e("v_lshrrev_b32 v32, 2, v21")
    e(f"v_lshl_add_u32 v{vDQ}, v32, 13, v29")
    e(f"v_mul_u32_u24 v{vD1}, 9216, v32"); e(f"v_add_u32 v{vD1}, v{vD1}, v29")
    e("v_bfe_u32 v32, v21, 2, 2"); e("v_lshlrev_b32 v32, 6, v32"); e("v_lshl_add_u32 v32, v30, 3, v32")
    e("v_and_b32 v26, 1, v25"); e("v_lshl_add_u32 v32, v26, 5, v32")
    e(f"v_lshl_add_u32 v{vS0}, v25, 9, v32")
    e("v_bfe_u32 v33, v21, 2, 2"); e(f"v_lshlrev_b32 v{vP5}, 10, v25"); e(f"v_lshl_add_u32 v{vP5}, v33, 7, v{vP5}"); e(f"v_lshl_add_u32 v{vP5}, v30, 3, v{vP5}")
    e("v_lshrrev_b32 v33, 1, v33"); e(f"v_lshl_add_u32 v{vP5}, v33, 5, v{vP5}"); e(f"v_lshl_add_u32 v{vP5}, v26, 6, v{vP5}")
    e("v_lshrrev_b32 v33, 3, v21"); e("v_mul_u32_u24 v238, 9216, v33"); e("v_and_b32 v33, 7, v21"); e("v_lshlrev_b32 v35, 1, v26"); e("v_xor_b32 v33, v33, v35")
    e("v_and_b32 v35, 1, v20"); e("v_lshlrev_b32 v35, 2, v35"); e("v_xor_b32 v33, v33, v35"); e("v_lshl_add_u32 v238, v33, 4, v238")
    e("v_lshl_add_u32 v32, v26, 9, v32"); e(f"v_lshl_add_u32 v{vB}, v28, 12, v32"); e(f"v_xor_b32 v{vB+1}, 32, v{vB}")
    for r in range(2, 6): e(f"v_add_u32 v{vB+r}, 0x10000, v{vB+r-2}")
    e("s_lshl_b32 s69, s63, 4"); e("s_lshl_b32 s78, s3, 2"); e("s_add_u32 s69, s69, s78"); e("s_lshl_b32 s78, s71, 1")
    for u in range(4):
        e(f"s_xor_b32 s79, s78, {u}"); e("s_add_u32 s79, s79, s69")
        e("s_mul_i32 s80, s79, 18432"); e(f"v_add_u32 v{vXN[u]}, s80, v{vL16}")
        e(f"s_mul_i32 s80, s79, {272*1024}"); e(f"v_add_u32 v{vST[u]}, s80, v{vL16}")
    e("v_lshrrev_b32 v36, 5, v0"); e("v_and_b32 v37, 7, v21"); e("v_xor_b32 v36, v36, v37"); e("v_lshlrev_b32 v36, 4, v36")
    e("v_lshl_add_u32 v36, v23, 7, v36"); e(f"v_add_u32 v36, {SPARE}, v36")
    e("v_lshrrev_b32 v38, 3, v21"); e("v_xor_b32 v39, v38, v37"); e("v_lshlrev_b32 v39, 4, v39"); e("v_lshl_add_u32 v39, v38, 7, v39"); e(f"v_add_u32 v39, {SPARE}, v39")
    e("v_lshlrev_b32 v38, 8, v38"); e("v_lshl_add_u32 v38, v37, 4, v38")
    e("s_lshl_b32 s72, s63, 1"); e("s_add_u32 s72, s72, s71")
    e("s_lshl_b32 s73, s70, 19"); e("s_lshl_b32 s74, s72, 13"); e("s_add_u32 s73, s73, s74"); e(f"s_add_u32 s73, s73, {1536*256}")
    e("s_lshl_b32 s74, s3, 6"); e("s_add_u32 s87, s73, s74"); e("s_add_u32 s88, s87, 4096")
    e("s_lshr_b32 s74, s3, 1"); e("s_lshl_b32 s74, s74, 12"); e("s_add_u32 s73, s73, s74")
    e("s_and_b32 s74, s3, 1"); e("s_lshl_b32 s74, s74, 7"); e("s_add_u32 s89, s73, s74")
    e("s_lshl_b32 s82, s70, 18"); e(f"s_add_u32 s82, s82, {WS_KVP}")
    e("s_lshl_b32 s93, s72, 14"); e("s_add_u32 s93, s93, s82"); e("s_lshl_b32 s78, s3, 11"); e("s_add_u32 s93, s93, s78"); e("s_add_u32 s95, s93, 8192")
    e("s_lshl_b32 s90, s70, 7"); e(f"s_add_u32 s90, s90, {FL_KV}"); e("s_lshl_b32 s91, s72, 2"); e("s_add_u32 s91, s91, s90")
    e(f"s_mul_i32 s77, s3, {8*9216}"); e("s_lshl_b32 s79, s62, 8"); e("s_add_u32 s79, s79, s77"); e(f"s_mul_i32 s77, s3, {144*9216}")
    e("s_lshl_b32 s80, s70, 6"); e("s_add_u32 s80, s80, s77"); e("s_add_u32 s80, s80, 8192")
    e("s_mul_i32 s81, s3, 9216")
    e("s_lshl_b32 s83, s62, 12"); e(f"s_add_u32 s83, s83, {WS_ACT}"); e(f"s_add_u32 s84, s83, {128*1024}")
    e("s_lshl_b32 s85, s70, 10"); e(f"s_add_u32 s85, s85, {WS_ACT + 256*1024}")
    e(f"s_mov_b32 s86, {f32bits(QSCALE):#x}")
    e("s_lshl_b32 s37, s62, 8"); e("s_lshl_b32 s67, s3, 6"); e("s_add_u32 s37, s37, s67"); e("s_lshl_b32 s67, s3, 10")
    for i in range(5): e(f"s_mov_b32 s{74+i}, {WS_XN + i*4096}")
    e("s_lshr_b32 s7, s66, 1"); e("s_mul_i32 s7, s7, 18432"); e("s_lshl_b32 s72, s71, 7"); e("s_add_u32 s7, s7, s72")
    e("s_lshl_b32 s36, s63, 12"); e("s_lshl_b32 s72, s62, 2"); e("s_add_u32 s36, s36, s72"); e(f"s_add_u32 s36, s36, {FL_LN}")
    Fv = 64
    for d in range(12):
        e(f"v_lshlrev_b32 v{Fv+2*d}, 16, v{48+d}"); e(f"v_and_b32 v{Fv+2*d+1}, 0xffff0000, v{48+d}")
    e(f"buffer_load_dword v{vTOK}, v{vZ}, s[20:23], 0 offen sc1", "tch")
    if ORD == 1: e(not_w0(wq_touch))
    if ORD == 4: e(not_w0(wq_touch, 1))
    if CPF == 2: e([x.replace("s[68:69]", "s[100:101]").replace("s68", "s100").replace("s69", "s101") if isinstance(x, str) else x for x in code_touch])
    e(stamp(1))
    def pk(op, d, a, b): return f"{op} {vr(d,2)}, {vr(a,2)}, {vr(b,2)}"
    e(pk("v_pk_add_f32", 40, Fv, Fv + 2)); e(pk("v_pk_add_f32", 42, Fv + 4, Fv + 6))
    for d in range(8, 24, 2): e(pk("v_pk_add_f32", 40 + (d & 2), 40 + (d & 2), Fv + d))
    def red(r):
        e(pk("v_pk_add_f32", r, r, r + 2)); e(f"v_add_f32 v{r}, v{r}, v{r+1}")
        for sh in (8, 4, 2, 1): e(f"v_add_f32_dpp v{r}, v{r}, v{r} row_ror:{sh} row_mask:0xf bank_mask:0xf")
        e(xlane("v_add_f32", r, r + 1, both=False))
    red(40)
    e(f"v_mul_f32 v40, {f32bits(-1.0/576):#x}, v40"); e("v_mov_b32 v41, v40")
    e("v_cvt_pk_bf16_f32 v44, v40, v40"); e("v_lshlrev_b32 v44, 16, v44"); e("v_mov_b32 v45, v44")
    for d in range(0, 24, 2):
        if d == 16: e("s_mov_b32 exec_lo, 0xff"); e("s_mov_b32 exec_hi, 0xff")
        t = 92 + (d & 2); a = 88 + (d & 2)
        e(pk("v_pk_add_f32", t, Fv + d, 40))
        if d < 4: e(pk("v_pk_mul_f32", a, t, t))
        else: e(f"v_pk_fma_f32 {vr(a,2)}, {vr(t,2)}, {vr(t,2)}, {vr(a,2)}")
    e("s_mov_b64 exec, -1")
    for d in range(0, 24, 2):
        e(pk("v_pk_add_f32", Fv + d, Fv + d, 44)); e(f"v_cvt_pk_bf16_f32 v{48+d//2}, v{Fv+d}, v{Fv+d+1}")
    red(88)
    def rbf(r): e(f"v_cvt_pk_bf16_f32 v{r}, v{r}, v{r}"); e(f"v_lshlrev_b32 v{r}, 16, v{r}")
    e(f"v_mul_f32 v88, {f32bits(1.0/576):#x}, v88"); rbf(88)
    e(f"v_add_f32 v88, {f32bits(1e-5):#x}, v88"); rbf(88)
    e("v_sqrt_f32 v88, v88")
    for d in range(12):
        e(f"v_lshlrev_b32 v{Fv+2*d}, 16, v{48+d}"); e(f"v_and_b32 v{Fv+2*d+1}, 0xffff0000, v{48+d}")
        if d == 0: rbf(88)
        if d == 1: e("v_rcp_f32 v90, v88")
        if d == 2: e("v_fma_f32 v91, -v88, v90, 2.0")
        if d == 3: e("v_mul_f32 v90, v90, v91"); e("v_mov_b32 v91, v90")
    for d in range(12):
        e(pk("v_pk_mul_f32", Fv + 2 * d, Fv + 2 * d, 90)); e(f"v_cvt_pk_bf16_f32 v{48+d}, v{Fv+2*d}, v{Fv+2*d+1}")
        if d % 4 == 3:
            if d == 11: e("s_mov_b32 exec_lo, 0xff"); e("s_mov_b32 exec_hi, 0xff")
            e(f"ds_write_b128 v36, {vr(48 + d - 3)} offset:{(d//4)*4096}")
    e("s_mov_b64 exec, -1")
    e("s_waitcnt lgkmcnt(0)")
    e("s_barrier")
    e(stamp(2))
    e("s_cmp_lg_u32 s3, 0"); e("s_cbranch_scc1 KF_x123")
    w0 = [f"ds_read_b128 {vr(136+4*q)}, v39 offset:{q*1024}" for q in range(9)]
    for q in range(9):
        w0 += [f"s_waitcnt lgkmcnt({8-q})", f"buffer_store_dwordx4 {vr(136+4*q)}, v38, s[16:19], s7 offen offset:{(q%2)*2048} sc1"]
        if q % 2: w0 += ["s_add_u32 s7, s7, 4096"]
    w0 += ["v_lshlrev_b32 v38, 7, v21", "s_mov_b32 s73, 0"] + mst(62) + ["KF_tk:", "s_waitcnt vmcnt(0)", f"v_cmp_eq_u32 vcc, 0, v{vTOK}",
           "s_add_u32 s73, s73, 1", f"s_cmp_ge_u32 s73, {SPIN_MAX}",
           "s_cbranch_scc1 KF_tkd", "s_cbranch_vccz KF_tkd", f"buffer_load_dword v{vTOK}, v{vZ}, s[20:23], 0 offen sc1", "s_branch KF_tk", "KF_tkd:"]
    w0 += mst(63) + flag_store("s36", 32, 38, allw=True)
    w0 += [f"v_mov_b32 v39, {SPARE + 12288}", f"ds_write_b32 v39, v{vTOK}"]
    for x in w0: e(x if x.endswith(":") else C(x))
    e("KF_x123:")
    if ORD >= 3: e("s_barrier")
    def wq_piece(b):
        return [[f"s_add_u32 m0, s67, {b*4096}", f"s_add_u32 s68, s37, {b*131072}"],
                Inst(f"buffer_load_dwordx4 v{vDQ}, s[8:11], s68 offen lds", "wq")]
    NPW = opt.get("npw", 36); XD = opt.get("xd", 3); XEND = opt.get("xend", 8)
    e(srd(20, 60, WS_SIZE))
    e("s_cmp_lg_u32 s3, 0"); e("s_cbranch_scc1 KF_y123")
    pl = ["v_lshlrev_b32 v38, 2, v23", "s_lshl_b32 s72, s66, 7", f"s_add_u32 s72, s72, {FL_LN}"]
    pl += spin("buffer_load_dword v39, v38, s[16:19], s72 offen sc1", [39]) + ["s_branch KF_y0", "KF_y123:"]
    if ORD >= 2: pl += wq_touch
    pl += ["s_sub_u32 s72, s3, 1", "s_lshl_b32 s94, s62, 8", "KF_wql:", "s_lshl_b32 m0, s72, 10", "s_lshr_b32 s73, s72, 2", "s_lshl_b32 s73, s73, 17",
           "s_and_b32 s68, s72, 3", "s_lshl_b32 s68, s68, 6", "s_add_u32 s68, s68, s73", "s_add_u32 s68, s68, s94",
           f"buffer_load_dwordx4 v{vDQ}, s[8:11], s68 offen lds", "s_add_u32 s72, s72, 3", f"s_cmp_lt_u32 s72, {NPW*4}", "s_cbranch_scc1 KF_wql"]
    pl += [f"s_waitcnt vmcnt({(NPW - 12) * 4 // 3})", "KF_y0:"]
    for x in pl: e(x if x.endswith(":") else C(x))
    e(stamp(3))
    e("s_waitcnt lgkmcnt(0)")
    e("s_barrier")
    e(stamp(4))
    def xn_load(u, s):
        return Inst(f"buffer_load_dwordx4 {X(u, s)}, v{vXN[u]}, s[16:19], s{74 + s//4} offen offset:{(s%4)*1024} sc1", "xn")
    for s in range(XD):
        for u in range(4): e(xn_load(u, s))
    e(f"v_mov_b32 v39, {SPARE + 12288}"); e(f"ds_read_b32 v{vTOK}, v39")
    assert NPW == 36
    e(f"v_mov_b32 v{vDQ}, v238")

    k.begin(name="gemm")
    class Frags:
        def __init__(s, af): s.mf = []; s.fr = []; s.af = af
        def add(s, vbase, off, ms, d2=256):
            b = s.af + (len(s.fr) % NF) * 4
            s.fr.append((len(s.mf), len(ms), [f"ds_read_b64_tr_b16 {vr(b,2)}, v{vbase} offset:{off}",
                                              f"ds_read_b64_tr_b16 {vr(b+2,2)}, v{vbase} offset:{off+d2}"], vr(b)))
            s.mf += [m.replace("@A", vr(b)) for m in ms]
        def sched(s, wrap=False):
            sc = Sched(s.mf); fr = s.fr; N = len(fr)
            for f in range(N):
                g0, n, _, _ = fr[f]
                if f + LEAD < N or wrap:
                    sc.put(g0, fr[(f + LEAD) % N][2][0]); sc.put(g0 + 1, fr[(f + LEAD) % N][2][1])
                if (f + 1 < N or wrap) and (n == 4 or f % 2 == 0):
                    sc.put(g0 + 1, WaitRegs(*([fr[(f + 1) % N][3]] + ([fr[f + 2][3]] if n == 2 and f + 2 < N else []))))
            return sc
    G = Frags(AF); pos = {}
    KL, VL, VD, VO, ID = 200, 208, 216, 208, 240
    KVS = opt.get("kvs", 15)
    for s in range(18):
        pos["Q", s] = len(G.mf)
        if s == KVS: G.mf += tr_mf(VD, VL, ID)
        for nt in range(8):
            G.add(vB + 2 * (s // 8) + (nt & 1), (s % 8) * 8192 + (nt >> 1) * 1024,
                  [f"{MF} {vr(qa(nt,u))}, @A, {X(u,s)}, {'0' if s == 0 else vr(qa(nt,u))}" for u in range(4)])
    S = lambda u: (B1 if u < 2 else B3) + (u & 1) * 8
    def KF(b, f): return ar(128 + b * 32 + f * 4)
    def VF(b, f): return ar(192 + b * 32 + f * 4)
    K0F = lambda f: vr(B5 + f * 4) if f < 4 else vr(B7 + (f - 4) * 4)
    NEGM = B5; P = B7; L = XV + 16; FL = XV + 24
    def qk(u, kf, zero=False):
        out = []
        for s in range(4):
            for kt in range(2):
                c = vr(S(u) + 4 * kt)
                out.append(f"{MF} {c}, {kf(kt*4+s)}, {Qf(u, s)}, {c if s else ('0' if zero else vr(NEGM + 4*u))}")
        return out
    sb = lambda st, a: vB + (st & 1) * 2 + a
    for st in range(5):
        us = (0, 1) if st == 4 else (0, 1, 2, 3)
        for f in range(36):
            a, s = f // 18, f % 18
            pos["F", st, f] = len(G.mf)
            if st == 3 and f == 8:
                pos["QK0"] = len(G.mf)
                for u in range(4): G.mf += qk(u, K0F, zero=True)
                pos["QK0e"] = len(G.mf)
            ms = [f"{MF} {vr(fa(a,u))}, @A, {X(u,s)}, {'0' if s == 0 else vr(fa(a,u))}" for u in us]
            if st == 4: G.add(vB + 4 + a, s * 2048, ms)
            else: G.add(vB + 2 * a + (s >= 9), (s % 9) * 4096, ms, 512)
    END = len(G.mf)
    for f in range(LEAD): e(G.fr[f][2])
    sc = G.sched()
    F = lambda st, f: pos["F", st, f]
    Qp = lambda s: pos["Q", s] if s < 18 else F(0, 0)
    def bar(g, *w): sc.put(g, list(w) + ["s_barrier"])
    bar(Qp(5) + 2)
    bar(Qp(10) + 2)
    bar(Qp(17) + 2, WaitTag(["f0"], 0))
    bar(F(0, 4) + 2, WaitTag(["kvst"], 0))
    bar(F(1, 28) + 2, WaitTag(["f1"], 0))
    bar(F(2, 0) + 6)
    bar(F(3, 0) + 6, WaitTag(["kv0"], 0))
    bar(F(3, 28) + 2, WaitTag(["f2", "dma"], 0))
    bar(F(4, 2))
    for s in range(17): sc.add([WaitRegs(*[X(u, s + 1) for u in range(4)])], Qp(s + 1) - 4, Qp(s + 1), spread=False)
    xp = sc.add([xn_load(u, s) for s in range(XD, 18) for u in range(4)], 2, Qp(XEND))
    for i, g in enumerate(xp): assert g < Qp(XD + i // 4) - 24, (i, g)
    def pair_piece(pr, i):
        return [[f"s_add_u32 m0, s67, {pr*2*SLOT + i*4096}", f"s_add_u32 s68, s79, {pr*128 + i*32*9216}"],
                Inst(f"buffer_load_dwordx4 v{vDQ}, s[12:15], s68 offen lds", f"f{pr}")]
    def sp_piece(p):
        return [[f"s_add_u32 m0, s81, {p*1024}", f"s_add_u32 s68, s80, {p*16*9216}"],
                Inst(f"buffer_load_dwordx4 v{vD1}, s[12:15], s68 offen lds", "f2")]
    def lin_pieces(ldsb, ldsoff, src, srcoff, n=9, tag="dma"):
        out = []
        for p in range(n):
            if p % 4 == 0: out.append([f"s_add_u32 m0, {ldsb}, {ldsoff + p*1024}", f"s_add_u32 s68, {src}, {srcoff + p*1024}"])
            out.append(Inst(f"buffer_load_dwordx4 v{vL16}, s[20:23], s68 offen offset:{(p%4)*1024} sc1 lds", tag))
        return out
    F0AT = opt.get("f0at", 12)
    sc.add(flat([pair_piece(0, i) for i in range(18)]), Qp(F0AT), Qp(opt.get("f0end", 16)))
    kvl = []
    for f in range(2):
        kvl += [f"buffer_load_dwordx2 {vr(KL+4*f,2)}, v{vKO}, s[24:27], s89 offen offset:{f*64}", f"buffer_load_dwordx2 {vr(KL+2+4*f,2)}, v{vKO}, s[24:27], s89 offen offset:{f*64+32}"]
    kvl += [f"buffer_load_dwordx4 {vr(VL)}, v{vVO}, s[28:31], s87 offen", f"buffer_load_dwordx4 {vr(VL+4)}, v{vVO}, s[28:31], s88 offen"]
    T1 = opt.get("t1", XEND); T2 = opt.get("t2", 12)
    kvt = [Inst("s_mov_b64 exec, 0xffff"), Inst(f"buffer_load_dword v0, v{vKO}, s[24:27], s89 offen", "tch"),
           Inst(f"buffer_load_dword v0, v{vKO}, s[28:31], s89 offen", "tch"), Inst("s_mov_b64 exec, -1")]
    tlb = []
    if opt.get("tlb", 0):
        tlb = [["s_lshr_b32 s72, s2, 3", "s_lshl_b32 s72, s72, 2", "s_add_u32 s72, s72, s3"],
               [Inst(f"s_mul_i32 s72, s72, {768*1024}"), Inst("s_mov_b64 exec, 1"), Inst(f"buffer_load_dword v0, v{vZ}, s[16:19], s72 offen offset:64 sc1", "tch"), Inst("s_mov_b64 exec, -1")]]
    sc.add([w1_touch(0), kvt] + tlb, Qp(T1), Qp(T1) + 16)
    sc.add(kvl[4:] + kvl[:4], Qp(T2), Qp(T2) + 30)
    sc.add(ident(ID, vT, vL), Qp(10), Qp(KVS - 1))
    sc.add([WaitRegs(vr(VL), vr(VL + 4))], Qp(KVS) - 3, Qp(KVS), spread=False)
    kst = [Inst(f"buffer_store_dwordx4 {vr(KL+4*f)}, v{vL16}, s[16:19], s93 offen offset:{f*1024} sc1", "kvst") for f in range(2)]
    for h in range(2):
        kst += tr_cvt(VO + 4 * h, VD, h) + [Inst(f"buffer_store_dwordx4 {vr(VO+4*h)}, v{vL16}, s[16:19], s95 offen offset:{h*1024} sc1", "kvst")]
    sc.add(kst, Qp(KVS) + 6, Qp(KVS + 1) - 2)
    sc.add([w1_touch(1), w1_touch(2)], Qp(opt.get("t3", 16)) + 8, Qp(opt.get("t3", 16)) + 24)
    sc.add([flag_store("s91", 1, vZ)], F(0, 4) + 3, F(0, 4) + 8)
    sc.add(flat([pair_piece(1, i) for i in range(18)]), F(0, opt.get("f2at", 10)), F(1, 2))
    kvld = f"buffer_load_dword v{vT2}, v{vT}, s[16:19], s90 offen sc1"
    sc.add([f"v_bfe_u32 v{vT}, v{vL16}, 4, 4", f"v_lshlrev_b32 v{vT}, 2, v{vT}", kvld], F(1, 0), F(1, 3))
    c1, c2 = check(kvld, [vT2])
    sc.add([c1 + c2], F(1, 20), F(1, 21))
    kv0 = [["s_lshl_b32 s72, s3, 12", "s_add_u32 s70, s82, s72"]] + lin_pieces("s72", SPARE, "s70", 0, 4, "kv0") + [["s_add_u32 s92, s82, s81"]]
    sc.add(kv0, F(1, 21), F(1, 34))
    sc.add(flat([sp_piece(p) for p in range(9)]) + lin_pieces("s81", 1 * SLOT, "s92", 16384), F(2, 2), F(3, 6))
    sc.add(lin_pieces("s81", 2 * SLOT, "s92", 16384 + 32768), F(4, 3), F(4, 30))
    for st in range(4):
        for a in range(2):
            lo, hi = ((Qp(16), Qp(17)) if st == 0 else (F(st - 1, 16), F(st - 1, 30))) if a == 0 else (F(st, 0), F(st, 12))
            sc.add([f"v_xor_b32 v{vB+2*a}, {((st & 1)*2 + a) * 32}, v{vP5}", f"v_add_u32 v{vB+2*a}, {(st >> 1)*2*SLOT}, v{vB+2*a}",
                    f"v_add_u32 v{vB+2*a+1}, {SLOT}, v{vB+2*a}"], lo, hi)
    sc.add([f"v_mov_b32 v{vB+4}, v{vS0}", f"v_xor_b32 v{vB+5}, 32, v{vS0}"], F(2, 4), F(2, 20))
    sc.add([f"v_lshrrev_b32 v{vP5}, 6, v{vL16}", f"v_mul_u32_u24 v{vP5}, 288, v{vP5}", f"v_bfe_u32 v{vT2}, v{vL16}, 4, 2", f"v_lshl_add_u32 v{vP5}, v{vT2}, 3, v{vP5}"], F(3, 14), F(3, 30))
    ids = [["s_cmp_lt_u32 s64, 4", "s_cselect_b32 s24, s48, s54", "s_cselect_b32 s25, s49, s55"],
           [f"s_mov_b32 s26, {4096*1152}", "s_cmp_lt_u32 s64, 4", f"s_cselect_b32 s26, s26, {4608*1152}"],
           ["s_cmp_lt_u32 s64, 4", "s_cselect_b32 s72, 32, 36", "s_cselect_b32 s5, 0, 1"],
           ["s_and_b32 s73, s64, 3", "s_mul_i32 s7, s73, s72"],
           ["s_lshl_b32 s6, s5, 7", "s_add_u32 s6, s6, s7"], [f"s_mul_i32 s7, s7, {32*1152}"],
           ["s_lshr_b32 s72, s2, 3", "s_lshl_b32 s72, s72, 2"], ["s_add_u32 s72, s72, s3", f"s_mul_i32 s72, s72, {41*128}"], ["s_add_u32 s89, s7, s72"],
           [f"s_add_u32 s88, s89, {41*128*128}"], f"v_lshlrev_b32 v{vKO}, 3, v{vL16}"]
    sc.add(ids, F(0, 8), F(0, 34))
    for so, g in (("s89", F(1, 4)), ("s88", F(3, opt.get("wt2", 10)))):
        sc.add([[Inst("s_mov_b32 exec_hi, 0x1ff"), Inst(f"buffer_load_dword v0, v{vKO}, s[24:27], {so} offen", "tch"), Inst("s_mov_b64 exec, -1")]], g, g + 6)
    def epi_a(us): return flat([[f"v_cvt_pk_bf16_f32 v{T+4*u}, v{fa(0,u)}, v{fa(0,u)+1}", f"v_cvt_pk_bf16_f32 v{T+4*u+1}, v{fa(0,u)+2}, v{fa(0,u)+3}",
                                 f"v_pk_max_i16 v{T+4*u}, v{T+4*u}, 0", f"v_pk_max_i16 v{T+4*u+1}, v{T+4*u+1}, 0"] for u in us])
    def epi_b(st, us):
        so, off = ("s85", 0) if st == 4 else ("s84", st * 1024)
        return flat([[f"v_cvt_pk_bf16_f32 v{T+4*u+2}, v{fa(1,u)}, v{fa(1,u)+1}", f"v_cvt_pk_bf16_f32 v{T+4*u+3}, v{fa(1,u)+2}, v{fa(1,u)+3}",
                      f"v_pk_max_i16 v{T+4*u+2}, v{T+4*u+2}, 0", f"v_pk_max_i16 v{T+4*u+3}, v{T+4*u+3}, 0",
                      Inst(f"buffer_store_dwordx4 {vr(T+4*u)}, v{vST[u]}, s[16:19], {so} offen offset:{off} sc1", "st")] for u in us])
    for st in range(5):
        us = (0, 1) if st == 4 else (0, 1, 2, 3)
        sc.add(epi_a(us), F(st, 20 if st < 4 else 22), F(st, 34))
        if st: sc.add(epi_b(st - 1, (0, 1, 2, 3)), F(st, 2 if st < 4 else 4), F(st, 16))
    qe = []
    for s in range(4):
        for u in range(4):
            a, b = qa(2 * s, u), qa(2 * s + 1, u)
            qe += [f"v_mul_f32 v{r}, s86, v{r}" for r in list(range(a, a + 4)) + list(range(b, b + 4))]
            qe += [f"v_cvt_pk_bf16_f32 v{a}, v{a}, v{a+1}", f"v_cvt_pk_bf16_f32 v{a+1}, v{a+2}, v{a+3}",
                   f"v_cvt_pk_bf16_f32 v{a+2}, v{b}, v{b+1}", f"v_cvt_pk_bf16_f32 v{a+3}, v{b+2}, v{b+3}"]
    qp = sc.add(qe, F(0, 1), F(2, 0), spread=False)
    PR = 21504
    pf = [["s_lshl_b32 s72, s63, 2", "s_add_u32 s72, s72, s65"], ["s_lshl_b32 s72, s72, 2", "s_add_u32 s72, s72, s3"],
          [f"s_mul_i32 s78, s72, {8*PR}", f"s_add_u32 s78, s78, {WS_PART if not opt.get('xp') else 0x70000000}"], [f"s_mul_i32 s73, s64, {PR}", "s_add_u32 s74, s78, s73"],
          ["s_add_u32 s75, s74, 5120", "s_add_u32 s76, s74, 10240"], ["s_add_u32 s77, s74, 15360", "s_mov_b32 s95, s74"]]
    sc.add(pf, F(1, 34), F(2, 4))
    sc.add([f"v_add_u32 v{vL}, {SPARE}, v{vL16}"], F(2, 30), F(2, 34))
    sc.add([f"ds_read_b128 {K0F(f)}, v{vL} offset:{f*1024}" for f in range(8)], F(3, 1) + 3, F(3, 7))
    sc.add([WaitRegs(*[K0F(f) for f in range(8)])], pos["QK0"] - 2, pos["QK0"], spread=False)
    M = lambda u: NEGM + 4 * u
    pa = []
    for u in range(4):
        s0 = S(u); m = M(u)
        pa += [f"v_max3_f32 v{m}, v{s0}, v{s0+1}, v{s0+2}", f"v_max3_f32 v{m}, v{m}, v{s0+3}, v{s0+4}",
               f"v_max3_f32 v{m}, v{m}, v{s0+5}, v{s0+6}", f"v_max_f32 v{m}, v{m}, v{s0+7}"]
    xl = [xlane("v_max_f32", M(u), M(u) + 1) for u in range(4)]
    for i in range(6): pa += [xl[u][i] for u in range(4)]
    for u in range(4):
        pa += [f"v_sub_f32 v{S(u)+i}, v{S(u)+i}, v{M(u)}" for i in range(8)] + [f"v_sub_f32 v{M(u)+i}, 0, v{M(u)}" for i in (3, 2, 1, 0)]
    for u in range(4): pa += [f"v_exp_f32 v{S(u)+i}, v{S(u)+i}" for i in range(8)]
    for u in range(4): pa += [f"v_cvt_pk_bf16_f32 v{P+4*u+i}, v{S(u)+2*i}, v{S(u)+2*i+1}" for i in range(4)]
    pp = sc.add(pa, pos["QK0e"] + 3, F(4, 6), spread=False)
    pl = []
    for u in range(4):
        s0 = S(u)
        pl += [f"v_add_f32 v{L+u}, v{s0}, v{s0+2}", f"v_add_f32 v{L+4+u}, v{s0+1}, v{s0+3}"]
        pl += [f"v_add_f32 v{L+u+4*(i&1)}, v{L+u+4*(i&1)}, v{s0+i}" for i in range(4, 8)]
    sc.add(pl, max(F(4, 1), pp[-1] + 1), END)
    sc.add([f"ds_read_b128 {VF(0, f)}, v{vL} offset:{8192 + f*1024}" for f in range(8)], F(4, 32), END, spread=False, mind=1)
    if stamps and opt.get("fine"):
        for i, g in enumerate([Qp(1), Qp(3), Qp(5), Qp(5) + 4, Qp(7), Qp(9), Qp(11), Qp(13), Qp(15), Qp(17), F(0, 0), F(0, 18), F(1, 0), F(2, 0), F(2, 6), F(3, 0), pos["QK0"], F(4, 0)]):
            sc.gap[g] = sc.gap[g] + [_mk(x) for x in mst(14 + i)]
    e(sc.flat())
    e(stamp(5))

    def O(dt, u): return (dt * 4 + u) * 4
    def pv(u, b, pb, zero=False):
        return [f"{MF} {ar(O(dt, u))}, {VF(b, dt)}, {vr(P + 4*pb)}, {'0' if zero else ar(O(dt, u))}" for dt in range(8)]
    vD = list(range(16, 25)); vDW = list(range(176, 185)); vTW = 185
    def softmax(u):
        s0 = S(u); sm = []
        for i in range(4):
            a = s0 + 2 * i
            sm += [f"v_exp_f32 v{a}, v{a}", f"v_exp_f32 v{a+1}, v{a+1}"]
            if i: sm += [f"v_add_f32 v{L+u}, v{L+u}, v{a-2}", f"v_add_f32 v{L+4+u}, v{L+4+u}, v{a-1}", f"v_cvt_pk_bf16_f32 v{P+4*u+i-1}, v{a-2}, v{a-1}"]
        return sm + [f"v_cvt_pk_bf16_f32 v{P+4*u+3}, v{s0+6}, v{s0+7}", f"v_add_f32 v{L+u}, v{L+u}, v{s0+6}", f"v_add_f32 v{L+4+u}, v{L+4+u}, v{s0+7}"]
    def ring_dma():
        dm = [["s_xor_b32 s92, s88, s85"], ["s_mul_i32 s92, s92, s97"], ["s_add_u32 s92, s92, s93"]]
        for p in range(9):
            if p % 4 == 0: dm.append([f"s_add_u32 m0, s94, {p*1024}"])
            dm.append(Inst(f"buffer_load_dwordx4 v{vD[p]}, s[20:23], s92 offen offset:{(p%4)*1024} sc1 lds", "dma"))
        return dm + [["s_add_u32 s88, s88, 1"], [f"s_add_u32 s94, s94, {SLOT}"], [f"s_cmp_ge_u32 s94, {4*SLOT}", "s_cselect_b32 s94, s81, s94"]]
    adv_rd = [[f"s_add_u32 s96, s96, {SLOT}"], [f"s_cmp_eq_u32 s96, {4*SLOT}", "s_cselect_b32 s96, 0, s96"]]
    hfl = f"buffer_load_dword v{FL}, v{vT}, s[16:19], s84 offen sc1"
    def BF(b, s, u): return ar(128 + ((b * 4 + s) * 4 + u) * 4)
    def B1st(s, u): return BF(s >> 1, s & 1, u)
    def bload(dst, s, u):
        return Inst(f"buffer_load_dwordx4 {dst}, v{vST[u]}, s[28:31], s79 offen offset:{s*1024} sc1", "b")
    adv_b = [["s_xor_b32 s79, s87, s85", "s_lshl_b32 s79, s79, 12"], ["s_add_u32 s79, s79, s80", "s_add_u32 s87, s87, 1"]]
    def attn_iter(kind):
        first, last = kind == "first", kind == "last"
        mf = []; base = []
        for sl in range(8):
            base.append(len(mf))
            t2 = sl + 2; kb = (t2 // 4) & 1
            if not (last and sl >= 6) and not (first and sl < 2): mf += qk(t2 % 4, lambda f: KF(kb, f))
            mf += pv(sl % 4, (sl // 4) & 1, sl % 4, zero=(first and sl < 4))
        base.append(len(mf))
        sc = Sched(mf)
        for sl in range(8):
            u, half = sl % 4, sl // 4
            n = base[sl + 1] - base[sl]
            if not (last and half == 1):
                nb = (half + 1) & 1
                for i in range(4):
                    f = (u & 1) * 4 + i
                    d, o = (KF(nb, f), 0) if u < 2 else (VF(nb, f), 8192)
                    g = f if n == 8 else base[sl] + (3 + 4 * i if u != 1 else (2, 3, 6, 7)[i])
                    sc.put(g, f"ds_read_b128 {d}, v{vL} offset:{half*16384 + o + f*1024}")
            if u == 1 and not (last and half == 1):
                sc.put(base[sl + 1] - (3 if n == 16 else 1), WaitRegs(*[KF((half + 1) & 1, f) for f in range(8)]))
            if u == 0 and n == 16: sc.put(base[sl] + 5, WaitRegs(*[VF(half & 1, f) for f in range(8)]))
        gb = base[1] + 11
        if first:
            gb = base[4] + 1
            sc.add(ring_dma(), 12, gb - 2)
        sc.put(gb, [WaitTag(["dma"] if first else ["dma", "st"], 9), "s_barrier"])
        dm = ring_dma() + adv_rd
        ONES = 188
        if first: sc.add([f"v_mov_b32 v{ONES+r}, -1" for r in range(4)], 1, 12, spread=False)
        if not last:
            sc.add([Inst(f"buffer_store_dwordx4 {vr(ONES)}, v{vL16}, s[16:19], s95 offen offset:{c*1024} sc1", "pf") for c in range(3)] + [["s_add_u32 s95, s95, 3072"]],
                   base[4] + 3 if first else 2, base[8] - 4)
        if last:
            sc.add([f"v_lshlrev_b32 v{ONES}, 7, v{vL16}", [WaitTag(["pf"], 0)] + flag_store("s89", 8, ONES, allw=True)], base[6], base[8])
            for s in range(4): sc.add([bload(B1st(s, u), s, u) for u in range(4)], base[2 + s] + 1, base[3 + s] + 8)
        if first:
            sc.add([f"v_add_u32 v{vD[p]}, {(p - p % 4)*1024}, v{vL16}" for p in range(9)], 1, 12, spread=False)
            sc.add([Inst(x.text.replace("s85", "s36"), x.tag) if isinstance(x, Inst) else x for x in epi_b(4, (0, 1))], 6, gb)
        sc.add(dm, gb + 1, base[8] - 2)
        for sl in range(8):
            if (last and sl == 7) or (first and sl < 3): continue
            hi = base[sl + 1] + (4 if sl < 7 and not (last and sl >= 5) else 0)
            sc.add(softmax((sl + 1) % 4), base[sl], hi, spread=False)
        if first:
            dw = [f"v_lshrrev_b32 v{vT2}, 4, v{vL16}"]
            for p in range(9):
                r = vDW[p]
                dw += [f"v_add_u32 v{vT}, {64*p}, v{vT2}", f"v_mul_u32_u24 v{r}, 3641, v{vT}", f"v_lshrrev_b32 v{r}, 16, v{r}",
                       f"v_mul_u32_u24 v{r}, {1152 - 288}, v{r}", f"v_lshl_add_u32 v{r}, v{vT}, 4, v{r}"]
                if p % 4: dw.append(f"v_subrev_u32 v{r}, {(p%4)*1024}, v{r}")
            dp = sc.add(dw, 1, base[7], spread=False)
            fa_ = [["s_lshl_b32 s72, s63, 14", "s_lshl_b32 s73, s3, 7"], ["s_add_u32 s72, s72, s73", f"s_add_u32 s72, s72, {FL_P2}"],
                   ["s_lshl_b32 s73, s62, 2", "s_add_u32 s91, s72, s73"], ["s_add_u32 s91, s91, 8192"],
                   ["s_lshr_b32 s73, s62, 3", "s_lshl_b32 s73, s73, 11"], ["s_add_u32 s90, s72, s73", "s_and_b32 s73, s62, 7"], ["s_lshl_b32 s73, s73, 2", "s_add_u32 s90, s90, s73"],
                   ["s_lshl_b32 s73, s64, 2", "s_add_u32 s73, s73, s65"], ["s_lshl_b32 s73, s73, 9", "s_add_u32 s84, s72, s73"],
                   [f"s_add_u32 s37, s84, {FL_EX - FL_P2}", "s_lshl_b32 s73, s64, 11"], ["s_sub_u32 s89, s37, s73", "s_lshl_b32 s73, s64, 2"], ["s_add_u32 s89, s89, s73"],
                   ["s_movk_i32 s73, 0x30", "s_cmp_eq_u32 s5, 0", "s_cselect_b32 s73, s73, 0x1f0"]]
            sc.add(fa_, base[3], base[6])
            sc.add([f"v_and_b32 v{vT}, s73, v{vL16}", f"v_lshrrev_b32 v{vT}, 2, v{vT}", f"v_lshlrev_b32 v{vT2}, 5, v{vL16}",
                    [WaitTag(["st"], 0)] + flag_store("s91", 16, vT2, allw=True)], max(base[7], dp[-1] + 1), base[8])
        e(f"v_add_u32 v{vL}, s96, v{vL16}")
        e(sc.flat())
    k.begin(name="attn_first")
    e(f"s_add_u32 s93, s92, {16384 + 2*32768}"); e("s_mov_b32 s97, 32768"); e("s_mov_b32 s88, 0"); e("s_mov_b32 s36, s85"); e("s_mov_b32 s85, 0")
    e(f"s_add_u32 s94, s81, {3*SLOT}"); e(f"s_mov_b32 s96, {SLOT}")
    e("s_mov_b32 s4, 1"); e("s_mov_b32 s28, s60"); e("s_mov_b32 s29, s61"); e("s_mov_b32 s30, 0")
    attn_iter("first")
    k.begin(loop=6, name="attn_loop")
    e(".p2align 3"); e("KF_aloop:")
    if stamps and opt.get("fine"):
        e(["s_memtime s[98:99]", "s_add_u32 s100, s4, 55", "s_lshl_b32 s100, s100, 4", f"v_cmp_eq_u32 vcc, s100, v{vL16}",
           "s_waitcnt lgkmcnt(0)", "v_mov_b32 v47, s98", f"v_cndmask_b32 v{STV}, v{STV}, v47, vcc"])
    e("s_cmp_eq_u32 s4, 5"); e("s_cbranch_scc1 KF_sw"); e("KF_oolr:")
    attn_iter("loop")
    e("s_add_u32 s4, s4, 1"); e("s_cmp_lt_u32 s4, 7"); e("s_cbranch_scc1 KF_aloop")
    ool.append([
                "KF_sw:",
                "s_mov_b32 s20, s24", "s_mov_b32 s21, s25", "s_mov_b32 s22, s26"] + [f"v_mov_b32 v{vD[p]}, v{vDW[p]}" for p in range(9)] +
               [f"s_mov_b32 s97, {128*1152}", f"s_mul_i32 s93, s3, {32*1152}", "s_add_u32 s93, s93, s7", "s_mul_i32 s72, s65, 288", "s_add_u32 s93, s93, s72",
                "s_lshl_b32 s80, s6, 10", f"s_add_u32 s80, s80, {WS_ACT}", "s_mov_b32 s79, s80", "s_mov_b32 s88, 0", "s_mov_b32 s87, 1",
                "s_cmp_eq_u32 s5, 0", "s_cselect_b32 s85, s65, 0", "s_cselect_b32 s30, 0, s18", hfl] + (
               ["s_getpc_b64 s[72:73]", "KF_pc2:", "s_sub_u32 s8, s72, KF_pc2-KF_nock", "s_subb_u32 s9, s73, 0", "s_mov_b32 s10, KF_codeend-KF_nock",
                "s_lshr_b32 s72, s2, 3", "s_lshl_b32 s72, s72, 2", "s_add_u32 s72, s72, s3", "s_mul_i32 s72, s72, 384",
                "s_mov_b64 exec, 7", Inst(f"buffer_load_dword v0, v{vKO}, s[8:11], s72 offen", "tch"), "s_mov_b64 exec, -1"] if opt.get("cpf2", 1) else []) + [
                "s_branch KF_oolr"])
    k.begin(name="attn_last")
    e("s_cmp_eq_u32 s5, 0"); e("s_cbranch_scc1 KF_nock")
    c1, c2 = check(hfl, [FL])
    for x in ["s_waitcnt vmcnt(18)"] + c1 + c2: e(x if x.endswith(":") else C(x))
    e("KF_nock:")
    attn_iter("last")
    e(stamp(6))
    W = 216
    for u in range(4): e(f"v_add_f32 v{L+u}, v{L+u}, v{L+4+u}")
    xl = [xlane("v_add_f32", L + u, W + 4 + u) for u in range(4)]
    for i in range(6):
        for u in range(4): e(xl[u][i])
    e(f"v_add_f32 v{W+1}, v{L}, v{L+1}"); e(f"v_add_f32 v{W+2}, v{L+2}, v{L+3}"); e(f"v_add_f32 v{W}, v{W+1}, v{W+2}")
    e(f"v_cmp_nge_f32 vcc, {f32bits(2.0**30):#x}, v{W}")
    e("s_cbranch_vccnz KF_slow")
    e("KF_epi:")
    k.begin(name="oepi")
    ACC = 48; A2 = 192
    def acc(nt, u): return ACC + (nt * 4 + u) * 4
    e(f"v_add_u32 v{vL}, s96, v{vP5}")
    def mkstage(bf, zero=False):
        G = Frags(A2)
        for s in range(4):
            for nt in range(9):
                G.add(vL, s * 9216 + nt * 32, [f"{MF} {vr(acc(nt,u))}, @A, {bf(s,u)}, {'0' if zero and s == 0 else vr(acc(nt,u))}" for u in range(4)], 4608)
        return G
    P5 = {b: mkstage(lambda s, u, b=b: BF(b, s, u)) for b in range(2)}
    for f in range(LEAD): e(P5[0].fr[f][2])
    for u in range(4): e(f"v_rcp_f32 v{L+u}, v{L+u}")
    if opt.get("xo"): e("s_mov_b32 s83, 0x7fff0000")
    if opt.get("xb"): e("s_mov_b32 s80, 0x70000000")
    if opt.get("xd2"): e("s_mov_b32 s22, 0")
    OB = lambda i, u: 216 + ((i & 1) * 4 + u) * 4
    def oepi(i, u, t, packed=False):
        o = OB(i, u)
        out = [f"v_accvgpr_read_b32 v{t+r}, a{O(2*i + r//4, u) + r%4}" for r in range(8)]
        if packed: out += [f"v_pk_mul_f32 {vr(t+r,2)}, {vr(t+r,2)}, {vr(L + (u & 2),2)} op_sel:[0,{u&1}] op_sel_hi:[1,{u&1}]" for r in range(0, 8, 2)]
        else: out += [f"v_mul_f32 v{t+r}, v{t+r}, v{L+u}" for r in range(8)]
        out += [f"v_cvt_pk_bf16_f32 v{o+r}, v{t+2*r}, v{t+2*r+1}" for r in range(4)]
        return out + [Inst(f"buffer_store_dwordx4 {vr(o)}, v{vST[u]}, s[16:19], s83 offen offset:{i*1024} sc1", "st")]
    def common(sc):
        sc.put(4 * (36 - LEAD) - 1, f"v_add_u32 v{vL}, s96, v{vP5}")
        sc.put(6, [WaitTag(["dma"], 9), "s_barrier"])
    e(stamp(7))
    e("s_mov_b32 s4, 0"); e("s_mov_b32 s101, s5")
    e("s_cmp_eq_u32 s5, 0"); e("s_cbranch_scc1 KF_spre")
    def BF2(s, u): return ar((s * 4 + u) * 4)
    lastb = [["s_add_u32 s72, s5, 7", "s_xor_b32 s72, s72, s85", "s_lshl_b32 s72, s72, 12", "s_add_u32 s82, s72, s80"]] + \
            [Inst(f"buffer_load_dwordx4 {BF2(s, u)}, v{vST[u]}, s[28:31], s82 offen offset:{s*1024} sc1", "b") for s in range(4) for u in range(4)]
    k.begin(name="g_pre")
    B2nd = lambda s, u: BF(s >> 1, 2 + (s & 1), u)
    NGP = opt.get("ngp", 2)
    maps = [B1st, B2nd, lambda s, u: BF(0, s, u), lambda s, u: BF(1, s, u), lambda s, u: BF(0, s, u)]
    G = mkstage(B1st, zero=True)
    for q in range(1, NGP):
        G1 = mkstage(maps[q]); off = len(G.mf); G.fr += [(g0 + off, n, r, d) for (g0, n, r, d) in G1.fr]; G.mf += G1.mf
    sc = G.sched(wrap=True)
    for q in range(NGP):
        o = 144 * q
        sc.put(o + 4 * (36 - LEAD) - 1, f"v_add_u32 v{vL}, s96, v{vP5}")
        sc.put(o + 6, [WaitTag(["dma"], 9), "s_barrier"])
        sc.add(adv_rd, o + 7, o + 12, spread=False)
    for q in range(4 * NGP): sc.add([WaitRegs(*[maps[(q + 1) // 4]((q + 1) % 4, u) for u in range(4)])], 36 * q + 32, 36 * q + 36, spread=False)
    OEG = opt.get("oeg", 200); B2E = opt.get("b2e", 90)
    sc.add(adv_b + [bload(B2nd(s, u), s, u) for s in range(4) for u in range(4)] + adv_b + [["s_add_u32 s86, s79, 4096"]], 0, B2E)
    def bl2(b, s): return [Inst(bload(BF(b, s, u), s, u).text.replace("s79", "s86" if b else "s79"), "b") for u in range(4)]
    sc.add(bl2(0, 0) + bl2(0, 1), 100, 144)
    sc.add(bl2(1, 0) + bl2(1, 1), 146, 190)
    sc.add(bl2(0, 2), 190, 216); sc.add(bl2(0, 3), 216, 250); sc.add(bl2(1, 2) + adv_b, 252, 284)
    for q in range(2, NGP):
        o = 144 * q; bq = q & 1
        for s in range(3): sc.add([bload(BF(bq, s, u), s, u) for u in range(4)], o + 36 * (s + 1), o + 36 * (s + 1) + 24)
        sc.add([bload(BF(bq ^ 1, 3, u), 3, u) for u in range(4)] + adv_b, o + 2, o + 34)
    for q in range(NGP): sc.add(ring_dma(), 144 * q + 12, 144 * q + 140)
    op = sc.add(flat([oepi(i, u, 248) for i in range(4) for u in range(4)]), opt.get("oes", 0), OEG)
    sc.add([[WaitTag(["st"], 0)] + flag_store("s90", 4, vT2, allw=True)], 144 * NGP - 6, 144 * NGP, spread=False)
    e(sc.flat())
    e(stamp(8))
    if NGP == 4: e("s_mov_b32 s4, 1")
    e("s_branch KF_loop2")
    k.begin(name="s_pre")
    e("KF_spre:")
    for u in range(4): e(oepi(0, u, 248 if u & 1 else 40, packed=True))
    G = mkstage(lambda s, u: vr(OB(s, u)), zero=True); sc = G.sched(wrap=True); common(sc)
    sc.add(adv_rd, 7, 12, spread=False)
    for i in range(1, 4): sc.add(flat([oepi(i, u, 248) for u in range(4)]), 36 * (i - 1), 36 * i - 1)
    sc.add(ring_dma(), 108, 143)
    e(sc.flat())
    e(mst(52))
    k.wait_tags("st")
    e(mst(53))
    e(flag_store("s90", 4, vT2, allw=True))
    e("s_mov_b32 s30, s18")
    e(adv_b)
    e(spin(hfl, [FL]))
    e(mst(54))
    for b in (0, 1):
        for s in range(4 - b):
            for u in range(4): e(bload(BF(b, s, u), s, u))
        if b == 0: e(adv_b)
    e(WaitRegs(*[BF(0, 0, u) for u in range(4)]))
    e("s_mov_b32 s4, 0")
    e(stamp(8))

    def stage2(b):
        G = P5[b]; sc = G.sched(wrap=True); common(sc)
        for s in range(4):
            nb, ns = (b, s + 1) if s < 3 else (b ^ 1, 0)
            sc.add([WaitRegs(*[BF(nb, ns, u) for u in range(4)])], 36 * s + 32, 36 * s + 36, spread=False)
        sc.add(adv_rd, 7, 12, spread=False)
        for s in range(3): sc.add([bload(BF(b, s, u), s, u) for u in range(4)], 36 * (s + 1), 36 * (s + 1) + 24)
        sc.add([bload(BF(b ^ 1, 3, u), 3, u) for u in range(4)] + adv_b, 2, 34)
        sc.add(ring_dma(), 12, 140)
        hk = [_mk(x) for x in ("s_cmp_eq_u32 s101, 0", f"s_cbranch_scc1 KF_hk{b}", f"KF_hk{b}r:")]
        sc.add([hk], (106, 30)[b], (112, 35)[b], spread=False)
        fl = sc.flat(); i = fl.index(hk[1])
        cnt[b] = sum(1 for x in (fl[i:] if b == 0 else fl[:i]) if x.kind in ("vload", "vstore", "dma"))
        assert b == 0 or not any(x.kind == "vload" and BF(1, 0, 0) in x.text for x in fl[:i])
        e(fl)
    cnt = {}
    k.begin(loop=2, name="L0")
    e(".p2align 3"); e("KF_loop2:")
    stage2(0)
    k.begin(loop=2, name="L1")
    stage2(1)
    e("s_add_u32 s4, s4, 1"); e("s_cmp_lt_u32 s4, 2"); e("s_cbranch_scc1 KF_loop2")
    hfl2 = hfl.replace("offen", "offen offset:16")
    ool.append(["KF_hk0:", hfl2, "s_branch KF_hk0r"])
    ool.append(["KF_hk1:", "s_mov_b32 s101, 1", f"s_waitcnt vmcnt({cnt[0] + cnt[1]})"] + cmpf([FL]) +
               ["s_nop 0", "s_cbranch_vccz KF_hk1r"] + spin(hfl2, [FL], "KF_hk1r"))

    k.begin(name="final")
    e(stamp(9))
    NPRE = opt.get("npre", 2)
    nts = [8, 0, 1, 2, 3, 4, 5, 6, 7]
    order = [(0, s, nt) for s in range(NPRE) for nt in range(9)]
    order += [(b, s, nt) for nt in nts for b in range(3) for s in range(4) if not (b == 0 and s < NPRE)]
    G = Frags(A2); done = {}
    vLb = [vL, vT, vB + 2]
    for (b, s, nt) in order:
        bf = (lambda u: BF(b, s, u)) if b < 2 else (lambda u: BF2(s, u))
        G.add(vLb[b], s * 9216 + nt * 32, [f"{MF} {vr(acc(nt,u))}, @A, {bf(u)}, {vr(acc(nt,u))}" for u in range(4)], 4608)
        done[nt] = len(G.mf)
    sc = G.sched(); NG = len(G.mf); G0 = 36 * NPRE
    sc.put(G0 - 26, [WaitTag(["dma"], 0), "s_barrier"])
    sc.add([bload(BF(1, 3, u), 3, u) for u in range(4)] + [Inst(x.text.replace("s82", "s86"), "b") if isinstance(x, Inst) else [y.replace("s82", "s86") for y in x] for x in lastb], 2, 50)
    gq = G0 + (8 - NPRE) * 4
    sc.add([WaitRegs(*[BF2(s, u) for s in range(4) for u in range(4)])], gq - 4, gq, spread=False)
    sc.add(adv_rd + [f"v_add_u32 v{vLb[1]}, s96, v{vP5}"] + adv_rd + [f"v_add_u32 v{vLb[2]}, s96, v{vP5}"], 7, 30, spread=False)
    for s in range(1, NPRE): sc.add([WaitRegs(*[BF(0, s, u) for u in range(4)])], 36 * s - 4, 36 * s, spread=False)
    sc.add([WaitRegs(*[BF(1, 3, u) for u in range(4)])], G0 - 4, G0, spread=False)
    SEL = 26; XRr = 36; vX = 25; vL8 = 46
    ad = [
          ["s_and_b32 s82, s64, 3", "s_mul_i32 s73, s82, 5120"], ["s_add_u32 s78, s78, s73", "s_lshl_b32 s73, s5, 10"], ["s_add_u32 s85, s78, s73"],
          ["s_lshl_b32 s73, s71, 1", "s_xor_b32 s82, s82, s73"], ["s_add_u32 s82, s82, s69", f"s_mul_i32 s83, s82, {16*1152}"],
          ["s_mul_i32 s73, s65, 288", "s_add_u32 s87, s83, s73"], ["s_lshl_b32 s73, s5, 6", "s_add_u32 s83, s87, s73"],
          ["s_mov_b32 s12, s56", "s_mov_b32 s13, s57"], [f"s_mov_b32 s14, {2048*1152}"],
          [f"s_mov_b32 s88, {f32bits(-math.log2(math.e)):#x}", "s_mov_b32 s89, 0xffff0000"]]
    sc.add(ad, 50, G0 + 30)
    va = [f"v_bfe_u32 v{vX}, v{vL16}, 4, 4", f"v_lshrrev_b32 v{vT2}, 8, v{vL16}", f"v_bfe_u32 v{vL8}, v{vL16}, 6, 2",
          [f"v_cmp_eq_u32 vcc, v{vL8}, v{vT2}", f"v_mov_b32 v{SEL}, 0x3f80", f"v_and_b32 v{vL8}, 16, v{vL16}", f"v_lshlrev_b32 v{SEL}, v{vL8}, v{SEL}",
           f"v_cndmask_b32 v{SEL}, 0, v{SEL}, vcc"],
          [f"v_and_b32 v{vL8}, 32, v{vL16}", f"v_cmp_eq_u32 vcc, 0, v{vL8}", "s_nop 1", f"v_cndmask_b32 v{SEL+2}, 0, v{SEL}, vcc", f"v_cndmask_b32 v{SEL+3}, v{SEL}, 0, vcc"],
          f"v_mov_b32 v{SEL}, 0", f"v_mov_b32 v{SEL+1}, 0", f"v_mov_b32 v{SEL+4}, 0", f"v_mov_b32 v{SEL+5}, 0",
          f"v_mov_b32 v{SEL+6}, v{SEL+2}", f"v_mov_b32 v{SEL+7}, v{SEL+3}", f"v_mov_b32 v{SEL+8}, v{SEL+2}", f"v_mov_b32 v{SEL+9}, v{SEL+3}",
          f"v_mul_u32_u24 v{vX}, 1152, v{vX}", f"v_lshl_add_u32 v{vX}, v{vT2}, 3, v{vX}",
          f"v_lshrrev_b32 v{vL8}, 1, v{vL16}", f"v_add_u32 v{vL8}, 4096, v{vL8}", f"v_lshlrev_b32 v{vT2}, 7, v{vL16}",
          f"v_bfe_u32 v{vB}, v{vL16}, 4, 3", f"v_lshlrev_b32 v{vB}, 2, v{vB}"]
    sc.add(va, 8, G0 + 30)
    xo = [(0, "s83", 0), (1, "s83", 32), (2, "s83", 128), (3, "s83", 160), (4, "s87", 256)]
    sc.add([f"buffer_load_dwordx2 {vr(XRr+2*t,2)}, v{vX}, s[32:35], {so} offen offset:{o}" for t, so, o in xo], G0 + 32, G0 + 70)
    tail = []; per = done[0] - done[8]
    for c in (4, 0, 1, 2, 3):
        pkx = []
        for u in range(4):
            a = acc(2 * c, u); tg = "p1" if c in (4, 0, 1) else "p2"
            pkx += [f"v_cvt_pk_bf16_f32 v{a}, v{a}, v{a+1}", f"v_cvt_pk_bf16_f32 v{a+1}, v{a+2}, v{a+3}"]
            if c < 4:
                b = acc(2 * c + 1, u)
                pkx += [f"v_cvt_pk_bf16_f32 v{a+2}, v{b}, v{b+1}", f"v_cvt_pk_bf16_f32 v{a+3}, v{b+2}, v{b+3}",
                        Inst(f"buffer_store_dwordx4 {vr(a)}, v{vL16}, s[16:19], s{74+u} offen offset:{c*1024} sc1", tg)]
            else:
                pkx += [Inst(f"buffer_store_dwordx2 {vr(a,2)}, v{vL8}, s[16:19], s{74+u} offen sc1", tg)]
        d = done[8] if c == 4 else done[2 * c + 1]
        if c != 3: sc.add(pkx, d + 4, d + 4 + (per if c == 1 else 2 * per - 8))
        else: tail = pkx
    fl1 = f"buffer_load_dword v{vB+1}, v{vB}, s[16:19], s37 offen sc1"
    sc.add([fl1], G0 + 70, G0 + 80)
    c1, c2 = check(fl1, [vB + 1])
    sc.add([c1 + c2], done[3], done[3] + 3)
    R1 = 48; RE = 80; R2 = 216
    order8 = [4, 5, 6, 7, 0, 1, 2, 3]
    def lds1(): return flat([[[f"s_add_u32 s86, s85, {src*PR}"], f"buffer_load_dwordx4 {vr(R1 + src*4)}, v{vL16}, s[16:19], s86 offen sc1"] for src in order8]) + \
                       flat([[[f"s_add_u32 s86, s78, {src*PR}"], f"buffer_load_dwordx2 {vr(RE + src*2, 2)}, v{vL8}, s[28:31], s86 offen sc1"] for src in order8])
    def lds2(): return flat([[[f"s_add_u32 s86, s85, {src*PR}"], f"buffer_load_dwordx4 {vr(R2 + src*4)}, v{vL16}, s[16:19], s86 offen offset:2048 sc1"] for src in order8])
    def sent(base, n):
        t = 128; o = [f"v_max3_u32 v{t}, v{base}, v{base+1}, v{base+2}", f"v_max3_u32 v{t+1}, v{base+3}, v{base+4}, v{base+5}"]
        for i in range(6, n, 2): o.append(f"v_max3_u32 v{t + (i//2) % 2}, v{t + (i//2) % 2}, v{base+i}, v{base+i+1}")
        return o + [f"v_max_u32 v{t}, v{t}, v{t+1}", f"v_cmp_eq_u32 vcc, -1, v{t}"]
    def poll(name, ld, base, n):
        ool.append([f"{name}x:", "s_add_u32 s4, s4, 1", f"s_cmp_ge_u32 s4, {SPIN_MAX}", f"s_cbranch_scc1 {name}d", f"s_sleep {opt.get('slp', 2)}"] + ld + ["s_waitcnt vmcnt(0)", f"s_branch {name}"])
        return [f"{name}:"] + sent(base, n) + ["s_nop 0", f"s_cbranch_vccnz {name}x", f"{name}d:"]
    sc.add([["s_cmp_eq_u32 s5, 0", "s_cselect_b32 s30, 0, s18", "s_mov_b32 s4, 0"]] + lds1(), done[6] - opt.get("r1e", 8), NG - 4)
    e(sc.flat())
    e(tail)
    e(stamp(10))
    Gs = lambda t: 96 + 4 * t
    Ss = lambda t: 108 + 4 * t
    t0 = 120; g1 = 124
    def round2(a):
        return [f"v_cvt_pk_bf16_f32 v{t0}, v{a}, v{a+1}", f"v_cvt_pk_bf16_f32 v{t0+1}, v{a+2}, v{a+3}",
                f"v_lshlrev_b32 v{a}, 16, v{t0}", f"v_and_b32 v{a+1}, s89, v{t0}", f"v_lshlrev_b32 v{a+2}, 16, v{t0+1}", f"v_and_b32 v{a+3}, s89, v{t0+1}"]
    def gate(t):
        g = Gs(t)
        return round2(g) + [f"v_mul_f32 v{g1+r}, s88, v{g+r}" for r in range(4)] + [f"v_exp_f32 v{g1+r}, v{g1+r}" for r in range(4)] + \
               [f"v_add_f32 v{g1+r}, 1.0, v{g1+r}" for r in range(4)] + [f"v_rcp_f32 v{g1+r}, v{g1+r}" for r in range(4)] + \
               [pk("v_pk_mul_f32", g + r, g + r, g1 + r) for r in (0, 2)] + round2(g)
    def fin(t, x, so, o):
        g = Gs(t); s0 = Ss(t)
        return round2(s0) + [pk("v_pk_mul_f32", g + r, g + r, s0 + r) for r in (0, 2)] + round2(g) + \
               [f"v_lshlrev_b32 v{g1}, 16, v{x}", f"v_and_b32 v{g1+1}, s89, v{x}", f"v_lshlrev_b32 v{g1+2}, 16, v{x+1}", f"v_and_b32 v{g1+3}, s89, v{x+1}"] + \
               [pk("v_pk_add_f32", g + r, g + r, g1 + r) for r in (0, 2)] + \
               [f"v_cvt_pk_bf16_f32 v{s0}, v{g}, v{g+1}", f"v_cvt_pk_bf16_f32 v{s0+1}, v{g+2}, v{g+3}",
                f"buffer_store_dwordx2 {vr(s0,2)}, v{vX}, s[12:15], {so} offen offset:{o}"]
    def redu(R):
        return [f"{MF} {vr((Gs if src >= 4 else Ss)(t))}, {vr(SEL + (0 if t else 2))}, {vr(R + src*4)}, {'0' if src in (0, 4) else vr((Gs if src >= 4 else Ss)(t))}"
                for src in order8 for t in range(2)]
    e(poll("KF_q1", lds1(), R1, 48))
    e(mst(46))
    e(redu(R1))
    e([f"{MF} {vr((Gs if q >= 2 else Ss)(2))}, {vr(SEL + 6)}, {vr(RE + q*4)}, {'0' if q % 2 == 0 else vr((Gs if q >= 2 else Ss)(2))}" for q in (2, 3, 0, 1)])
    e(gate(0))
    e(lds2())
    e(gate(1))
    for t in range(2): e(fin(t, XRr + 2 * t, "s83", 32 * t))
    e("s_cmp_eq_u32 s5, 0"); e("s_cbranch_scc1 KF_r2")
    for x in gate(2) + fin(2, XRr + 8, "s87", 256): e(C(x))
    e("KF_r2:")
    e(stamp(11))
    e(poll("KF_q2", lds2(), R2, 32))
    e(mst(50))
    e(redu(R2))
    for t in range(2): e(gate(t))
    for t in range(2): e(fin(t, XRr + 4 + 2 * t, "s83", 128 + 32 * t))
    k.begin(name="fin")
    e("KF_fin:")
    if stamps:
        e(stamp(12)); e("s_waitcnt vmcnt(0)"); e(stamp(13))
        e("s_lshl_b32 s72, s2, 2"); e("s_add_u32 s72, s72, s3"); e("s_lshl_b32 s72, s72, 8"); e(f"s_add_u32 s72, s72, {200<<20}")
        e(f"v_lshrrev_b32 v2, 2, v{vL16}")
        e(f"buffer_store_dword v{STV}, v2, s[16:19], s72 offen")
        if "probe" in opt:
            e(f"s_cmp_lg_u32 s2, {opt.get('pw', 133)}"); e("s_cbranch_scc1 KF_end"); e("s_cmp_lg_u32 s3, 0"); e("s_cbranch_scc1 KF_end")
            if opt["probe"] >= 0: e(f"v_readlane_b32 s72, v{STV}, {32 + opt['probe']}")
            else: e("s_mov_b32 s72, s38")
            e("s_nop 3"); e("s_add_u32 s72, s72, 10000")
            e("KF_pw:"); e("s_memrealtime s[98:99]"); e("s_waitcnt lgkmcnt(0)"); e("s_sub_u32 s73, s72, s98"); e("s_cmp_lt_u32 s73, 20000"); e("s_cbranch_scc1 KF_pw")
        if opt.get("dbg"):
            e(f"s_cmp_lg_u32 s2, {opt['dbg']}"); e("s_cbranch_scc1 KF_end"); e("s_cmp_lg_u32 s3, 1"); e("s_cbranch_scc1 KF_end")
            e(srd(20, 58, 64)); e(f"v_readlane_b32 s72, v{STV}, 32"); e("v_subrev_u32 v2, 124, v2"); e(f"v_subrev_u32 v{STV}, s72, v{STV}")
            e("s_mov_b32 exec_lo, 0"); e(f"buffer_store_dword v{STV}, v2, s[20:23], 0 offen")
    e("KF_end:")
    e("s_endpgm")

    for i, blk in enumerate(ool):
        k.begin(name=f"ool{i}")
        e(blk); e("s_endpgm")
    Mx = W + 8; AL = W + 12; TT = W + 16
    k.begin(name="slow_pre")
    e("KF_codeend:")
    e("KF_slow:")
    e("s_waitcnt vmcnt(0) lgkmcnt(0)"); e("s_nop 15")
    for i in range(128): e(f"v_accvgpr_write_b32 a{i}, 0")
    for u in range(4): e(f"v_mov_b32 v{L+u}, 0"); e(f"v_mov_b32 v{Mx+u}, 0xff7fffff")
    e("s_mov_b32 s72, 0"); e("s_mov_b32 s68, s82")
    k.begin(loop=16, name="slow_loop")
    e("KF_sloop:")
    for q in range(4):
        for f in range(4):
            ff = q * 4 + f
            e(f"buffer_load_dwordx4 {KF(1, ff) if ff < 8 else VF(1, ff - 8)}, v{vL16}, s[16:19], s68 offen offset:{f*1024} sc1")
        e("s_add_u32 s68, s68, 4096")
    for u in range(4):
        e(qk(u, lambda f: KF(1, f), zero=True))
        s0 = S(u); m = W + u
        e(f"v_max3_f32 v{m}, v{s0}, v{s0+1}, v{s0+2}"); e(f"v_max3_f32 v{m}, v{m}, v{s0+3}, v{s0+4}")
        e(f"v_max3_f32 v{m}, v{m}, v{s0+5}, v{s0+6}"); e(f"v_max3_f32 v{m}, v{m}, v{s0+7}, v{Mx+u}")
        e(xlane("v_max_f32", m, W + 4))
        e(f"v_sub_f32 v{AL}, v{Mx+u}, v{m}"); e(f"v_exp_f32 v{AL}, v{AL}"); e(f"v_mov_b32 v{Mx+u}, v{m}")
        e(f"v_mul_f32 v{L+u}, v{L+u}, v{AL}")
        for i in range(8):
            e(f"v_sub_f32 v{s0+i}, v{s0+i}, v{m}"); e(f"v_exp_f32 v{s0+i}, v{s0+i}")
        for i in range(8): e(f"v_add_f32 v{L+u}, v{L+u}, v{s0+i}")
        for i in range(4): e(f"v_cvt_pk_bf16_f32 v{P+i}, v{s0+2*i}, v{s0+2*i+1}")
        for dt in range(8):
            for r in range(4): e(f"v_accvgpr_read_b32 v{TT+r}, a{O(dt,u)+r}")
            for r in range(4): e(f"v_mul_f32 v{TT+r}, v{TT+r}, v{AL}")
            for r in range(4): e(f"v_accvgpr_write_b32 a{O(dt,u)+r}, v{TT+r}")
        e(pv(u, 1, 0))
    e("s_add_u32 s72, s72, 1"); e("s_cmp_lt_u32 s72, 16"); e("s_cbranch_scc1 KF_sloop")
    k.begin(name="slow_post")
    e("s_nop 15")
    for u in range(4): e(xlane("v_add_f32", L + u, W + 4))
    e("s_nop 15")
    e("s_branch KF_epi")
    pre = ["p0a", "gemm", "attn_first"]
    k.paths = []
    for na in (1, 2, 4):
        for nl in (1, 2):
            mid = pre + ["attn_loop"] * na + ["attn_last", "oepi"]
            if na > 1 and nl > 1 and (na, nl) != (4, 2): continue
            k.paths.append(mid + ["g_pre"] + ["L0", "L1"] * nl + ["final", "fin"])
            k.paths.append(mid + ["s_pre"] + ["L0", "L1"] * nl + ["final", "fin"])
    return kstart(name) + k.finish(), kdesc(name, 512, 256), (name, 256, 256, 163840)
```

```python
from lib import *
from lib import _mk
from common import *
import math

SLOT = 36864
SPARE = 4 * SLOT
MF = "v_mfma_f32_16x16x32_bf16"
QSCALE = math.log2(math.e) / math.sqrt(128.0)
SPIN_MAX = 100000
KNAME = "recurrent_scan__sliding_block_cached__dense_activation_relu__prompt_kernel"

def flat(l): return [x for y in l for x in y]

def gen_kf(name=KNAME, stamps=False, opt=None):
    opt = opt or {}
    k = Kernel(name)
    k.cur.name = 'p0a'
    e = k.e
    vL16, vDQ, vD1, vS0, vP5, vZ, vTOK, vL, vT = 1, 2, 3, 4, 5, 6, 7, 8, 9
    vST = [10, 11, 12, 13]
    vT2 = 14; STV = 15
    XV = 16; QA = 48; AF = 176; NF = 6; LEAD = 4
    FA = 200; T = 232; vB = 248
    vXN = [232, 233, 234, 235]; vKO, vVO = 254, 255
    B1, B3, B5, B7 = 64, 96, 128, 160
    def X(u, s):
        h, idx = u >> 1, s * 2 + (u & 1)
        return ar(h * 128 + idx * 4) if idx < 32 else vr(XV + h * 16 + (idx - 32) * 4)
    def qa(nt, u): return QA + (nt * 4 + u) * 4
    def Qf(u, s): return vr(qa(2 * s, u))
    def fa(a, u): return FA + a * 16 + u * 4
    def stamp(i):
        if not stamps: return []
        return ["s_memtime s[98:99]", "s_waitcnt lgkmcnt(0)", f"v_writelane_b32 v{STV}, s98, {i}",
                "s_memrealtime s[98:99]", "s_waitcnt lgkmcnt(0)", f"v_writelane_b32 v{STV}, s98, {32+i}"]
    def mst(i):
        if not (stamps and opt.get("fine")): return ["s_nop 0"] if False else []
        return ["s_memtime s[98:99]", "s_waitcnt lgkmcnt(0)", "s_nop 0", f"v_writelane_b32 v{STV}, s98, {i}"]
    def C(t): return Inst(t, "cond")
    uid = [0]
    def lab(p): uid[0] += 1; return f"KF_{p}{uid[0]}"
    def flag_store(sreg, nl, voff, allw=False):
        lb = lab("nf")
        m = ["s_mov_b64 exec, %#x" % ((1 << nl) - 1)] if nl < 32 else ["s_mov_b32 exec_hi, 0"]
        body = m + [f"buffer_store_dword v{vTOK}, v{voff}, s[16:19], {sreg} offen sc1", "s_mov_b64 exec, -1"]
        if allw: return body
        return ["s_cmp_lg_u32 s3, 0", f"s_cbranch_scc1 {lb}"] + [C(x) for x in body] + [f"{lb}:"]
    ool = []
    def spin(load, regs, ret=None):
        lb = lab("sp"); dn = ret or lab("sd")
        out = ["s_mov_b32 s73, 0", f"{lb}:", load, "s_waitcnt vmcnt(0)"] + cmpf(regs)
        out += ["s_add_u32 s73, s73, 1", f"s_cmp_ge_u32 s73, {SPIN_MAX}", f"s_cbranch_scc1 {dn}", f"s_cbranch_vccz {dn}", "s_sleep 2", f"s_branch {lb}"]
        if not ret: out.append(f"{dn}:")
        return out
    def cmpf(regs):
        out = []
        if len(regs) > 1:
            out += [f"v_xor_b32 v{r}, v{r}, v{vTOK}" for r in regs]
            out += [f"v_or_b32 v{regs[0]}, v{regs[0]}, v{r}" for r in regs[1:]]
            out += [f"v_cmp_ne_u32 vcc, 0, v{regs[0]}"]
        else:
            out += [f"v_cmp_ne_u32 vcc, v{regs[0]}, v{vTOK}"]
        return out
    def check(load, regs):
        a, b = lab("ck"), lab("cr")
        ool.append([f"{a}:"] + spin(load, regs, b))
        return cmpf(regs), ["s_nop 0", f"s_cbranch_vccnz {a}", f"{b}:"]
    def xlane(op, r, t, both=True):
        o = [f"v_mov_b32 v{t}, v{r}", f"v_permlane32_swap_b32 v{t}, v{r}", f"{op} v{r}, v{r}, v{t}"] if both else []
        return o + [f"v_mov_b32 v{t}, v{r}", f"v_permlane16_swap_b32 v{t}, v{r}", f"{op} v{r}, v{r}, v{t}"]
    def ident(ID, t0, t1):
        o = [f"v_lshrrev_b32 v{t0}, 4, v{vL16}", f"v_and_b32 v{t1}, 15, v{t0}", f"v_lshrrev_b32 v{t0}, 4, v{t0}", f"v_lshlrev_b32 v{t0}, 3, v{t0}",
             f"v_sub_u32 v{t0}, v{t1}, v{t0}", f"v_and_b32 v{t1}, 1, v{t0}", f"v_lshlrev_b32 v{t1}, 4, v{t1}", f"v_mov_b32 v{ID}, 0x3f80",
             f"v_lshlrev_b32 v{t1}, v{t1}, v{ID}", f"v_ashrrev_i32 v{t0}, 1, v{t0}"]
        for h in range(2):
            for r in range(4):
                o.append([f"v_cmp_eq_i32 vcc, {r - 8*h}, v{t0}", "s_nop 1", f"v_cndmask_b32 v{ID+4*h+r}, 0, v{t1}, vcc"])
        return o
    def tr_mf(D, A, ID): return [f"{MF} {vr(D + (h*2+r)*4)}, {vr(A + 4*r)}, {vr(ID + 4*h)}, 0" for h in range(2) for r in range(2)]
    def tr_cvt(o, D, h): return [f"v_cvt_pk_bf16_f32 v{o+2*r+q}, v{D+(h*2+r)*4+2*q}, v{D+(h*2+r)*4+2*q+1}" for r in range(2) for q in range(2)]

    e("s_cmp_ge_u32 s2, 256"); e("s_cbranch_scc1 KF_end")
    if opt.get("scr"):
        e("s_and_b32 s4, s2, 7"); e("s_bfe_u32 s5, s2, 0x30003"); e("s_andn2_b32 s2, s2, 63"); e("s_lshl_b32 s4, s4, 3"); e("s_or_b32 s2, s2, s4"); e("s_or_b32 s2, s2, s5")
    e("s_load_dwordx16 s[40:55], s[0:1], 0")
    e("s_load_dwordx4 s[56:59], s[0:1], 64")
    e("s_load_dwordx2 s[60:61], s[0:1], 80")
    e("s_memrealtime s[38:39]")
    if opt.get("cpf0", 8):
        e("s_getpc_b64 s[96:97]"); e(f"s_mov_b32 s98, {opt.get('cpf0', 8) * 1024}"); e("s_mov_b32 s99, 0x20000")
        e("v_lshlrev_b32 v27, 7, v0")
        e("buffer_load_dword v31, v27, s[96:99], 0 offen", "tch")
    e("v_lshrrev_b32 v20, 6, v0")
    e("v_and_b32 v21, 63, v0")
    e("v_readfirstlane_b32 s3, v20")
    e("s_and_b32 s64, s2, 7"); e("s_bfe_u32 s65, s2, 0x20003")
    e("s_and_b32 s62, s2, 3"); e("s_lshl_b32 s62, s62, 3"); e("s_and_b32 s63, s2, 4"); e("s_add_u32 s62, s62, s63"); e("s_add_u32 s62, s62, s65")
    e("s_lshr_b32 s63, s2, 5")
    e("s_lshl_b32 s66, s63, 5"); e("s_add_u32 s66, s66, s62")
    e("v_lshrrev_b32 v22, 5, v0"); e("v_mul_u32_u24 v22, 1152, v22")
    e("v_and_b32 v23, 31, v21"); e("v_lshl_add_u32 v22, v23, 4, v22")
    e("s_mul_i32 s67, s66, 9216")
    for r in range(56, 60): e(f"v_mov_b32 v{r}, 0")
    e(f"v_mov_b32 v{vZ}, 0")
    e(f"v_lshlrev_b32 v{vL16}, 4, v21")
    e("s_waitcnt lgkmcnt(0)")
    e(srd(32, 40, 2048 * 1152))
    e(f"buffer_load_dwordx4 {vr(48)}, v22, s[32:35], s67 offen")
    e(f"buffer_load_dwordx4 {vr(52)}, v22, s[32:35], s67 offen offset:512")
    e("s_mov_b32 exec_lo, 0xff"); e("s_mov_b32 exec_hi, 0xff")
    e(f"buffer_load_dwordx4 {vr(56)}, v22, s[32:35], s67 offen offset:1024")
    e("s_mov_b64 exec, -1")
    e(stamp(0))
    e(srd(8, 46, 576 * 8192)); e(srd(20, 58, 256))
    e("s_or_b32 s77, s2, s3"); e("s_cbranch_scc1 KF_w0")
    e(C("s_or_b32 s38, s38, 1")); e(C("v_mov_b32 v28, s38")); e(C("s_mov_b64 exec, 1"))
    e(C(f"buffer_store_dword v28, v{vZ}, s[20:23], 0 offen sc1")); e(C("s_mov_b64 exec, -1"))
    e("KF_w0:")
    e(srd(16, 60, WS_SIZE)); e(srd(12, 52, 576 * 9216)); e(srd(24, 42, 8388608)); e(srd(28, 44, 8388608))
    e("v_lshrrev_b32 v28, 1, v21"); e("v_and_b32 v29, 1, v21"); e("v_lshlrev_b32 v29, 7, v29")
    e("v_lshl_add_u32 v34, v28, 13, v29"); e("v_mul_u32_u24 v239, 9216, v21")
    e("s_sub_u32 s77, s3, 1"); e("s_lshl_b32 s77, s77, 3"); e("s_add_u32 s77, s77, s63"); e(f"s_mul_i32 s4, s77, {24*8192}"); e("s_lshl_b32 s5, s63, 2"); e("s_add_u32 s5, s5, s3"); e(f"s_mul_i32 s5, s5, {18*9216}")
    e("s_lshr_b32 s70, s62, 1"); e("s_and_b32 s71, s62, 1")
    e("s_lshl_b32 s6, s70, 6"); e("s_add_u32 s6, s6, s5"); e("s_add_u32 s6, s6, 8192")
    e("s_lshl_b32 s79, s62, 8"); e("s_add_u32 s4, s4, s79"); e("s_add_u32 s5, s5, s79")
    wq_touch = ["s_mov_b32 exec_hi, 0xffff", "buffer_load_dword v31, v34, s[8:11], s4 offen", "s_mov_b64 exec, -1"]
    def w1_touch(i):
        return [Inst("s_mov_b64 exec, 0x3ffff"), Inst(f"buffer_load_dword v0, v239, s[12:15], {('s5','s5','s6')[i]} offen offset:{(0,128,0)[i]}", "tch"), Inst("s_mov_b64 exec, -1")]
    def not_w0(body, maxw=3):
        lb = lab("nw")
        return ["s_sub_u32 s72, s3, 1", f"s_cmp_ge_u32 s72, {maxw}", f"s_cbranch_scc1 {lb}"] + [C(x) for x in body] + [f"{lb}:"]
    ORD = opt.get("ord", 1)
    CPF = opt.get("codepf", 2)
    code_touch = ["s_getpc_b64 s[68:69]", "KF_pc:", f"s_sub_u32 s96, s68, KF_pc-{name}", "s_subb_u32 s97, s69, 0", f"s_mov_b32 s98, KF_codeend-{name}", "s_mov_b32 s99, 0x20000",
                  "s_lshr_b32 s94, s2, 3", "s_lshl_b32 s94, s94, 2", "s_add_u32 s94, s94, s3", "s_mul_i32 s94, s94, 640",
                  "v_lshlrev_b32 v27, 7, v21", "s_mov_b64 exec, 31", Inst("buffer_load_dword v31, v27, s[96:99], s94 offen", "tch"), "s_mov_b64 exec, -1"]
    if CPF == 1: e(code_touch)
    e("v_and_b32 v24, 15, v21"); e("v_lshrrev_b32 v25, 4, v21")
    e(f"v_lshlrev_b32 v{vKO}, 8, v24"); e(f"v_lshl_add_u32 v{vVO}, v25, 4, v{vKO}"); e(f"v_lshl_add_u32 v{vKO}, v25, 3, v{vKO}")
    e("v_lshrrev_b32 v28, 5, v21"); e("v_lshlrev_b32 v29, 1, v28"); e("v_and_b32 v30, 3, v21"); e("v_xor_b32 v29, v29, v30")
    e("v_lshlrev_b32 v29, 4, v29"); e("v_lshrrev_b32 v32, 2, v21")
    e(f"v_lshl_add_u32 v{vDQ}, v32, 13, v29")
    e(f"v_mul_u32_u24 v{vD1}, 9216, v32"); e(f"v_add_u32 v{vD1}, v{vD1}, v29")
    e("v_bfe_u32 v32, v21, 2, 2"); e("v_lshlrev_b32 v32, 6, v32"); e("v_lshl_add_u32 v32, v30, 3, v32")
    e("v_and_b32 v26, 1, v25"); e("v_lshl_add_u32 v32, v26, 5, v32")
    e(f"v_lshl_add_u32 v{vS0}, v25, 9, v32")
    e("v_bfe_u32 v33, v21, 2, 2"); e(f"v_lshlrev_b32 v{vP5}, 10, v25"); e(f"v_lshl_add_u32 v{vP5}, v33, 7, v{vP5}"); e(f"v_lshl_add_u32 v{vP5}, v30, 3, v{vP5}")
    e("v_lshrrev_b32 v33, 1, v33"); e(f"v_lshl_add_u32 v{vP5}, v33, 5, v{vP5}"); e(f"v_lshl_add_u32 v{vP5}, v26, 6, v{vP5}")
    e("v_lshrrev_b32 v33, 3, v21"); e("v_mul_u32_u24 v238, 9216, v33"); e("v_and_b32 v33, 7, v21"); e("v_lshlrev_b32 v35, 1, v26"); e("v_xor_b32 v33, v33, v35")
    e("v_and_b32 v35, 1, v20"); e("v_lshlrev_b32 v35, 2, v35"); e("v_xor_b32 v33, v33, v35"); e("v_lshl_add_u32 v238, v33, 4, v238")
    e("v_lshl_add_u32 v32, v26, 9, v32"); e(f"v_lshl_add_u32 v{vB}, v28, 12, v32"); e(f"v_xor_b32 v{vB+1}, 32, v{vB}")
    for r in range(2, 6): e(f"v_add_u32 v{vB+r}, 0x10000, v{vB+r-2}")
    e("s_lshl_b32 s69, s63, 4"); e("s_lshl_b32 s78, s3, 2"); e("s_add_u32 s69, s69, s78"); e("s_lshl_b32 s78, s71, 1")
    for u in range(4):
        e(f"s_xor_b32 s79, s78, {u}"); e("s_add_u32 s79, s79, s69")
        e("s_mul_i32 s80, s79, 18432"); e(f"v_add_u32 v{vXN[u]}, s80, v{vL16}")
        e(f"s_mul_i32 s80, s79, {272*1024}"); e(f"v_add_u32 v{vST[u]}, s80, v{vL16}")
    e("v_lshrrev_b32 v36, 5, v0"); e("v_and_b32 v37, 7, v21"); e("v_xor_b32 v36, v36, v37"); e("v_lshlrev_b32 v36, 4, v36")
    e("v_lshl_add_u32 v36, v23, 7, v36"); e(f"v_add_u32 v36, {SPARE}, v36")
    e("v_lshrrev_b32 v38, 3, v21"); e("v_xor_b32 v39, v38, v37"); e("v_lshlrev_b32 v39, 4, v39"); e("v_lshl_add_u32 v39, v38, 7, v39"); e(f"v_add_u32 v39, {SPARE}, v39")
    e("v_lshlrev_b32 v38, 8, v38"); e("v_lshl_add_u32 v38, v37, 4, v38")
    e("s_lshl_b32 s72, s63, 1"); e("s_add_u32 s72, s72, s71")
    e("s_lshl_b32 s73, s70, 19"); e("s_lshl_b32 s74, s72, 13"); e("s_add_u32 s73, s73, s74"); e(f"s_add_u32 s73, s73, {1536*256}")
    e("s_lshl_b32 s74, s3, 6"); e("s_add_u32 s87, s73, s74"); e("s_add_u32 s88, s87, 4096")
    e("s_lshr_b32 s74, s3, 1"); e("s_lshl_b32 s74, s74, 12"); e("s_add_u32 s73, s73, s74")
    e("s_and_b32 s74, s3, 1"); e("s_lshl_b32 s74, s74, 7"); e("s_add_u32 s89, s73, s74")
    e("s_lshl_b32 s82, s70, 18"); e(f"s_add_u32 s82, s82, {WS_KVP}")
    e("s_lshl_b32 s93, s72, 14"); e("s_add_u32 s93, s93, s82"); e("s_lshl_b32 s78, s3, 11"); e("s_add_u32 s93, s93, s78"); e("s_add_u32 s95, s93, 8192")
    e("s_lshl_b32 s90, s70, 7"); e(f"s_add_u32 s90, s90, {FL_KV}"); e("s_lshl_b32 s91, s72, 2"); e("s_add_u32 s91, s91, s90")
    e(f"s_mul_i32 s77, s3, {8*9216}"); e("s_lshl_b32 s79, s62, 8"); e("s_add_u32 s79, s79, s77"); e(f"s_mul_i32 s77, s3, {144*9216}")
    e("s_lshl_b32 s80, s70, 6"); e("s_add_u32 s80, s80, s77"); e("s_add_u32 s80, s80, 8192")
    e("s_mul_i32 s81, s3, 9216")
    e("s_lshl_b32 s83, s62, 12"); e(f"s_add_u32 s83, s83, {WS_ACT}"); e(f"s_add_u32 s84, s83, {128*1024}")
    e("s_lshl_b32 s85, s70, 10"); e(f"s_add_u32 s85, s85, {WS_ACT + 256*1024}")
    e(f"s_mov_b32 s86, {f32bits(QSCALE):#x}")
    e("s_lshl_b32 s37, s62, 8"); e("s_lshl_b32 s67, s3, 6"); e("s_add_u32 s37, s37, s67"); e("s_lshl_b32 s67, s3, 10")
    for i in range(5): e(f"s_mov_b32 s{74+i}, {WS_XN + i*4096}")
    e("s_lshr_b32 s7, s66, 1"); e("s_mul_i32 s7, s7, 18432"); e("s_lshl_b32 s72, s71, 7"); e("s_add_u32 s7, s7, s72")
    e("s_lshl_b32 s36, s63, 12"); e("s_lshl_b32 s72, s62, 2"); e("s_add_u32 s36, s36, s72"); e(f"s_add_u32 s36, s36, {FL_LN}")
    Fv = 64
    for d in range(12):
        e(f"v_lshlrev_b32 v{Fv+2*d}, 16, v{48+d}"); e(f"v_and_b32 v{Fv+2*d+1}, 0xffff0000, v{48+d}")
    e(f"buffer_load_dword v{vTOK}, v{vZ}, s[20:23], 0 offen sc1", "tch")
    if ORD == 1: e(not_w0(wq_touch))
    if ORD == 4: e(not_w0(wq_touch, 1))
    if CPF == 2: e([x.replace("s[68:69]", "s[100:101]").replace("s68", "s100").replace("s69", "s101") if isinstance(x, str) else x for x in code_touch])
    e(stamp(1))
    def pk(op, d, a, b): return f"{op} {vr(d,2)}, {vr(a,2)}, {vr(b,2)}"
    e(pk("v_pk_add_f32", 40, Fv, Fv + 2)); e(pk("v_pk_add_f32", 42, Fv + 4, Fv + 6))
    for d in range(8, 24, 2): e(pk("v_pk_add_f32", 40 + (d & 2), 40 + (d & 2), Fv + d))
    def red(r):
        e(pk("v_pk_add_f32", r, r, r + 2)); e(f"v_add_f32 v{r}, v{r}, v{r+1}")
        for sh in (8, 4, 2, 1): e(f"v_add_f32_dpp v{r}, v{r}, v{r} row_ror:{sh} row_mask:0xf bank_mask:0xf")
        e(xlane("v_add_f32", r, r + 1, both=False))
    red(40)
    e(f"v_mul_f32 v40, {f32bits(-1.0/576):#x}, v40"); e("v_mov_b32 v41, v40")
    e("v_cvt_pk_bf16_f32 v44, v40, v40"); e("v_lshlrev_b32 v44, 16, v44"); e("v_mov_b32 v45, v44")
    for d in range(0, 24, 2):
        if d == 16: e("s_mov_b32 exec_lo, 0xff"); e("s_mov_b32 exec_hi, 0xff")
        t = 92 + (d & 2); a = 88 + (d & 2)
        e(pk("v_pk_add_f32", t, Fv + d, 40))
        if d < 4: e(pk("v_pk_mul_f32", a, t, t))
        else: e(f"v_pk_fma_f32 {vr(a,2)}, {vr(t,2)}, {vr(t,2)}, {vr(a,2)}")
    e("s_mov_b64 exec, -1")
    for d in range(0, 24, 2):
        e(pk("v_pk_add_f32", Fv + d, Fv + d, 44)); e(f"v_cvt_pk_bf16_f32 v{48+d//2}, v{Fv+d}, v{Fv+d+1}")
    red(88)
    def rbf(r): e(f"v_cvt_pk_bf16_f32 v{r}, v{r}, v{r}"); e(f"v_lshlrev_b32 v{r}, 16, v{r}")
    e(f"v_mul_f32 v88, {f32bits(1.0/576):#x}, v88"); rbf(88)
    e(f"v_add_f32 v88, {f32bits(1e-5):#x}, v88"); rbf(88)
    e("v_sqrt_f32 v88, v88")
    for d in range(12):
        e(f"v_lshlrev_b32 v{Fv+2*d}, 16, v{48+d}"); e(f"v_and_b32 v{Fv+2*d+1}, 0xffff0000, v{48+d}")
        if d == 0: rbf(88)
        if d == 1: e("v_rcp_f32 v90, v88")
        if d == 2: e("v_fma_f32 v91, -v88, v90, 2.0")
        if d == 3: e("v_mul_f32 v90, v90, v91"); e("v_mov_b32 v91, v90")
    for d in range(12):
        e(pk("v_pk_mul_f32", Fv + 2 * d, Fv + 2 * d, 90)); e(f"v_cvt_pk_bf16_f32 v{48+d}, v{Fv+2*d}, v{Fv+2*d+1}")
        if d % 4 == 3:
            if d == 11: e("s_mov_b32 exec_lo, 0xff"); e("s_mov_b32 exec_hi, 0xff")
            e(f"ds_write_b128 v36, {vr(48 + d - 3)} offset:{(d//4)*4096}")
    e("s_mov_b64 exec, -1")
    e("s_waitcnt lgkmcnt(0)")
    e("s_barrier")
    e(stamp(2))
    e("s_cmp_lg_u32 s3, 0"); e("s_cbranch_scc1 KF_x123")
    w0 = [f"ds_read_b128 {vr(136+4*q)}, v39 offset:{q*1024}" for q in range(9)]
    for q in range(9):
        w0 += [f"s_waitcnt lgkmcnt({8-q})", f"buffer_store_dwordx4 {vr(136+4*q)}, v38, s[16:19], s7 offen offset:{(q%2)*2048} sc1"]
        if q % 2: w0 += ["s_add_u32 s7, s7, 4096"]
    w0 += ["v_lshlrev_b32 v38, 7, v21", "s_mov_b32 s73, 0"] + mst(62) + ["KF_tk:", "s_waitcnt vmcnt(0)", f"v_cmp_eq_u32 vcc, 0, v{vTOK}",
           "s_add_u32 s73, s73, 1", f"s_cmp_ge_u32 s73, {SPIN_MAX}",
           "s_cbranch_scc1 KF_tkd", "s_cbranch_vccz KF_tkd", f"buffer_load_dword v{vTOK}, v{vZ}, s[20:23], 0 offen sc1", "s_branch KF_tk", "KF_tkd:"]
    w0 += mst(63) + flag_store("s36", 32, 38, allw=True)
    w0 += [f"v_mov_b32 v39, {SPARE + 12288}", f"ds_write_b32 v39, v{vTOK}"]
    for x in w0: e(x if x.endswith(":") else C(x))
    e("KF_x123:")
    if ORD >= 3: e("s_barrier")
    def wq_piece(b):
        return [[f"s_add_u32 m0, s67, {b*4096}", f"s_add_u32 s68, s37, {b*131072}"],
                Inst(f"buffer_load_dwordx4 v{vDQ}, s[8:11], s68 offen lds", "wq")]
    NPW = opt.get("npw", 36); XD = opt.get("xd", 4); XEND = opt.get("xend", 8)
    e(srd(20, 60, WS_SIZE))
    e("s_cmp_lg_u32 s3, 0"); e("s_cbranch_scc1 KF_y123")
    pl = ["v_lshlrev_b32 v38, 2, v23", "s_lshl_b32 s72, s66, 7", f"s_add_u32 s72, s72, {FL_LN}"]
    pl += spin("buffer_load_dword v39, v38, s[16:19], s72 offen sc1", [39]) + ["s_branch KF_y0", "KF_y123:"]
    if ORD >= 2: pl += wq_touch
    pl += ["s_sub_u32 s72, s3, 1", "s_lshl_b32 s94, s62, 8", "KF_wql:", "s_lshl_b32 m0, s72, 10", "s_lshr_b32 s73, s72, 2", "s_lshl_b32 s73, s73, 17",
           "s_and_b32 s68, s72, 3", "s_lshl_b32 s68, s68, 6", "s_add_u32 s68, s68, s73", "s_add_u32 s68, s68, s94",
           f"buffer_load_dwordx4 v{vDQ}, s[8:11], s68 offen lds", "s_add_u32 s72, s72, 3", f"s_cmp_lt_u32 s72, {NPW*4}", "s_cbranch_scc1 KF_wql"]
    pl += [f"s_waitcnt vmcnt({(NPW - 12) * 4 // 3})", "KF_y0:"]
    for x in pl: e(x if x.endswith(":") else C(x))
    e(stamp(3))
    e("s_waitcnt lgkmcnt(0)")
    e("s_barrier")
    e(stamp(4))
    def xn_load(u, s):
        return Inst(f"buffer_load_dwordx4 {X(u, s)}, v{vXN[u]}, s[16:19], s{74 + s//4} offen offset:{(s%4)*1024} sc1", "xn")
    for s in range(XD):
        for u in range(4): e(xn_load(u, s))
    e(f"v_mov_b32 v39, {SPARE + 12288}"); e(f"ds_read_b32 v{vTOK}, v39")
    assert NPW == 36
    e(f"v_mov_b32 v{vDQ}, v238")

    k.begin(name="gemm")
    class Frags:
        def __init__(s, af): s.mf = []; s.fr = []; s.af = af
        def add(s, vbase, off, ms, d2=256):
            b = s.af + (len(s.fr) % NF) * 4
            s.fr.append((len(s.mf), len(ms), [f"ds_read_b64_tr_b16 {vr(b,2)}, v{vbase} offset:{off}",
                                              f"ds_read_b64_tr_b16 {vr(b+2,2)}, v{vbase} offset:{off+d2}"], vr(b)))
            s.mf += [m.replace("@A", vr(b)) for m in ms]
        def chain(s):
            fr = s.fr; flip = False
            for f in range(0, len(fr) - 1, 2):
                g0, n = fr[f][0], fr[f][1]
                assert fr[f + 1][0] == g0 + n and fr[f + 1][1] == n
                a, b = s.mf[g0:g0 + n], s.mf[g0 + n:g0 + 2 * n]
                dst = lambda m: m.split()[1]
                assert [dst(m) for m in a] == [dst(m) for m in b]
                prev = dst(s.mf[g0 - 1]) if g0 else None
                us = list(range(n))
                if prev == dst(a[-1]): us.reverse()
                out = []
                for i, u in enumerate(us):
                    out += [a[u], b[u]] if (i % 2 == 0 or a[u].endswith(", 0")) else [b[u], a[u]]
                s.mf[g0:g0 + 2 * n] = out
            s.paired = True
        def sched(s, wrap=False):
            sc = Sched(s.mf); fr = s.fr; N = len(fr)
            if getattr(s, "paired", False):
                for f in range(0, N, 2):
                    g0, n = fr[f][0], fr[f][1]
                    if f + LEAD < N or wrap:
                        rd = fr[(f + LEAD) % N][2] + fr[(f + LEAD + 1) % N][2]
                        for i, g in enumerate((0, 1, 4, 5) if n == 4 else (0, 1, 2, 3)): sc.put(g0 + g, rd[i])
                    if f + 2 < N or wrap:
                        sc.put(g0 + (5 if n == 4 else 3), WaitRegs(fr[(f + 2) % N][3], fr[(f + 3) % N][3]))
                return sc
            for f in range(N):
                g0, n, _, _ = fr[f]
                if f + LEAD < N or wrap:
                    sc.put(g0, fr[(f + LEAD) % N][2][0]); sc.put(g0 + 1, fr[(f + LEAD) % N][2][1])
                if (f + 1 < N or wrap) and (n == 4 or f % 2 == 0):
                    sc.put(g0 + 1, WaitRegs(*([fr[(f + 1) % N][3]] + ([fr[f + 2][3]] if n == 2 and f + 2 < N else []))))
            return sc
    G = Frags(AF); pos = {}
    KL, VL, VD, VO, ID = 200, 208, 216, 208, 240
    KVS = opt.get("kvs", 15)
    for s2 in range(0, 18, 2):
        for nt in range(8):
            if nt % 4 == 0:
                pos["Q", s2 + nt // 4] = len(G.mf)
                if s2 + nt // 4 == KVS: G.mf += tr_mf(VD, VL, ID)
            for s in (s2, s2 + 1):
                G.add(vB + 2 * (s // 8) + (nt & 1), (s % 8) * 8192 + (nt >> 1) * 1024,
                      [f"{MF} {vr(qa(nt,u))}, @A, {X(u,s)}, {'0' if s == 0 else vr(qa(nt,u))}" for u in range(4)])
    S = lambda u: (B1 if u < 2 else B3) + (u & 1) * 8
    def KF(b, f): return ar(128 + b * 32 + f * 4)
    def VF(b, f): return ar(192 + b * 32 + f * 4)
    K0F = lambda f: vr(B5 + f * 4) if f < 4 else vr(B7 + (f - 4) * 4)
    NEGM = B5; P = B7; L = XV + 16; FL = XV + 24
    def qk(u, kf, zero=False):
        out = []
        for kt in range(2):
            for s in range(4):
                c = vr(S(u) + 4 * kt)
                out.append(f"{MF} {c}, {kf(kt*4+s)}, {Qf(u, s)}, {c if s else ('0' if zero else vr(NEGM + 4*u))}")
        return out
    sb = lambda st, a: vB + (st & 1) * 2 + a
    for st in range(5):
        us = (0, 1) if st == 4 else (0, 1, 2, 3)
        for f in range(36):
            a, s = f // 18, f % 18
            pos["F", st, f] = len(G.mf)
            if st == 3 and f == 8:
                pos["QK0"] = len(G.mf)
                for u in range(4): G.mf += qk(u, K0F, zero=True)
                pos["QK0e"] = len(G.mf)
            ms = [f"{MF} {vr(fa(a,u))}, @A, {X(u,s)}, {'0' if s == 0 else vr(fa(a,u))}" for u in us]
            if st == 4: G.add(vB + 4 + a, s * 2048, ms)
            else: G.add(vB + 2 * a + (s >= 9), (s % 9) * 4096, ms, 512)
    END = len(G.mf)
    for f in range(LEAD): e(G.fr[f][2])
    G.chain()
    sc = G.sched()
    F = lambda st, f: pos["F", st, f]
    Qp = lambda s: pos["Q", s] if s < 18 else F(0, 0)
    def bar(g, *w): sc.put(g, list(w) + ["s_barrier"])
    bar(Qp(5) + 2)
    bar(Qp(10) + 2)
    bar(Qp(17) + 2, WaitTag(["f0"], 0))
    bar(F(0, 4) + 2, WaitTag(["kvst"], 0))
    bar(F(1, 28) + 2, WaitTag(["f1"], 0))
    bar(F(2, 0) + 6)
    bar(F(3, 0) + 6, WaitTag(["kv0"], 0))
    bar(F(3, 28) + 2, WaitTag(["f2", "dma"], 0))
    bar(F(4, 2))
    for s in range(2, 18, 2): sc.add([WaitRegs(*[X(u, s + q) for u in range(4) for q in range(2)])], Qp(s) - 4, Qp(s), spread=False)
    xp = sc.add([xn_load(u, s) for s in range(XD, 18) for u in range(4)], 2, Qp(XEND))
    for i, g in enumerate(xp): assert g < Qp((XD + i // 4) & ~1) - 24, (i, g)
    def pair_piece(pr, i):
        return [[f"s_add_u32 m0, s67, {pr*2*SLOT + i*4096}", f"s_add_u32 s68, s79, {pr*128 + i*32*9216}"],
                Inst(f"buffer_load_dwordx4 v{vDQ}, s[12:15], s68 offen lds", f"f{pr}")]
    def sp_piece(p):
        return [[f"s_add_u32 m0, s81, {p*1024}", f"s_add_u32 s68, s80, {p*16*9216}"],
                Inst(f"buffer_load_dwordx4 v{vD1}, s[12:15], s68 offen lds", "f2")]
    def lin_pieces(ldsb, ldsoff, src, srcoff, n=9, tag="dma"):
        out = []
        for p in range(n):
            if p % 4 == 0: out.append([f"s_add_u32 m0, {ldsb}, {ldsoff + p*1024}", f"s_add_u32 s68, {src}, {srcoff + p*1024}"])
            out.append(Inst(f"buffer_load_dwordx4 v{vL16}, s[20:23], s68 offen offset:{(p%4)*1024} sc1 lds", tag))
        return out
    F0AT = opt.get("f0at", 12)
    sc.add(flat([pair_piece(0, i) for i in range(18)]), Qp(F0AT), Qp(opt.get("f0end", 16)))
    kvl = []
    for f in range(2):
        kvl += [f"buffer_load_dwordx2 {vr(KL+4*f,2)}, v{vKO}, s[24:27], s89 offen offset:{f*64}", f"buffer_load_dwordx2 {vr(KL+2+4*f,2)}, v{vKO}, s[24:27], s89 offen offset:{f*64+32}"]
    kvl += [f"buffer_load_dwordx4 {vr(VL)}, v{vVO}, s[28:31], s87 offen", f"buffer_load_dwordx4 {vr(VL+4)}, v{vVO}, s[28:31], s88 offen"]
    T1 = opt.get("t1", XEND); T2 = opt.get("t2", 12)
    kvt = [Inst("s_mov_b64 exec, 0xffff"), Inst(f"buffer_load_dword v0, v{vKO}, s[24:27], s89 offen", "tch"),
           Inst(f"buffer_load_dword v0, v{vKO}, s[28:31], s89 offen", "tch"), Inst("s_mov_b64 exec, -1")]
    tlb = []
    if opt.get("tlb", 0):
        tlb = [["s_lshr_b32 s72, s2, 3", "s_lshl_b32 s72, s72, 2", "s_add_u32 s72, s72, s3"],
               [Inst(f"s_mul_i32 s72, s72, {768*1024}"), Inst("s_mov_b64 exec, 1"), Inst(f"buffer_load_dword v0, v{vZ}, s[16:19], s72 offen offset:64 sc1", "tch"), Inst("s_mov_b64 exec, -1")]]
    sc.add([w1_touch(0), kvt] + tlb, Qp(T1), Qp(T1) + 16)
    sc.add(kvl[4:] + kvl[:4], Qp(T2), Qp(T2) + 30)
    sc.add(ident(ID, vT, vL), Qp(10), Qp(KVS - 1))
    sc.add([WaitRegs(vr(VL), vr(VL + 4))], Qp(KVS) - 3, Qp(KVS), spread=False)
    kst = [Inst(f"buffer_store_dwordx4 {vr(KL+4*f)}, v{vL16}, s[16:19], s93 offen offset:{f*1024} sc1", "kvst") for f in range(2)]
    for h in range(2):
        kst += tr_cvt(VO + 4 * h, VD, h) + [Inst(f"buffer_store_dwordx4 {vr(VO+4*h)}, v{vL16}, s[16:19], s95 offen offset:{h*1024} sc1", "kvst")]
    sc.add(kst, Qp(KVS) + 6, Qp(KVS + 1) - 2)
    sc.add([w1_touch(1), w1_touch(2)], Qp(opt.get("t3", 16)) + 8, Qp(opt.get("t3", 16)) + 24)
    sc.add([flag_store("s91", 1, vZ)], F(0, 4) + 3, F(0, 4) + 8)
    sc.add(flat([pair_piece(1, i) for i in range(18)]), F(0, opt.get("f2at", 10)), F(1, 2))
    kvld = f"buffer_load_dword v{vT2}, v{vT}, s[16:19], s90 offen sc1"
    sc.add([f"v_bfe_u32 v{vT}, v{vL16}, 4, 4", f"v_lshlrev_b32 v{vT}, 2, v{vT}", kvld], F(1, 0), F(1, 3))
    c1, c2 = check(kvld, [vT2])
    sc.add([c1 + c2], F(1, 20), F(1, 21))
    kv0 = [["s_lshl_b32 s72, s3, 12", "s_add_u32 s70, s82, s72"]] + lin_pieces("s72", SPARE, "s70", 0, 4, "kv0") + [["s_add_u32 s92, s82, s81"]]
    sc.add(kv0, F(1, 21), F(1, 34))
    sc.add(flat([sp_piece(p) for p in range(9)]) + lin_pieces("s81", 1 * SLOT, "s92", 16384), F(2, 2), F(3, 6))
    sc.add(lin_pieces("s81", 2 * SLOT, "s92", 16384 + 32768), F(4, 3), F(4, 30))
    for st in range(4):
        for a in range(2):
            lo, hi = ((Qp(16), Qp(17)) if st == 0 else (F(st - 1, 16), F(st - 1, 30))) if a == 0 else (F(st, 0), F(st, 12))
            sc.add([f"v_xor_b32 v{vB+2*a}, {((st & 1)*2 + a) * 32}, v{vP5}", f"v_add_u32 v{vB+2*a}, {(st >> 1)*2*SLOT}, v{vB+2*a}",
                    f"v_add_u32 v{vB+2*a+1}, {SLOT}, v{vB+2*a}"], lo, hi)
    sc.add([f"v_mov_b32 v{vB+4}, v{vS0}", f"v_xor_b32 v{vB+5}, 32, v{vS0}"], F(2, 4), F(2, 20))
    sc.add([f"v_lshrrev_b32 v{vP5}, 6, v{vL16}", f"v_mul_u32_u24 v{vP5}, 288, v{vP5}", f"v_bfe_u32 v{vT2}, v{vL16}, 4, 2", f"v_lshl_add_u32 v{vP5}, v{vT2}, 3, v{vP5}"], F(3, 14), F(3, 30))
    ids = [["s_cmp_lt_u32 s64, 4", "s_cselect_b32 s24, s48, s54", "s_cselect_b32 s25, s49, s55"],
           [f"s_mov_b32 s26, {4096*1152}", "s_cmp_lt_u32 s64, 4", f"s_cselect_b32 s26, s26, {4608*1152}"],
           ["s_cmp_lt_u32 s64, 4", "s_cselect_b32 s72, 32, 36", "s_cselect_b32 s5, 0, 1"],
           ["s_and_b32 s73, s64, 3", "s_mul_i32 s7, s73, s72"],
           ["s_lshl_b32 s6, s5, 7", "s_add_u32 s6, s6, s7"], [f"s_mul_i32 s7, s7, {32*1152}"],
           ["s_lshr_b32 s72, s2, 3", "s_lshl_b32 s72, s72, 2"], ["s_add_u32 s72, s72, s3", f"s_mul_i32 s72, s72, {41*128}"], ["s_add_u32 s89, s7, s72"],
           [f"s_add_u32 s88, s89, {41*128*128}"], f"v_lshlrev_b32 v{vKO}, 3, v{vL16}"]
    sc.add(ids, F(0, 8), F(0, 34))
    for so, g in (("s89", F(1, 4)), ("s88", F(3, opt.get("wt2", 10)))):
        sc.add([[Inst("s_mov_b32 exec_hi, 0x1ff"), Inst(f"buffer_load_dword v0, v{vKO}, s[24:27], {so} offen", "tch"), Inst("s_mov_b64 exec, -1")]], g, g + 6)
    def epi_a(us): return flat([[f"v_cvt_pk_bf16_f32 v{T+4*u}, v{fa(0,u)}, v{fa(0,u)+1}", f"v_cvt_pk_bf16_f32 v{T+4*u+1}, v{fa(0,u)+2}, v{fa(0,u)+3}",
                                 f"v_pk_max_i16 v{T+4*u}, v{T+4*u}, 0", f"v_pk_max_i16 v{T+4*u+1}, v{T+4*u+1}, 0"] for u in us])
    def epi_b(st, us):
        so, off = ("s85", 0) if st == 4 else ("s84", st * 1024)
        return flat([[f"v_cvt_pk_bf16_f32 v{T+4*u+2}, v{fa(1,u)}, v{fa(1,u)+1}", f"v_cvt_pk_bf16_f32 v{T+4*u+3}, v{fa(1,u)+2}, v{fa(1,u)+3}",
                      f"v_pk_max_i16 v{T+4*u+2}, v{T+4*u+2}, 0", f"v_pk_max_i16 v{T+4*u+3}, v{T+4*u+3}, 0",
                      Inst(f"buffer_store_dwordx4 {vr(T+4*u)}, v{vST[u]}, s[16:19], {so} offen offset:{off} sc1", "st")] for u in us])
    for st in range(5):
        us = (0, 1) if st == 4 else (0, 1, 2, 3)
        sc.add(epi_a(us), F(st, 20 if st < 4 else 22), F(st, 34))
        if st: sc.add(epi_b(st - 1, (0, 1, 2, 3)), F(st, 2 if st < 4 else 4), F(st, 16))
    qe = []
    for s in range(4):
        for u in range(4):
            a, b = qa(2 * s, u), qa(2 * s + 1, u)
            qe += [f"v_mul_f32 v{r}, s86, v{r}" for r in list(range(a, a + 4)) + list(range(b, b + 4))]
            qe += [f"v_cvt_pk_bf16_f32 v{a}, v{a}, v{a+1}", f"v_cvt_pk_bf16_f32 v{a+1}, v{a+2}, v{a+3}",
                   f"v_cvt_pk_bf16_f32 v{a+2}, v{b}, v{b+1}", f"v_cvt_pk_bf16_f32 v{a+3}, v{b+2}, v{b+3}"]
    qp = sc.add(qe, F(0, 1), F(2, 0), spread=False)
    PR = 21504
    pf = [["s_lshl_b32 s72, s63, 2", "s_add_u32 s72, s72, s65"], ["s_lshl_b32 s72, s72, 2", "s_add_u32 s72, s72, s3"],
          [f"s_mul_i32 s78, s72, {8*PR}", f"s_add_u32 s78, s78, {WS_PART if not opt.get('xp') else 0x70000000}"], [f"s_mul_i32 s73, s64, {PR}", "s_add_u32 s74, s78, s73"],
          ["s_add_u32 s75, s74, 5120", "s_add_u32 s76, s74, 10240"], ["s_add_u32 s77, s74, 15360", "s_mov_b32 s95, s74"]]
    sc.add(pf, F(1, 34), F(2, 4))
    sc.add([f"v_add_u32 v{vL}, {SPARE}, v{vL16}"], F(2, 30), F(2, 34))
    sc.add([f"ds_read_b128 {K0F(f)}, v{vL} offset:{f*1024}" for f in range(8)], F(3, 1) + 3, F(3, 7))
    sc.add([WaitRegs(*[K0F(f) for f in range(8)])], pos["QK0"] - 2, pos["QK0"], spread=False)
    M = lambda u: NEGM + 4 * u
    pa = []
    for u in range(4):
        s0 = S(u); m = M(u)
        pa += [f"v_max3_f32 v{m}, v{s0}, v{s0+1}, v{s0+2}", f"v_max3_f32 v{m}, v{m}, v{s0+3}, v{s0+4}",
               f"v_max3_f32 v{m}, v{m}, v{s0+5}, v{s0+6}", f"v_max_f32 v{m}, v{m}, v{s0+7}"]
    xl = [xlane("v_max_f32", M(u), M(u) + 1) for u in range(4)]
    for i in range(6): pa += [xl[u][i] for u in range(4)]
    for u in range(4):
        pa += [f"v_sub_f32 v{S(u)+i}, v{S(u)+i}, v{M(u)}" for i in range(8)] + [f"v_sub_f32 v{M(u)+i}, 0, v{M(u)}" for i in (3, 2, 1, 0)]
    for u in range(4): pa += [f"v_exp_f32 v{S(u)+i}, v{S(u)+i}" for i in range(8)]
    for u in range(4): pa += [f"v_cvt_pk_bf16_f32 v{P+4*u+i}, v{S(u)+2*i}, v{S(u)+2*i+1}" for i in range(4)]
    pp = sc.add(pa, pos["QK0e"] + 3, F(4, 6), spread=False)
    pl = []
    for u in range(4):
        s0 = S(u)
        pl += [f"v_add_f32 v{L+u}, v{s0}, v{s0+2}", f"v_add_f32 v{L+4+u}, v{s0+1}, v{s0+3}"]
        pl += [f"v_add_f32 v{L+u+4*(i&1)}, v{L+u+4*(i&1)}, v{s0+i}" for i in range(4, 8)]
    sc.add(pl, max(F(4, 1), pp[-1] + 1), END)
    sc.add([f"ds_read_b128 {VF(0, f)}, v{vL} offset:{8192 + f*1024}" for f in range(8)], F(4, 32), END, spread=False, mind=1)
    if stamps and opt.get("fine"):
        for i, g in enumerate([Qp(1), Qp(3), Qp(5), Qp(5) + 4, Qp(7), Qp(9), Qp(11), Qp(13), Qp(15), Qp(17), F(0, 0), F(0, 18), F(1, 0), F(2, 0), F(2, 6), F(3, 0), pos["QK0"], F(4, 0)]):
            sc.gap[g] = sc.gap[g] + [_mk(x) for x in mst(14 + i)]
    e(sc.flat())
    e(stamp(5))

    def O(dt, u): return (dt * 4 + u) * 4
    def pv(u, b, pb, zero=False):
        return [f"{MF} {ar(O(dt, u))}, {VF(b, dt)}, {vr(P + 4*pb)}, {'0' if zero else ar(O(dt, u))}" for dt in range(8)]
    vD = list(range(16, 25)); vDW = list(range(176, 185)); vTW = 185
    def softmax(u):
        s0 = S(u); sm = []
        for i in range(4):
            a = s0 + 2 * i
            sm += [f"v_exp_f32 v{a}, v{a}", f"v_exp_f32 v{a+1}, v{a+1}"]
            if i: sm += [f"v_add_f32 v{L+u}, v{L+u}, v{a-2}", f"v_add_f32 v{L+4+u}, v{L+4+u}, v{a-1}", f"v_cvt_pk_bf16_f32 v{P+4*u+i-1}, v{a-2}, v{a-1}"]
        return sm + [f"v_cvt_pk_bf16_f32 v{P+4*u+3}, v{s0+6}, v{s0+7}", f"v_add_f32 v{L+u}, v{L+u}, v{s0+6}", f"v_add_f32 v{L+4+u}, v{L+4+u}, v{s0+7}"]
    def ring_dma():
        dm = [["s_xor_b32 s92, s88, s85"], ["s_mul_i32 s92, s92, s97"], ["s_add_u32 s92, s92, s93"]]
        for p in range(9):
            if p % 4 == 0: dm.append([f"s_add_u32 m0, s94, {p*1024}"])
            dm.append(Inst(f"buffer_load_dwordx4 v{vD[p]}, s[20:23], s92 offen offset:{(p%4)*1024} sc1 lds", "dma"))
        return dm + [["s_add_u32 s88, s88, 1"], [f"s_add_u32 s94, s94, {SLOT}"], [f"s_cmp_ge_u32 s94, {4*SLOT}", "s_cselect_b32 s94, s81, s94"]]
    adv_rd = [[f"s_add_u32 s96, s96, {SLOT}"], [f"s_cmp_eq_u32 s96, {4*SLOT}", "s_cselect_b32 s96, 0, s96"]]
    hfl = f"buffer_load_dword v{FL}, v{vT}, s[16:19], s84 offen sc1"
    def BF(b, s, u): return ar(128 + ((b * 4 + s) * 4 + u) * 4)
    def B1st(s, u): return BF(s >> 1, s & 1, u)
    def bload(dst, s, u):
        return Inst(f"buffer_load_dwordx4 {dst}, v{vST[u]}, s[28:31], s79 offen offset:{s*1024} sc1", "b")
    adv_b = [["s_xor_b32 s79, s87, s85", "s_lshl_b32 s79, s79, 12"], ["s_add_u32 s79, s79, s80", "s_add_u32 s87, s87, 1"]]
    def attn_iter(kind):
        first, last = kind == "first", kind == "last"
        mf = []; base = []
        for sl in range(8):
            base.append(len(mf))
            t2 = sl + 2; kb = (t2 // 4) & 1
            if not (last and sl >= 6) and not (first and sl < 2): mf += qk(t2 % 4, lambda f: KF(kb, f))
            mf += pv(sl % 4, (sl // 4) & 1, sl % 4, zero=(first and sl < 4))
        base.append(len(mf))
        sc = Sched(mf)
        for sl in range(8):
            u, half = sl % 4, sl // 4
            n = base[sl + 1] - base[sl]
            if not (last and half == 1):
                nb = (half + 1) & 1
                for i in range(4):
                    f = (u & 1) * 4 + i
                    d, o = (KF(nb, f), 0) if u < 2 else (VF(nb, f), 8192)
                    g = f if n == 8 else base[sl] + (3 + 4 * i if u != 1 else (2, 3, 6, 7)[i])
                    sc.put(g, f"ds_read_b128 {d}, v{vL} offset:{half*16384 + o + f*1024}")
            if u == 1 and not (last and half == 1):
                sc.put(base[sl + 1] - (3 if n == 16 else 1), WaitRegs(*[KF((half + 1) & 1, f) for f in range(8)]))
            if u == 0 and n == 16: sc.put(base[sl] + 5, WaitRegs(*[VF(half & 1, f) for f in range(8)]))
        gb = base[1] + 11
        if first:
            gb = base[4] + 1
            sc.add(ring_dma(), 12, gb - 2)
        sc.put(gb, [WaitTag(["dma"] if first else ["dma", "st"], 9), "s_barrier"])
        dm = ring_dma() + adv_rd
        ONES = 188
        if first: sc.add([f"v_mov_b32 v{ONES+r}, -1" for r in range(4)], 1, 12, spread=False)
        if not last:
            sc.add([Inst(f"buffer_store_dwordx4 {vr(ONES)}, v{vL16}, s[16:19], s95 offen offset:{c*1024} sc1", "pf") for c in range(3)] + [["s_add_u32 s95, s95, 3072"]],
                   base[4] + 3 if first else 2, base[8] - 4)
        if last:
            sc.add([f"v_lshlrev_b32 v{ONES}, 7, v{vL16}", [WaitTag(["pf"], 0)] + flag_store("s89", 8, ONES, allw=True)], base[6], base[8])
            for s in range(4): sc.add([bload(B1st(s, u), s, u) for u in range(4)], base[2 + s] + 1, base[3 + s] + 8)
        if first:
            sc.add([f"v_add_u32 v{vD[p]}, {(p - p % 4)*1024}, v{vL16}" for p in range(9)], 1, 12, spread=False)
            sc.add([Inst(x.text.replace("s85", "s36"), x.tag) if isinstance(x, Inst) else x for x in epi_b(4, (0, 1))], 6, gb)
        sc.add(dm, gb + 1, base[8] - 2)
        for sl in range(8):
            if (last and sl == 7) or (first and sl < 3): continue
            hi = base[sl + 1] + (4 if sl < 7 and not (last and sl >= 5) else 0)
            sc.add(softmax((sl + 1) % 4), base[sl], hi, spread=False)
        if first:
            dw = [f"v_lshrrev_b32 v{vT2}, 4, v{vL16}"]
            for p in range(9):
                r = vDW[p]
                dw += [f"v_add_u32 v{vT}, {64*p}, v{vT2}", f"v_mul_u32_u24 v{r}, 3641, v{vT}", f"v_lshrrev_b32 v{r}, 16, v{r}",
                       f"v_mul_u32_u24 v{r}, {1152 - 288}, v{r}", f"v_lshl_add_u32 v{r}, v{vT}, 4, v{r}"]
                if p % 4: dw.append(f"v_subrev_u32 v{r}, {(p%4)*1024}, v{r}")
            dp = sc.add(dw, 1, base[7], spread=False)
            fa_ = [["s_lshl_b32 s72, s63, 14", "s_lshl_b32 s73, s3, 7"], ["s_add_u32 s72, s72, s73", f"s_add_u32 s72, s72, {FL_P2}"],
                   ["s_lshl_b32 s73, s62, 2", "s_add_u32 s91, s72, s73"], ["s_add_u32 s91, s91, 8192"],
                   ["s_lshr_b32 s73, s62, 3", "s_lshl_b32 s73, s73, 11"], ["s_add_u32 s90, s72, s73", "s_and_b32 s73, s62, 7"], ["s_lshl_b32 s73, s73, 2", "s_add_u32 s90, s90, s73"],
                   ["s_lshl_b32 s73, s64, 2", "s_add_u32 s73, s73, s65"], ["s_lshl_b32 s73, s73, 9", "s_add_u32 s84, s72, s73"],
                   [f"s_add_u32 s37, s84, {FL_EX - FL_P2}", "s_lshl_b32 s73, s64, 11"], ["s_sub_u32 s89, s37, s73", "s_lshl_b32 s73, s64, 2"], ["s_add_u32 s89, s89, s73"],
                   ["s_movk_i32 s73, 0x30", "s_cmp_eq_u32 s5, 0", "s_cselect_b32 s73, s73, 0x1f0"]]
            sc.add(fa_, base[3], base[6])
            sc.add([f"v_and_b32 v{vT}, s73, v{vL16}", f"v_lshrrev_b32 v{vT}, 2, v{vT}", f"v_lshlrev_b32 v{vT2}, 5, v{vL16}",
                    [WaitTag(["st"], 0)] + flag_store("s91", 16, vT2, allw=True)], max(base[7], dp[-1] + 1), base[8])
        e(f"v_add_u32 v{vL}, s96, v{vL16}")
        e(sc.flat())
    k.begin(name="attn_first")
    e(f"s_add_u32 s93, s92, {16384 + 2*32768}"); e("s_mov_b32 s97, 32768"); e("s_mov_b32 s88, 0"); e("s_mov_b32 s36, s85"); e("s_mov_b32 s85, 0")
    e(f"s_add_u32 s94, s81, {3*SLOT}"); e(f"s_mov_b32 s96, {SLOT}")
    e("s_mov_b32 s4, 1"); e("s_mov_b32 s28, s60"); e("s_mov_b32 s29, s61"); e("s_mov_b32 s30, 0")
    attn_iter("first")
    k.begin(loop=6, name="attn_loop")
    e(".p2align 3"); e("KF_aloop:")
    if stamps and opt.get("fine"):
        e(["s_memtime s[98:99]", "s_add_u32 s100, s4, 55", "s_lshl_b32 s100, s100, 4", f"v_cmp_eq_u32 vcc, s100, v{vL16}",
           "s_waitcnt lgkmcnt(0)", "v_mov_b32 v47, s98", f"v_cndmask_b32 v{STV}, v{STV}, v47, vcc"])
    e("s_cmp_eq_u32 s4, 5"); e("s_cbranch_scc1 KF_sw"); e("KF_oolr:")
    attn_iter("loop")
    e("s_add_u32 s4, s4, 1"); e("s_cmp_lt_u32 s4, 7"); e("s_cbranch_scc1 KF_aloop")
    ool.append([
                "KF_sw:",
                "s_mov_b32 s20, s24", "s_mov_b32 s21, s25", "s_mov_b32 s22, s26"] + [f"v_mov_b32 v{vD[p]}, v{vDW[p]}" for p in range(9)] +
               [f"s_mov_b32 s97, {128*1152}", f"s_mul_i32 s93, s3, {32*1152}", "s_add_u32 s93, s93, s7", "s_mul_i32 s72, s65, 288", "s_add_u32 s93, s93, s72",
                "s_lshl_b32 s80, s6, 10", f"s_add_u32 s80, s80, {WS_ACT}", "s_mov_b32 s79, s80", "s_mov_b32 s88, 0", "s_mov_b32 s87, 1",
                "s_cmp_eq_u32 s5, 0", "s_cselect_b32 s85, s65, 0", "s_cselect_b32 s30, 0, s18", hfl] + (
               ["s_getpc_b64 s[72:73]", "KF_pc2:", "s_sub_u32 s8, s72, KF_pc2-KF_nock", "s_subb_u32 s9, s73, 0", "s_mov_b32 s10, KF_codeend-KF_nock",
                "s_lshr_b32 s72, s2, 3", "s_lshl_b32 s72, s72, 2", "s_add_u32 s72, s72, s3", "s_mul_i32 s72, s72, 384",
                "s_mov_b64 exec, 7", Inst(f"buffer_load_dword v0, v{vKO}, s[8:11], s72 offen", "tch"), "s_mov_b64 exec, -1"] if opt.get("cpf2", 1) else []) + [
                "s_branch KF_oolr"])
    k.begin(name="attn_last")
    e("s_cmp_eq_u32 s5, 0"); e("s_cbranch_scc1 KF_nock")
    c1, c2 = check(hfl, [FL])
    for x in ["s_waitcnt vmcnt(18)"] + c1 + c2: e(x if x.endswith(":") else C(x))
    e("KF_nock:")
    attn_iter("last")
    e(stamp(6))
    W = 216
    for u in range(4): e(f"v_add_f32 v{L+u}, v{L+u}, v{L+4+u}")
    xl = [xlane("v_add_f32", L + u, W + 4 + u) for u in range(4)]
    for i in range(6):
        for u in range(4): e(xl[u][i])
    e(f"v_add_f32 v{W+1}, v{L}, v{L+1}"); e(f"v_add_f32 v{W+2}, v{L+2}, v{L+3}"); e(f"v_add_f32 v{W}, v{W+1}, v{W+2}")
    e(f"v_cmp_nge_f32 vcc, {f32bits(2.0**30):#x}, v{W}")
    e("s_cbranch_vccnz KF_slow")
    e("KF_epi:")
    k.begin(name="oepi")
    ACC = 48; A2 = 192
    def acc(nt, u): return ACC + (nt * 4 + u) * 4
    e(f"v_add_u32 v{vL}, s96, v{vP5}")
    def mkstage(bf, zero=False, pair=True):
        G = Frags(A2)
        for (s, nt) in ([(s2 + q, nt) for s2 in (0, 2) for nt in range(9) for q in range(2)] if pair else [(s, nt) for s in range(4) for nt in range(9)]):
            G.add(vL, s * 9216 + nt * 32, [f"{MF} {vr(acc(nt,u))}, @A, {bf(s,u)}, {'0' if zero and s == 0 else vr(acc(nt,u))}" for u in range(4)], 4608)
        if pair: G.chain()
        return G
    P5 = {b: mkstage(lambda s, u, b=b: BF(b, s, u)) for b in range(2)}
    for u in range(4): e(f"v_rcp_f32 v{L+u}, v{L+u}")
    if opt.get("xo"): e("s_mov_b32 s83, 0x7fff0000")
    if opt.get("xb"): e("s_mov_b32 s80, 0x70000000")
    if opt.get("xd2"): e("s_mov_b32 s22, 0")
    OB = lambda i, u: 216 + ((i & 1) * 4 + u) * 4
    def oepi(i, u, t, packed=False):
        o = OB(i, u)
        out = [f"v_accvgpr_read_b32 v{t+r}, a{O(2*i + r//4, u) + r%4}" for r in range(8)]
        if packed: out += [f"v_pk_mul_f32 {vr(t+r,2)}, {vr(t+r,2)}, {vr(L + (u & 2),2)} op_sel:[0,{u&1}] op_sel_hi:[1,{u&1}]" for r in range(0, 8, 2)]
        else: out += [f"v_mul_f32 v{t+r}, v{t+r}, v{L+u}" for r in range(8)]
        out += [f"v_cvt_pk_bf16_f32 v{o+r}, v{t+2*r}, v{t+2*r+1}" for r in range(4)]
        return out + [Inst(f"buffer_store_dwordx4 {vr(o)}, v{vST[u]}, s[16:19], s83 offen offset:{i*1024} sc1", "st")]
    def common(sc):
        sc.put(4 * (36 - LEAD) - 1, f"v_add_u32 v{vL}, s96, v{vP5}")
        sc.put(6, [WaitTag(["dma"], 9), "s_barrier"])
    e(stamp(7))
    e("s_mov_b32 s4, 0"); e("s_mov_b32 s101, s5")
    e("s_cmp_eq_u32 s5, 0"); e("s_cbranch_scc1 KF_spre")
    def BF2(s, u): return ar((s * 4 + u) * 4)
    lastb = [["s_add_u32 s72, s5, 7", "s_xor_b32 s72, s72, s85", "s_lshl_b32 s72, s72, 12", "s_add_u32 s82, s72, s80"]] + \
            [Inst(f"buffer_load_dwordx4 {BF2(s, u)}, v{vST[u]}, s[28:31], s82 offen offset:{s*1024} sc1", "b") for s in range(4) for u in range(4)]
    k.begin(name="g_pre")
    for f in range(LEAD): e(P5[0].fr[f][2])
    B2nd = lambda s, u: BF(s >> 1, 2 + (s & 1), u)
    G = mkstage(B1st, zero=True); G1 = mkstage(B2nd)
    off = len(G.mf); G.fr += [(g0 + off, n, r, d) for (g0, n, r, d) in G1.fr]; G.mf += G1.mf
    sc = G.sched(wrap=True)
    for o in (0, 144):
        sc.put(o + 4 * (36 - LEAD) - 1, f"v_add_u32 v{vL}, s96, v{vP5}")
        sc.put(o + 6, [WaitTag(["dma"], 9), "s_barrier"])
        sc.add(adv_rd, o + 7, o + 12, spread=False)
    def W2(f, s): return WaitRegs(*[f(s + q, u) for q in range(2) for u in range(4)])
    for q, w in enumerate([W2(B1st, 2), W2(B2nd, 0), W2(B2nd, 2), W2(lambda s, u: BF(0, s, u), 0)]): sc.add([w], 72 * q + 68, 72 * q + 72, spread=False)
    OEG = opt.get("oeg", 200); B2E = opt.get("b2e", 70)
    sc.add(adv_b + [bload(B2nd(s, u), s, u) for s in range(4) for u in range(4)] + adv_b + [["s_add_u32 s86, s79, 4096"]], 0, B2E)
    def bl2(b, s): return [Inst(bload(BF(b, s, u), s, u).text.replace("s79", "s86" if b else "s79"), "b") for u in range(4)]
    sc.add(bl2(0, 0) + bl2(0, 1), 80, 144)
    sc.add(bl2(1, 0) + bl2(1, 1), 146, 214)
    sc.add(bl2(0, 2) + bl2(0, 3) + adv_b, 216, 280)
    for q in range(2): sc.add(ring_dma(), 144 * q + 12, 144 * q + 140)
    sc.add(flat([oepi(i, u, 248) for i in range(4) for u in range(4)]), opt.get("oes", 0), OEG)
    sc.add([[WaitTag(["st"], 0)] + flag_store("s90", 4, vT2, allw=True)], min(OEG + 60, 282), 288, spread=False)
    e(sc.flat())
    e(stamp(8))
    e("s_branch KF_loop2")
    k.begin(name="s_pre")
    e("KF_spre:")
    for f in range(LEAD): e(mkstage(lambda s, u: vr(OB(s, u)), pair=False).fr[f][2])
    for u in range(4): e(oepi(0, u, 248 if u & 1 else 40, packed=True))
    G = mkstage(lambda s, u: vr(OB(s, u)), zero=True, pair=False); sc = G.sched(); common(sc)
    sc.add(adv_rd, 7, 12, spread=False)
    for i in range(1, 4): sc.add(flat([oepi(i, u, 248) for u in range(4)]), 36 * (i - 1), 36 * i - 1)
    sc.add(ring_dma(), 108, 143)
    e(sc.flat())
    e(mst(52))
    k.wait_tags("st")
    e(mst(53))
    e(flag_store("s90", 4, vT2, allw=True))
    e("s_mov_b32 s30, s18")
    e(adv_b)
    e(spin(hfl, [FL]))
    e(mst(54))
    for b in (0, 1):
        for s in range(4 - 2 * b):
            for u in range(4): e(bload(BF(b, s, u), s, u))
        if b == 0: e(adv_b)
    for f in range(LEAD): e(P5[0].fr[f][2])
    e(W2(lambda s, u: BF(0, s, u), 0))
    e("s_mov_b32 s4, 0")
    e(stamp(8))

    def stage2(b):
        G = P5[b]; sc = G.sched(wrap=True); common(sc)
        sc.add([W2(lambda s, u: BF(b, s, u), 2)], 68, 72, spread=False)
        sc.add([W2(lambda s, u: BF(b ^ 1, s, u), 0)], 140, 144, spread=False)
        sc.add(adv_rd, 7, 12, spread=False)
        sc.add([bload(BF(b ^ 1, s, u), s, u) for s in (2, 3) for u in range(4)] + adv_b, 2, 62)
        sc.add([bload(BF(b, s, u), s, u) for s in (0, 1) for u in range(4)], 72, 136)
        sc.add(ring_dma(), 12, 140)
        hk = [_mk(x) for x in ("s_cmp_eq_u32 s101, 0", f"s_cbranch_scc1 KF_hk{b}", f"KF_hk{b}r:")]
        sc.add([hk], (130, 64)[b], (136, 71)[b], spread=False)
        fl = sc.flat(); i = fl.index(hk[1])
        cnt[b] = sum(1 for x in (fl[i:] if b == 0 else fl[:i]) if x.kind in ("vload", "vstore", "dma"))
        assert b == 0 or not any(x.kind == "vload" and BF(1, 0, 0) in x.text for x in fl[:i])
        e(fl)
    cnt = {}
    k.begin(loop=2, name="L0")
    e(".p2align 3"); e("KF_loop2:")
    stage2(0)
    k.begin(loop=2, name="L1")
    stage2(1)
    e("s_add_u32 s4, s4, 1"); e("s_cmp_lt_u32 s4, 2"); e("s_cbranch_scc1 KF_loop2")
    hfl2 = hfl.replace("offen", "offen offset:16")
    ool.append(["KF_hk0:", hfl2, "s_branch KF_hk0r"])
    ool.append(["KF_hk1:", "s_mov_b32 s101, 1", f"s_waitcnt vmcnt({cnt[0] + cnt[1]})"] + cmpf([FL]) +
               ["s_nop 0", "s_cbranch_vccz KF_hk1r"] + spin(hfl2, [FL], "KF_hk1r"))

    k.begin(name="final")
    e(stamp(9))
    NPRE = opt.get("npre", 2)
    nts = [8, 0, 1, 2, 3, 4, 5, 6, 7]
    assert NPRE == 2
    order = [(0, s, nt) for nt in range(9) for s in range(2)]
    order += [(b, s, nt) for nt in nts for b in range(3) for s in range(4) if not (b == 0 and s < NPRE)]
    G = Frags(A2); done = {}
    vLb = [vL, vT, vB + 2]
    for (b, s, nt) in order:
        bf = (lambda u: BF(b, s, u)) if b < 2 else (lambda u: BF2(s, u))
        G.add(vLb[b], s * 9216 + nt * 32, [f"{MF} {vr(acc(nt,u))}, @A, {bf(u)}, {vr(acc(nt,u))}" for u in range(4)], 4608)
        done[nt] = len(G.mf)
    G.chain()
    sc = G.sched(); NG = len(G.mf); G0 = 36 * NPRE
    sc.put(G0 - 26, [WaitTag(["dma"], 0), "s_barrier"])
    sc.add([bload(BF(1, s, u), s, u) for s in (2, 3) for u in range(4)] + [Inst(x.text.replace("s82", "s86"), "b") if isinstance(x, Inst) else [y.replace("s82", "s86") for y in x] for x in lastb], 2, 56)
    gq = G0 + (8 - NPRE) * 4
    sc.add([WaitRegs(*[BF2(s, u) for s in range(4) for u in range(4)])], gq - 4, gq, spread=False)
    sc.add(adv_rd + [f"v_add_u32 v{vLb[1]}, s96, v{vP5}"] + adv_rd + [f"v_add_u32 v{vLb[2]}, s96, v{vP5}"], 7, 30, spread=False)
    sc.add([W2(lambda s, u: BF(1, s, u), 0)], G0 - 4, G0, spread=False)
    sc.add([W2(lambda s, u: BF(1, s, u), 2)], G0 + 12, G0 + 16, spread=False)
    SEL = 26; XRr = 36; vX = 25; vL8 = 46
    ad = [
          ["s_and_b32 s82, s64, 3", "s_mul_i32 s73, s82, 5120"], ["s_add_u32 s78, s78, s73", "s_lshl_b32 s73, s5, 10"], ["s_add_u32 s85, s78, s73"],
          ["s_lshl_b32 s73, s71, 1", "s_xor_b32 s82, s82, s73"], ["s_add_u32 s82, s82, s69", f"s_mul_i32 s83, s82, {16*1152}"],
          ["s_mul_i32 s73, s65, 288", "s_add_u32 s87, s83, s73"], ["s_lshl_b32 s73, s5, 6", "s_add_u32 s83, s87, s73"],
          ["s_mov_b32 s12, s56", "s_mov_b32 s13, s57"], [f"s_mov_b32 s14, {2048*1152}"],
          [f"s_mov_b32 s88, {f32bits(-math.log2(math.e)):#x}", "s_mov_b32 s89, 0xffff0000"]]
    sc.add(ad, 56, G0 + 36)
    va = [f"v_bfe_u32 v{vX}, v{vL16}, 4, 4", f"v_lshrrev_b32 v{vT2}, 8, v{vL16}", f"v_bfe_u32 v{vL8}, v{vL16}, 6, 2",
          [f"v_cmp_eq_u32 vcc, v{vL8}, v{vT2}", f"v_mov_b32 v{SEL}, 0x3f80", f"v_and_b32 v{vL8}, 16, v{vL16}", f"v_lshlrev_b32 v{SEL}, v{vL8}, v{SEL}",
           f"v_cndmask_b32 v{SEL}, 0, v{SEL}, vcc"],
          [f"v_and_b32 v{vL8}, 32, v{vL16}", f"v_cmp_eq_u32 vcc, 0, v{vL8}", "s_nop 1", f"v_cndmask_b32 v{SEL+2}, 0, v{SEL}, vcc", f"v_cndmask_b32 v{SEL+3}, v{SEL}, 0, vcc"],
          f"v_mov_b32 v{SEL}, 0", f"v_mov_b32 v{SEL+1}, 0", f"v_mov_b32 v{SEL+4}, 0", f"v_mov_b32 v{SEL+5}, 0",
          f"v_mov_b32 v{SEL+6}, v{SEL+2}", f"v_mov_b32 v{SEL+7}, v{SEL+3}", f"v_mov_b32 v{SEL+8}, v{SEL+2}", f"v_mov_b32 v{SEL+9}, v{SEL+3}",
          f"v_mul_u32_u24 v{vX}, 1152, v{vX}", f"v_lshl_add_u32 v{vX}, v{vT2}, 3, v{vX}",
          f"v_lshrrev_b32 v{vL8}, 1, v{vL16}", f"v_add_u32 v{vL8}, 4096, v{vL8}", f"v_lshlrev_b32 v{vT2}, 7, v{vL16}",
          f"v_bfe_u32 v{vB}, v{vL16}, 4, 3", f"v_lshlrev_b32 v{vB}, 2, v{vB}"]
    sc.add(va, 8, G0 + 30)
    xo = [(0, "s83", 0), (1, "s83", 32), (2, "s83", 128), (3, "s83", 160), (4, "s87", 256)]
    sc.add([f"buffer_load_dwordx2 {vr(XRr+2*t,2)}, v{vX}, s[32:35], {so} offen offset:{o}" for t, so, o in xo], G0 + 38, G0 + 70)
    tail = []; per = done[0] - done[8]
    for c in (4, 0, 1, 2, 3):
        pkx = []
        for u in range(4):
            a = acc(2 * c, u); tg = "p1" if c in (4, 0, 1) else "p2"
            pkx += [f"v_cvt_pk_bf16_f32 v{a}, v{a}, v{a+1}", f"v_cvt_pk_bf16_f32 v{a+1}, v{a+2}, v{a+3}"]
            if c < 4:
                b = acc(2 * c + 1, u)
                pkx += [f"v_cvt_pk_bf16_f32 v{a+2}, v{b}, v{b+1}", f"v_cvt_pk_bf16_f32 v{a+3}, v{b+2}, v{b+3}",
                        Inst(f"buffer_store_dwordx4 {vr(a)}, v{vL16}, s[16:19], s{74+u} offen offset:{c*1024} sc1", tg)]
            else:
                pkx += [Inst(f"buffer_store_dwordx2 {vr(a,2)}, v{vL8}, s[16:19], s{74+u} offen sc1", tg)]
        d = done[8] if c == 4 else done[2 * c + 1]
        if c != 3: sc.add(pkx, d + 4, d + 4 + (per if c == 1 else 2 * per - 8))
        else: tail = pkx
    fl1 = f"buffer_load_dword v{vB+1}, v{vB}, s[16:19], s37 offen sc1"
    sc.add([fl1], G0 + 70, G0 + 80)
    c1, c2 = check(fl1, [vB + 1])
    sc.add([c1 + c2], done[3], done[3] + 3)
    R1 = 48; RE = 80; R2 = 216
    order8 = [4, 5, 6, 7, 0, 1, 2, 3]
    def lds1(): return flat([[[f"s_add_u32 s86, s85, {src*PR}"], f"buffer_load_dwordx4 {vr(R1 + src*4)}, v{vL16}, s[16:19], s86 offen sc1"] for src in order8]) + \
                       flat([[[f"s_add_u32 s86, s78, {src*PR}"], f"buffer_load_dwordx2 {vr(RE + src*2, 2)}, v{vL8}, s[28:31], s86 offen sc1"] for src in order8])
    def lds2(): return flat([[[f"s_add_u32 s86, s85, {src*PR}"], f"buffer_load_dwordx4 {vr(R2 + src*4)}, v{vL16}, s[16:19], s86 offen offset:2048 sc1"] for src in order8])
    def sent(base, n):
        t = 128; o = [f"v_max3_u32 v{t}, v{base}, v{base+1}, v{base+2}", f"v_max3_u32 v{t+1}, v{base+3}, v{base+4}, v{base+5}"]
        for i in range(6, n, 2): o.append(f"v_max3_u32 v{t + (i//2) % 2}, v{t + (i//2) % 2}, v{base+i}, v{base+i+1}")
        return o + [f"v_max_u32 v{t}, v{t}, v{t+1}", f"v_cmp_eq_u32 vcc, -1, v{t}"]
    def poll(name, ld, base, n):
        ool.append([f"{name}x:", "s_add_u32 s4, s4, 1", f"s_cmp_ge_u32 s4, {SPIN_MAX}", f"s_cbranch_scc1 {name}d", f"s_sleep {opt.get('slp', 2)}"] + ld + ["s_waitcnt vmcnt(0)", f"s_branch {name}"])
        return [f"{name}:"] + sent(base, n) + ["s_nop 0", f"s_cbranch_vccnz {name}x", f"{name}d:"]
    sc.add([["s_cmp_eq_u32 s5, 0", "s_cselect_b32 s30, 0, s18", "s_mov_b32 s4, 0"]] + lds1(), done[6] - opt.get("r1e", 8), NG - 4)
    e(sc.flat())
    e(tail)
    e(stamp(10))
    Gs = lambda t: 96 + 4 * t
    Ss = lambda t: 108 + 4 * t
    t0 = 120; g1 = 124
    def round2(a):
        return [f"v_cvt_pk_bf16_f32 v{t0}, v{a}, v{a+1}", f"v_cvt_pk_bf16_f32 v{t0+1}, v{a+2}, v{a+3}",
                f"v_lshlrev_b32 v{a}, 16, v{t0}", f"v_and_b32 v{a+1}, s89, v{t0}", f"v_lshlrev_b32 v{a+2}, 16, v{t0+1}", f"v_and_b32 v{a+3}, s89, v{t0+1}"]
    def gate(t):
        g = Gs(t)
        return round2(g) + [f"v_mul_f32 v{g1+r}, s88, v{g+r}" for r in range(4)] + [f"v_exp_f32 v{g1+r}, v{g1+r}" for r in range(4)] + \
               [f"v_add_f32 v{g1+r}, 1.0, v{g1+r}" for r in range(4)] + [f"v_rcp_f32 v{g1+r}, v{g1+r}" for r in range(4)] + \
               [pk("v_pk_mul_f32", g + r, g + r, g1 + r) for r in (0, 2)] + round2(g)
    def fin(t, x, so, o):
        g = Gs(t); s0 = Ss(t)
        return round2(s0) + [pk("v_pk_mul_f32", g + r, g + r, s0 + r) for r in (0, 2)] + round2(g) + \
               [f"v_lshlrev_b32 v{g1}, 16, v{x}", f"v_and_b32 v{g1+1}, s89, v{x}", f"v_lshlrev_b32 v{g1+2}, 16, v{x+1}", f"v_and_b32 v{g1+3}, s89, v{x+1}"] + \
               [pk("v_pk_add_f32", g + r, g + r, g1 + r) for r in (0, 2)] + \
               [f"v_cvt_pk_bf16_f32 v{s0}, v{g}, v{g+1}", f"v_cvt_pk_bf16_f32 v{s0+1}, v{g+2}, v{g+3}",
                f"buffer_store_dwordx2 {vr(s0,2)}, v{vX}, s[12:15], {so} offen offset:{o}"]
    def redu(R):
        return [f"{MF} {vr((Gs if src >= 4 else Ss)(t))}, {vr(SEL + (0 if t else 2))}, {vr(R + src*4)}, {'0' if src in (0, 4) else vr((Gs if src >= 4 else Ss)(t))}"
                for src in order8 for t in range(2)]
    e(poll("KF_q1", lds1(), R1, 48))
    e(mst(46))
    e(redu(R1))
    e([f"{MF} {vr((Gs if q >= 2 else Ss)(2))}, {vr(SEL + 6)}, {vr(RE + q*4)}, {'0' if q % 2 == 0 else vr((Gs if q >= 2 else Ss)(2))}" for q in (2, 3, 0, 1)])
    e(gate(0))
    e(lds2())
    e(gate(1))
    for t in range(2): e(fin(t, XRr + 2 * t, "s83", 32 * t))
    e("s_cmp_eq_u32 s5, 0"); e("s_cbranch_scc1 KF_r2")
    for x in gate(2) + fin(2, XRr + 8, "s87", 256): e(C(x))
    e("KF_r2:")
    e(stamp(11))
    e(poll("KF_q2", lds2(), R2, 32))
    e(mst(50))
    e(redu(R2))
    for t in range(2): e(gate(t))
    for t in range(2): e(fin(t, XRr + 4 + 2 * t, "s83", 128 + 32 * t))
    k.begin(name="fin")
    e("KF_fin:")
    if stamps:
        e(stamp(12)); e("s_waitcnt vmcnt(0)"); e(stamp(13))
        e("s_lshl_b32 s72, s2, 2"); e("s_add_u32 s72, s72, s3"); e("s_lshl_b32 s72, s72, 8"); e(f"s_add_u32 s72, s72, {200<<20}")
        e(f"v_lshrrev_b32 v2, 2, v{vL16}")
        e(f"buffer_store_dword v{STV}, v2, s[16:19], s72 offen")
        if "probe" in opt:
            e(f"s_cmp_lg_u32 s2, {opt.get('pw', 133)}"); e("s_cbranch_scc1 KF_end"); e("s_cmp_lg_u32 s3, 0"); e("s_cbranch_scc1 KF_end")
            if opt["probe"] >= 0: e(f"v_readlane_b32 s72, v{STV}, {32 + opt['probe']}")
            else: e("s_mov_b32 s72, s38")
            e("s_nop 3"); e("s_add_u32 s72, s72, 10000")
            e("KF_pw:"); e("s_memrealtime s[98:99]"); e("s_waitcnt lgkmcnt(0)"); e("s_sub_u32 s73, s72, s98"); e("s_cmp_lt_u32 s73, 20000"); e("s_cbranch_scc1 KF_pw")
        if opt.get("dbg"):
            e(f"s_cmp_lg_u32 s2, {opt['dbg']}"); e("s_cbranch_scc1 KF_end"); e("s_cmp_lg_u32 s3, 1"); e("s_cbranch_scc1 KF_end")
            e(srd(20, 58, 64)); e(f"v_readlane_b32 s72, v{STV}, 32"); e("v_subrev_u32 v2, 124, v2"); e(f"v_subrev_u32 v{STV}, s72, v{STV}")
            e("s_mov_b32 exec_lo, 0"); e(f"buffer_store_dword v{STV}, v2, s[20:23], 0 offen")
    e("KF_end:")
    e("s_endpgm")

    for i, blk in enumerate(ool):
        k.begin(name=f"ool{i}")
        e(blk); e("s_endpgm")
    Mx = W + 8; AL = W + 12; TT = W + 16
    k.begin(name="slow_pre")
    e("KF_codeend:")
    e("KF_slow:")
    e("s_waitcnt vmcnt(0) lgkmcnt(0)"); e("s_nop 15")
    for i in range(128): e(f"v_accvgpr_write_b32 a{i}, 0")
    for u in range(4): e(f"v_mov_b32 v{L+u}, 0"); e(f"v_mov_b32 v{Mx+u}, 0xff7fffff")
    e("s_mov_b32 s72, 0"); e("s_mov_b32 s68, s82")
    k.begin(loop=16, name="slow_loop")
    e("KF_sloop:")
    for q in range(4):
        for f in range(4):
            ff = q * 4 + f
            e(f"buffer_load_dwordx4 {KF(1, ff) if ff < 8 else VF(1, ff - 8)}, v{vL16}, s[16:19], s68 offen offset:{f*1024} sc1")
        e("s_add_u32 s68, s68, 4096")
    for u in range(4):
        e(qk(u, lambda f: KF(1, f), zero=True))
        s0 = S(u); m = W + u
        e(f"v_max3_f32 v{m}, v{s0}, v{s0+1}, v{s0+2}"); e(f"v_max3_f32 v{m}, v{m}, v{s0+3}, v{s0+4}")
        e(f"v_max3_f32 v{m}, v{m}, v{s0+5}, v{s0+6}"); e(f"v_max3_f32 v{m}, v{m}, v{s0+7}, v{Mx+u}")
        e(xlane("v_max_f32", m, W + 4))
        e(f"v_sub_f32 v{AL}, v{Mx+u}, v{m}"); e(f"v_exp_f32 v{AL}, v{AL}"); e(f"v_mov_b32 v{Mx+u}, v{m}")
        e(f"v_mul_f32 v{L+u}, v{L+u}, v{AL}")
        for i in range(8):
            e(f"v_sub_f32 v{s0+i}, v{s0+i}, v{m}"); e(f"v_exp_f32 v{s0+i}, v{s0+i}")
        for i in range(8): e(f"v_add_f32 v{L+u}, v{L+u}, v{s0+i}")
        for i in range(4): e(f"v_cvt_pk_bf16_f32 v{P+i}, v{s0+2*i}, v{s0+2*i+1}")
        for dt in range(8):
            for r in range(4): e(f"v_accvgpr_read_b32 v{TT+r}, a{O(dt,u)+r}")
            for r in range(4): e(f"v_mul_f32 v{TT+r}, v{TT+r}, v{AL}")
            for r in range(4): e(f"v_accvgpr_write_b32 a{O(dt,u)+r}, v{TT+r}")
        e(pv(u, 1, 0))
    e("s_add_u32 s72, s72, 1"); e("s_cmp_lt_u32 s72, 16"); e("s_cbranch_scc1 KF_sloop")
    k.begin(name="slow_post")
    e("s_nop 15")
    for u in range(4): e(xlane("v_add_f32", L + u, W + 4))
    e("s_nop 15")
    e("s_branch KF_epi")
    pre = ["p0a", "gemm", "attn_first"]
    k.paths = []
    for na in (1, 2, 4):
        for nl in (1, 2):
            mid = pre + ["attn_loop"] * na + ["attn_last", "oepi"]
            if na > 1 and nl > 1 and (na, nl) != (4, 2): continue
            k.paths.append(mid + ["g_pre"] + ["L0", "L1"] * nl + ["final", "fin"])
            k.paths.append(mid + ["s_pre"] + ["L0", "L1"] * nl + ["final", "fin"])
    return kstart(name) + k.finish(), kdesc(name, 512, 256), (name, 256, 256, 163840)
```

```python
from lib import *
from lib import _mk
from common import *
import math

SLOT = 36864
SPARE = 4 * SLOT
MF = "v_mfma_f32_16x16x32_bf16"
QSCALE = math.log2(math.e) / math.sqrt(128.0)
SPIN_MAX = 100000
KNAME = "recurrent_scan__sliding_block_cached__dense_activation_relu__prompt_kernel"

def flat(l): return [x for y in l for x in y]

def gen_kf(name=KNAME, stamps=False, opt=None):
    opt = opt or {}
    k = Kernel(name)
    k.cur.name = 'p0a'
    e = k.e
    vL16, vDQ, vD1, vS0, vP5, vZ, vTOK, vL, vT = 1, 2, 3, 4, 5, 6, 7, 8, 9
    vST = [10, 11, 12, 13]
    vT2 = 14; STV = 15
    XV = 16; QA = 48; AF = 176; NF = 6; LEAD = 4
    FA = 200; T = 232; vB = 248
    vXN = [232, 233, 234, 235]; vKO, vVO = 254, 255
    B1, B3, B5, B7 = 64, 96, 128, 160
    def X(u, s):
        h, idx = u >> 1, s * 2 + (u & 1)
        return ar(h * 128 + idx * 4) if idx < 32 else vr(XV + h * 16 + (idx - 32) * 4)
    def qa(nt, u): return QA + (nt * 4 + u) * 4
    def Qf(u, s): return vr(qa(2 * s, u))
    def fa(a, u): return FA + a * 16 + u * 4
    def stamp(i):
        if not stamps: return []
        return ["s_memtime s[98:99]", "s_waitcnt lgkmcnt(0)", f"v_writelane_b32 v{STV}, s98, {i}",
                "s_memrealtime s[98:99]", "s_waitcnt lgkmcnt(0)", f"v_writelane_b32 v{STV}, s98, {32+i}"]
    def mst(i):
        if not (stamps and opt.get("fine")): return ["s_nop 0"] if False else []
        return ["s_memtime s[98:99]", "s_waitcnt lgkmcnt(0)", "s_nop 0", f"v_writelane_b32 v{STV}, s98, {i}"]
    def C(t): return Inst(t, "cond")
    uid = [0]
    def lab(p): uid[0] += 1; return f"KF_{p}{uid[0]}"
    def flag_store(sreg, nl, voff, allw=False):
        lb = lab("nf")
        m = ["s_mov_b64 exec, %#x" % ((1 << nl) - 1)] if nl < 32 else ["s_mov_b32 exec_hi, 0"]
        body = m + [f"buffer_store_dword v{vTOK}, v{voff}, s[16:19], {sreg} offen sc1", "s_mov_b64 exec, -1"]
        if allw: return body
        return ["s_cmp_lg_u32 s3, 0", f"s_cbranch_scc1 {lb}"] + [C(x) for x in body] + [f"{lb}:"]
    ool = []
    def spin(load, regs, ret=None):
        lb = lab("sp"); dn = ret or lab("sd")
        out = ["s_mov_b32 s73, 0", f"{lb}:", load, "s_waitcnt vmcnt(0)"] + cmpf(regs)
        out += ["s_add_u32 s73, s73, 1", f"s_cmp_ge_u32 s73, {SPIN_MAX}", f"s_cbranch_scc1 {dn}", f"s_cbranch_vccz {dn}", "s_sleep 2", f"s_branch {lb}"]
        if not ret: out.append(f"{dn}:")
        return out
    def cmpf(regs):
        out = []
        if len(regs) > 1:
            out += [f"v_xor_b32 v{r}, v{r}, v{vTOK}" for r in regs]
            out += [f"v_or_b32 v{regs[0]}, v{regs[0]}, v{r}" for r in regs[1:]]
            out += [f"v_cmp_ne_u32 vcc, 0, v{regs[0]}"]
        else:
            out += [f"v_cmp_ne_u32 vcc, v{regs[0]}, v{vTOK}"]
        return out
    def check(load, regs):
        a, b = lab("ck"), lab("cr")
        ool.append([f"{a}:"] + spin(load, regs, b))
        return cmpf(regs), ["s_nop 0", f"s_cbranch_vccnz {a}", f"{b}:"]
    def xlane(op, r, t, both=True):
        o = [f"v_mov_b32 v{t}, v{r}", f"v_permlane32_swap_b32 v{t}, v{r}", f"{op} v{r}, v{r}, v{t}"] if both else []
        return o + [f"v_mov_b32 v{t}, v{r}", f"v_permlane16_swap_b32 v{t}, v{r}", f"{op} v{r}, v{r}, v{t}"]
    def ident(ID, t0, t1):
        o = [f"v_lshrrev_b32 v{t0}, 4, v{vL16}", f"v_and_b32 v{t1}, 15, v{t0}", f"v_lshrrev_b32 v{t0}, 4, v{t0}", f"v_lshlrev_b32 v{t0}, 3, v{t0}",
             f"v_sub_u32 v{t0}, v{t1}, v{t0}", f"v_and_b32 v{t1}, 1, v{t0}", f"v_lshlrev_b32 v{t1}, 4, v{t1}", f"v_mov_b32 v{ID}, 0x3f80",
             f"v_lshlrev_b32 v{t1}, v{t1}, v{ID}", f"v_ashrrev_i32 v{t0}, 1, v{t0}"]
        for h in range(2):
            for r in range(4):
                o.append([f"v_cmp_eq_i32 vcc, {r - 8*h}, v{t0}", "s_nop 1", f"v_cndmask_b32 v{ID+4*h+r}, 0, v{t1}, vcc"])
        return o
    def tr_mf(D, A, ID): return [f"{MF} {vr(D + (h*2+r)*4)}, {vr(A + 4*r)}, {vr(ID + 4*h)}, 0" for h in range(2) for r in range(2)]
    def tr_cvt(o, D, h): return [f"v_cvt_pk_bf16_f32 v{o+2*r+q}, v{D+(h*2+r)*4+2*q}, v{D+(h*2+r)*4+2*q+1}" for r in range(2) for q in range(2)]

    e("s_cmp_ge_u32 s2, 256"); e("s_cbranch_scc1 KF_end")
    if opt.get("scr"):
        e("s_and_b32 s4, s2, 7"); e("s_bfe_u32 s5, s2, 0x30003"); e("s_andn2_b32 s2, s2, 63"); e("s_lshl_b32 s4, s4, 3"); e("s_or_b32 s2, s2, s4"); e("s_or_b32 s2, s2, s5")
    e("s_load_dwordx16 s[40:55], s[0:1], 0")
    e("s_load_dwordx4 s[56:59], s[0:1], 64")
    e("s_load_dwordx2 s[60:61], s[0:1], 80")
    e("s_memrealtime s[38:39]")
    if opt.get("cpf0", 8):
        e("s_getpc_b64 s[96:97]"); e(f"s_mov_b32 s98, {opt.get('cpf0', 8) * 1024}"); e("s_mov_b32 s99, 0x20000")
        e("v_lshlrev_b32 v27, 7, v0")
        e("buffer_load_dword v31, v27, s[96:99], 0 offen", "tch")
    e("v_lshrrev_b32 v20, 6, v0")
    e("v_and_b32 v21, 63, v0")
    e("v_readfirstlane_b32 s3, v20")
    e("s_and_b32 s64, s2, 7"); e("s_bfe_u32 s65, s2, 0x20003")
    e("s_and_b32 s62, s2, 3"); e("s_lshl_b32 s62, s62, 3"); e("s_and_b32 s63, s2, 4"); e("s_add_u32 s62, s62, s63"); e("s_add_u32 s62, s62, s65")
    e("s_lshr_b32 s63, s2, 5")
    e("s_lshl_b32 s66, s63, 5"); e("s_add_u32 s66, s66, s62")
    e("v_lshrrev_b32 v22, 5, v0"); e("v_mul_u32_u24 v22, 1152, v22")
    e("v_and_b32 v23, 31, v21"); e("v_lshl_add_u32 v22, v23, 4, v22")
    e("s_mul_i32 s67, s66, 9216")
    for r in range(56, 60): e(f"v_mov_b32 v{r}, 0")
    e(f"v_mov_b32 v{vZ}, 0")
    e(f"v_lshlrev_b32 v{vL16}, 4, v21")
    e("s_waitcnt lgkmcnt(0)")
    e(srd(32, 40, 2048 * 1152))
    e(f"buffer_load_dwordx4 {vr(48)}, v22, s[32:35], s67 offen")
    e(f"buffer_load_dwordx4 {vr(52)}, v22, s[32:35], s67 offen offset:512")
    e("s_mov_b32 exec_lo, 0xff"); e("s_mov_b32 exec_hi, 0xff")
    e(f"buffer_load_dwordx4 {vr(56)}, v22, s[32:35], s67 offen offset:1024")
    e("s_mov_b64 exec, -1")
    e(stamp(0))
    e(srd(8, 46, 576 * 8192)); e(srd(20, 58, 256))
    e("s_or_b32 s77, s2, s3"); e("s_cbranch_scc1 KF_w0")
    e(C("s_or_b32 s38, s38, 1")); e(C("v_mov_b32 v28, s38")); e(C("s_mov_b64 exec, 1"))
    e(C(f"buffer_store_dword v28, v{vZ}, s[20:23], 0 offen sc1")); e(C("s_mov_b64 exec, -1"))
    e("KF_w0:")
    e(srd(16, 60, WS_SIZE)); e(srd(12, 52, 576 * 9216)); e(srd(24, 42, 8388608)); e(srd(28, 44, 8388608))
    e("v_lshrrev_b32 v28, 1, v21"); e("v_and_b32 v29, 1, v21"); e("v_lshlrev_b32 v29, 7, v29")
    e("v_lshl_add_u32 v34, v28, 13, v29"); e("v_mul_u32_u24 v239, 9216, v21")
    e("s_sub_u32 s77, s3, 1"); e("s_lshl_b32 s77, s77, 3"); e("s_add_u32 s77, s77, s63"); e(f"s_mul_i32 s4, s77, {24*8192}"); e("s_lshl_b32 s5, s63, 2"); e("s_add_u32 s5, s5, s3"); e(f"s_mul_i32 s5, s5, {18*9216}")
    e("s_lshr_b32 s70, s62, 1"); e("s_and_b32 s71, s62, 1")
    e("s_lshl_b32 s6, s70, 6"); e("s_add_u32 s6, s6, s5"); e("s_add_u32 s6, s6, 8192")
    e("s_lshl_b32 s79, s62, 8"); e("s_add_u32 s4, s4, s79"); e("s_add_u32 s5, s5, s79")
    wq_touch = ["s_mov_b32 exec_hi, 0xffff", "buffer_load_dword v31, v34, s[8:11], s4 offen", "s_mov_b64 exec, -1"]
    def w1_touch(i):
        return [Inst("s_mov_b64 exec, 0x3ffff"), Inst(f"buffer_load_dword v0, v239, s[12:15], {('s5','s5','s6')[i]} offen offset:{(0,128,0)[i]}", "tch"), Inst("s_mov_b64 exec, -1")]
    def not_w0(body, maxw=3):
        lb = lab("nw")
        return ["s_sub_u32 s72, s3, 1", f"s_cmp_ge_u32 s72, {maxw}", f"s_cbranch_scc1 {lb}"] + [C(x) for x in body] + [f"{lb}:"]
    ORD = opt.get("ord", 1)
    CPF = opt.get("codepf", 2)
    code_touch = ["s_getpc_b64 s[68:69]", "KF_pc:", f"s_sub_u32 s96, s68, KF_pc-{name}", "s_subb_u32 s97, s69, 0", f"s_mov_b32 s98, KF_codeend-{name}", "s_mov_b32 s99, 0x20000",
                  "s_lshr_b32 s94, s2, 3", "s_lshl_b32 s94, s94, 2", "s_add_u32 s94, s94, s3", "s_mul_i32 s94, s94, 640",
                  "v_lshlrev_b32 v27, 7, v21", "s_mov_b64 exec, 31", Inst("buffer_load_dword v31, v27, s[96:99], s94 offen", "tch"), "s_mov_b64 exec, -1"]
    if CPF == 1: e(code_touch)
    e("v_and_b32 v24, 15, v21"); e("v_lshrrev_b32 v25, 4, v21")
    e(f"v_lshlrev_b32 v{vKO}, 8, v24"); e(f"v_lshl_add_u32 v{vVO}, v25, 4, v{vKO}"); e(f"v_lshl_add_u32 v{vKO}, v25, 3, v{vKO}")
    e("v_lshrrev_b32 v28, 5, v21"); e("v_lshlrev_b32 v29, 1, v28"); e("v_and_b32 v30, 3, v21"); e("v_xor_b32 v29, v29, v30")
    e("v_lshlrev_b32 v29, 4, v29"); e("v_lshrrev_b32 v32, 2, v21")
    e(f"v_lshl_add_u32 v{vDQ}, v32, 13, v29")
    e(f"v_mul_u32_u24 v{vD1}, 9216, v32"); e(f"v_add_u32 v{vD1}, v{vD1}, v29")
    e("v_bfe_u32 v32, v21, 2, 2"); e("v_lshlrev_b32 v32, 6, v32"); e("v_lshl_add_u32 v32, v30, 3, v32")
    e("v_and_b32 v26, 1, v25"); e("v_lshl_add_u32 v32, v26, 5, v32")
    e(f"v_lshl_add_u32 v{vS0}, v25, 9, v32")
    e("v_bfe_u32 v33, v21, 2, 2"); e(f"v_lshlrev_b32 v{vP5}, 10, v25"); e(f"v_lshl_add_u32 v{vP5}, v33, 7, v{vP5}"); e(f"v_lshl_add_u32 v{vP5}, v30, 3, v{vP5}")
    e("v_lshrrev_b32 v33, 1, v33"); e(f"v_lshl_add_u32 v{vP5}, v33, 5, v{vP5}"); e(f"v_lshl_add_u32 v{vP5}, v26, 6, v{vP5}")
    e("v_lshrrev_b32 v33, 3, v21"); e("v_mul_u32_u24 v238, 9216, v33"); e("v_and_b32 v33, 7, v21"); e("v_lshlrev_b32 v35, 1, v26"); e("v_xor_b32 v33, v33, v35")
    e("v_and_b32 v35, 1, v20"); e("v_lshlrev_b32 v35, 2, v35"); e("v_xor_b32 v33, v33, v35"); e("v_lshl_add_u32 v238, v33, 4, v238")
    e("v_lshl_add_u32 v32, v26, 9, v32"); e(f"v_lshl_add_u32 v{vB}, v28, 12, v32"); e(f"v_xor_b32 v{vB+1}, 32, v{vB}")
    for r in range(2, 6): e(f"v_add_u32 v{vB+r}, 0x10000, v{vB+r-2}")
    e("s_lshl_b32 s69, s63, 4"); e("s_lshl_b32 s78, s3, 2"); e("s_add_u32 s69, s69, s78"); e("s_lshl_b32 s78, s71, 1")
    for u in range(4):
        e(f"s_xor_b32 s79, s78, {u}"); e("s_add_u32 s79, s79, s69")
        e("s_mul_i32 s80, s79, 18432"); e(f"v_add_u32 v{vXN[u]}, s80, v{vL16}")
        e(f"s_mul_i32 s80, s79, {272*1024}"); e(f"v_add_u32 v{vST[u]}, s80, v{vL16}")
    e("v_lshrrev_b32 v36, 5, v0"); e("v_and_b32 v37, 7, v21"); e("v_xor_b32 v36, v36, v37"); e("v_lshlrev_b32 v36, 4, v36")
    e("v_lshl_add_u32 v36, v23, 7, v36"); e(f"v_add_u32 v36, {SPARE}, v36")
    e("v_lshrrev_b32 v38, 3, v21"); e("v_xor_b32 v39, v38, v37"); e("v_lshlrev_b32 v39, 4, v39"); e("v_lshl_add_u32 v39, v38, 7, v39"); e(f"v_add_u32 v39, {SPARE}, v39")
    e("v_lshlrev_b32 v38, 8, v38"); e("v_lshl_add_u32 v38, v37, 4, v38")
    e("s_lshl_b32 s72, s63, 1"); e("s_add_u32 s72, s72, s71")
    e("s_lshl_b32 s73, s70, 19"); e("s_lshl_b32 s74, s72, 13"); e("s_add_u32 s73, s73, s74"); e(f"s_add_u32 s73, s73, {1536*256}")
    e("s_lshl_b32 s74, s3, 6"); e("s_add_u32 s87, s73, s74"); e("s_add_u32 s88, s87, 4096")
    e("s_lshr_b32 s74, s3, 1"); e("s_lshl_b32 s74, s74, 12"); e("s_add_u32 s73, s73, s74")
    e("s_and_b32 s74, s3, 1"); e("s_lshl_b32 s74, s74, 7"); e("s_add_u32 s89, s73, s74")
    e("s_lshl_b32 s82, s70, 18"); e(f"s_add_u32 s82, s82, {WS_KVP}")
    e("s_lshl_b32 s93, s72, 14"); e("s_add_u32 s93, s93, s82"); e("s_lshl_b32 s78, s3, 11"); e("s_add_u32 s93, s93, s78"); e("s_add_u32 s95, s93, 8192")
    e("s_lshl_b32 s90, s70, 7"); e(f"s_add_u32 s90, s90, {FL_KV}"); e("s_lshl_b32 s91, s72, 2"); e("s_add_u32 s91, s91, s90")
    e(f"s_mul_i32 s77, s3, {8*9216}"); e("s_lshl_b32 s79, s62, 8"); e("s_add_u32 s79, s79, s77"); e(f"s_mul_i32 s77, s3, {144*9216}")
    e("s_lshl_b32 s80, s70, 6"); e("s_add_u32 s80, s80, s77"); e("s_add_u32 s80, s80, 8192")
    e("s_mul_i32 s81, s3, 9216")
    e("s_lshl_b32 s83, s62, 12"); e(f"s_add_u32 s83, s83, {WS_ACT}"); e(f"s_add_u32 s84, s83, {128*1024}")
    e("s_lshl_b32 s85, s70, 10"); e(f"s_add_u32 s85, s85, {WS_ACT + 256*1024}")
    e(f"s_mov_b32 s86, {f32bits(QSCALE):#x}")
    e("s_lshl_b32 s37, s62, 8"); e("s_lshl_b32 s67, s3, 6"); e("s_add_u32 s37, s37, s67"); e("s_lshl_b32 s67, s3, 10")
    for i in range(5): e(f"s_mov_b32 s{74+i}, {WS_XN + i*4096}")
    e("s_lshr_b32 s7, s66, 1"); e("s_mul_i32 s7, s7, 18432"); e("s_lshl_b32 s72, s71, 7"); e("s_add_u32 s7, s7, s72")
    e("s_lshl_b32 s36, s63, 12"); e("s_lshl_b32 s72, s62, 2"); e("s_add_u32 s36, s36, s72"); e(f"s_add_u32 s36, s36, {FL_LN}")
    Fv = 64
    for d in range(12):
        e(f"v_lshlrev_b32 v{Fv+2*d}, 16, v{48+d}"); e(f"v_and_b32 v{Fv+2*d+1}, 0xffff0000, v{48+d}")
    e(f"buffer_load_dword v{vTOK}, v{vZ}, s[20:23], 0 offen sc1", "tch")
    if ORD == 1: e(not_w0(wq_touch))
    if ORD == 4: e(not_w0(wq_touch, 1))
    if CPF == 2: e([x.replace("s[68:69]", "s[100:101]").replace("s68", "s100").replace("s69", "s101") if isinstance(x, str) else x for x in code_touch])
    e(stamp(1))
    def pk(op, d, a, b): return f"{op} {vr(d,2)}, {vr(a,2)}, {vr(b,2)}"
    e(pk("v_pk_add_f32", 40, Fv, Fv + 2)); e(pk("v_pk_add_f32", 42, Fv + 4, Fv + 6))
    for d in range(8, 24, 2): e(pk("v_pk_add_f32", 40 + (d & 2), 40 + (d & 2), Fv + d))
    def red(r):
        e(pk("v_pk_add_f32", r, r, r + 2)); e(f"v_add_f32 v{r}, v{r}, v{r+1}")
        for sh in (8, 4, 2, 1): e(f"v_add_f32_dpp v{r}, v{r}, v{r} row_ror:{sh} row_mask:0xf bank_mask:0xf")
        e(xlane("v_add_f32", r, r + 1, both=False))
    red(40)
    e(f"v_mul_f32 v40, {f32bits(-1.0/576):#x}, v40"); e("v_mov_b32 v41, v40")
    e("v_cvt_pk_bf16_f32 v44, v40, v40"); e("v_lshlrev_b32 v44, 16, v44"); e("v_mov_b32 v45, v44")
    for d in range(0, 24, 2):
        if d == 16: e("s_mov_b32 exec_lo, 0xff"); e("s_mov_b32 exec_hi, 0xff")
        t = 92 + (d & 2); a = 88 + (d & 2)
        e(pk("v_pk_add_f32", t, Fv + d, 40))
        if d < 4: e(pk("v_pk_mul_f32", a, t, t))
        else: e(f"v_pk_fma_f32 {vr(a,2)}, {vr(t,2)}, {vr(t,2)}, {vr(a,2)}")
    e("s_mov_b64 exec, -1")
    for d in range(0, 24, 2):
        e(pk("v_pk_add_f32", Fv + d, Fv + d, 44)); e(f"v_cvt_pk_bf16_f32 v{48+d//2}, v{Fv+d}, v{Fv+d+1}")
    red(88)
    def rbf(r): e(f"v_cvt_pk_bf16_f32 v{r}, v{r}, v{r}"); e(f"v_lshlrev_b32 v{r}, 16, v{r}")
    e(f"v_mul_f32 v88, {f32bits(1.0/576):#x}, v88"); rbf(88)
    e(f"v_add_f32 v88, {f32bits(1e-5):#x}, v88"); rbf(88)
    e("v_sqrt_f32 v88, v88")
    for d in range(12):
        e(f"v_lshlrev_b32 v{Fv+2*d}, 16, v{48+d}"); e(f"v_and_b32 v{Fv+2*d+1}, 0xffff0000, v{48+d}")
        if d == 0: rbf(88)
        if d == 1: e("v_rcp_f32 v90, v88")
        if d == 2: e("v_fma_f32 v91, -v88, v90, 2.0")
        if d == 3: e("v_mul_f32 v90, v90, v91"); e("v_mov_b32 v91, v90")
    for d in range(12):
        e(pk("v_pk_mul_f32", Fv + 2 * d, Fv + 2 * d, 90)); e(f"v_cvt_pk_bf16_f32 v{48+d}, v{Fv+2*d}, v{Fv+2*d+1}")
        if d % 4 == 3:
            if d == 11: e("s_mov_b32 exec_lo, 0xff"); e("s_mov_b32 exec_hi, 0xff")
            e(f"ds_write_b128 v36, {vr(48 + d - 3)} offset:{(d//4)*4096}")
    e("s_mov_b64 exec, -1")
    e("s_waitcnt lgkmcnt(0)")
    e("s_barrier")
    e(stamp(2))
    e("s_cmp_lg_u32 s3, 0"); e("s_cbranch_scc1 KF_x123")
    w0 = [f"ds_read_b128 {vr(136+4*q)}, v39 offset:{q*1024}" for q in range(9)]
    for q in range(9):
        w0 += [f"s_waitcnt lgkmcnt({8-q})", f"buffer_store_dwordx4 {vr(136+4*q)}, v38, s[16:19], s7 offen offset:{(q%2)*2048} sc1"]
        if q % 2: w0 += ["s_add_u32 s7, s7, 4096"]
    w0 += ["v_lshlrev_b32 v38, 7, v21", "s_mov_b32 s73, 0"] + mst(62) + ["KF_tk:", "s_waitcnt vmcnt(0)", f"v_cmp_eq_u32 vcc, 0, v{vTOK}",
           "s_add_u32 s73, s73, 1", f"s_cmp_ge_u32 s73, {SPIN_MAX}",
           "s_cbranch_scc1 KF_tkd", "s_cbranch_vccz KF_tkd", f"buffer_load_dword v{vTOK}, v{vZ}, s[20:23], 0 offen sc1", "s_branch KF_tk", "KF_tkd:"]
    w0 += mst(63) + flag_store("s36", 32, 38, allw=True)
    w0 += [f"v_mov_b32 v39, {SPARE + 12288}", f"ds_write_b32 v39, v{vTOK}"]
    for x in w0: e(x if x.endswith(":") else C(x))
    e("KF_x123:")
    if ORD >= 3: e("s_barrier")
    def wq_piece(b):
        return [[f"s_add_u32 m0, s67, {b*4096}", f"s_add_u32 s68, s37, {b*131072}"],
                Inst(f"buffer_load_dwordx4 v{vDQ}, s[8:11], s68 offen lds", "wq")]
    NPW = opt.get("npw", 36); XD = opt.get("xd", 4); XEND = opt.get("xend", 8)
    e(srd(20, 60, WS_SIZE))
    e("s_cmp_lg_u32 s3, 0"); e("s_cbranch_scc1 KF_y123")
    pl = ["v_lshlrev_b32 v38, 2, v23", "s_lshl_b32 s72, s66, 7", f"s_add_u32 s72, s72, {FL_LN}"]
    pl += spin("buffer_load_dword v39, v38, s[16:19], s72 offen sc1", [39]) + ["s_branch KF_y0", "KF_y123:"]
    if ORD >= 2: pl += wq_touch
    pl += ["s_sub_u32 s72, s3, 1", "s_lshl_b32 s94, s62, 8", "KF_wql:", "s_lshl_b32 m0, s72, 10", "s_lshr_b32 s73, s72, 2", "s_lshl_b32 s73, s73, 17",
           "s_and_b32 s68, s72, 3", "s_lshl_b32 s68, s68, 6", "s_add_u32 s68, s68, s73", "s_add_u32 s68, s68, s94",
           f"buffer_load_dwordx4 v{vDQ}, s[8:11], s68 offen lds", "s_add_u32 s72, s72, 3", f"s_cmp_lt_u32 s72, {NPW*4}", "s_cbranch_scc1 KF_wql"]
    pl += [f"s_waitcnt vmcnt({(NPW - 12) * 4 // 3})", "KF_y0:"]
    for x in pl: e(x if x.endswith(":") else C(x))
    e(stamp(3))
    e("s_waitcnt lgkmcnt(0)")
    e("s_barrier")
    e(stamp(4))
    def xn_load(u, s):
        return Inst(f"buffer_load_dwordx4 {X(u, s)}, v{vXN[u]}, s[16:19], s{74 + s//4} offen offset:{(s%4)*1024} sc1", "xn")
    for s in range(XD):
        for u in range(4): e(xn_load(u, s))
    e(f"v_mov_b32 v39, {SPARE + 12288}"); e(f"ds_read_b32 v{vTOK}, v39")
    assert NPW == 36
    e(f"v_mov_b32 v{vDQ}, v238")

    k.begin(name="gemm")
    class Frags:
        def __init__(s, af): s.mf = []; s.fr = []; s.af = af
        def add(s, vbase, off, ms, d2=256):
            b = s.af + (len(s.fr) % NF) * 4
            s.fr.append((len(s.mf), len(ms), [f"ds_read_b64_tr_b16 {vr(b,2)}, v{vbase} offset:{off}",
                                              f"ds_read_b64_tr_b16 {vr(b+2,2)}, v{vbase} offset:{off+d2}"], vr(b)))
            s.mf += [m.replace("@A", vr(b)) for m in ms]
        def chain(s):
            fr = s.fr; flip = False
            for f in range(0, len(fr) - 1, 2):
                g0, n = fr[f][0], fr[f][1]
                assert fr[f + 1][0] == g0 + n and fr[f + 1][1] == n
                a, b = s.mf[g0:g0 + n], s.mf[g0 + n:g0 + 2 * n]
                dst = lambda m: m.split()[1]
                assert [dst(m) for m in a] == [dst(m) for m in b]
                prev = dst(s.mf[g0 - 1]) if g0 else None
                us = list(range(n))
                if prev == dst(a[-1]): us.reverse()
                out = []
                for i, u in enumerate(us):
                    out += [a[u], b[u]] if (i % 2 == 0 or a[u].endswith(", 0")) else [b[u], a[u]]
                s.mf[g0:g0 + 2 * n] = out
            s.paired = True
        def sched(s, wrap=False):
            sc = Sched(s.mf); fr = s.fr; N = len(fr)
            if getattr(s, "paired", False):
                for f in range(0, N, 2):
                    g0, n = fr[f][0], fr[f][1]
                    if f + LEAD < N or wrap:
                        rd = fr[(f + LEAD) % N][2] + fr[(f + LEAD + 1) % N][2]
                        for i, g in enumerate((0, 1, 4, 5) if n == 4 else (0, 1, 2, 3)): sc.put(g0 + g, rd[i])
                    if f + 2 < N or wrap:
                        sc.put(g0 + (5 if n == 4 else 3), WaitRegs(fr[(f + 2) % N][3], fr[(f + 3) % N][3]))
                return sc
            for f in range(N):
                g0, n, _, _ = fr[f]
                if f + LEAD < N or wrap:
                    sc.put(g0, fr[(f + LEAD) % N][2][0]); sc.put(g0 + 1, fr[(f + LEAD) % N][2][1])
                if (f + 1 < N or wrap) and (n == 4 or f % 2 == 0):
                    sc.put(g0 + 1, WaitRegs(*([fr[(f + 1) % N][3]] + ([fr[f + 2][3]] if n == 2 and f + 2 < N else []))))
            return sc
    G = Frags(AF); pos = {}
    KL, VL, VD, VO, ID = 200, 208, 216, 208, 240
    KVS = opt.get("kvs", 15)
    for s2 in range(0, 18, 2):
        for nt in range(8):
            if nt % 4 == 0:
                pos["Q", s2 + nt // 4] = len(G.mf)
                if s2 + nt // 4 == KVS: G.mf += tr_mf(VD, VL, ID)
            for s in (s2, s2 + 1):
                G.add(vB + 2 * (s // 8) + (nt & 1), (s % 8) * 8192 + (nt >> 1) * 1024,
                      [f"{MF} {vr(qa(nt,u))}, @A, {X(u,s)}, {'0' if s == 0 else vr(qa(nt,u))}" for u in range(4)])
    S = lambda u: (B1 if u < 2 else B3) + (u & 1) * 8
    def KF(b, f): return ar(128 + b * 32 + f * 4)
    def VF(b, f): return ar(192 + b * 32 + f * 4)
    K0F = lambda f: vr(B5 + f * 4) if f < 4 else vr(B7 + (f - 4) * 4)
    NEGM = B5; P = B7; L = XV + 16; FL = XV + 24
    def qk(u, kf, zero=False):
        out = []
        for kt in range(2):
            for s in range(4):
                c = vr(S(u) + 4 * kt)
                out.append(f"{MF} {c}, {kf(kt*4+s)}, {Qf(u, s)}, {c if s else ('0' if zero else vr(NEGM + 4*u))}")
        return out
    sb = lambda st, a: vB + (st & 1) * 2 + a
    for st in range(5):
        us = (0, 1) if st == 4 else (0, 1, 2, 3)
        for f in range(36):
            a, s = f // 18, f % 18
            pos["F", st, f] = len(G.mf)
            if st == 3 and f == 8:
                pos["QK0"] = len(G.mf)
                for u in range(4): G.mf += qk(u, K0F, zero=True)
                pos["QK0e"] = len(G.mf)
            ms = [f"{MF} {vr(fa(a,u))}, @A, {X(u,s)}, {'0' if s == 0 else vr(fa(a,u))}" for u in us]
            if st == 4: G.add(vB + 4 + a, s * 2048, ms)
            else: G.add(vB + 2 * a + (s >= 9), (s % 9) * 4096, ms, 512)
    END = len(G.mf)
    for f in range(LEAD): e(G.fr[f][2])
    G.chain()
    sc = G.sched()
    F = lambda st, f: pos["F", st, f]
    Qp = lambda s: pos["Q", s] if s < 18 else F(0, 0)
    def bar(g, *w): sc.put(g, list(w) + ["s_barrier"])
    bar(Qp(5) + 2)
    bar(Qp(10) + 2)
    bar(Qp(17) + 2, WaitTag(["f0"], 0))
    bar(F(0, 4) + 2, WaitTag(["kvst"], 0))
    bar(F(1, 28) + 2, WaitTag(["f1"], 0))
    bar(F(2, 0) + 6)
    bar(F(3, 0) + 6, WaitTag(["kv0"], 0))
    bar(F(3, 28) + 2, WaitTag(["f2", "dma"], 0))
    bar(F(4, 2))
    for s in range(2, 18, 2): sc.add([WaitRegs(*[X(u, s + q) for u in range(4) for q in range(2)])], Qp(s) - 4, Qp(s), spread=False)
    xp = sc.add([xn_load(u, s) for s in range(XD, 18) for u in range(4)], 2, Qp(XEND))
    for i, g in enumerate(xp): assert g < Qp((XD + i // 4) & ~1) - 24, (i, g)
    def pair_piece(pr, i):
        return [[f"s_add_u32 m0, s67, {pr*2*SLOT + i*4096}", f"s_add_u32 s68, s79, {pr*128 + i*32*9216}"],
                Inst(f"buffer_load_dwordx4 v{vDQ}, s[12:15], s68 offen lds", f"f{pr}")]
    def sp_piece(p):
        return [[f"s_add_u32 m0, s81, {p*1024}", f"s_add_u32 s68, s80, {p*16*9216}"],
                Inst(f"buffer_load_dwordx4 v{vD1}, s[12:15], s68 offen lds", "f2")]
    def lin_pieces(ldsb, ldsoff, src, srcoff, n=9, tag="dma"):
        out = []
        for p in range(n):
            if p % 4 == 0: out.append([f"s_add_u32 m0, {ldsb}, {ldsoff + p*1024}", f"s_add_u32 s68, {src}, {srcoff + p*1024}"])
            out.append(Inst(f"buffer_load_dwordx4 v{vL16}, s[20:23], s68 offen offset:{(p%4)*1024} sc1 lds", tag))
        return out
    F0AT = opt.get("f0at", 12)
    sc.add(flat([pair_piece(0, i) for i in range(18)]), Qp(F0AT), Qp(opt.get("f0end", 16)))
    kvl = []
    for f in range(2):
        kvl += [f"buffer_load_dwordx2 {vr(KL+4*f,2)}, v{vKO}, s[24:27], s89 offen offset:{f*64}", f"buffer_load_dwordx2 {vr(KL+2+4*f,2)}, v{vKO}, s[24:27], s89 offen offset:{f*64+32}"]
    kvl += [f"buffer_load_dwordx4 {vr(VL)}, v{vVO}, s[28:31], s87 offen", f"buffer_load_dwordx4 {vr(VL+4)}, v{vVO}, s[28:31], s88 offen"]
    T1 = opt.get("t1", XEND); T2 = opt.get("t2", 12)
    kvt = [Inst("s_mov_b64 exec, 0xffff"), Inst(f"buffer_load_dword v0, v{vKO}, s[24:27], s89 offen", "tch"),
           Inst(f"buffer_load_dword v0, v{vKO}, s[28:31], s89 offen", "tch"), Inst("s_mov_b64 exec, -1")]
    tlb = []
    if opt.get("tlb", 0):
        tlb = [["s_lshr_b32 s72, s2, 3", "s_lshl_b32 s72, s72, 2", "s_add_u32 s72, s72, s3"],
               [Inst(f"s_mul_i32 s72, s72, {768*1024}"), Inst("s_mov_b64 exec, 1"), Inst(f"buffer_load_dword v0, v{vZ}, s[16:19], s72 offen offset:64 sc1", "tch"), Inst("s_mov_b64 exec, -1")]]
    sc.add([w1_touch(0), kvt] + tlb, Qp(T1), Qp(T1) + 16)
    sc.add(kvl[4:] + kvl[:4], Qp(T2), Qp(T2) + 30)
    sc.add(ident(ID, vT, vL), Qp(10), Qp(KVS - 1))
    sc.add([WaitRegs(vr(VL), vr(VL + 4))], Qp(KVS) - 3, Qp(KVS), spread=False)
    kst = [Inst(f"buffer_store_dwordx4 {vr(KL+4*f)}, v{vL16}, s[16:19], s93 offen offset:{f*1024} sc1", "kvst") for f in range(2)]
    for h in range(2):
        kst += tr_cvt(VO + 4 * h, VD, h) + [Inst(f"buffer_store_dwordx4 {vr(VO+4*h)}, v{vL16}, s[16:19], s95 offen offset:{h*1024} sc1", "kvst")]
    sc.add(kst, Qp(KVS) + 6, Qp(KVS + 1) - 2)
    sc.add([w1_touch(1), w1_touch(2)], Qp(opt.get("t3", 16)) + 8, Qp(opt.get("t3", 16)) + 24)
    sc.add([flag_store("s91", 1, vZ)], F(0, 4) + 3, F(0, 4) + 8)
    sc.add(flat([pair_piece(1, i) for i in range(18)]), F(0, opt.get("f2at", 10)), F(1, 2))
    kvld = f"buffer_load_dword v{vT2}, v{vT}, s[16:19], s90 offen sc1"
    sc.add([f"v_bfe_u32 v{vT}, v{vL16}, 4, 4", f"v_lshlrev_b32 v{vT}, 2, v{vT}", kvld], F(1, 0), F(1, 3))
    c1, c2 = check(kvld, [vT2])
    sc.add([c1 + c2], F(1, 20), F(1, 21))
    kv0 = [["s_lshl_b32 s72, s3, 12", "s_add_u32 s70, s82, s72"]] + lin_pieces("s72", SPARE, "s70", 0, 4, "kv0") + [["s_add_u32 s92, s82, s81"]]
    sc.add(kv0, F(1, 21), F(1, 34))
    sc.add(flat([sp_piece(p) for p in range(9)]) + lin_pieces("s81", 1 * SLOT, "s92", 16384), F(2, 2), F(3, 6))
    sc.add(lin_pieces("s81", 2 * SLOT, "s92", 16384 + 32768), F(4, 3), F(4, 30))
    for st in range(4):
        for a in range(2):
            lo, hi = ((Qp(16), Qp(17)) if st == 0 else (F(st - 1, 16), F(st - 1, 30))) if a == 0 else (F(st, 0), F(st, 12))
            sc.add([f"v_xor_b32 v{vB+2*a}, {((st & 1)*2 + a) * 32}, v{vP5}", f"v_add_u32 v{vB+2*a}, {(st >> 1)*2*SLOT}, v{vB+2*a}",
                    f"v_add_u32 v{vB+2*a+1}, {SLOT}, v{vB+2*a}"], lo, hi)
    sc.add([f"v_mov_b32 v{vB+4}, v{vS0}", f"v_xor_b32 v{vB+5}, 32, v{vS0}"], F(2, 4), F(2, 20))
    sc.add([f"v_lshrrev_b32 v{vP5}, 6, v{vL16}", f"v_mul_u32_u24 v{vP5}, 288, v{vP5}", f"v_bfe_u32 v{vT2}, v{vL16}, 4, 2", f"v_lshl_add_u32 v{vP5}, v{vT2}, 3, v{vP5}"], F(3, 14), F(3, 30))
    ids = [["s_cmp_lt_u32 s64, 4", "s_cselect_b32 s24, s48, s54", "s_cselect_b32 s25, s49, s55"],
           [f"s_mov_b32 s26, {4096*1152}", "s_cmp_lt_u32 s64, 4", f"s_cselect_b32 s26, s26, {4608*1152}"],
           ["s_cmp_lt_u32 s64, 4", "s_cselect_b32 s72, 32, 36", "s_cselect_b32 s5, 0, 1"],
           ["s_and_b32 s73, s64, 3", "s_mul_i32 s7, s73, s72"],
           ["s_lshl_b32 s6, s5, 7", "s_add_u32 s6, s6, s7"], [f"s_mul_i32 s7, s7, {32*1152}"],
           ["s_lshr_b32 s72, s2, 3", "s_lshl_b32 s72, s72, 2"], ["s_add_u32 s72, s72, s3", f"s_mul_i32 s72, s72, {(41 if opt.get('wtm', 0) == 0 else 14)*128}"], ["s_add_u32 s89, s7, s72", "s_mov_b32 s39, s89"],
           [f"s_add_u32 s88, s89, {41*128*128}"], f"v_lshlrev_b32 v{vKO}, 3, v{vL16}"]
    sc.add(ids, F(0, 8), F(0, 34))
    WTM = opt.get("wtm", 0)
    for so, g in ((("s89", F(1, 4)), ("s88", F(3, opt.get("wt2", 10)))) if WTM == 0 else ()):
        sc.add([[Inst("s_mov_b32 exec_hi, 0x1ff"), Inst(f"buffer_load_dword v0, v{vKO}, s[24:27], {so} offen", "tch"), Inst("s_mov_b64 exec, -1")]], g, g + 6)
    def epi_a(us): return flat([[f"v_cvt_pk_bf16_f32 v{T+4*u}, v{fa(0,u)}, v{fa(0,u)+1}", f"v_cvt_pk_bf16_f32 v{T+4*u+1}, v{fa(0,u)+2}, v{fa(0,u)+3}",
                                 f"v_pk_max_i16 v{T+4*u}, v{T+4*u}, 0", f"v_pk_max_i16 v{T+4*u+1}, v{T+4*u+1}, 0"] for u in us])
    def epi_b(st, us):
        so, off = ("s85", 0) if st == 4 else ("s84", st * 1024)
        return flat([[f"v_cvt_pk_bf16_f32 v{T+4*u+2}, v{fa(1,u)}, v{fa(1,u)+1}", f"v_cvt_pk_bf16_f32 v{T+4*u+3}, v{fa(1,u)+2}, v{fa(1,u)+3}",
                      f"v_pk_max_i16 v{T+4*u+2}, v{T+4*u+2}, 0", f"v_pk_max_i16 v{T+4*u+3}, v{T+4*u+3}, 0",
                      Inst(f"buffer_store_dwordx4 {vr(T+4*u)}, v{vST[u]}, s[16:19], {so} offen offset:{off} sc1", "st")] for u in us])
    for st in range(5):
        us = (0, 1) if st == 4 else (0, 1, 2, 3)
        sc.add(epi_a(us), F(st, 20 if st < 4 else 22), F(st, 34))
        if st: sc.add(epi_b(st - 1, (0, 1, 2, 3)), F(st, 2 if st < 4 else 4), F(st, 16))
    qe = []
    for s in range(4):
        for u in range(4):
            a, b = qa(2 * s, u), qa(2 * s + 1, u)
            qe += [f"v_mul_f32 v{r}, s86, v{r}" for r in list(range(a, a + 4)) + list(range(b, b + 4))]
            qe += [f"v_cvt_pk_bf16_f32 v{a}, v{a}, v{a+1}", f"v_cvt_pk_bf16_f32 v{a+1}, v{a+2}, v{a+3}",
                   f"v_cvt_pk_bf16_f32 v{a+2}, v{b}, v{b+1}", f"v_cvt_pk_bf16_f32 v{a+3}, v{b+2}, v{b+3}"]
    qp = sc.add(qe, F(0, 1), F(2, 0), spread=False)
    PR = 21504
    pf = [["s_lshl_b32 s72, s63, 2", "s_add_u32 s72, s72, s65"], ["s_lshl_b32 s72, s72, 2", "s_add_u32 s72, s72, s3"],
          [f"s_mul_i32 s78, s72, {8*PR}", f"s_add_u32 s78, s78, {WS_PART if not opt.get('xp') else 0x70000000}"], [f"s_mul_i32 s73, s64, {PR}", "s_add_u32 s74, s78, s73"],
          ["s_add_u32 s75, s74, 5120", "s_add_u32 s76, s74, 10240"], ["s_add_u32 s77, s74, 15360", "s_mov_b32 s95, s74"]]
    sc.add(pf, F(1, 34), F(2, 4))
    sc.add([f"v_add_u32 v{vL}, {SPARE}, v{vL16}"], F(2, 30), F(2, 34))
    sc.add([f"ds_read_b128 {K0F(f)}, v{vL} offset:{f*1024}" for f in range(8)], F(3, 1) + 3, F(3, 7))
    sc.add([WaitRegs(*[K0F(f) for f in range(8)])], pos["QK0"] - 2, pos["QK0"], spread=False)
    M = lambda u: NEGM + 4 * u
    pa = []
    for u in range(4):
        s0 = S(u); m = M(u)
        pa += [f"v_max3_f32 v{m}, v{s0}, v{s0+1}, v{s0+2}", f"v_max3_f32 v{m}, v{m}, v{s0+3}, v{s0+4}",
               f"v_max3_f32 v{m}, v{m}, v{s0+5}, v{s0+6}", f"v_max_f32 v{m}, v{m}, v{s0+7}"]
    xl = [xlane("v_max_f32", M(u), M(u) + 1) for u in range(4)]
    for i in range(6): pa += [xl[u][i] for u in range(4)]
    for u in range(4):
        pa += [f"v_sub_f32 v{S(u)+i}, v{S(u)+i}, v{M(u)}" for i in range(8)] + [f"v_sub_f32 v{M(u)+i}, 0, v{M(u)}" for i in (3, 2, 1, 0)]
    for u in range(4): pa += [f"v_exp_f32 v{S(u)+i}, v{S(u)+i}" for i in range(8)]
    for u in range(4): pa += [f"v_cvt_pk_bf16_f32 v{P+4*u+i}, v{S(u)+2*i}, v{S(u)+2*i+1}" for i in range(4)]
    pp = sc.add(pa, pos["QK0e"] + 3, F(4, 6), spread=False)
    pl = []
    for u in range(4):
        s0 = S(u)
        pl += [f"v_add_f32 v{L+u}, v{s0}, v{s0+2}", f"v_add_f32 v{L+4+u}, v{s0+1}, v{s0+3}"]
        pl += [f"v_add_f32 v{L+u+4*(i&1)}, v{L+u+4*(i&1)}, v{s0+i}" for i in range(4, 8)]
    sc.add(pl, max(F(4, 1), pp[-1] + 1), END)
    sc.add([f"ds_read_b128 {VF(0, f)}, v{vL} offset:{8192 + f*1024}" for f in range(8)], F(4, 32), END, spread=False, mind=1)
    if stamps and opt.get("fine"):
        for i, g in enumerate([Qp(1), Qp(3), Qp(5), Qp(5) + 4, Qp(7), Qp(9), Qp(11), Qp(13), Qp(15), Qp(17), F(0, 0), F(0, 18), F(1, 0), F(2, 0), F(2, 6), F(3, 0), pos["QK0"], F(4, 0)]):
            sc.gap[g] = sc.gap[g] + [_mk(x) for x in mst(14 + i)]
    e(sc.flat())
    e(stamp(5))

    def O(dt, u): return (dt * 4 + u) * 4
    def pv(u, b, pb, zero=False):
        return [f"{MF} {ar(O(dt, u))}, {VF(b, dt)}, {vr(P + 4*pb)}, {'0' if zero else ar(O(dt, u))}" for dt in range(8)]
    vD = list(range(16, 25)); vDW = list(range(176, 185)); vTW = 185
    def softmax(u):
        s0 = S(u); sm = []
        for i in range(4):
            a = s0 + 2 * i
            sm += [f"v_exp_f32 v{a}, v{a}", f"v_exp_f32 v{a+1}, v{a+1}"]
            if i: sm += [f"v_add_f32 v{L+u}, v{L+u}, v{a-2}", f"v_add_f32 v{L+4+u}, v{L+4+u}, v{a-1}", f"v_cvt_pk_bf16_f32 v{P+4*u+i-1}, v{a-2}, v{a-1}"]
        return sm + [f"v_cvt_pk_bf16_f32 v{P+4*u+3}, v{s0+6}, v{s0+7}", f"v_add_f32 v{L+u}, v{L+u}, v{s0+6}", f"v_add_f32 v{L+4+u}, v{L+4+u}, v{s0+7}"]
    def ring_dma():
        dm = [["s_xor_b32 s92, s88, s85"], ["s_mul_i32 s92, s92, s97"], ["s_add_u32 s92, s92, s93"]]
        for p in range(9):
            if p % 4 == 0: dm.append([f"s_add_u32 m0, s94, {p*1024}"])
            dm.append(Inst(f"buffer_load_dwordx4 v{vD[p]}, s[20:23], s92 offen offset:{(p%4)*1024} sc1 lds", "dma"))
        return dm + [["s_add_u32 s88, s88, 1"], [f"s_add_u32 s94, s94, {SLOT}"], [f"s_cmp_ge_u32 s94, {4*SLOT}", "s_cselect_b32 s94, s81, s94"]]
    adv_rd = [[f"s_add_u32 s96, s96, {SLOT}"], [f"s_cmp_eq_u32 s96, {4*SLOT}", "s_cselect_b32 s96, 0, s96"]]
    hfl = f"buffer_load_dword v{FL}, v{vT}, s[16:19], s84 offen sc1"
    def BF(b, s, u): return ar(128 + ((b * 4 + s) * 4 + u) * 4)
    def B1st(s, u): return BF(s >> 1, s & 1, u)
    def bload(dst, s, u):
        return Inst(f"buffer_load_dwordx4 {dst}, v{vST[u]}, s[28:31], s79 offen offset:{s*1024} sc1", "b")
    adv_b = [["s_xor_b32 s79, s87, s85", "s_lshl_b32 s79, s79, 12"], ["s_add_u32 s79, s79, s80", "s_add_u32 s87, s87, 1"]]
    def attn_iter(kind):
        first, last = kind == "first", kind == "last"
        mf = []; base = []
        for sl in range(8):
            base.append(len(mf))
            t2 = sl + 2; kb = (t2 // 4) & 1
            if not (last and sl >= 6) and not (first and sl < 2): mf += qk(t2 % 4, lambda f: KF(kb, f))
            mf += pv(sl % 4, (sl // 4) & 1, sl % 4, zero=(first and sl < 4))
        base.append(len(mf))
        sc = Sched(mf)
        for sl in range(8):
            u, half = sl % 4, sl // 4
            n = base[sl + 1] - base[sl]
            if not (last and half == 1):
                nb = (half + 1) & 1
                for i in range(4):
                    f = (u & 1) * 4 + i
                    d, o = (KF(nb, f), 0) if u < 2 else (VF(nb, f), 8192)
                    g = f if n == 8 else base[sl] + (3 + 4 * i if u != 1 else (2, 3, 6, 7)[i])
                    sc.put(g, f"ds_read_b128 {d}, v{vL} offset:{half*16384 + o + f*1024}")
            if u == 1 and not (last and half == 1):
                sc.put(base[sl + 1] - (3 if n == 16 else 1), WaitRegs(*[KF((half + 1) & 1, f) for f in range(8)]))
            if u == 0 and n == 16: sc.put(base[sl] + 5, WaitRegs(*[VF(half & 1, f) for f in range(8)]))
        gb = base[1] + 11
        if first:
            gb = base[4] + 1
            sc.add(ring_dma(), 12, gb - 2)
        sc.put(gb, [WaitTag(["dma"] if first else ["dma", "st"], 9), "s_barrier"])
        dm = ring_dma() + adv_rd
        if kind == "loop" and WTM:
            dm += [[Inst("s_mov_b64 exec, 0x3fff"), Inst(f"buffer_load_dword v0, v{vKO}, s[24:27], s39 offen", "tch"), Inst("s_mov_b64 exec, -1")],
                   [f"s_add_u32 s39, s39, {1792*128}"]]
        ONES = 188
        if first: sc.add([f"v_mov_b32 v{ONES+r}, -1" for r in range(4)], 1, 12, spread=False)
        if not last:
            sc.add([Inst(f"buffer_store_dwordx4 {vr(ONES)}, v{vL16}, s[16:19], s95 offen offset:{c*1024} sc1", "pf") for c in range(3)] + [["s_add_u32 s95, s95, 3072"]],
                   base[4] + 3 if first else 2, base[8] - 4)
        if last:
            sc.add([f"v_lshlrev_b32 v{ONES}, 7, v{vL16}", [WaitTag(["pf"], 0)] + flag_store("s89", 8, ONES, allw=True)], base[6], base[8])
            for s in range(4): sc.add([bload(B1st(s, u), s, u) for u in range(4)], base[2 + s] + 1, base[3 + s] + 8)
        if first:
            sc.add([f"v_add_u32 v{vD[p]}, {(p - p % 4)*1024}, v{vL16}" if p < 5 else f"v_add_u32 v{vD[p]}, {('s72','s73')[p == 8]}, v{vL16}" for p in range(9)], 1, 12, spread=False)
            sc.add([Inst(x.text.replace("s85", "s36"), x.tag) if isinstance(x, Inst) else x for x in epi_b(4, (0, 1))], 6, gb)
        sc.add(dm, gb + 1, base[opt.get("dme", 8)] - 2 if kind == "loop" else base[8] - 2)
        for sl in range(8):
            if (last and sl == 7) or (first and sl < 3): continue
            hi = base[sl + 1] + (4 if sl < 7 and not (last and sl >= 5) else 0)
            sc.add(softmax((sl + 1) % 4), base[sl], hi, spread=False)
        if first:
            dw = [f"v_lshrrev_b32 v{vT2}, 4, v{vL16}"]
            for p in range(9):
                r = vDW[p]
                dw += [f"v_add_u32 v{vT}, {64*p}, v{vT2}", f"v_mul_u32_u24 v{r}, 3641, v{vT}", f"v_lshrrev_b32 v{r}, 16, v{r}",
                       f"v_mul_u32_u24 v{r}, {1152 - 288}, v{r}", f"v_lshl_add_u32 v{r}, v{vT}, 4, v{r}"]
                if p % 4: dw.append(f"v_subrev_u32 v{r}, {(p%4)*1024}, v{r}")
            dp = sc.add(dw, 1, base[7], spread=False)
            fa_ = [["s_lshl_b32 s72, s63, 14", "s_lshl_b32 s73, s3, 7"], ["s_add_u32 s72, s72, s73", f"s_add_u32 s72, s72, {FL_P2}"],
                   ["s_lshl_b32 s73, s62, 2", "s_add_u32 s91, s72, s73"], ["s_add_u32 s91, s91, 8192"],
                   ["s_lshr_b32 s73, s62, 3", "s_lshl_b32 s73, s73, 11"], ["s_add_u32 s90, s72, s73", "s_and_b32 s73, s62, 7"], ["s_lshl_b32 s73, s73, 2", "s_add_u32 s90, s90, s73"],
                   ["s_lshl_b32 s73, s64, 2", "s_add_u32 s73, s73, s65"], ["s_lshl_b32 s73, s73, 9", "s_add_u32 s84, s72, s73"],
                   [f"s_add_u32 s37, s84, {FL_EX - FL_P2}", "s_lshl_b32 s73, s64, 11"], ["s_sub_u32 s89, s37, s73", "s_lshl_b32 s73, s64, 2"], ["s_add_u32 s89, s89, s73"],
                   ["s_movk_i32 s73, 0x30", "s_cmp_eq_u32 s5, 0", "s_cselect_b32 s73, s73, 0x1f0"]]
            sc.add(fa_, base[3], base[6])
            sc.add([f"v_and_b32 v{vT}, s73, v{vL16}", f"v_lshrrev_b32 v{vT}, 2, v{vT}", f"v_lshlrev_b32 v{vT2}, 5, v{vL16}",
                    [WaitTag(["st"], 0)] + flag_store("s91", 16, vT2, allw=True)], max(base[7], dp[-1] + 1), base[8])
        e(f"v_add_u32 v{vL}, s96, v{vL16}")
        e(sc.flat())
    k.begin(name="attn_first")
    e(f"s_add_u32 s93, s92, {16384 + 2*32768}"); e("s_mov_b32 s97, 32768"); e("s_mov_b32 s88, 0"); e("s_mov_b32 s36, s85"); e("s_mov_b32 s85, 0")
    e(f"s_add_u32 s94, s81, {3*SLOT}"); e(f"s_mov_b32 s96, {SLOT}")
    e("s_mov_b32 s4, 1"); e("s_mov_b32 s28, s60"); e("s_mov_b32 s29, s61"); e("s_mov_b32 s30, 0")
    e("s_cmp_eq_u32 s3, 3"); e("s_cselect_b32 s72, s18, 0x1000"); e("s_cselect_b32 s73, s18, 0x2000")
    attn_iter("first")
    k.begin(loop=6, name="attn_loop")
    e(".p2align 3"); e("KF_aloop:")
    if stamps and opt.get("fine"):
        e(["s_memtime s[98:99]", "s_add_u32 s100, s4, 55", "s_lshl_b32 s100, s100, 4", f"v_cmp_eq_u32 vcc, s100, v{vL16}",
           "s_waitcnt lgkmcnt(0)", "v_mov_b32 v47, s98", f"v_cndmask_b32 v{STV}, v{STV}, v47, vcc"])
    e("s_cmp_eq_u32 s4, 5"); e("s_cbranch_scc1 KF_sw"); e("KF_oolr:")
    attn_iter("loop")
    e("s_add_u32 s4, s4, 1"); e("s_cmp_lt_u32 s4, 7"); e("s_cbranch_scc1 KF_aloop")
    ool.append([
                "KF_sw:",
                "s_mov_b32 s20, s24", "s_mov_b32 s21, s25", "s_mov_b32 s22, s26"] + [f"v_mov_b32 v{vD[p]}, v{vDW[p]}" for p in range(9)] +
               [f"s_mov_b32 s97, {128*1152}", f"s_mul_i32 s93, s3, {32*1152}", "s_add_u32 s93, s93, s7", "s_mul_i32 s72, s65, 288", "s_add_u32 s93, s93, s72",
                "s_lshl_b32 s80, s6, 10", f"s_add_u32 s80, s80, {WS_ACT}", "s_mov_b32 s79, s80", "s_mov_b32 s88, 0", "s_mov_b32 s87, 1",
                "s_cmp_eq_u32 s5, 0", "s_cselect_b32 s85, s65, 0", "s_cselect_b32 s30, 0, s18", hfl] + (
               ["s_getpc_b64 s[72:73]", "KF_pc2:", "s_sub_u32 s8, s72, KF_pc2-KF_nock", "s_subb_u32 s9, s73, 0", "s_mov_b32 s10, KF_codeend-KF_nock",
                "s_lshr_b32 s72, s2, 3", "s_lshl_b32 s72, s72, 2", "s_add_u32 s72, s72, s3", "s_mul_i32 s72, s72, 384",
                "s_mov_b64 exec, 7", Inst(f"buffer_load_dword v0, v{vKO}, s[8:11], s72 offen", "tch"), "s_mov_b64 exec, -1"] if opt.get("cpf2", 1) else []) + [
                "s_branch KF_oolr"])
    k.begin(name="attn_last")
    e("s_cmp_eq_u32 s5, 0"); e("s_cbranch_scc1 KF_nock")
    c1, c2 = check(hfl, [FL])
    for x in ["s_waitcnt vmcnt(18)"] + c1 + c2: e(x if x.endswith(":") else C(x))
    e("KF_nock:")
    attn_iter("last")
    e(stamp(6))
    W = 216
    for u in range(4): e(f"v_add_f32 v{L+u}, v{L+u}, v{L+4+u}")
    xl = [xlane("v_add_f32", L + u, W + 4 + u) for u in range(4)]
    for i in range(6):
        for u in range(4): e(xl[u][i])
    e(f"v_add_f32 v{W+1}, v{L}, v{L+1}"); e(f"v_add_f32 v{W+2}, v{L+2}, v{L+3}"); e(f"v_add_f32 v{W}, v{W+1}, v{W+2}")
    e(f"v_cmp_nge_f32 vcc, {f32bits(2.0**30):#x}, v{W}")
    e("s_cbranch_vccnz KF_slow")
    e("KF_epi:")
    k.begin(name="oepi")
    ACC = 48; A2 = 192
    def acc(nt, u): return ACC + (nt * 4 + u) * 4
    e(f"v_add_u32 v{vL}, s96, v{vP5}")
    def mkstage(bf, zero=False, pair=True):
        G = Frags(A2)
        for (s, nt) in ([(s2 + q, nt) for s2 in (0, 2) for nt in range(9) for q in range(2)] if pair else [(s, nt) for s in range(4) for nt in range(9)]):
            G.add(vL, s * 9216 + nt * 32, [f"{MF} {vr(acc(nt,u))}, @A, {bf(s,u)}, {'0' if zero and s == 0 else vr(acc(nt,u))}" for u in range(4)], 4608)
        if pair: G.chain()
        return G
    P5 = {b: mkstage(lambda s, u, b=b: BF(b, s, u)) for b in range(2)}
    for u in range(4): e(f"v_rcp_f32 v{L+u}, v{L+u}")
    if opt.get("xo"): e("s_mov_b32 s83, 0x7fff0000")
    if opt.get("xb"): e("s_mov_b32 s80, 0x70000000")
    if opt.get("xd2"): e("s_mov_b32 s22, 0")
    OB = lambda i, u: 216 + ((i & 1) * 4 + u) * 4
    def oepi(i, u, t, packed=False):
        o = OB(i, u)
        out = [f"v_accvgpr_read_b32 v{t+r}, a{O(2*i + r//4, u) + r%4}" for r in range(8)]
        if packed: out += [f"v_pk_mul_f32 {vr(t+r,2)}, {vr(t+r,2)}, {vr(L + (u & 2),2)} op_sel:[0,{u&1}] op_sel_hi:[1,{u&1}]" for r in range(0, 8, 2)]
        else: out += [f"v_mul_f32 v{t+r}, v{t+r}, v{L+u}" for r in range(8)]
        out += [f"v_cvt_pk_bf16_f32 v{o+r}, v{t+2*r}, v{t+2*r+1}" for r in range(4)]
        return out + [Inst(f"buffer_store_dwordx4 {vr(o)}, v{vST[u]}, s[16:19], s83 offen offset:{i*1024} sc1", "st")]
    def common(sc):
        sc.put(4 * (36 - LEAD) - 1, f"v_add_u32 v{vL}, s96, v{vP5}")
        sc.put(6, [WaitTag(["dma"], 9), "s_barrier"])
    e(stamp(7))
    e("s_mov_b32 s4, 0"); e("s_mov_b32 s101, s5")
    e("s_cmp_eq_u32 s5, 0"); e("s_cbranch_scc1 KF_spre")
    def BF2(s, u): return ar((s * 4 + u) * 4)
    lastb = [["s_add_u32 s72, s5, 7", "s_xor_b32 s72, s72, s85", "s_lshl_b32 s72, s72, 12", "s_add_u32 s82, s72, s80"]] + \
            [Inst(f"buffer_load_dwordx4 {BF2(s, u)}, v{vST[u]}, s[28:31], s82 offen offset:{s*1024} sc1", "b") for s in range(4) for u in range(4)]
    k.begin(name="g_pre")
    for f in range(LEAD): e(P5[0].fr[f][2])
    B2nd = lambda s, u: BF(s >> 1, 2 + (s & 1), u)
    G = mkstage(B1st, zero=True); G1 = mkstage(B2nd)
    off = len(G.mf); G.fr += [(g0 + off, n, r, d) for (g0, n, r, d) in G1.fr]; G.mf += G1.mf
    sc = G.sched(wrap=True)
    for o in (0, 144):
        sc.put(o + 4 * (36 - LEAD) - 1, f"v_add_u32 v{vL}, s96, v{vP5}")
        sc.put(o + 6, [WaitTag(["dma"], 9), "s_barrier"])
        sc.add(adv_rd, o + 7, o + 12, spread=False)
    def W2(f, s): return WaitRegs(*[f(s + q, u) for q in range(2) for u in range(4)])
    for q, w in enumerate([W2(B1st, 2), W2(B2nd, 0), W2(B2nd, 2), W2(lambda s, u: BF(0, s, u), 0)]): sc.add([w], 72 * q + 68, 72 * q + 72, spread=False)
    OEG = opt.get("oeg", 200); B2E = opt.get("b2e", 70)
    sc.add(adv_b + [bload(B2nd(s, u), s, u) for s in range(4) for u in range(4)] + adv_b + [["s_add_u32 s86, s79, 4096"]], 0, B2E)
    def bl2(b, s): return [Inst(bload(BF(b, s, u), s, u).text.replace("s79", "s86" if b else "s79"), "b") for u in range(4)]
    sc.add(bl2(0, 0) + bl2(0, 1), 80, 144)
    sc.add(bl2(1, 0) + bl2(1, 1), 146, 214)
    sc.add(bl2(0, 2) + bl2(0, 3) + adv_b, 216, 280)
    for q in range(2): sc.add(ring_dma(), 144 * q + 12, 144 * q + 140)
    sc.add(flat([oepi(i, u, 248) for i in range(4) for u in range(4)]), opt.get("oes", 0), OEG)
    sc.add([[WaitTag(["st"], 0)] + flag_store("s90", 4, vT2, allw=True)], min(OEG + 60, 282), 288, spread=False)
    e(sc.flat())
    e(stamp(8))
    e("s_branch KF_loop2")
    k.begin(name="s_pre")
    e("KF_spre:")
    for f in range(LEAD): e(mkstage(lambda s, u: vr(OB(s, u)), pair=False).fr[f][2])
    for u in range(4): e(oepi(0, u, 248 if u & 1 else 40, packed=True))
    G = mkstage(lambda s, u: vr(OB(s, u)), zero=True, pair=False); sc = G.sched(); common(sc)
    sc.add(adv_rd, 7, 12, spread=False)
    for i in range(1, 4): sc.add(flat([oepi(i, u, 248) for u in range(4)]), 36 * (i - 1), 36 * i - 1)
    sc.add(ring_dma(), 108, 143)
    e(sc.flat())
    e(mst(52))
    k.wait_tags("st")
    e(mst(53))
    e(flag_store("s90", 4, vT2, allw=True))
    e("s_mov_b32 s30, s18")
    e(adv_b)
    e(spin(hfl, [FL]))
    e(mst(54))
    for b in (0, 1):
        for s in range(4 - 2 * b):
            for u in range(4): e(bload(BF(b, s, u), s, u))
        if b == 0: e(adv_b)
    for f in range(LEAD): e(P5[0].fr[f][2])
    e(W2(lambda s, u: BF(0, s, u), 0))
    e("s_mov_b32 s4, 0")
    e(stamp(8))

    def stage2(b):
        G = P5[b]; sc = G.sched(wrap=True); common(sc)
        sc.add([W2(lambda s, u: BF(b, s, u), 2)], 68, 72, spread=False)
        sc.add([W2(lambda s, u: BF(b ^ 1, s, u), 0)], 140, 144, spread=False)
        sc.add(adv_rd, 7, 12, spread=False)
        sc.add([bload(BF(b ^ 1, s, u), s, u) for s in (2, 3) for u in range(4)] + adv_b, 2, 62)
        sc.add([bload(BF(b, s, u), s, u) for s in (0, 1) for u in range(4)], 72, 136)
        sc.add(ring_dma(), 12, 140)
        hk = [_mk(x) for x in ("s_cmp_eq_u32 s101, 0", f"s_cbranch_scc1 KF_hk{b}", f"KF_hk{b}r:")]
        sc.add([hk], (130, 64)[b], (136, 71)[b], spread=False)
        fl = sc.flat(); i = fl.index(hk[1])
        cnt[b] = sum(1 for x in (fl[i:] if b == 0 else fl[:i]) if x.kind in ("vload", "vstore", "dma"))
        assert b == 0 or not any(x.kind == "vload" and BF(1, 0, 0) in x.text for x in fl[:i])
        e(fl)
    cnt = {}
    k.begin(loop=2, name="L0")
    e(".p2align 3"); e("KF_loop2:")
    stage2(0)
    k.begin(loop=2, name="L1")
    stage2(1)
    e("s_add_u32 s4, s4, 1"); e("s_cmp_lt_u32 s4, 2"); e("s_cbranch_scc1 KF_loop2")
    hfl2 = hfl.replace("offen", "offen offset:16")
    ool.append(["KF_hk0:", hfl2, "s_branch KF_hk0r"])
    ool.append(["KF_hk1:", "s_mov_b32 s101, 1", f"s_waitcnt vmcnt({cnt[0] + cnt[1]})"] + cmpf([FL]) +
               ["s_nop 0", "s_cbranch_vccz KF_hk1r"] + spin(hfl2, [FL], "KF_hk1r"))

    k.begin(name="final")
    e(stamp(9))
    NPRE = opt.get("npre", 2)
    nts = [8, 0, 1, 2, 3, 4, 5, 6, 7]
    assert NPRE == 2
    order = [(0, s, nt) for nt in range(9) for s in range(2)]
    order += [(b, s, nt) for nt in nts for b in range(3) for s in range(4) if not (b == 0 and s < NPRE)]
    G = Frags(A2); done = {}
    vLb = [vL, vT, vB + 2]
    for (b, s, nt) in order:
        bf = (lambda u: BF(b, s, u)) if b < 2 else (lambda u: BF2(s, u))
        G.add(vLb[b], s * 9216 + nt * 32, [f"{MF} {vr(acc(nt,u))}, @A, {bf(u)}, {vr(acc(nt,u))}" for u in range(4)], 4608)
        done[nt] = len(G.mf)
    G.chain()
    sc = G.sched(); NG = len(G.mf); G0 = 36 * NPRE
    sc.put(G0 - 26, [WaitTag(["dma"], 0), "s_barrier"])
    sc.add([bload(BF(1, s, u), s, u) for s in (2, 3) for u in range(4)] + [Inst(x.text.replace("s82", "s86"), "b") if isinstance(x, Inst) else [y.replace("s82", "s86") for y in x] for x in lastb], 2, 56)
    gq = G0 + (8 - NPRE) * 4
    sc.add([WaitRegs(*[BF2(s, u) for s in range(4) for u in range(4)])], gq - 4, gq, spread=False)
    sc.add(adv_rd + [f"v_add_u32 v{vLb[1]}, s96, v{vP5}"] + adv_rd + [f"v_add_u32 v{vLb[2]}, s96, v{vP5}"], 7, 30, spread=False)
    sc.add([W2(lambda s, u: BF(1, s, u), 0)], G0 - 4, G0, spread=False)
    sc.add([W2(lambda s, u: BF(1, s, u), 2)], G0 + 12, G0 + 16, spread=False)
    SEL = 26; XRr = 36; vX = 25; vL8 = 46
    ad = [
          ["s_and_b32 s82, s64, 3", "s_mul_i32 s73, s82, 5120"], ["s_add_u32 s78, s78, s73", "s_lshl_b32 s73, s5, 10"], ["s_add_u32 s85, s78, s73"],
          ["s_lshl_b32 s73, s71, 1", "s_xor_b32 s82, s82, s73"], ["s_add_u32 s82, s82, s69", f"s_mul_i32 s83, s82, {16*1152}"],
          ["s_mul_i32 s73, s65, 288", "s_add_u32 s87, s83, s73"], ["s_lshl_b32 s73, s5, 6", "s_add_u32 s83, s87, s73"],
          ["s_mov_b32 s12, s56", "s_mov_b32 s13, s57"], [f"s_mov_b32 s14, {2048*1152}"],
          [f"s_mov_b32 s88, {f32bits(-math.log2(math.e)):#x}", "s_mov_b32 s89, 0xffff0000"]]
    sc.add(ad, 56, G0 + 36)
    va = [f"v_bfe_u32 v{vX}, v{vL16}, 4, 4", f"v_lshrrev_b32 v{vT2}, 8, v{vL16}", f"v_bfe_u32 v{vL8}, v{vL16}, 6, 2",
          [f"v_cmp_eq_u32 vcc, v{vL8}, v{vT2}", f"v_mov_b32 v{SEL}, 0x3f80", f"v_and_b32 v{vL8}, 16, v{vL16}", f"v_lshlrev_b32 v{SEL}, v{vL8}, v{SEL}",
           f"v_cndmask_b32 v{SEL}, 0, v{SEL}, vcc"],
          [f"v_and_b32 v{vL8}, 32, v{vL16}", f"v_cmp_eq_u32 vcc, 0, v{vL8}", "s_nop 1", f"v_cndmask_b32 v{SEL+2}, 0, v{SEL}, vcc", f"v_cndmask_b32 v{SEL+3}, v{SEL}, 0, vcc"],
          f"v_mov_b32 v{SEL}, 0", f"v_mov_b32 v{SEL+1}, 0", f"v_mov_b32 v{SEL+4}, 0", f"v_mov_b32 v{SEL+5}, 0",
          f"v_mov_b32 v{SEL+6}, v{SEL+2}", f"v_mov_b32 v{SEL+7}, v{SEL+3}", f"v_mov_b32 v{SEL+8}, v{SEL+2}", f"v_mov_b32 v{SEL+9}, v{SEL+3}",
          f"v_mul_u32_u24 v{vX}, 1152, v{vX}", f"v_lshl_add_u32 v{vX}, v{vT2}, 3, v{vX}",
          f"v_lshrrev_b32 v{vL8}, 1, v{vL16}", f"v_add_u32 v{vL8}, 4096, v{vL8}", f"v_lshlrev_b32 v{vT2}, 7, v{vL16}",
          f"v_bfe_u32 v{vB}, v{vL16}, 4, 3", f"v_lshlrev_b32 v{vB}, 2, v{vB}"]
    sc.add(va, 8, G0 + 30)
    xo = [(0, "s83", 0), (1, "s83", 32), (2, "s83", 128), (3, "s83", 160), (4, "s87", 256)]
    sc.add([f"buffer_load_dwordx2 {vr(XRr+2*t,2)}, v{vX}, s[32:35], {so} offen offset:{o}" for t, so, o in xo], G0 + 38, G0 + 70)
    tail = []; per = done[0] - done[8]
    for c in (4, 0, 1, 2, 3):
        pkx = []
        for u in range(4):
            a = acc(2 * c, u); tg = "p1" if c in (4, 0, 1) else "p2"
            pkx += [f"v_cvt_pk_bf16_f32 v{a}, v{a}, v{a+1}", f"v_cvt_pk_bf16_f32 v{a+1}, v{a+2}, v{a+3}"]
            if c < 4:
                b = acc(2 * c + 1, u)
                pkx += [f"v_cvt_pk_bf16_f32 v{a+2}, v{b}, v{b+1}", f"v_cvt_pk_bf16_f32 v{a+3}, v{b+2}, v{b+3}",
                        Inst(f"buffer_store_dwordx4 {vr(a)}, v{vL16}, s[16:19], s{74+u} offen offset:{c*1024} sc1", tg)]
            else:
                pkx += [Inst(f"buffer_store_dwordx2 {vr(a,2)}, v{vL8}, s[16:19], s{74+u} offen sc1", tg)]
        d = done[8] if c == 4 else done[2 * c + 1]
        if c != 3: sc.add(pkx, d + 4, d + 4 + (per if c == 1 else 2 * per - 8))
        else: tail = pkx
    fl1 = f"buffer_load_dword v{vB+1}, v{vB}, s[16:19], s37 offen sc1"
    sc.add([fl1], G0 + 70, G0 + 80)
    c1, c2 = check(fl1, [vB + 1])
    sc.add([c1 + c2], done[3], done[3] + 3)
    R1 = 48; RE = 80; R2 = 216
    order8 = [4, 5, 6, 7, 0, 1, 2, 3]
    def lds1(): return flat([[[f"s_add_u32 s86, s85, {src*PR}"], f"buffer_load_dwordx4 {vr(R1 + src*4)}, v{vL16}, s[16:19], s86 offen sc1"] for src in order8]) + \
                       flat([[[f"s_add_u32 s86, s78, {src*PR}"], f"buffer_load_dwordx2 {vr(RE + src*2, 2)}, v{vL8}, s[28:31], s86 offen sc1"] for src in order8])
    def lds2(): return flat([[[f"s_add_u32 s86, s85, {src*PR}"], f"buffer_load_dwordx4 {vr(R2 + src*4)}, v{vL16}, s[16:19], s86 offen offset:2048 sc1"] for src in order8])
    def sent(base, n):
        t = 128; o = [f"v_max3_u32 v{t}, v{base}, v{base+1}, v{base+2}", f"v_max3_u32 v{t+1}, v{base+3}, v{base+4}, v{base+5}"]
        for i in range(6, n, 2): o.append(f"v_max3_u32 v{t + (i//2) % 2}, v{t + (i//2) % 2}, v{base+i}, v{base+i+1}")
        return o + [f"v_max_u32 v{t}, v{t}, v{t+1}", f"v_cmp_eq_u32 vcc, -1, v{t}"]
    def poll(name, ld, base, n):
        ool.append([f"{name}x:", "s_add_u32 s4, s4, 1", f"s_cmp_ge_u32 s4, {SPIN_MAX}", f"s_cbranch_scc1 {name}d", f"s_sleep {opt.get('slp', 2)}"] + ld + ["s_waitcnt vmcnt(0)", f"s_branch {name}"])
        return [f"{name}:"] + sent(base, n) + ["s_nop 0", f"s_cbranch_vccnz {name}x", f"{name}d:"]
    sc.add([["s_cmp_eq_u32 s5, 0", "s_cselect_b32 s30, 0, s18", "s_mov_b32 s4, 0"]] + lds1(), done[6] - opt.get("r1e", 8), NG - 4)
    e(sc.flat())
    e(tail)
    e(stamp(10))
    Gs = lambda t: 96 + 4 * t
    Ss = lambda t: 108 + 4 * t
    t0 = 120; g1 = 124
    def round2(a):
        return [f"v_cvt_pk_bf16_f32 v{t0}, v{a}, v{a+1}", f"v_cvt_pk_bf16_f32 v{t0+1}, v{a+2}, v{a+3}",
                f"v_lshlrev_b32 v{a}, 16, v{t0}", f"v_and_b32 v{a+1}, s89, v{t0}", f"v_lshlrev_b32 v{a+2}, 16, v{t0+1}", f"v_and_b32 v{a+3}, s89, v{t0+1}"]
    def gate(t):
        g = Gs(t)
        return round2(g) + [f"v_mul_f32 v{g1+r}, s88, v{g+r}" for r in range(4)] + [f"v_exp_f32 v{g1+r}, v{g1+r}" for r in range(4)] + \
               [f"v_add_f32 v{g1+r}, 1.0, v{g1+r}" for r in range(4)] + [f"v_rcp_f32 v{g1+r}, v{g1+r}" for r in range(4)] + \
               [pk("v_pk_mul_f32", g + r, g + r, g1 + r) for r in (0, 2)] + round2(g)
    def fin(t, x, so, o):
        g = Gs(t); s0 = Ss(t)
        return round2(s0) + [pk("v_pk_mul_f32", g + r, g + r, s0 + r) for r in (0, 2)] + round2(g) + \
               [f"v_lshlrev_b32 v{g1}, 16, v{x}", f"v_and_b32 v{g1+1}, s89, v{x}", f"v_lshlrev_b32 v{g1+2}, 16, v{x+1}", f"v_and_b32 v{g1+3}, s89, v{x+1}"] + \
               [pk("v_pk_add_f32", g + r, g + r, g1 + r) for r in (0, 2)] + \
               [f"v_cvt_pk_bf16_f32 v{s0}, v{g}, v{g+1}", f"v_cvt_pk_bf16_f32 v{s0+1}, v{g+2}, v{g+3}",
                f"buffer_store_dwordx2 {vr(s0,2)}, v{vX}, s[12:15], {so} offen offset:{o}"]
    def redu(R):
        return [f"{MF} {vr((Gs if src >= 4 else Ss)(t))}, {vr(SEL + (0 if t else 2))}, {vr(R + src*4)}, {'0' if src in (0, 4) else vr((Gs if src >= 4 else Ss)(t))}"
                for src in order8 for t in range(2)]
    e(poll("KF_q1", lds1(), R1, 48))
    e(mst(46))
    e(redu(R1))
    e([f"{MF} {vr((Gs if q >= 2 else Ss)(2))}, {vr(SEL + 6)}, {vr(RE + q*4)}, {'0' if q % 2 == 0 else vr((Gs if q >= 2 else Ss)(2))}" for q in (2, 3, 0, 1)])
    e(gate(0))
    e(lds2())
    e(gate(1))
    for t in range(2): e(fin(t, XRr + 2 * t, "s83", 32 * t))
    e("s_cmp_eq_u32 s5, 0"); e("s_cbranch_scc1 KF_r2")
    for x in gate(2) + fin(2, XRr + 8, "s87", 256): e(C(x))
    e("KF_r2:")
    e(stamp(11))
    e(poll("KF_q2", lds2(), R2, 32))
    e(mst(50))
    e(redu(R2))
    for t in range(2): e(gate(t))
    for t in range(2): e(fin(t, XRr + 4 + 2 * t, "s83", 128 + 32 * t))
    k.begin(name="fin")
    e("KF_fin:")
    if stamps:
        e(stamp(12)); e("s_waitcnt vmcnt(0)"); e(stamp(13))
        e("s_lshl_b32 s72, s2, 2"); e("s_add_u32 s72, s72, s3"); e("s_lshl_b32 s72, s72, 8"); e(f"s_add_u32 s72, s72, {200<<20}")
        e(f"v_lshrrev_b32 v2, 2, v{vL16}")
        e(f"buffer_store_dword v{STV}, v2, s[16:19], s72 offen")
        if "probe" in opt:
            e(f"s_cmp_lg_u32 s2, {opt.get('pw', 133)}"); e("s_cbranch_scc1 KF_end"); e("s_cmp_lg_u32 s3, 0"); e("s_cbranch_scc1 KF_end")
            if opt["probe"] >= 0: e(f"v_readlane_b32 s72, v{STV}, {32 + opt['probe']}")
            else: e("s_mov_b32 s72, s38")
            e("s_nop 3"); e("s_add_u32 s72, s72, 10000")
            e("KF_pw:"); e("s_memrealtime s[98:99]"); e("s_waitcnt lgkmcnt(0)"); e("s_sub_u32 s73, s72, s98"); e("s_cmp_lt_u32 s73, 20000"); e("s_cbranch_scc1 KF_pw")
        if opt.get("dbg"):
            e(f"s_cmp_lg_u32 s2, {opt['dbg']}"); e("s_cbranch_scc1 KF_end"); e("s_cmp_lg_u32 s3, 1"); e("s_cbranch_scc1 KF_end")
            e(srd(20, 58, 64)); e(f"v_readlane_b32 s72, v{STV}, 32"); e("v_subrev_u32 v2, 124, v2"); e(f"v_subrev_u32 v{STV}, s72, v{STV}")
            e("s_mov_b32 exec_lo, 0"); e(f"buffer_store_dword v{STV}, v2, s[20:23], 0 offen")
    e("KF_end:")
    e("s_endpgm")

    for i, blk in enumerate(ool):
        k.begin(name=f"ool{i}")
        e(blk); e("s_endpgm")
    Mx = W + 8; AL = W + 12; TT = W + 16
    k.begin(name="slow_pre")
    e("KF_codeend:")
    e("KF_slow:")
    e("s_waitcnt vmcnt(0) lgkmcnt(0)"); e("s_nop 15")
    for i in range(128): e(f"v_accvgpr_write_b32 a{i}, 0")
    for u in range(4): e(f"v_mov_b32 v{L+u}, 0"); e(f"v_mov_b32 v{Mx+u}, 0xff7fffff")
    e("s_mov_b32 s72, 0"); e("s_mov_b32 s68, s82")
    k.begin(loop=16, name="slow_loop")
    e("KF_sloop:")
    for q in range(4):
        for f in range(4):
            ff = q * 4 + f
            e(f"buffer_load_dwordx4 {KF(1, ff) if ff < 8 else VF(1, ff - 8)}, v{vL16}, s[16:19], s68 offen offset:{f*1024} sc1")
        e("s_add_u32 s68, s68, 4096")
    for u in range(4):
        e(qk(u, lambda f: KF(1, f), zero=True))
        s0 = S(u); m = W + u
        e(f"v_max3_f32 v{m}, v{s0}, v{s0+1}, v{s0+2}"); e(f"v_max3_f32 v{m}, v{m}, v{s0+3}, v{s0+4}")
        e(f"v_max3_f32 v{m}, v{m}, v{s0+5}, v{s0+6}"); e(f"v_max3_f32 v{m}, v{m}, v{s0+7}, v{Mx+u}")
        e(xlane("v_max_f32", m, W + 4))
        e(f"v_sub_f32 v{AL}, v{Mx+u}, v{m}"); e(f"v_exp_f32 v{AL}, v{AL}"); e(f"v_mov_b32 v{Mx+u}, v{m}")
        e(f"v_mul_f32 v{L+u}, v{L+u}, v{AL}")
        for i in range(8):
            e(f"v_sub_f32 v{s0+i}, v{s0+i}, v{m}"); e(f"v_exp_f32 v{s0+i}, v{s0+i}")
        for i in range(8): e(f"v_add_f32 v{L+u}, v{L+u}, v{s0+i}")
        for i in range(4): e(f"v_cvt_pk_bf16_f32 v{P+i}, v{s0+2*i}, v{s0+2*i+1}")
        for dt in range(8):
            for r in range(4): e(f"v_accvgpr_read_b32 v{TT+r}, a{O(dt,u)+r}")
            for r in range(4): e(f"v_mul_f32 v{TT+r}, v{TT+r}, v{AL}")
            for r in range(4): e(f"v_accvgpr_write_b32 a{O(dt,u)+r}, v{TT+r}")
        e(pv(u, 1, 0))
    e("s_add_u32 s72, s72, 1"); e("s_cmp_lt_u32 s72, 16"); e("s_cbranch_scc1 KF_sloop")
    k.begin(name="slow_post")
    e("s_nop 15")
    for u in range(4): e(xlane("v_add_f32", L + u, W + 4))
    e("s_nop 15")
    e("s_branch KF_epi")
    pre = ["p0a", "gemm", "attn_first"]
    k.paths = []
    for na in (1, 2, 4):
        for nl in (1, 2):
            mid = pre + ["attn_loop"] * na + ["attn_last", "oepi"]
            if na > 1 and nl > 1 and (na, nl) != (4, 2): continue
            k.paths.append(mid + ["g_pre"] + ["L0", "L1"] * nl + ["final", "fin"])
            k.paths.append(mid + ["s_pre"] + ["L0", "L1"] * nl + ["final", "fin"])
    return kstart(name) + k.finish(), kdesc(name, 512, 256), (name, 256, 256, 163840)
```

```python
from lib import *
from lib import _mk
from common import *
import math

SLOT = 36864
SPARE = 4 * SLOT
MF = "v_mfma_f32_16x16x32_bf16"
QSCALE = math.log2(math.e) / math.sqrt(128.0)
SPIN_MAX = 100000
KNAME = "recurrent_scan__sliding_block_cached__dense_activation_relu__prompt_kernel"

def flat(l): return [x for y in l for x in y]

def gen_kf(name=KNAME, stamps=False, opt=None):
    opt = opt or {}
    k = Kernel(name)
    k.cur.name = 'p0a'
    e = k.e
    vL16, vDQ, vD1, vS0, vP5, vZ, vTOK, vL, vT = 1, 2, 3, 4, 5, 6, 7, 8, 9
    vST = [10, 11, 12, 13]
    vT2 = 14; STV = 15
    XV = 16; QA = 48; AF = 176; NF = 6; LEAD = 4
    FA = 200; T = 232; vB = 248
    vXN = [232, 233, 234, 235]; vKO, vVO = 254, 255
    B1, B3, B5, B7 = 64, 96, 128, 160
    def X(u, s):
        h, idx = u >> 1, s * 2 + (u & 1)
        return ar(h * 128 + idx * 4) if idx < 32 else vr(XV + h * 16 + (idx - 32) * 4)
    def qa(nt, u): return QA + (nt * 4 + u) * 4
    def Qf(u, s): return vr(qa(2 * s, u))
    def fa(a, u): return FA + a * 16 + u * 4
    def stamp(i):
        if not stamps: return []
        return ["s_memtime s[98:99]", "s_waitcnt lgkmcnt(0)", f"v_writelane_b32 v{STV}, s98, {i}",
                "s_memrealtime s[98:99]", "s_waitcnt lgkmcnt(0)", f"v_writelane_b32 v{STV}, s98, {32+i}"]
    def mst(i):
        if not (stamps and opt.get("fine")): return ["s_nop 0"] if False else []
        return ["s_memtime s[98:99]", "s_waitcnt lgkmcnt(0)", "s_nop 0", f"v_writelane_b32 v{STV}, s98, {i}"]
    def C(t): return Inst(t, "cond")
    uid = [0]
    def lab(p): uid[0] += 1; return f"KF_{p}{uid[0]}"
    def flag_store(sreg, nl, voff, allw=False):
        lb = lab("nf")
        m = ["s_mov_b64 exec, %#x" % ((1 << nl) - 1)] if nl < 32 else ["s_mov_b32 exec_hi, 0"]
        body = m + [f"buffer_store_dword v{vTOK}, v{voff}, s[16:19], {sreg} offen sc1", "s_mov_b64 exec, -1"]
        if allw: return body
        return ["s_cmp_lg_u32 s3, 0", f"s_cbranch_scc1 {lb}"] + [C(x) for x in body] + [f"{lb}:"]
    ool = []
    def spin(load, regs, ret=None):
        lb = lab("sp"); dn = ret or lab("sd")
        out = ["s_mov_b32 s73, 0", f"{lb}:", load, "s_waitcnt vmcnt(0)"] + cmpf(regs)
        out += ["s_add_u32 s73, s73, 1", f"s_cmp_ge_u32 s73, {SPIN_MAX}", f"s_cbranch_scc1 {dn}", f"s_cbranch_vccz {dn}", "s_sleep 2", f"s_branch {lb}"]
        if not ret: out.append(f"{dn}:")
        return out
    def cmpf(regs):
        out = []
        if len(regs) > 1:
            out += [f"v_xor_b32 v{r}, v{r}, v{vTOK}" for r in regs]
            out += [f"v_or_b32 v{regs[0]}, v{regs[0]}, v{r}" for r in regs[1:]]
            out += [f"v_cmp_ne_u32 vcc, 0, v{regs[0]}"]
        else:
            out += [f"v_cmp_ne_u32 vcc, v{regs[0]}, v{vTOK}"]
        return out
    def check(load, regs):
        a, b = lab("ck"), lab("cr")
        ool.append([f"{a}:"] + spin(load, regs, b))
        return cmpf(regs), ["s_nop 0", f"s_cbranch_vccnz {a}", f"{b}:"]
    def xlane(op, r, t, both=True):
        o = [f"v_mov_b32 v{t}, v{r}", f"v_permlane32_swap_b32 v{t}, v{r}", f"{op} v{r}, v{r}, v{t}"] if both else []
        return o + [f"v_mov_b32 v{t}, v{r}", f"v_permlane16_swap_b32 v{t}, v{r}", f"{op} v{r}, v{r}, v{t}"]
    def ident(ID, t0, t1):
        o = [f"v_lshrrev_b32 v{t0}, 4, v{vL16}", f"v_and_b32 v{t1}, 15, v{t0}", f"v_lshrrev_b32 v{t0}, 4, v{t0}", f"v_lshlrev_b32 v{t0}, 3, v{t0}",
             f"v_sub_u32 v{t0}, v{t1}, v{t0}", f"v_and_b32 v{t1}, 1, v{t0}", f"v_lshlrev_b32 v{t1}, 4, v{t1}", f"v_mov_b32 v{ID}, 0x3f80",
             f"v_lshlrev_b32 v{t1}, v{t1}, v{ID}", f"v_ashrrev_i32 v{t0}, 1, v{t0}"]
        for h in range(2):
            for r in range(4):
                o.append([f"v_cmp_eq_i32 vcc, {r - 8*h}, v{t0}", "s_nop 1", f"v_cndmask_b32 v{ID+4*h+r}, 0, v{t1}, vcc"])
        return o
    def tr_mf(D, A, ID): return [f"{MF} {vr(D + (h*2+r)*4)}, {vr(A + 4*r)}, {vr(ID + 4*h)}, 0" for h in range(2) for r in range(2)]
    def tr_cvt(o, D, h): return [f"v_cvt_pk_bf16_f32 v{o+2*r+q}, v{D+(h*2+r)*4+2*q}, v{D+(h*2+r)*4+2*q+1}" for r in range(2) for q in range(2)]

    e("s_cmp_ge_u32 s2, 256"); e("s_cbranch_scc1 KF_end")
    if opt.get("scr"):
        e("s_and_b32 s4, s2, 7"); e("s_bfe_u32 s5, s2, 0x30003"); e("s_andn2_b32 s2, s2, 63"); e("s_lshl_b32 s4, s4, 3"); e("s_or_b32 s2, s2, s4"); e("s_or_b32 s2, s2, s5")
    e("s_load_dwordx16 s[40:55], s[0:1], 0")
    e("s_load_dwordx4 s[56:59], s[0:1], 64")
    e("s_load_dwordx2 s[60:61], s[0:1], 80")
    e("s_memrealtime s[38:39]")
    if opt.get("cpf0", 8):
        e("s_getpc_b64 s[96:97]"); e(f"s_mov_b32 s98, {opt.get('cpf0', 8) * 1024}"); e("s_mov_b32 s99, 0x20000")
        e("v_lshlrev_b32 v27, 7, v0")
        e("buffer_load_dword v31, v27, s[96:99], 0 offen", "tch")
    e("v_lshrrev_b32 v20, 6, v0")
    e("v_and_b32 v21, 63, v0")
    e("v_readfirstlane_b32 s3, v20")
    e("s_and_b32 s64, s2, 7"); e("s_bfe_u32 s65, s2, 0x20003")
    e("s_and_b32 s62, s2, 3"); e("s_lshl_b32 s62, s62, 3"); e("s_and_b32 s63, s2, 4"); e("s_add_u32 s62, s62, s63"); e("s_add_u32 s62, s62, s65")
    e("s_lshr_b32 s63, s2, 5")
    e("s_lshl_b32 s66, s63, 5"); e("s_add_u32 s66, s66, s62")
    e("v_lshrrev_b32 v22, 5, v0"); e("v_mul_u32_u24 v22, 1152, v22")
    e("v_and_b32 v23, 31, v21"); e("v_lshl_add_u32 v22, v23, 4, v22")
    e("s_mul_i32 s67, s66, 9216")
    for r in range(56, 60): e(f"v_mov_b32 v{r}, 0")
    e(f"v_mov_b32 v{vZ}, 0")
    e(f"v_lshlrev_b32 v{vL16}, 4, v21")
    e("s_waitcnt lgkmcnt(0)")
    e(srd(32, 40, 2048 * 1152))
    e(f"buffer_load_dwordx4 {vr(48)}, v22, s[32:35], s67 offen")
    e(f"buffer_load_dwordx4 {vr(52)}, v22, s[32:35], s67 offen offset:512")
    e("s_mov_b32 exec_lo, 0xff"); e("s_mov_b32 exec_hi, 0xff")
    e(f"buffer_load_dwordx4 {vr(56)}, v22, s[32:35], s67 offen offset:1024")
    e("s_mov_b64 exec, -1")
    e(stamp(0))
    e(srd(8, 46, 576 * 8192)); e(srd(20, 58, 256))
    e("s_or_b32 s77, s2, s3"); e("s_cbranch_scc1 KF_w0")
    e(C("s_or_b32 s38, s38, 1")); e(C("v_mov_b32 v28, s38")); e(C("s_mov_b64 exec, 1"))
    e(C(f"buffer_store_dword v28, v{vZ}, s[20:23], 0 offen sc1")); e(C("s_mov_b64 exec, -1"))
    e("KF_w0:")
    e(srd(16, 60, WS_SIZE))
    if opt.get("flw", 1):
        e("s_lshl_b32 s72, s66, 7"); e(f"s_add_u32 s72, s72, {FL_LN}"); e("v_mov_b32 v27, s72")
        e("s_lshl_b32 s72, s63, 3"); e("s_add_u32 s72, s72, s64"); e("s_lshl_b32 s72, s72, 2"); e("s_add_u32 s72, s72, s65"); e("s_lshl_b32 s72, s72, 2")
        e("s_add_u32 s72, s72, s3"); e("s_lshl_b32 s72, s72, 7"); e(f"s_add_u32 s72, s72, {FL_P2}"); e("v_writelane_b32 v27, s72, 1")
        e(f"s_add_u32 s72, s72, {FL_EX - FL_P2}"); e("v_writelane_b32 v27, s72, 2")
        e("s_lshr_b32 s72, s62, 1"); e("s_lshl_b32 s72, s72, 7"); e(f"s_add_u32 s72, s72, {FL_KV}"); e("v_writelane_b32 v27, s72, 3")
        e("s_mov_b64 exec, 15"); e("buffer_load_dword v31, v27, s[16:19], 0 offen sc1", "tch"); e("s_mov_b64 exec, -1")
    e(srd(12, 52, 576 * 9216)); e(srd(24, 42, 8388608)); e(srd(28, 44, 8388608))
    e("v_lshrrev_b32 v28, 1, v21"); e("v_and_b32 v29, 1, v21"); e("v_lshlrev_b32 v29, 7, v29")
    e("v_lshl_add_u32 v34, v28, 13, v29"); e("v_mul_u32_u24 v239, 9216, v21")
    e("s_sub_u32 s77, s3, 1"); e("s_lshl_b32 s77, s77, 3"); e("s_add_u32 s77, s77, s63"); e(f"s_mul_i32 s4, s77, {24*8192}"); e("s_lshl_b32 s5, s63, 2"); e("s_add_u32 s5, s5, s3"); e(f"s_mul_i32 s5, s5, {18*9216}")
    e("s_lshr_b32 s70, s62, 1"); e("s_and_b32 s71, s62, 1")
    e("s_lshl_b32 s6, s70, 6"); e("s_add_u32 s6, s6, s5"); e("s_add_u32 s6, s6, 8192")
    e("s_lshl_b32 s79, s62, 8"); e("s_add_u32 s4, s4, s79"); e("s_add_u32 s5, s5, s79")
    wq_touch = ["s_mov_b32 exec_hi, 0xffff", "buffer_load_dword v31, v34, s[8:11], s4 offen", "s_mov_b64 exec, -1"]
    def w1_touch(i):
        return [Inst("s_mov_b64 exec, 0x3ffff"), Inst(f"buffer_load_dword v0, v239, s[12:15], {('s5','s5','s6')[i]} offen offset:{(0,128,0)[i]}", "tch"), Inst("s_mov_b64 exec, -1")]
    def not_w0(body, maxw=3):
        lb = lab("nw")
        return ["s_sub_u32 s72, s3, 1", f"s_cmp_ge_u32 s72, {maxw}", f"s_cbranch_scc1 {lb}"] + [C(x) for x in body] + [f"{lb}:"]
    ORD = opt.get("ord", 1)
    CPF = opt.get("codepf", 2)
    code_touch = ["s_getpc_b64 s[68:69]", "KF_pc:", f"s_sub_u32 s96, s68, KF_pc-{name}", "s_subb_u32 s97, s69, 0", f"s_mov_b32 s98, KF_codeend-{name}", "s_mov_b32 s99, 0x20000",
                  "s_lshr_b32 s94, s2, 3", "s_lshl_b32 s94, s94, 2", "s_add_u32 s94, s94, s3", "s_mul_i32 s94, s94, 640",
                  "v_lshlrev_b32 v27, 7, v21", "s_mov_b64 exec, 31", Inst("buffer_load_dword v31, v27, s[96:99], s94 offen", "tch"), "s_mov_b64 exec, -1"]
    if CPF == 1: e(code_touch)
    e("v_and_b32 v24, 15, v21"); e("v_lshrrev_b32 v25, 4, v21")
    e(f"v_lshlrev_b32 v{vKO}, 8, v24"); e(f"v_lshl_add_u32 v{vVO}, v25, 4, v{vKO}"); e(f"v_lshl_add_u32 v{vKO}, v25, 3, v{vKO}")
    e("v_lshrrev_b32 v28, 5, v21"); e("v_lshlrev_b32 v29, 1, v28"); e("v_and_b32 v30, 3, v21"); e("v_xor_b32 v29, v29, v30")
    e("v_lshlrev_b32 v29, 4, v29"); e("v_lshrrev_b32 v32, 2, v21")
    e(f"v_mul_u32_u24 v{vD1}, 9216, v32"); e(f"v_add_u32 v{vD1}, v{vD1}, v29")
    e("v_bfe_u32 v32, v21, 2, 2"); e("v_lshlrev_b32 v32, 6, v32"); e("v_lshl_add_u32 v32, v30, 3, v32")
    e("v_and_b32 v26, 1, v25"); e("v_lshl_add_u32 v32, v26, 5, v32")
    e(f"v_lshl_add_u32 v{vS0}, v25, 9, v32")
    e("v_bfe_u32 v33, v21, 2, 2"); e(f"v_lshlrev_b32 v{vP5}, 10, v25"); e(f"v_lshl_add_u32 v{vP5}, v33, 7, v{vP5}"); e(f"v_lshl_add_u32 v{vP5}, v30, 3, v{vP5}")
    e("v_lshrrev_b32 v33, 1, v33"); e(f"v_lshl_add_u32 v{vP5}, v33, 5, v{vP5}"); e(f"v_lshl_add_u32 v{vP5}, v26, 6, v{vP5}")
    e("v_lshrrev_b32 v33, 3, v21"); e("v_mul_u32_u24 v238, 9216, v33"); e("v_and_b32 v33, 7, v21"); e("v_lshlrev_b32 v35, 1, v26"); e("v_xor_b32 v33, v33, v35")
    e(f"v_lshrrev_b32 v{vDQ}, 3, v21"); e(f"v_lshlrev_b32 v{vDQ}, 13, v{vDQ}"); e(f"v_lshl_add_u32 v{vDQ}, v33, 4, v{vDQ}")
    e(f"v_xor_b32 v46, 64, v{vDQ}"); e("v_add_u32 v46, 0x10000, v46")
    e("v_and_b32 v35, 1, v20"); e("v_lshlrev_b32 v35, 2, v35"); e("v_xor_b32 v33, v33, v35"); e("v_lshl_add_u32 v238, v33, 4, v238")
    QB = [[vB, vB + 1, vB + 2, vB + 3], [vB + 4, vB + 5, 236, 237]]
    e(f"v_lshl_add_u32 v{vB}, v25, 10, v{vP5}")
    for r in range(1, 4): e(f"v_xor_b32 v{vB+r}, {32*r}, v{vB}")
    for r in range(4): e(f"v_add_u32 v{QB[1][r]}, 0x10000, v{QB[0][r]}")
    e("s_lshl_b32 s69, s63, 4"); e("s_lshl_b32 s78, s3, 2"); e("s_add_u32 s69, s69, s78"); e("s_lshl_b32 s78, s71, 1")
    for u in range(4):
        e(f"s_xor_b32 s79, s78, {u}"); e("s_add_u32 s79, s79, s69")
        e("s_mul_i32 s80, s79, 18432"); e(f"v_add_u32 v{vXN[u]}, s80, v{vL16}")
        e(f"s_mul_i32 s80, s79, {272*1024}"); e(f"v_add_u32 v{vST[u]}, s80, v{vL16}")
    e("v_lshrrev_b32 v36, 5, v0"); e("v_and_b32 v37, 7, v21"); e("v_xor_b32 v36, v36, v37"); e("v_lshlrev_b32 v36, 4, v36")
    e("v_lshl_add_u32 v36, v23, 7, v36"); e(f"v_add_u32 v36, {SPARE}, v36")
    e("v_lshrrev_b32 v38, 3, v21"); e("v_xor_b32 v39, v38, v37"); e("v_lshlrev_b32 v39, 4, v39"); e("v_lshl_add_u32 v39, v38, 7, v39"); e(f"v_add_u32 v39, {SPARE}, v39")
    e("v_lshlrev_b32 v38, 8, v38"); e("v_lshl_add_u32 v38, v37, 4, v38")
    e("s_lshl_b32 s72, s63, 1"); e("s_add_u32 s72, s72, s71")
    e("s_lshl_b32 s73, s70, 19"); e("s_lshl_b32 s74, s72, 13"); e("s_add_u32 s73, s73, s74"); e(f"s_add_u32 s73, s73, {1536*256}")
    e("s_lshl_b32 s74, s3, 6"); e("s_add_u32 s87, s73, s74"); e("s_add_u32 s88, s87, 4096")
    e("s_lshr_b32 s74, s3, 1"); e("s_lshl_b32 s74, s74, 12"); e("s_add_u32 s73, s73, s74")
    e("s_and_b32 s74, s3, 1"); e("s_lshl_b32 s74, s74, 7"); e("s_add_u32 s89, s73, s74")
    e("s_lshl_b32 s82, s70, 18"); e(f"s_add_u32 s82, s82, {WS_KVP}")
    e("s_lshl_b32 s93, s72, 14"); e("s_add_u32 s93, s93, s82"); e("s_lshl_b32 s78, s3, 11"); e("s_add_u32 s93, s93, s78"); e("s_add_u32 s95, s93, 8192")
    e("s_lshl_b32 s90, s70, 7"); e(f"s_add_u32 s90, s90, {FL_KV}"); e("s_lshl_b32 s91, s72, 2"); e("s_add_u32 s91, s91, s90")
    e(f"s_mul_i32 s77, s3, {8*9216}"); e("s_lshl_b32 s79, s62, 8"); e("s_add_u32 s79, s79, s77"); e(f"s_mul_i32 s77, s3, {144*9216}")
    e("s_lshl_b32 s80, s70, 6"); e("s_add_u32 s80, s80, s77"); e("s_add_u32 s80, s80, 8192")
    e("s_mul_i32 s81, s3, 9216")
    e("s_lshl_b32 s83, s62, 12"); e(f"s_add_u32 s83, s83, {WS_ACT}"); e(f"s_add_u32 s84, s83, {128*1024}")
    e("s_lshl_b32 s85, s70, 10"); e(f"s_add_u32 s85, s85, {WS_ACT + 256*1024}")
    e(f"s_mov_b32 s86, {f32bits(QSCALE):#x}")
    e("s_lshl_b32 s37, s62, 8"); e("s_lshl_b32 s67, s3, 6"); e("s_add_u32 s37, s37, s67"); e("s_lshl_b32 s67, s3, 10")
    for i in range(5): e(f"s_mov_b32 s{74+i}, {WS_XN + i*4096}")
    e("s_lshr_b32 s7, s66, 1"); e("s_mul_i32 s7, s7, 18432"); e("s_lshl_b32 s72, s71, 7"); e("s_add_u32 s7, s7, s72")
    e("s_lshl_b32 s36, s63, 12"); e("s_lshl_b32 s72, s62, 2"); e("s_add_u32 s36, s36, s72"); e(f"s_add_u32 s36, s36, {FL_LN}")
    Fv = 64
    for d in range(12):
        e(f"v_lshlrev_b32 v{Fv+2*d}, 16, v{48+d}"); e(f"v_and_b32 v{Fv+2*d+1}, 0xffff0000, v{48+d}")
    e(f"buffer_load_dword v{vTOK}, v{vZ}, s[20:23], 0 offen sc1", "tch")
    if ORD == 1: e(not_w0(wq_touch))
    if ORD == 4: e(not_w0(wq_touch, 1))
    if CPF == 2: e([x.replace("s[68:69]", "s[100:101]").replace("s68", "s100").replace("s69", "s101") if isinstance(x, str) else x for x in code_touch])
    e(stamp(1))
    def pk(op, d, a, b): return f"{op} {vr(d,2)}, {vr(a,2)}, {vr(b,2)}"
    e(pk("v_pk_add_f32", 40, Fv, Fv + 2)); e(pk("v_pk_add_f32", 42, Fv + 4, Fv + 6))
    for d in range(8, 24, 2): e(pk("v_pk_add_f32", 40 + (d & 2), 40 + (d & 2), Fv + d))
    def red(r):
        e(pk("v_pk_add_f32", r, r, r + 2)); e(f"v_add_f32 v{r}, v{r}, v{r+1}")
        for sh in (8, 4, 2, 1): e(f"v_add_f32_dpp v{r}, v{r}, v{r} row_ror:{sh} row_mask:0xf bank_mask:0xf")
        e(xlane("v_add_f32", r, r + 1, both=False))
    red(40)
    e(f"v_mul_f32 v40, {f32bits(-1.0/576):#x}, v40"); e("v_mov_b32 v41, v40")
    e("v_cvt_pk_bf16_f32 v44, v40, v40"); e("v_lshlrev_b32 v44, 16, v44"); e("v_mov_b32 v45, v44")
    for d in range(0, 24, 2):
        if d == 16: e("s_mov_b32 exec_lo, 0xff"); e("s_mov_b32 exec_hi, 0xff")
        t = 92 + (d & 2); a = 88 + (d & 2)
        e(pk("v_pk_add_f32", t, Fv + d, 40))
        if d < 4: e(pk("v_pk_mul_f32", a, t, t))
        else: e(f"v_pk_fma_f32 {vr(a,2)}, {vr(t,2)}, {vr(t,2)}, {vr(a,2)}")
    e("s_mov_b64 exec, -1")
    for d in range(0, 24, 2):
        e(pk("v_pk_add_f32", Fv + d, Fv + d, 44)); e(f"v_cvt_pk_bf16_f32 v{48+d//2}, v{Fv+d}, v{Fv+d+1}")
    red(88)
    def rbf(r): e(f"v_cvt_pk_bf16_f32 v{r}, v{r}, v{r}"); e(f"v_lshlrev_b32 v{r}, 16, v{r}")
    e(f"v_mul_f32 v88, {f32bits(1.0/576):#x}, v88"); rbf(88)
    e(f"v_add_f32 v88, {f32bits(1e-5):#x}, v88"); rbf(88)
    e("v_sqrt_f32 v88, v88")
    for d in range(12):
        e(f"v_lshlrev_b32 v{Fv+2*d}, 16, v{48+d}"); e(f"v_and_b32 v{Fv+2*d+1}, 0xffff0000, v{48+d}")
        if d == 0: rbf(88)
        if d == 1: e("v_rcp_f32 v90, v88")
        if d == 2: e("v_fma_f32 v91, -v88, v90, 2.0")
        if d == 3: e("v_mul_f32 v90, v90, v91"); e("v_mov_b32 v91, v90")
    for d in range(12):
        e(pk("v_pk_mul_f32", Fv + 2 * d, Fv + 2 * d, 90)); e(f"v_cvt_pk_bf16_f32 v{48+d}, v{Fv+2*d}, v{Fv+2*d+1}")
        if d % 4 == 3:
            if d == 11: e("s_mov_b32 exec_lo, 0xff"); e("s_mov_b32 exec_hi, 0xff")
            e(f"ds_write_b128 v36, {vr(48 + d - 3)} offset:{(d//4)*4096}")
    e("s_mov_b64 exec, -1")
    e("s_waitcnt lgkmcnt(0)")
    e("s_barrier")
    e(stamp(2))
    e("s_cmp_lg_u32 s3, 0"); e("s_cbranch_scc1 KF_x123")
    w0 = [f"ds_read_b128 {vr(136+4*q)}, v39 offset:{q*1024}" for q in range(9)]
    for q in range(9):
        w0 += [f"s_waitcnt lgkmcnt({8-q})", f"buffer_store_dwordx4 {vr(136+4*q)}, v38, s[16:19], s7 offen offset:{(q%2)*2048} sc1"]
        if q % 2: w0 += ["s_add_u32 s7, s7, 4096"]
    w0 += ["v_lshlrev_b32 v38, 7, v21", "s_mov_b32 s73, 0"] + mst(62) + ["KF_tk:", "s_waitcnt vmcnt(0)", f"v_cmp_eq_u32 vcc, 0, v{vTOK}",
           "s_add_u32 s73, s73, 1", f"s_cmp_ge_u32 s73, {SPIN_MAX}",
           "s_cbranch_scc1 KF_tkd", "s_cbranch_vccz KF_tkd", f"buffer_load_dword v{vTOK}, v{vZ}, s[20:23], 0 offen sc1", "s_branch KF_tk", "KF_tkd:"]
    w0 += mst(63) + flag_store("s36", 32, 38, allw=True)
    w0 += [f"v_mov_b32 v39, {SPARE + 12288}", f"ds_write_b32 v39, v{vTOK}"]
    for x in w0: e(x if x.endswith(":") else C(x))
    e("KF_x123:")
    if ORD >= 3: e("s_barrier")
    def wq_piece(b):
        return [[f"s_add_u32 m0, s67, {b*4096}", f"s_add_u32 s68, s37, {b*131072}"],
                Inst(f"buffer_load_dwordx4 v{vDQ}, s[8:11], s68 offen lds", "wq")]
    NPW = opt.get("npw", 36); XD = opt.get("xd", 4); XEND = opt.get("xend", 8)
    e(srd(20, 60, WS_SIZE))
    e("s_cmp_lg_u32 s3, 0"); e("s_cbranch_scc1 KF_y123")
    pl = ["v_lshlrev_b32 v38, 2, v23", "s_lshl_b32 s72, s66, 7", f"s_add_u32 s72, s72, {FL_LN}"]
    pl += spin("buffer_load_dword v39, v38, s[16:19], s72 offen sc1", [39]) + ["s_branch KF_y0", "KF_y123:"]
    if ORD >= 2: pl += wq_touch
    pl += ["s_sub_u32 s72, s3, 1", "s_lshl_b32 s68, s72, 17", "s_lshl_b32 s73, s62, 8", "s_add_u32 s68, s68, s73", "s_lshl_b32 s72, s72, 12", "KF_wql:"]
    for v, mo, o in ((vDQ, 0, 0), (vDQ, 896, 128), (46, 2048, 0), (46, 2944, 128)):
        pl += [f"s_add_u32 m0, s72, {mo}", "s_nop 0", f"buffer_load_dwordx4 v{v}, s[8:11], s68 offen offset:{o} lds"]
    pl += [f"s_add_u32 s68, s68, {3*131072}", f"s_add_u32 s72, s72, {3*4096}", f"s_cmp_lt_u32 s72, {36*4096}", "s_cbranch_scc1 KF_wql"]
    pl += ["s_waitcnt vmcnt(32)", "KF_y0:"]
    for x in pl: e(x if x.endswith(":") else C(x))
    e(stamp(3))
    e("s_waitcnt lgkmcnt(0)")
    e("s_barrier")
    e(stamp(4))
    def xn_load(u, s):
        return Inst(f"buffer_load_dwordx4 {X(u, s)}, v{vXN[u]}, s[16:19], s{74 + s//4} offen offset:{(s%4)*1024} sc1", "xn")
    for s in range(XD):
        for u in range(4): e(xn_load(u, s))
    e(f"v_mov_b32 v39, {SPARE + 12288}"); e(f"ds_read_b32 v{vTOK}, v39")
    assert NPW == 36
    e(f"v_mov_b32 v{vDQ}, v238")

    k.begin(name="gemm")
    class Frags:
        def __init__(s, af): s.mf = []; s.fr = []; s.af = af
        def add(s, vbase, off, ms, d2=256):
            b = s.af + (len(s.fr) % NF) * 4
            s.fr.append((len(s.mf), len(ms), [f"ds_read_b64_tr_b16 {vr(b,2)}, v{vbase} offset:{off}",
                                              f"ds_read_b64_tr_b16 {vr(b+2,2)}, v{vbase} offset:{off+d2}"], vr(b)))
            s.mf += [m.replace("@A", vr(b)) for m in ms]
        def chain(s):
            fr = s.fr; flip = False
            for f in range(0, len(fr) - 1, 2):
                g0, n = fr[f][0], fr[f][1]
                assert fr[f + 1][0] == g0 + n and fr[f + 1][1] == n
                a, b = s.mf[g0:g0 + n], s.mf[g0 + n:g0 + 2 * n]
                dst = lambda m: m.split()[1]
                assert [dst(m) for m in a] == [dst(m) for m in b]
                prev = dst(s.mf[g0 - 1]) if g0 else None
                us = list(range(n))
                if prev == dst(a[-1]): us.reverse()
                out = []
                for i, u in enumerate(us):
                    out += [a[u], b[u]] if (i % 2 == 0 or a[u].endswith(", 0")) else [b[u], a[u]]
                s.mf[g0:g0 + 2 * n] = out
            s.paired = True
        def sched(s, wrap=False):
            sc = Sched(s.mf); fr = s.fr; N = len(fr)
            if getattr(s, "paired", False):
                for f in range(0, N, 2):
                    g0, n = fr[f][0], fr[f][1]
                    if f + LEAD < N or wrap:
                        rd = fr[(f + LEAD) % N][2] + fr[(f + LEAD + 1) % N][2]
                        for i, g in enumerate((0, 1, 4, 5) if n == 4 else (0, 1, 2, 3)): sc.put(g0 + g, rd[i])
                    if f + 2 < N or wrap:
                        sc.put(g0 + (5 if n == 4 else 3), WaitRegs(fr[(f + 2) % N][3], fr[(f + 3) % N][3]))
                return sc
            for f in range(N):
                g0, n, _, _ = fr[f]
                if f + LEAD < N or wrap:
                    sc.put(g0, fr[(f + LEAD) % N][2][0]); sc.put(g0 + 1, fr[(f + LEAD) % N][2][1])
                if (f + 1 < N or wrap) and (n == 4 or f % 2 == 0):
                    sc.put(g0 + 1, WaitRegs(*([fr[(f + 1) % N][3]] + ([fr[f + 2][3]] if n == 2 and f + 2 < N else []))))
            return sc
    G = Frags(AF); pos = {}
    KL, VL, VD, VO, ID = 200, 208, 216, 208, 240
    KVS = opt.get("kvs", 15)
    for s2 in range(0, 18, 2):
        for nt in range(8):
            if nt % 4 == 0:
                pos["Q", s2 + nt // 4] = len(G.mf)
                if s2 + nt // 4 == KVS: G.mf += tr_mf(VD, VL, ID)
            for s in (s2, s2 + 1):
                G.add(QB[(s // 8) & 1][nt & 3], (s % 8) * 8192 + (nt >> 2) * 1024,
                      [f"{MF} {vr(qa(nt,u))}, @A, {X(u,s)}, {'0' if s == 0 else vr(qa(nt,u))}" for u in range(4)], 512)
    S = lambda u: (B1 if u < 2 else B3) + (u & 1) * 8
    def KF(b, f): return ar(128 + b * 32 + f * 4)
    def VF(b, f): return ar(192 + b * 32 + f * 4)
    K0F = lambda f: vr(B5 + f * 4) if f < 4 else vr(B7 + (f - 4) * 4)
    NEGM = B5; P = B7; L = XV + 16; FL = XV + 24
    def qk(u, kf, zero=False):
        out = []
        for kt in range(2):
            for s in range(4):
                c = vr(S(u) + 4 * kt)
                out.append(f"{MF} {c}, {kf(kt*4+s)}, {Qf(u, s)}, {c if s else ('0' if zero else vr(NEGM + 4*u))}")
        return out
    sb = lambda st, a: vB + (st & 1) * 2 + a
    for st in range(5):
        us = (0, 1) if st == 4 else (0, 1, 2, 3)
        for f in range(36):
            a, s = f // 18, f % 18
            pos["F", st, f] = len(G.mf)
            if st == 3 and f == 8:
                pos["QK0"] = len(G.mf)
                for u in range(4): G.mf += qk(u, K0F, zero=True)
                pos["QK0e"] = len(G.mf)
            ms = [f"{MF} {vr(fa(a,u))}, @A, {X(u,s)}, {'0' if s == 0 else vr(fa(a,u))}" for u in us]
            if st == 4: G.add(vB + a, s * 2048, ms)
            else: G.add(vB + 4 - 2 * a + (s >= 9), (s % 9) * 4096, ms, 512)
    END = len(G.mf)
    for f in range(LEAD): e(G.fr[f][2])
    G.chain()
    sc = G.sched()
    F = lambda st, f: pos["F", st, f]
    Qp = lambda s: pos["Q", s] if s < 18 else F(0, 0)
    def bar(g, *w): sc.put(g, list(w) + ["s_barrier"])
    bar(Qp(5) + 2)
    bar(Qp(10) + 2)
    bar(Qp(17) + 2, WaitTag(["f0"], 0))
    bar(F(0, 4) + 2, WaitTag(["kvst"], 0))
    bar(F(1, 28) + 2, WaitTag(["f1"], 0))
    bar(F(2, 0) + 6)
    bar(F(3, 0) + 6, WaitTag(["kv0"], 0))
    bar(F(3, 28) + 2, WaitTag(["f2", "dma"], 0))
    bar(F(4, 2))
    for s in range(2, 18, 2): sc.add([WaitRegs(*[X(u, s + q) for u in range(4) for q in range(2)])], Qp(s) - 4, Qp(s), spread=False)
    xp = sc.add([xn_load(u, s) for s in range(XD, 18) for u in range(4)], 2, Qp(XEND))
    for i, g in enumerate(xp): assert g < Qp((XD + i // 4) & ~1) - 24, (i, g)
    def pair_piece(pr, i):
        return [[f"s_add_u32 m0, s67, {pr*2*SLOT + i*4096}", f"s_add_u32 s68, s79, {pr*128 + i*32*9216}"],
                Inst(f"buffer_load_dwordx4 v{vDQ}, s[12:15], s68 offen lds", f"f{pr}")]
    def sp_piece(p):
        return [[f"s_add_u32 m0, s81, {p*1024}", f"s_add_u32 s68, s80, {p*16*9216}"],
                Inst(f"buffer_load_dwordx4 v{vD1}, s[12:15], s68 offen lds", "f2")]
    def lin_pieces(ldsb, ldsoff, src, srcoff, n=9, tag="dma"):
        out = []
        for p in range(n):
            if p % 4 == 0: out.append([f"s_add_u32 m0, {ldsb}, {ldsoff + p*1024}", f"s_add_u32 s68, {src}, {srcoff + p*1024}"])
            out.append(Inst(f"buffer_load_dwordx4 v{vL16}, s[20:23], s68 offen offset:{(p%4)*1024} sc1 lds", tag))
        return out
    F0AT = opt.get("f0at", 12)
    sc.add(flat([pair_piece(0, i) for i in range(18)]), Qp(F0AT), Qp(opt.get("f0end", 16)))
    kvl = []
    for f in range(2):
        kvl += [f"buffer_load_dwordx2 {vr(KL+4*f,2)}, v{vKO}, s[24:27], s89 offen offset:{f*64}", f"buffer_load_dwordx2 {vr(KL+2+4*f,2)}, v{vKO}, s[24:27], s89 offen offset:{f*64+32}"]
    kvl += [f"buffer_load_dwordx4 {vr(VL)}, v{vVO}, s[28:31], s87 offen", f"buffer_load_dwordx4 {vr(VL+4)}, v{vVO}, s[28:31], s88 offen"]
    T1 = opt.get("t1", XEND); T2 = opt.get("t2", 12)
    kvt = [Inst("s_mov_b64 exec, 0xffff"), Inst(f"buffer_load_dword v0, v{vKO}, s[24:27], s89 offen", "tch"),
           Inst(f"buffer_load_dword v0, v{vKO}, s[28:31], s89 offen", "tch"), Inst("s_mov_b64 exec, -1")]
    tlb = []
    PR = 21504
    if opt.get("tlb", 0):
        pre = [["s_lshl_b32 s72, s63, 2", "s_add_u32 s72, s72, s65"], ["s_lshl_b32 s72, s72, 2", "s_add_u32 s72, s72, s3"], ["s_lshl_b32 s72, s72, 3", "s_add_u32 s72, s72, s64"],
               [f"s_mul_i32 s72, s72, {PR}", f"s_add_u32 s39, s72, {WS_PART}"]]
        sc.add(pre, Qp(2), Qp(4))
        tlb = [[Inst("s_mov_b64 exec, 1")] + [Inst(f"buffer_load_dword v0, v{vST[u]}, s[16:19], {so} offen sc1", "tch") for u in range(4) for so in ("s83", "s84")] +
               [Inst(f"buffer_load_dword v0, v{vZ}, s[16:19], s39 offen sc1", "tch"), Inst("s_mov_b64 exec, -1")]]
    sc.add([w1_touch(0), kvt] + tlb, Qp(T1), Qp(T1) + 16)
    sc.add(kvl[4:] + kvl[:4], Qp(T2), Qp(T2) + 30)
    sc.add(ident(ID, vT, vL), Qp(10), Qp(KVS - 1))
    sc.add([WaitRegs(vr(VL), vr(VL + 4))], Qp(KVS) - 3, Qp(KVS), spread=False)
    kst = [Inst(f"buffer_store_dwordx4 {vr(KL+4*f)}, v{vL16}, s[16:19], s93 offen offset:{f*1024} sc1", "kvst") for f in range(2)]
    for h in range(2):
        kst += tr_cvt(VO + 4 * h, VD, h) + [Inst(f"buffer_store_dwordx4 {vr(VO+4*h)}, v{vL16}, s[16:19], s95 offen offset:{h*1024} sc1", "kvst")]
    sc.add(kst, Qp(KVS) + 6, Qp(KVS + 1) - 2)
    sc.add([w1_touch(1), w1_touch(2)], Qp(opt.get("t3", 16)) + 8, Qp(opt.get("t3", 16)) + 24)
    sc.add([flag_store("s91", 1, vZ)], F(0, 4) + 3, F(0, 4) + 8)
    sc.add(flat([pair_piece(1, i) for i in range(18)]), F(0, opt.get("f2at", 10)), F(1, 2))
    kvld = f"buffer_load_dword v{vT2}, v{vT}, s[16:19], s90 offen sc1"
    sc.add([f"v_bfe_u32 v{vT}, v{vL16}, 4, 4", f"v_lshlrev_b32 v{vT}, 2, v{vT}", kvld], F(1, 0), F(1, 3))
    c1, c2 = check(kvld, [vT2])
    sc.add([c1 + c2], F(1, 20), F(1, 21))
    kv0 = [["s_lshl_b32 s72, s3, 12", "s_add_u32 s70, s82, s72"]] + lin_pieces("s72", SPARE, "s70", 0, 4, "kv0") + [["s_add_u32 s92, s82, s81"]]
    sc.add(kv0, F(1, 21), F(1, 34))
    sc.add(flat([sp_piece(p) for p in range(9)]) + lin_pieces("s81", 1 * SLOT, "s92", 16384), F(2, 2), F(3, 6))
    sc.add(lin_pieces("s81", 2 * SLOT, "s92", 16384 + 32768), F(4, 3), F(4, 30))
    for st in range(4):
        for a in range(2):
            lo, hi = ((Qp(16), Qp(17)) if st == 0 else (F(st - 1, 16), F(st - 1, 30))) if a == 0 else (F(st, 0), F(st, 12))
            r = vB + 4 - 2 * a
            sc.add([f"v_xor_b32 v{r}, {((st & 1)*2 + a) * 32}, v{vP5}", f"v_add_u32 v{r}, {(st >> 1)*2*SLOT}, v{r}", f"v_add_u32 v{r+1}, {SLOT}, v{r}"], lo, hi)
    sc.add([f"v_mov_b32 v{vB}, v{vS0}", f"v_xor_b32 v{vB+1}, 32, v{vS0}"], F(2, 4), F(2, 20))
    sc.add([f"v_add_u32 v{r}, 0x20000, v{r}" for r in QB[0]], Qp(9), Qp(12))
    sc.add([f"v_lshrrev_b32 v{vP5}, 6, v{vL16}", f"v_mul_u32_u24 v{vP5}, 288, v{vP5}", f"v_bfe_u32 v{vT2}, v{vL16}, 4, 2", f"v_lshl_add_u32 v{vP5}, v{vT2}, 3, v{vP5}"], F(3, 14), F(3, 30))
    ids = [["s_cmp_lt_u32 s64, 4", "s_cselect_b32 s24, s48, s54", "s_cselect_b32 s25, s49, s55"],
           ["s_cmp_lt_u32 s64, 4", "s_cselect_b32 s72, 32, 36", "s_cselect_b32 s5, 0, 1"],
           ["s_and_b32 s73, s64, 3", "s_mul_i32 s7, s73, s72"],
           ["s_lshl_b32 s6, s5, 7", "s_add_u32 s6, s6, s7"], ["s_add_u32 s26, s7, s72", f"s_mul_i32 s26, s26, {32*1152}"], [f"s_mul_i32 s7, s7, {32*1152}"],
           ["s_lshr_b32 s72, s2, 3", "s_lshl_b32 s72, s72, 2"], ["s_add_u32 s72, s72, s3", f"s_mul_i32 s72, s72, {(41 if opt.get('wtm', 1) == 0 else opt.get('wnl', 21))*128}"], ["s_add_u32 s89, s7, s72", "s_mov_b32 s39, s89"],
           [f"s_add_u32 s88, s89, {41*128*128}"], f"v_lshlrev_b32 v{vKO}, 3, v{vL16}"]
    sc.add(ids, F(0, 8), F(0, 34))
    WTM = opt.get("wtm", 1)
    for so, g in ((("s89", F(1, 4)), ("s88", F(3, opt.get("wt2", 10)))) if WTM == 0 else ()):
        sc.add([[Inst("s_mov_b32 exec_hi, 0x1ff"), Inst(f"buffer_load_dword v0, v{vKO}, s[24:27], {so} offen", "tch"), Inst("s_mov_b64 exec, -1")]], g, g + 6)
    def epi_a(us): return flat([[f"v_cvt_pk_bf16_f32 v{T+4*u}, v{fa(0,u)}, v{fa(0,u)+1}", f"v_cvt_pk_bf16_f32 v{T+4*u+1}, v{fa(0,u)+2}, v{fa(0,u)+3}",
                                 f"v_pk_max_i16 v{T+4*u}, v{T+4*u}, 0", f"v_pk_max_i16 v{T+4*u+1}, v{T+4*u+1}, 0"] for u in us])
    def epi_b(st, us):
        so, off = ("s85", 0) if st == 4 else ("s84", st * 1024)
        return flat([[f"v_cvt_pk_bf16_f32 v{T+4*u+2}, v{fa(1,u)}, v{fa(1,u)+1}", f"v_cvt_pk_bf16_f32 v{T+4*u+3}, v{fa(1,u)+2}, v{fa(1,u)+3}",
                      f"v_pk_max_i16 v{T+4*u+2}, v{T+4*u+2}, 0", f"v_pk_max_i16 v{T+4*u+3}, v{T+4*u+3}, 0",
                      Inst(f"buffer_store_dwordx4 {vr(T+4*u)}, v{vST[u]}, s[16:19], {so} offen offset:{off} sc1", "st")] for u in us])
    for st in range(5):
        us = (0, 1) if st == 4 else (0, 1, 2, 3)
        sc.add(epi_a(us), F(st, 20 if st < 4 else 22), F(st, 34))
        if st: sc.add(epi_b(st - 1, (0, 1, 2, 3)), F(st, 2 if st < 4 else 4), F(st, 16))
    qe = []
    for s in range(4):
        for u in range(4):
            a, b = qa(2 * s, u), qa(2 * s + 1, u)
            qe += [f"v_mul_f32 v{r}, s86, v{r}" for r in list(range(a, a + 4)) + list(range(b, b + 4))]
            qe += [f"v_cvt_pk_bf16_f32 v{a}, v{a}, v{a+1}", f"v_cvt_pk_bf16_f32 v{a+1}, v{a+2}, v{a+3}",
                   f"v_cvt_pk_bf16_f32 v{a+2}, v{b}, v{b+1}", f"v_cvt_pk_bf16_f32 v{a+3}, v{b+2}, v{b+3}"]
    qp = sc.add(qe, F(0, 1), F(2, 0), spread=False)
    pf = [["s_lshl_b32 s72, s63, 2", "s_add_u32 s72, s72, s65"], ["s_lshl_b32 s72, s72, 2", "s_add_u32 s72, s72, s3"],
          [f"s_mul_i32 s78, s72, {8*PR}", f"s_add_u32 s78, s78, {WS_PART if not opt.get('xp') else 0x70000000}"], [f"s_mul_i32 s73, s64, {PR}", "s_add_u32 s74, s78, s73"],
          ["s_add_u32 s75, s74, 5120", "s_add_u32 s76, s74, 10240"], ["s_add_u32 s77, s74, 15360", "s_mov_b32 s95, s74"]]
    sc.add(pf, F(1, 34), F(2, 4))
    sc.add([f"v_add_u32 v{vL}, {SPARE}, v{vL16}"], F(2, 30), F(2, 34))
    sc.add([f"ds_read_b128 {K0F(f)}, v{vL} offset:{f*1024}" for f in range(8)], F(3, 1) + 3, F(3, 7))
    sc.add([WaitRegs(*[K0F(f) for f in range(8)])], pos["QK0"] - 2, pos["QK0"], spread=False)
    M = lambda u: NEGM + 4 * u
    pa = []
    for u in range(4):
        s0 = S(u); m = M(u)
        pa += [f"v_max3_f32 v{m}, v{s0}, v{s0+1}, v{s0+2}", f"v_max3_f32 v{m}, v{m}, v{s0+3}, v{s0+4}",
               f"v_max3_f32 v{m}, v{m}, v{s0+5}, v{s0+6}", f"v_max_f32 v{m}, v{m}, v{s0+7}"]
    xl = [xlane("v_max_f32", M(u), M(u) + 1) for u in range(4)]
    for i in range(6): pa += [xl[u][i] for u in range(4)]
    for u in range(4):
        pa += [f"v_sub_f32 v{S(u)+i}, v{S(u)+i}, v{M(u)}" for i in range(8)] + [f"v_sub_f32 v{M(u)+i}, 0, v{M(u)}" for i in (3, 2, 1, 0)]
    for u in range(4): pa += [f"v_exp_f32 v{S(u)+i}, v{S(u)+i}" for i in range(8)]
    for u in range(4): pa += [f"v_cvt_pk_bf16_f32 v{P+4*u+i}, v{S(u)+2*i}, v{S(u)+2*i+1}" for i in range(4)]
    pp = sc.add(pa, pos["QK0e"] + 3, F(4, 6), spread=False)
    LM = opt.get("lm", 1); LT = 192; ONE4 = 208
    pl = []
    for u in range(4 if not LM else 0):
        s0 = S(u)
        pl += [f"v_add_f32 v{L+u}, v{s0}, v{s0+2}", f"v_add_f32 v{L+4+u}, v{s0+1}, v{s0+3}"]
        pl += [f"v_add_f32 v{L+u+4*(i&1)}, v{L+u+4*(i&1)}, v{s0+i}" for i in range(4, 8)]
    if pl: sc.add(pl, max(F(4, 1), pp[-1] + 1), END)
    if LM: sc.add([f"v_mov_b32 v{ONE4+r}, 0x3f803f80" for r in range(4)], F(4, 4), F(4, 20))
    sc.add([f"ds_read_b128 {VF(0, f)}, v{vL} offset:{8192 + f*1024}" for f in range(8)], F(4, 32), END, spread=False, mind=1)
    if stamps and opt.get("fine"):
        for i, g in enumerate([Qp(1), Qp(3), Qp(5), Qp(5) + 4, Qp(7), Qp(9), Qp(11), Qp(13), Qp(15), Qp(17), F(0, 0), F(0, 18), F(1, 0), F(2, 0), F(2, 6), F(3, 0), pos["QK0"], F(4, 0)]):
            sc.gap[g] = sc.gap[g] + [_mk(x) for x in mst(14 + i)]
    e(sc.flat())
    e(stamp(5))

    def O(dt, u): return (dt * 4 + u) * 4
    def pv(u, b, pb, zero=False, lm=True):
        return [f"{MF} {ar(O(dt, u))}, {VF(b, dt)}, {vr(P + 4*pb)}, {'0' if zero else ar(O(dt, u))}" for dt in range(8)] + \
               ([f"{MF} {vr(LT + 4*u)}, {vr(ONE4)}, {vr(P + 4*pb)}, {'0' if zero else vr(LT + 4*u)}"] if LM and lm else [])
    vD = list(range(16, 25)); vDW = list(range(176, 185)); vTW = 185
    def softmax(u):
        s0 = S(u); sm = []
        if LM:
            for i in range(4):
                a = s0 + 2 * i
                sm += [f"v_exp_f32 v{a}, v{a}", f"v_exp_f32 v{a+1}, v{a+1}"] + ([f"v_cvt_pk_bf16_f32 v{P+4*u+i-1}, v{a-2}, v{a-1}"] if i else [])
            return sm + [f"v_cvt_pk_bf16_f32 v{P+4*u+3}, v{s0+6}, v{s0+7}"]
        for i in range(4):
            a = s0 + 2 * i
            sm += [f"v_exp_f32 v{a}, v{a}", f"v_exp_f32 v{a+1}, v{a+1}"]
            if i: sm += [f"v_add_f32 v{L+u}, v{L+u}, v{a-2}", f"v_add_f32 v{L+4+u}, v{L+4+u}, v{a-1}", f"v_cvt_pk_bf16_f32 v{P+4*u+i-1}, v{a-2}, v{a-1}"]
        return sm + [f"v_cvt_pk_bf16_f32 v{P+4*u+3}, v{s0+6}, v{s0+7}", f"v_add_f32 v{L+u}, v{L+u}, v{s0+6}", f"v_add_f32 v{L+4+u}, v{L+4+u}, v{s0+7}"]
    def ring_dma():
        dm = [["s_xor_b32 s92, s88, s85"], ["s_mul_i32 s92, s92, s97"], ["s_add_u32 s92, s92, s93"]]
        for p in range(9):
            if p % 4 == 0: dm.append([f"s_add_u32 m0, s94, {p*1024}"])
            dm.append(Inst(f"buffer_load_dwordx4 v{vD[p]}, s[20:23], s92 offen offset:{(p%4)*1024} sc1 lds", "dma"))
        return dm + [["s_add_u32 s88, s88, 1"], [f"s_add_u32 s94, s94, {SLOT}"], [f"s_cmp_ge_u32 s94, {4*SLOT}", "s_cselect_b32 s94, s81, s94"]]
    adv_rd = [[f"s_add_u32 s96, s96, {SLOT}"], [f"s_cmp_eq_u32 s96, {4*SLOT}", "s_cselect_b32 s96, 0, s96"]]
    hfl = f"buffer_load_dword v{FL}, v{vT}, s[16:19], s84 offen sc1"
    def BF(b, s, u): return ar(128 + ((b * 4 + s) * 4 + u) * 4)
    def B1st(s, u): return BF(s >> 1, s & 1, u)
    def bload(dst, s, u):
        return Inst(f"buffer_load_dwordx4 {dst}, v{vST[u]}, s[28:31], s79 offen offset:{s*1024} sc1", "b")
    adv_b = [["s_xor_b32 s79, s87, s85", "s_lshl_b32 s79, s79, 12"], ["s_add_u32 s79, s79, s80", "s_add_u32 s87, s87, 1"]]
    def attn_iter(kind):
        first, last = kind == "first", kind == "last"
        mf = []; base = []
        for sl in range(8):
            base.append(len(mf))
            t2 = sl + 2; kb = (t2 // 4) & 1
            if not (last and sl >= 6) and not (first and sl < 2): mf += qk(t2 % 4, lambda f: KF(kb, f))
            mf += pv(sl % 4, (sl // 4) & 1, sl % 4, zero=(first and sl < 4))
        base.append(len(mf))
        sc = Sched(mf)
        for sl in range(8):
            u, half = sl % 4, sl // 4
            n = base[sl + 1] - base[sl]
            if not (last and half == 1):
                nb = (half + 1) & 1
                for i in range(4):
                    f = (u & 1) * 4 + i
                    d, o = (KF(nb, f), 0) if u < 2 else (VF(nb, f), 8192)
                    g = f if n <= 9 else base[sl] + (3 + 4 * i if u != 1 else (2, 3, 6, 7)[i])
                    sc.put(g, f"ds_read_b128 {d}, v{vL} offset:{half*16384 + o + f*1024}")
            if u == 1 and not (last and half == 1):
                sc.put(base[sl + 1] - (3 if n >= 16 else 1), WaitRegs(*[KF((half + 1) & 1, f) for f in range(8)]))
            if u == 0 and n >= 16: sc.put(base[sl] + 5, WaitRegs(*[VF(half & 1, f) for f in range(8)]))
        gb = base[1] + 11
        if first:
            gb = base[4] + 1
            sc.add(ring_dma(), 12, gb - 2)
        sc.put(gb, [WaitTag(["dma"] if first else ["dma", "st"], 9), "s_barrier"])
        dm = ring_dma() + adv_rd
        if kind == "loop" and WTM:
            WNL = opt.get("wnl", 21)
            dm += [[Inst(f"s_mov_b64 exec, {(1 << WNL) - 1:#x}" if WNL < 32 else f"s_mov_b32 exec_hi, {(1 << (WNL - 32)) - 1:#x}"), Inst(f"buffer_load_dword v0, v{vKO}, s[24:27], s39 offen", "tch"), Inst("s_mov_b64 exec, -1")],
                   [f"s_add_u32 s39, s39, {WNL*128*128}"]]
        ONES = 188
        if first: sc.add([f"v_mov_b32 v{ONES+r}, -1" for r in range(4)], 1, 12, spread=False)
        if not last:
            sc.add([Inst(f"buffer_store_dwordx4 {vr(ONES)}, v{vL16}, s[16:19], s95 offen offset:{c*1024} sc1", "pf") for c in range(3)] + [["s_add_u32 s95, s95, 3072"]],
                   base[4] + 3 if first else 2, base[8] - 4)
        if last:
            sc.add([f"v_lshlrev_b32 v{ONES}, 7, v{vL16}", [WaitTag(["pf"], 0)] + flag_store("s89", 8, ONES, allw=True)], base[6], base[8])
            for s in range(4): sc.add([bload(B1st(s, u), s, u) for u in range(4)], base[2 + s] + 1, base[3 + s] + 8)
        if first:
            sc.add([f"v_add_u32 v{vD[p]}, {(p - p % 4)*1024}, v{vL16}" if p < 5 else f"v_add_u32 v{vD[p]}, {('s72','s73')[p == 8]}, v{vL16}" for p in range(9)], 1, 12, spread=False)
            sc.add([Inst(x.text.replace("s85", "s36"), x.tag) if isinstance(x, Inst) else x for x in epi_b(4, (0, 1))], 6, gb)
        sc.add(dm, gb + 1, base[opt.get("dme", 8)] - 2 if kind == "loop" else base[8] - 2)
        for sl in range(8):
            if (last and sl == 7) or (first and sl < 3): continue
            hi = base[sl + 1] + (4 if sl < 7 and not (last and sl >= 5) else 0)
            sc.add(softmax((sl + 1) % 4), base[sl], hi, spread=False)
        if first:
            dw = [f"v_lshrrev_b32 v{vT2}, 4, v{vL16}"]
            for p in range(9):
                r = vDW[p]
                dw += [f"v_add_u32 v{vT}, {64*p}, v{vT2}", f"v_mul_u32_u24 v{r}, 3641, v{vT}", f"v_lshrrev_b32 v{r}, 16, v{r}",
                       f"v_mul_u32_u24 v{r}, {1152 - 288}, v{r}", f"v_lshl_add_u32 v{r}, v{vT}, 4, v{r}"]
                if p % 4: dw.append(f"v_subrev_u32 v{r}, {(p%4)*1024}, v{r}")
            dp = sc.add(dw, 1, base[7], spread=False)
            fa_ = [["s_lshl_b32 s72, s63, 14", "s_lshl_b32 s73, s3, 7"], ["s_add_u32 s72, s72, s73", f"s_add_u32 s72, s72, {FL_P2}"],
                   ["s_lshl_b32 s73, s62, 2", "s_add_u32 s91, s72, s73"], ["s_add_u32 s91, s91, 8192"],
                   ["s_lshr_b32 s73, s62, 3", "s_lshl_b32 s73, s73, 11"], ["s_add_u32 s90, s72, s73", "s_and_b32 s73, s62, 7"], ["s_lshl_b32 s73, s73, 2", "s_add_u32 s90, s90, s73"],
                   ["s_lshl_b32 s73, s64, 2", "s_add_u32 s73, s73, s65"], ["s_lshl_b32 s73, s73, 9", "s_add_u32 s84, s72, s73"],
                   [f"s_add_u32 s37, s84, {FL_EX - FL_P2}", "s_lshl_b32 s73, s64, 11"], ["s_sub_u32 s89, s37, s73", "s_lshl_b32 s73, s64, 2"], ["s_add_u32 s89, s89, s73"],
                   ["s_movk_i32 s73, 0x30", "s_cmp_eq_u32 s5, 0", "s_cselect_b32 s73, s73, 0x1f0"]]
            sc.add(fa_, base[3], base[6])
            sc.add([f"v_and_b32 v{vT}, s73, v{vL16}", f"v_lshrrev_b32 v{vT}, 2, v{vT}", f"v_lshlrev_b32 v{vT2}, 5, v{vL16}",
                    [WaitTag(["st"], 0)] + flag_store("s91", 16, vT2, allw=True)], max(base[7], dp[-1] + 1), base[8])
        e(f"v_add_u32 v{vL}, s96, v{vL16}")
        e(sc.flat())
    k.begin(name="attn_first")
    e(f"s_add_u32 s93, s92, {16384 + 2*32768}"); e("s_mov_b32 s97, 32768"); e("s_mov_b32 s88, 0"); e("s_mov_b32 s36, s85"); e("s_mov_b32 s85, 0")
    e(f"s_add_u32 s94, s81, {3*SLOT}"); e(f"s_mov_b32 s96, {SLOT}")
    e("s_mov_b32 s4, 1"); e("s_mov_b32 s28, s60"); e("s_mov_b32 s29, s61"); e("s_mov_b32 s30, 0")
    e("s_cmp_eq_u32 s3, 3"); e("s_cselect_b32 s72, s18, 0x1000"); e("s_cselect_b32 s73, s18, 0x2000")
    attn_iter("first")
    k.begin(loop=6, name="attn_loop")
    e(".p2align 3"); e("KF_aloop:")
    if stamps and opt.get("fine"):
        e(["s_memtime s[98:99]", "s_add_u32 s100, s4, 55", "s_lshl_b32 s100, s100, 4", f"v_cmp_eq_u32 vcc, s100, v{vL16}",
           "s_waitcnt lgkmcnt(0)", "v_mov_b32 v47, s98", f"v_cndmask_b32 v{STV}, v{STV}, v47, vcc"])
    e("s_cmp_eq_u32 s4, 5"); e("s_cbranch_scc1 KF_sw"); e("KF_oolr:")
    attn_iter("loop")
    e("s_add_u32 s4, s4, 1"); e("s_cmp_lt_u32 s4, 7"); e("s_cbranch_scc1 KF_aloop")
    ool.append([
                "KF_sw:",
                "s_mov_b32 s20, s24", "s_mov_b32 s21, s25", "s_mov_b32 s22, s26"] + [f"v_mov_b32 v{vD[p]}, v{vDW[p]}" for p in range(9)] +
               [f"s_mov_b32 s97, {128*1152}", f"s_mul_i32 s93, s3, {32*1152}", "s_add_u32 s93, s93, s7", "s_mul_i32 s72, s65, 288", "s_add_u32 s93, s93, s72",
                "s_lshl_b32 s80, s6, 10", f"s_add_u32 s80, s80, {WS_ACT}", "s_mov_b32 s79, s80", "s_mov_b32 s88, 0", "s_mov_b32 s87, 1",
                "s_cmp_eq_u32 s5, 0", "s_cselect_b32 s85, s65, 0", "s_cselect_b32 s30, 0, s18", hfl] + (
               ["s_getpc_b64 s[72:73]", "KF_pc2:", "s_sub_u32 s8, s72, KF_pc2-KF_nock", "s_subb_u32 s9, s73, 0", "s_mov_b32 s10, KF_codeend-KF_nock",
                "s_lshr_b32 s72, s2, 3", "s_lshl_b32 s72, s72, 2", "s_add_u32 s72, s72, s3", "s_mul_i32 s72, s72, 384",
                "s_mov_b64 exec, 7", Inst(f"buffer_load_dword v0, v{vKO}, s[8:11], s72 offen", "tch"), "s_mov_b64 exec, -1"] if opt.get("cpf2", 1) else []) + [
                "s_branch KF_oolr"])
    k.begin(name="attn_last")
    e("s_cmp_eq_u32 s5, 0"); e("s_cbranch_scc1 KF_nock")
    c1, c2 = check(hfl, [FL])
    for x in ["s_waitcnt vmcnt(18)"] + c1 + c2: e(x if x.endswith(":") else C(x))
    e("KF_nock:")
    attn_iter("last")
    e(stamp(6))
    W = 216
    if LM:
        for u in range(4): e(f"v_mov_b32 v{L+u}, v{LT+4*u}")
    else:
        for u in range(4): e(f"v_add_f32 v{L+u}, v{L+u}, v{L+4+u}")
        xl = [xlane("v_add_f32", L + u, W + 4 + u) for u in range(4)]
        for i in range(6):
            for u in range(4): e(xl[u][i])
    e(f"v_add_f32 v{W+1}, v{L}, v{L+1}"); e(f"v_add_f32 v{W+2}, v{L+2}, v{L+3}"); e(f"v_add_f32 v{W}, v{W+1}, v{W+2}")
    e(f"v_cmp_nge_f32 vcc, {f32bits(2.0**30):#x}, v{W}")
    e("s_cbranch_vccnz KF_slow")
    e("KF_epi:")
    k.begin(name="oepi")
    ACC = 48; A2 = 192
    def acc(nt, u): return ACC + (nt * 4 + u) * 4
    e(f"v_add_u32 v{vL}, s96, v{vP5}")
    def mkstage(bf, zero=False, pair=True):
        G = Frags(A2)
        for (s, nt) in ([(s2 + q, nt) for s2 in (0, 2) for nt in range(9) for q in range(2)] if pair else [(s, nt) for s in range(4) for nt in range(9)]):
            G.add(vL, s * 9216 + nt * 32, [f"{MF} {vr(acc(nt,u))}, @A, {bf(s,u)}, {'0' if zero and s == 0 else vr(acc(nt,u))}" for u in range(4)], 4608)
        if pair: G.chain()
        return G
    P5 = {b: mkstage(lambda s, u, b=b: BF(b, s, u)) for b in range(2)}
    for u in range(4): e(f"v_rcp_f32 v{L+u}, v{L+u}")
    if opt.get("xo"): e("s_mov_b32 s83, 0x7fff0000")
    if opt.get("xb"): e("s_mov_b32 s80, 0x70000000")
    if opt.get("xd2"): e("s_mov_b32 s22, 0")
    OB = lambda i, u: 216 + ((i & 1) * 4 + u) * 4
    def oepi(i, u, t, packed=False):
        o = OB(i, u)
        out = [f"v_accvgpr_read_b32 v{t+r}, a{O(2*i + r//4, u) + r%4}" for r in range(8)]
        if packed: out += [f"v_pk_mul_f32 {vr(t+r,2)}, {vr(t+r,2)}, {vr(L + (u & 2),2)} op_sel:[0,{u&1}] op_sel_hi:[1,{u&1}]" for r in range(0, 8, 2)]
        else: out += [f"v_mul_f32 v{t+r}, v{t+r}, v{L+u}" for r in range(8)]
        out += [f"v_cvt_pk_bf16_f32 v{o+r}, v{t+2*r}, v{t+2*r+1}" for r in range(4)]
        return out + [Inst(f"buffer_store_dwordx4 {vr(o)}, v{vST[u]}, s[16:19], s83 offen offset:{i*1024} sc1", "st")]
    def common(sc):
        sc.put(4 * (36 - LEAD) - 1, f"v_add_u32 v{vL}, s96, v{vP5}")
        sc.put(6, [WaitTag(["dma"], 9), "s_barrier"])
    e(stamp(7))
    e("s_mov_b32 s4, 0"); e("s_mov_b32 s101, s5")
    e("s_cmp_eq_u32 s5, 0"); e("s_cbranch_scc1 KF_spre")
    def BF2(s, u): return ar((s * 4 + u) * 4)
    lastb = [["s_add_u32 s72, s5, 7", "s_xor_b32 s72, s72, s85", "s_lshl_b32 s72, s72, 12", "s_add_u32 s82, s72, s80"]] + \
            [Inst(f"buffer_load_dwordx4 {BF2(s, u)}, v{vST[u]}, s[28:31], s82 offen offset:{s*1024} sc1", "b") for s in range(4) for u in range(4)]
    k.begin(name="g_pre")
    for f in range(LEAD): e(P5[0].fr[f][2])
    B2nd = lambda s, u: BF(s >> 1, 2 + (s & 1), u)
    G = mkstage(B1st, zero=True); G1 = mkstage(B2nd)
    off = len(G.mf); G.fr += [(g0 + off, n, r, d) for (g0, n, r, d) in G1.fr]; G.mf += G1.mf
    sc = G.sched(wrap=True)
    for o in (0, 144):
        sc.put(o + 4 * (36 - LEAD) - 1, f"v_add_u32 v{vL}, s96, v{vP5}")
        sc.put(o + 6, [WaitTag(["dma"], 9), "s_barrier"])
        sc.add(adv_rd, o + 7, o + 12, spread=False)
    def W2(f, s): return WaitRegs(*[f(s + q, u) for q in range(2) for u in range(4)])
    for q, w in enumerate([W2(B1st, 2), W2(B2nd, 0), W2(B2nd, 2), W2(lambda s, u: BF(0, s, u), 0)]): sc.add([w], 72 * q + 68, 72 * q + 72, spread=False)
    OEG = opt.get("oeg", 140); B2E = opt.get("b2e", 70)
    sc.add(adv_b + [bload(B2nd(s, u), s, u) for s in range(4) for u in range(4)] + adv_b + [["s_add_u32 s86, s79, 4096"]], 0, B2E)
    def bl2(b, s): return [Inst(bload(BF(b, s, u), s, u).text.replace("s79", "s86" if b else "s79"), "b") for u in range(4)]
    sc.add(bl2(0, 0) + bl2(0, 1), 80, 144)
    sc.add(bl2(1, 0) + bl2(1, 1), 146, 214)
    sc.add(bl2(0, 2) + bl2(0, 3) + adv_b, 216, 280)
    for q in range(2): sc.add(ring_dma(), 144 * q + 12, 144 * q + 140)
    sc.add(flat([oepi(i, u, 248) for i in range(4) for u in range(4)]), opt.get("oes", 0), OEG)
    sc.add([[WaitTag(["st"], 0)] + flag_store("s90", 4, vT2, allw=True)], min(OEG + 60, 282), 288, spread=False)
    e(sc.flat())
    e(stamp(8))
    e("s_branch KF_loop2")
    k.begin(name="s_pre")
    e("KF_spre:")
    for f in range(LEAD): e(mkstage(lambda s, u: vr(OB(s, u)), pair=False).fr[f][2])
    for u in range(4): e(oepi(0, u, 248 if u & 1 else 40, packed=True))
    G = mkstage(lambda s, u: vr(OB(s, u)), zero=True, pair=False); sc = G.sched(); common(sc)
    sc.add(adv_rd, 7, 12, spread=False)
    for i in range(1, 4): sc.add(flat([oepi(i, u, 248) for u in range(4)]), 36 * (i - 1), 36 * i - 1)
    sc.add(ring_dma(), 108, 143)
    e(sc.flat())
    e(mst(52))
    k.wait_tags("st")
    e(mst(53))
    e(flag_store("s90", 4, vT2, allw=True))
    e("s_mov_b32 s30, s18")
    e(adv_b)
    e(spin(hfl, [FL]))
    e(mst(54))
    for b in (0, 1):
        for s in range(4 - 2 * b):
            for u in range(4): e(bload(BF(b, s, u), s, u))
        if b == 0: e(adv_b)
    for f in range(LEAD): e(P5[0].fr[f][2])
    e(W2(lambda s, u: BF(0, s, u), 0))
    e("s_mov_b32 s4, 0")
    e(stamp(8))

    def stage2(b):
        G = P5[b]; sc = G.sched(wrap=True); common(sc)
        sc.add([W2(lambda s, u: BF(b, s, u), 2)], 68, 72, spread=False)
        sc.add([W2(lambda s, u: BF(b ^ 1, s, u), 0)], 140, 144, spread=False)
        sc.add(adv_rd, 7, 12, spread=False)
        sc.add([bload(BF(b ^ 1, s, u), s, u) for s in (2, 3) for u in range(4)] + adv_b, 2, 62)
        sc.add([bload(BF(b, s, u), s, u) for s in (0, 1) for u in range(4)], 72, 136)
        sc.add(ring_dma(), 12, 140)
        hk = [_mk(x) for x in ("s_cmp_eq_u32 s101, 0", f"s_cbranch_scc1 KF_hk{b}", f"KF_hk{b}r:")]
        sc.add([hk], (130, 64)[b], (136, 71)[b], spread=False)
        fl = sc.flat(); i = fl.index(hk[1])
        cnt[b] = sum(1 for x in (fl[i:] if b == 0 else fl[:i]) if x.kind in ("vload", "vstore", "dma"))
        assert b == 0 or not any(x.kind == "vload" and BF(1, 0, 0) in x.text for x in fl[:i])
        e(fl)
    cnt = {}
    k.begin(loop=2, name="L0")
    e(".p2align 3"); e("KF_loop2:")
    stage2(0)
    k.begin(loop=2, name="L1")
    stage2(1)
    e("s_add_u32 s4, s4, 1"); e("s_cmp_lt_u32 s4, 2"); e("s_cbranch_scc1 KF_loop2")
    hfl2 = hfl.replace("offen", "offen offset:16")
    ool.append(["KF_hk0:", hfl2, "s_branch KF_hk0r"])
    ool.append(["KF_hk1:", "s_mov_b32 s101, 1", f"s_waitcnt vmcnt({cnt[0] + cnt[1]})"] + cmpf([FL]) +
               ["s_nop 0", "s_cbranch_vccz KF_hk1r"] + spin(hfl2, [FL], "KF_hk1r"))

    k.begin(name="final")
    e(stamp(9))
    NPRE = opt.get("npre", 2)
    nts = [8, 0, 1, 2, 3, 4, 5, 6, 7]
    assert NPRE == 2
    order = [(0, s, nt) for nt in range(9) for s in range(2)]
    order += [(b, s, nt) for nt in nts for b in range(3) for s in range(4) if not (b == 0 and s < NPRE)]
    G = Frags(A2); done = {}
    vLb = [vL, vT, vB + 2]
    for (b, s, nt) in order:
        bf = (lambda u: BF(b, s, u)) if b < 2 else (lambda u: BF2(s, u))
        G.add(vLb[b], s * 9216 + nt * 32, [f"{MF} {vr(acc(nt,u))}, @A, {bf(u)}, {vr(acc(nt,u))}" for u in range(4)], 4608)
        done[nt] = len(G.mf)
    G.chain()
    sc = G.sched(); NG = len(G.mf); G0 = 36 * NPRE
    sc.put(G0 - 26, [WaitTag(["dma"], 0), "s_barrier"])
    sc.add([bload(BF(1, s, u), s, u) for s in (2, 3) for u in range(4)] + [Inst(x.text.replace("s82", "s86"), "b") if isinstance(x, Inst) else [y.replace("s82", "s86") for y in x] for x in lastb], 2, 56)
    gq = G0 + (8 - NPRE) * 4
    sc.add([WaitRegs(*[BF2(s, u) for s in range(4) for u in range(4)])], gq - 4, gq, spread=False)
    sc.add(adv_rd + [f"v_add_u32 v{vLb[1]}, s96, v{vP5}"] + adv_rd + [f"v_add_u32 v{vLb[2]}, s96, v{vP5}"], 7, 30, spread=False)
    sc.add([W2(lambda s, u: BF(1, s, u), 0)], G0 - 4, G0, spread=False)
    sc.add([W2(lambda s, u: BF(1, s, u), 2)], G0 + 12, G0 + 16, spread=False)
    SEL = 26; XRr = 36; vX = 25; vL8 = 46
    ad = [
          ["s_and_b32 s82, s64, 3", "s_mul_i32 s73, s82, 5120"], ["s_add_u32 s78, s78, s73", "s_lshl_b32 s73, s5, 10"], ["s_add_u32 s85, s78, s73"],
          ["s_lshl_b32 s73, s71, 1", "s_xor_b32 s82, s82, s73"], ["s_add_u32 s82, s82, s69", f"s_mul_i32 s83, s82, {16*1152}"],
          ["s_mul_i32 s73, s65, 288", "s_add_u32 s87, s83, s73"], ["s_lshl_b32 s73, s5, 6", "s_add_u32 s83, s87, s73"],
          ["s_mov_b32 s12, s56", "s_mov_b32 s13, s57"], [f"s_mov_b32 s14, {2048*1152}"],
          [f"s_mov_b32 s88, {f32bits(-math.log2(math.e)):#x}", "s_mov_b32 s89, 0xffff0000"]]
    sc.add(ad, 56, G0 + 36)
    va = [f"v_bfe_u32 v{vX}, v{vL16}, 4, 4", f"v_lshrrev_b32 v{vT2}, 8, v{vL16}", f"v_bfe_u32 v{vL8}, v{vL16}, 6, 2",
          [f"v_cmp_eq_u32 vcc, v{vL8}, v{vT2}", f"v_mov_b32 v{SEL}, 0x3f80", f"v_and_b32 v{vL8}, 16, v{vL16}", f"v_lshlrev_b32 v{SEL}, v{vL8}, v{SEL}",
           f"v_cndmask_b32 v{SEL}, 0, v{SEL}, vcc"],
          [f"v_and_b32 v{vL8}, 32, v{vL16}", f"v_cmp_eq_u32 vcc, 0, v{vL8}", "s_nop 1", f"v_cndmask_b32 v{SEL+2}, 0, v{SEL}, vcc", f"v_cndmask_b32 v{SEL+3}, v{SEL}, 0, vcc"],
          f"v_mov_b32 v{SEL}, 0", f"v_mov_b32 v{SEL+1}, 0", f"v_mov_b32 v{SEL+4}, 0", f"v_mov_b32 v{SEL+5}, 0",
          f"v_mov_b32 v{SEL+6}, v{SEL+2}", f"v_mov_b32 v{SEL+7}, v{SEL+3}", f"v_mov_b32 v{SEL+8}, v{SEL+2}", f"v_mov_b32 v{SEL+9}, v{SEL+3}",
          f"v_mul_u32_u24 v{vX}, 1152, v{vX}", f"v_lshl_add_u32 v{vX}, v{vT2}, 3, v{vX}",
          f"v_lshrrev_b32 v{vL8}, 1, v{vL16}", f"v_add_u32 v{vL8}, 4096, v{vL8}", f"v_lshlrev_b32 v{vT2}, 7, v{vL16}",
          f"v_bfe_u32 v{vB}, v{vL16}, 4, 3", f"v_lshlrev_b32 v{vB}, 2, v{vB}"]
    sc.add(va, 8, G0 + 30)
    xo = [(0, "s83", 0), (1, "s83", 32), (2, "s83", 128), (3, "s83", 160), (4, "s87", 256)]
    sc.add([f"buffer_load_dwordx2 {vr(XRr+2*t,2)}, v{vX}, s[32:35], {so} offen offset:{o}" for t, so, o in xo] +
           ([Inst(f"buffer_load_dword v0, v{vX}, s[12:15], {so} offen offset:{o}", "tch") for so, o in (("s83", 0), ("s83", 128), ("s87", 256))] if opt.get("otc", 0) else []), G0 + 38, G0 + 70)
    tail = []; per = done[0] - done[8]
    for c in (4, 0, 1, 2, 3):
        pkx = []
        for u in range(4):
            a = acc(2 * c, u); tg = "p1" if c in (4, 0, 1) else "p2"
            pkx += [f"v_cvt_pk_bf16_f32 v{a}, v{a}, v{a+1}", f"v_cvt_pk_bf16_f32 v{a+1}, v{a+2}, v{a+3}"]
            if c < 4:
                b = acc(2 * c + 1, u)
                pkx += [f"v_cvt_pk_bf16_f32 v{a+2}, v{b}, v{b+1}", f"v_cvt_pk_bf16_f32 v{a+3}, v{b+2}, v{b+3}",
                        Inst(f"buffer_store_dwordx4 {vr(a)}, v{vL16}, s[16:19], s{74+u} offen offset:{c*1024} sc1", tg)]
            else:
                pkx += [Inst(f"buffer_store_dwordx2 {vr(a,2)}, v{vL8}, s[16:19], s{74+u} offen sc1", tg)]
        d = done[8] if c == 4 else done[2 * c + 1]
        if c != 3: sc.add(pkx, d + 4, d + 4 + (per if c == 1 else 2 * per - 8))
        else: tail = pkx
    fl1 = f"buffer_load_dword v{vB+1}, v{vB}, s[16:19], s37 offen sc1"
    sc.add([fl1], G0 + 70, G0 + 80)
    c1, c2 = check(fl1, [vB + 1])
    sc.add([c1 + c2], done[3], done[3] + 3)
    R1 = 48; RE = 80; R2 = 216
    order8 = [4, 5, 6, 7, 0, 1, 2, 3]
    def lds1(): return flat([[[f"s_add_u32 s86, s85, {src*PR}"], f"buffer_load_dwordx4 {vr(R1 + src*4)}, v{vL16}, s[16:19], s86 offen sc1"] for src in order8]) + \
                       flat([[[f"s_add_u32 s86, s78, {src*PR}"], f"buffer_load_dwordx2 {vr(RE + src*2, 2)}, v{vL8}, s[28:31], s86 offen sc1"] for src in order8])
    def lds2(): return flat([[[f"s_add_u32 s86, s85, {src*PR}"], f"buffer_load_dwordx4 {vr(R2 + src*4)}, v{vL16}, s[16:19], s86 offen offset:2048 sc1"] for src in order8])
    def sent(base, n):
        t = 128; o = [f"v_max3_u32 v{t}, v{base}, v{base+1}, v{base+2}", f"v_max3_u32 v{t+1}, v{base+3}, v{base+4}, v{base+5}"]
        for i in range(6, n, 2): o.append(f"v_max3_u32 v{t + (i//2) % 2}, v{t + (i//2) % 2}, v{base+i}, v{base+i+1}")
        return o + [f"v_max_u32 v{t}, v{t}, v{t+1}", f"v_cmp_eq_u32 vcc, -1, v{t}"]
    def poll(name, ld, base, n):
        ool.append([f"{name}x:", "s_add_u32 s4, s4, 1", f"s_cmp_ge_u32 s4, {SPIN_MAX}", f"s_cbranch_scc1 {name}d", f"s_sleep {opt.get('slp', 2)}"] + ld + ["s_waitcnt vmcnt(0)", f"s_branch {name}"])
        return [f"{name}:"] + sent(base, n) + ["s_nop 0", f"s_cbranch_vccnz {name}x", f"{name}d:"]
    sc.add([["s_cmp_eq_u32 s5, 0", "s_cselect_b32 s30, 0, s18", "s_mov_b32 s4, 0"]] + lds1(), done[6] - opt.get("r1e", 8), NG - 4)
    e(sc.flat())
    e(tail)
    e(stamp(10))
    Gs = lambda t: 96 + 4 * t
    Ss = lambda t: 108 + 4 * t
    t0 = 120; g1 = 124
    def round2(a):
        return [f"v_cvt_pk_bf16_f32 v{t0}, v{a}, v{a+1}", f"v_cvt_pk_bf16_f32 v{t0+1}, v{a+2}, v{a+3}",
                f"v_lshlrev_b32 v{a}, 16, v{t0}", f"v_and_b32 v{a+1}, s89, v{t0}", f"v_lshlrev_b32 v{a+2}, 16, v{t0+1}", f"v_and_b32 v{a+3}, s89, v{t0+1}"]
    def gate(t):
        g = Gs(t)
        return round2(g) + [f"v_mul_f32 v{g1+r}, s88, v{g+r}" for r in range(4)] + [f"v_exp_f32 v{g1+r}, v{g1+r}" for r in range(4)] + \
               [f"v_add_f32 v{g1+r}, 1.0, v{g1+r}" for r in range(4)] + [f"v_rcp_f32 v{g1+r}, v{g1+r}" for r in range(4)] + \
               [pk("v_pk_mul_f32", g + r, g + r, g1 + r) for r in (0, 2)] + round2(g)
    def fin(t, x, so, o):
        g = Gs(t); s0 = Ss(t)
        return round2(s0) + [pk("v_pk_mul_f32", g + r, g + r, s0 + r) for r in (0, 2)] + round2(g) + \
               [f"v_lshlrev_b32 v{g1}, 16, v{x}", f"v_and_b32 v{g1+1}, s89, v{x}", f"v_lshlrev_b32 v{g1+2}, 16, v{x+1}", f"v_and_b32 v{g1+3}, s89, v{x+1}"] + \
               [pk("v_pk_add_f32", g + r, g + r, g1 + r) for r in (0, 2)] + \
               [f"v_cvt_pk_bf16_f32 v{s0}, v{g}, v{g+1}", f"v_cvt_pk_bf16_f32 v{s0+1}, v{g+2}, v{g+3}",
                f"buffer_store_dwordx2 {vr(s0,2)}, v{vX}, s[12:15], {so} offen offset:{o}"]
    def redu(R):
        return [f"{MF} {vr((Gs if src >= 4 else Ss)(t))}, {vr(SEL + (0 if t else 2))}, {vr(R + src*4)}, {'0' if src in (0, 4) else vr((Gs if src >= 4 else Ss)(t))}"
                for src in order8 for t in range(2)]
    e(poll("KF_q1", lds1(), R1, 48))
    e(mst(46))
    e(redu(R1))
    e([f"{MF} {vr((Gs if q >= 2 else Ss)(2))}, {vr(SEL + 6)}, {vr(RE + q*4)}, {'0' if q % 2 == 0 else vr((Gs if q >= 2 else Ss)(2))}" for q in (2, 3, 0, 1)])
    e(gate(0))
    e(lds2())
    e(gate(1))
    for t in range(2): e(fin(t, XRr + 2 * t, "s83", 32 * t))
    e("s_cmp_eq_u32 s5, 0"); e("s_cbranch_scc1 KF_r2")
    for x in gate(2) + fin(2, XRr + 8, "s87", 256): e(C(x))
    e("KF_r2:")
    e(stamp(11))
    e(poll("KF_q2", lds2(), R2, 32))
    e(mst(50))
    e(redu(R2))
    for t in range(2): e(gate(t))
    for t in range(2): e(fin(t, XRr + 4 + 2 * t, "s83", 128 + 32 * t))
    k.begin(name="fin")
    e("KF_fin:")
    if stamps:
        e(stamp(12)); e("s_waitcnt vmcnt(0)"); e(stamp(13))
        e("s_lshl_b32 s72, s2, 2"); e("s_add_u32 s72, s72, s3"); e("s_lshl_b32 s72, s72, 8"); e(f"s_add_u32 s72, s72, {200<<20}")
        e(f"v_lshrrev_b32 v2, 2, v{vL16}")
        e(f"buffer_store_dword v{STV}, v2, s[16:19], s72 offen")
        if "probe" in opt:
            e(f"s_cmp_lg_u32 s2, {opt.get('pw', 133)}"); e("s_cbranch_scc1 KF_end"); e("s_cmp_lg_u32 s3, 0"); e("s_cbranch_scc1 KF_end")
            if opt["probe"] >= 0: e(f"v_readlane_b32 s72, v{STV}, {32 + opt['probe']}")
            else: e("s_mov_b32 s72, s38")
            e("s_nop 3"); e("s_add_u32 s72, s72, 10000")
            e("KF_pw:"); e("s_memrealtime s[98:99]"); e("s_waitcnt lgkmcnt(0)"); e("s_sub_u32 s73, s72, s98"); e("s_cmp_lt_u32 s73, 20000"); e("s_cbranch_scc1 KF_pw")
        if opt.get("dbg"):
            e(f"s_cmp_lg_u32 s2, {opt['dbg']}"); e("s_cbranch_scc1 KF_end"); e("s_cmp_lg_u32 s3, 1"); e("s_cbranch_scc1 KF_end")
            e(srd(20, 58, 64)); e(f"v_readlane_b32 s72, v{STV}, 32"); e("v_subrev_u32 v2, 124, v2"); e(f"v_subrev_u32 v{STV}, s72, v{STV}")
            e("s_mov_b32 exec_lo, 0"); e(f"buffer_store_dword v{STV}, v2, s[20:23], 0 offen")
    e("KF_end:")
    e("s_endpgm")

    for i, blk in enumerate(ool):
        k.begin(name=f"ool{i}")
        e(blk); e("s_endpgm")
    Mx = W + 8; AL = W + 12; TT = W + 16
    k.begin(name="slow_pre")
    e("KF_codeend:")
    e("KF_slow:")
    e("s_waitcnt vmcnt(0) lgkmcnt(0)"); e("s_nop 15")
    for i in range(128): e(f"v_accvgpr_write_b32 a{i}, 0")
    for u in range(4): e(f"v_mov_b32 v{L+u}, 0"); e(f"v_mov_b32 v{Mx+u}, 0xff7fffff")
    e("s_mov_b32 s72, 0"); e("s_mov_b32 s68, s82")
    k.begin(loop=16, name="slow_loop")
    e("KF_sloop:")
    for q in range(4):
        for f in range(4):
            ff = q * 4 + f
            e(f"buffer_load_dwordx4 {KF(1, ff) if ff < 8 else VF(1, ff - 8)}, v{vL16}, s[16:19], s68 offen offset:{f*1024} sc1")
        e("s_add_u32 s68, s68, 4096")
    for u in range(4):
        e(qk(u, lambda f: KF(1, f), zero=True))
        s0 = S(u); m = W + u
        e(f"v_max3_f32 v{m}, v{s0}, v{s0+1}, v{s0+2}"); e(f"v_max3_f32 v{m}, v{m}, v{s0+3}, v{s0+4}")
        e(f"v_max3_f32 v{m}, v{m}, v{s0+5}, v{s0+6}"); e(f"v_max3_f32 v{m}, v{m}, v{s0+7}, v{Mx+u}")
        e(xlane("v_max_f32", m, W + 4))
        e(f"v_sub_f32 v{AL}, v{Mx+u}, v{m}"); e(f"v_exp_f32 v{AL}, v{AL}"); e(f"v_mov_b32 v{Mx+u}, v{m}")
        e(f"v_mul_f32 v{L+u}, v{L+u}, v{AL}")
        for i in range(8):
            e(f"v_sub_f32 v{s0+i}, v{s0+i}, v{m}"); e(f"v_exp_f32 v{s0+i}, v{s0+i}")
        for i in range(8): e(f"v_add_f32 v{L+u}, v{L+u}, v{s0+i}")
        for i in range(4): e(f"v_cvt_pk_bf16_f32 v{P+i}, v{s0+2*i}, v{s0+2*i+1}")
        for dt in range(8):
            for r in range(4): e(f"v_accvgpr_read_b32 v{TT+r}, a{O(dt,u)+r}")
            for r in range(4): e(f"v_mul_f32 v{TT+r}, v{TT+r}, v{AL}")
            for r in range(4): e(f"v_accvgpr_write_b32 a{O(dt,u)+r}, v{TT+r}")
        e(pv(u, 1, 0, lm=False))
    e("s_add_u32 s72, s72, 1"); e("s_cmp_lt_u32 s72, 16"); e("s_cbranch_scc1 KF_sloop")
    k.begin(name="slow_post")
    e("s_nop 15")
    for u in range(4): e(xlane("v_add_f32", L + u, W + 4))
    e("s_nop 15")
    e("s_branch KF_epi")
    pre = ["p0a", "gemm", "attn_first"]
    k.paths = []
    for na in (1, 2, 4):
        for nl in (1, 2):
            mid = pre + ["attn_loop"] * na + ["attn_last", "oepi"]
            if na > 1 and nl > 1 and (na, nl) != (4, 2): continue
            k.paths.append(mid + ["g_pre"] + ["L0", "L1"] * nl + ["final", "fin"])
            k.paths.append(mid + ["s_pre"] + ["L0", "L1"] * nl + ["final", "fin"])
    return kstart(name) + k.finish(), kdesc(name, 512, 256), (name, 256, 256, 163840)
```

```python
from lib import *
from lib import _mk
from common import *
import math

SLOT = 36864
SPARE = 4 * SLOT
MF = "v_mfma_f32_16x16x32_bf16"
QSCALE = math.log2(math.e) / math.sqrt(128.0)
SPIN_MAX = 100000
KNAME = "recurrent_scan__sliding_block_cached__dense_activation_relu__prompt_kernel"

def flat(l): return [x for y in l for x in y]

def gen_kf(name=KNAME, stamps=False, opt=None):
    opt = opt or {}
    k = Kernel(name)
    k.cur.name = 'p0a'
    e = k.e
    vL16, vDQ, vD1, vS0, vP5, vZ, vTOK, vL, vT = 1, 2, 3, 4, 5, 6, 7, 8, 9
    vST = [10, 11, 12, 13]
    vT2 = 14; STV = 15
    XV = 16; QA = 48; AF = 176; NF = 6; LEAD = 4
    FA = 200; T = 232; vB = 248
    vXN = [232, 233, 234, 235]; vKO, vVO = 254, 255
    B1, B3, B5, B7 = 64, 96, 128, 160
    def X(u, s):
        h, idx = u >> 1, s * 2 + (u & 1)
        return ar(h * 128 + idx * 4) if idx < 32 else vr(XV + h * 16 + (idx - 32) * 4)
    def qa(nt, u): return QA + (nt * 4 + u) * 4
    def Qf(u, s): return vr(qa(2 * s, u))
    def fa(a, u): return FA + a * 16 + u * 4
    def stamp(i):
        if not stamps: return []
        return ["s_memtime s[98:99]", "s_waitcnt lgkmcnt(0)", f"v_writelane_b32 v{STV}, s98, {i}",
                "s_memrealtime s[98:99]", "s_waitcnt lgkmcnt(0)", f"v_writelane_b32 v{STV}, s98, {32+i}"]
    def mst(i):
        if not (stamps and opt.get("fine")): return ["s_nop 0"] if False else []
        return ["s_memtime s[98:99]", "s_waitcnt lgkmcnt(0)", "s_nop 0", f"v_writelane_b32 v{STV}, s98, {i}"]
    def C(t): return Inst(t, "cond")
    uid = [0]
    def lab(p): uid[0] += 1; return f"KF_{p}{uid[0]}"
    def flag_store(sreg, nl, voff, allw=False):
        lb = lab("nf")
        m = ["s_mov_b64 exec, %#x" % ((1 << nl) - 1)] if nl < 32 else ["s_mov_b32 exec_hi, 0"]
        body = m + [f"buffer_store_dword v{vTOK}, v{voff}, s[16:19], {sreg} offen sc1", "s_mov_b64 exec, -1"]
        if allw: return body
        return ["s_cmp_lg_u32 s3, 0", f"s_cbranch_scc1 {lb}"] + [C(x) for x in body] + [f"{lb}:"]
    ool = []
    def spin(load, regs, ret=None):
        lb = lab("sp"); dn = ret or lab("sd")
        out = ["s_mov_b32 s73, 0", f"{lb}:", load, "s_waitcnt vmcnt(0)"] + cmpf(regs)
        out += ["s_add_u32 s73, s73, 1", f"s_cmp_ge_u32 s73, {SPIN_MAX}", f"s_cbranch_scc1 {dn}", f"s_cbranch_vccz {dn}", "s_sleep 2", f"s_branch {lb}"]
        if not ret: out.append(f"{dn}:")
        return out
    def cmpf(regs):
        out = []
        if len(regs) > 1:
            out += [f"v_xor_b32 v{r}, v{r}, v{vTOK}" for r in regs]
            out += [f"v_or_b32 v{regs[0]}, v{regs[0]}, v{r}" for r in regs[1:]]
            out += [f"v_cmp_ne_u32 vcc, 0, v{regs[0]}"]
        else:
            out += [f"v_cmp_ne_u32 vcc, v{regs[0]}, v{vTOK}"]
        return out
    def check(load, regs):
        a, b = lab("ck"), lab("cr")
        ool.append([f"{a}:"] + spin(load, regs, b))
        return cmpf(regs), ["s_nop 0", f"s_cbranch_vccnz {a}", f"{b}:"]
    def xlane(op, r, t, both=True):
        o = [f"v_mov_b32 v{t}, v{r}", f"v_permlane32_swap_b32 v{t}, v{r}", f"{op} v{r}, v{r}, v{t}"] if both else []
        return o + [f"v_mov_b32 v{t}, v{r}", f"v_permlane16_swap_b32 v{t}, v{r}", f"{op} v{r}, v{r}, v{t}"]
    def ident(ID, t0, t1):
        o = [f"v_lshrrev_b32 v{t0}, 4, v{vL16}", f"v_and_b32 v{t1}, 15, v{t0}", f"v_lshrrev_b32 v{t0}, 4, v{t0}", f"v_lshlrev_b32 v{t0}, 3, v{t0}",
             f"v_sub_u32 v{t0}, v{t1}, v{t0}", f"v_and_b32 v{t1}, 1, v{t0}", f"v_lshlrev_b32 v{t1}, 4, v{t1}", f"v_mov_b32 v{ID}, 0x3f80",
             f"v_lshlrev_b32 v{t1}, v{t1}, v{ID}", f"v_ashrrev_i32 v{t0}, 1, v{t0}"]
        for h in range(2):
            for r in range(4):
                o.append([f"v_cmp_eq_i32 vcc, {r - 8*h}, v{t0}", "s_nop 1", f"v_cndmask_b32 v{ID+4*h+r}, 0, v{t1}, vcc"])
        return o
    def tr_mf(D, A, ID): return [f"{MF} {vr(D + (h*2+r)*4)}, {vr(A + 4*r)}, {vr(ID + 4*h)}, 0" for h in range(2) for r in range(2)]
    def tr_cvt(o, D, h): return [f"v_cvt_pk_bf16_f32 v{o+2*r+q}, v{D+(h*2+r)*4+2*q}, v{D+(h*2+r)*4+2*q+1}" for r in range(2) for q in range(2)]

    e("s_cmp_ge_u32 s2, 256"); e("s_cbranch_scc1 KF_end")
    if opt.get("scr"):
        e("s_and_b32 s4, s2, 7"); e("s_bfe_u32 s5, s2, 0x30003"); e("s_andn2_b32 s2, s2, 63"); e("s_lshl_b32 s4, s4, 3"); e("s_or_b32 s2, s2, s4"); e("s_or_b32 s2, s2, s5")
    e("s_load_dwordx16 s[40:55], s[0:1], 0")
    e("s_load_dwordx4 s[56:59], s[0:1], 64")
    e("s_load_dwordx2 s[60:61], s[0:1], 80")
    e("s_memrealtime s[38:39]")
    if opt.get("cpf0", 8):
        e("s_getpc_b64 s[96:97]"); e(f"s_mov_b32 s98, {opt.get('cpf0', 8) * 1024}"); e("s_mov_b32 s99, 0x20000")
        e("v_lshlrev_b32 v27, 7, v0")
        e("buffer_load_dword v31, v27, s[96:99], 0 offen", "tch")
    e("v_lshrrev_b32 v20, 6, v0")
    e("v_and_b32 v21, 63, v0")
    e("v_readfirstlane_b32 s3, v20")
    e("s_and_b32 s64, s2, 7"); e("s_bfe_u32 s65, s2, 0x20003")
    e("s_and_b32 s62, s2, 3"); e("s_lshl_b32 s62, s62, 3"); e("s_and_b32 s63, s2, 4"); e("s_add_u32 s62, s62, s63"); e("s_add_u32 s62, s62, s65")
    e("s_lshr_b32 s63, s2, 5")
    e("s_lshl_b32 s66, s63, 5"); e("s_add_u32 s66, s66, s62")
    e("v_lshrrev_b32 v22, 5, v0"); e("v_mul_u32_u24 v22, 1152, v22")
    e("v_and_b32 v23, 31, v21"); e("v_lshl_add_u32 v22, v23, 4, v22")
    e("s_mul_i32 s67, s66, 9216")
    for r in range(56, 60): e(f"v_mov_b32 v{r}, 0")
    e(f"v_mov_b32 v{vZ}, 0")
    e(f"v_lshlrev_b32 v{vL16}, 4, v21")
    e("s_waitcnt lgkmcnt(0)")
    e(srd(32, 40, 2048 * 1152))
    e(f"buffer_load_dwordx4 {vr(48)}, v22, s[32:35], s67 offen")
    e(f"buffer_load_dwordx4 {vr(52)}, v22, s[32:35], s67 offen offset:512")
    e("s_mov_b32 exec_lo, 0xff"); e("s_mov_b32 exec_hi, 0xff")
    e(f"buffer_load_dwordx4 {vr(56)}, v22, s[32:35], s67 offen offset:1024")
    e("s_mov_b64 exec, -1")
    e(stamp(0))
    e(srd(8, 46, 576 * 8192)); e(srd(20, 58, 256))
    e("s_or_b32 s77, s2, s3"); e("s_cbranch_scc1 KF_w0")
    e(C("s_or_b32 s38, s38, 1")); e(C("v_mov_b32 v28, s38")); e(C("s_mov_b64 exec, 1"))
    e(C(f"buffer_store_dword v28, v{vZ}, s[20:23], 0 offen sc1")); e(C("s_mov_b64 exec, -1"))
    e("KF_w0:")
    e(srd(16, 60, WS_SIZE))
    if opt.get("flw", 1):
        e("s_lshl_b32 s72, s66, 7"); e(f"s_add_u32 s72, s72, {FL_LN}"); e("v_mov_b32 v27, s72")
        e("s_lshl_b32 s72, s63, 3"); e("s_add_u32 s72, s72, s64"); e("s_lshl_b32 s72, s72, 2"); e("s_add_u32 s72, s72, s65"); e("s_lshl_b32 s72, s72, 2")
        e("s_add_u32 s72, s72, s3"); e("s_lshl_b32 s72, s72, 7"); e(f"s_add_u32 s72, s72, {FL_P2}"); e("v_writelane_b32 v27, s72, 1")
        e(f"s_add_u32 s72, s72, {FL_EX - FL_P2}"); e("v_writelane_b32 v27, s72, 2")
        e("s_lshr_b32 s72, s62, 1"); e("s_lshl_b32 s72, s72, 7"); e(f"s_add_u32 s72, s72, {FL_KV}"); e("v_writelane_b32 v27, s72, 3")
        e("s_mov_b64 exec, 15"); e("buffer_load_dword v31, v27, s[16:19], 0 offen sc1", "tch"); e("s_mov_b64 exec, -1")
    e(srd(12, 52, 576 * 9216)); e(srd(24, 42, 8388608)); e(srd(28, 44, 8388608))
    e("v_lshrrev_b32 v28, 1, v21"); e("v_and_b32 v29, 1, v21"); e("v_lshlrev_b32 v29, 7, v29")
    e("v_lshl_add_u32 v34, v28, 13, v29"); e("v_mul_u32_u24 v239, 9216, v21")
    e("s_sub_u32 s77, s3, 1"); e("s_lshl_b32 s77, s77, 3"); e("s_add_u32 s77, s77, s63"); e(f"s_mul_i32 s4, s77, {24*8192}"); e("s_lshl_b32 s5, s63, 2"); e("s_add_u32 s5, s5, s3"); e(f"s_mul_i32 s5, s5, {18*9216}")
    e("s_lshr_b32 s70, s62, 1"); e("s_and_b32 s71, s62, 1")
    e("s_lshl_b32 s6, s70, 6"); e("s_add_u32 s6, s6, s5"); e("s_add_u32 s6, s6, 8192")
    e("s_lshl_b32 s79, s62, 8"); e("s_add_u32 s4, s4, s79"); e("s_add_u32 s5, s5, s79")
    wq_touch = ["s_mov_b32 exec_hi, 0xffff", "buffer_load_dword v31, v34, s[8:11], s4 offen", "s_mov_b64 exec, -1"]
    def w1_touch(i):
        return [Inst("s_mov_b64 exec, 0x3ffff"), Inst(f"buffer_load_dword v0, v239, s[12:15], {('s5','s5','s6')[i]} offen offset:{(0,128,0)[i]}", "tch"), Inst("s_mov_b64 exec, -1")]
    def not_w0(body, maxw=3):
        lb = lab("nw")
        return ["s_sub_u32 s72, s3, 1", f"s_cmp_ge_u32 s72, {maxw}", f"s_cbranch_scc1 {lb}"] + [C(x) for x in body] + [f"{lb}:"]
    ORD = opt.get("ord", 1)
    CPF = opt.get("codepf", 2)
    code_touch = ["s_getpc_b64 s[68:69]", "KF_pc:", f"s_sub_u32 s96, s68, KF_pc-{name}", "s_subb_u32 s97, s69, 0", f"s_mov_b32 s98, KF_codeend-{name}", "s_mov_b32 s99, 0x20000",
                  "s_lshr_b32 s94, s2, 3", "s_lshl_b32 s94, s94, 2", "s_add_u32 s94, s94, s3", "s_mul_i32 s94, s94, 640",
                  "v_lshlrev_b32 v27, 7, v21", "s_mov_b64 exec, 31", Inst("buffer_load_dword v31, v27, s[96:99], s94 offen", "tch"), "s_mov_b64 exec, -1"]
    if CPF == 1: e(code_touch)
    e("v_and_b32 v24, 15, v21"); e("v_lshrrev_b32 v25, 4, v21")
    e(f"v_lshlrev_b32 v{vKO}, 8, v24"); e(f"v_lshl_add_u32 v{vVO}, v25, 4, v{vKO}"); e(f"v_lshl_add_u32 v{vKO}, v25, 3, v{vKO}")
    e("v_lshrrev_b32 v28, 5, v21"); e("v_lshlrev_b32 v29, 1, v28"); e("v_and_b32 v30, 3, v21"); e("v_xor_b32 v29, v29, v30")
    e("v_lshlrev_b32 v29, 4, v29"); e("v_lshrrev_b32 v32, 2, v21")
    e(f"v_lshl_add_u32 v{vDQ}, v32, 13, v29")
    e(f"v_mul_u32_u24 v{vD1}, 9216, v32"); e(f"v_add_u32 v{vD1}, v{vD1}, v29")
    e("v_bfe_u32 v32, v21, 2, 2"); e("v_lshlrev_b32 v32, 6, v32"); e("v_lshl_add_u32 v32, v30, 3, v32")
    e("v_and_b32 v26, 1, v25"); e("v_lshl_add_u32 v32, v26, 5, v32")
    e(f"v_lshl_add_u32 v{vS0}, v25, 9, v32")
    e("v_bfe_u32 v33, v21, 2, 2"); e(f"v_lshlrev_b32 v{vP5}, 10, v25"); e(f"v_lshl_add_u32 v{vP5}, v33, 7, v{vP5}"); e(f"v_lshl_add_u32 v{vP5}, v30, 3, v{vP5}")
    e("v_lshrrev_b32 v33, 1, v33"); e(f"v_lshl_add_u32 v{vP5}, v33, 5, v{vP5}"); e(f"v_lshl_add_u32 v{vP5}, v26, 6, v{vP5}")
    e("v_lshrrev_b32 v33, 3, v21"); e("v_mul_u32_u24 v238, 9216, v33"); e("v_and_b32 v33, 7, v21"); e("v_lshlrev_b32 v35, 1, v26"); e("v_xor_b32 v33, v33, v35")
    e("v_and_b32 v35, 1, v20"); e("v_lshlrev_b32 v35, 2, v35"); e("v_xor_b32 v33, v33, v35"); e("v_lshl_add_u32 v238, v33, 4, v238")
    e("v_lshl_add_u32 v32, v26, 9, v32"); e(f"v_lshl_add_u32 v{vB}, v28, 12, v32"); e(f"v_xor_b32 v{vB+1}, 32, v{vB}")
    for r in range(2, 6): e(f"v_add_u32 v{vB+r}, 0x10000, v{vB+r-2}")
    e("s_lshl_b32 s69, s63, 4"); e("s_lshl_b32 s78, s3, 2"); e("s_add_u32 s69, s69, s78"); e("s_lshl_b32 s78, s71, 1")
    for u in range(4):
        e(f"s_xor_b32 s79, s78, {u}"); e("s_add_u32 s79, s79, s69")
        e("s_mul_i32 s80, s79, 18432"); e(f"v_add_u32 v{vXN[u]}, s80, v{vL16}")
        e(f"s_mul_i32 s80, s79, {272*1024}"); e(f"v_add_u32 v{vST[u]}, s80, v{vL16}")
    e("v_lshrrev_b32 v36, 5, v0"); e("v_and_b32 v37, 7, v21"); e("v_xor_b32 v36, v36, v37"); e("v_lshlrev_b32 v36, 4, v36")
    e("v_lshl_add_u32 v36, v23, 7, v36"); e(f"v_add_u32 v36, {SPARE}, v36")
    e("v_lshrrev_b32 v38, 3, v21"); e("v_xor_b32 v39, v38, v37"); e("v_lshlrev_b32 v39, 4, v39"); e("v_lshl_add_u32 v39, v38, 7, v39"); e(f"v_add_u32 v39, {SPARE}, v39")
    e("v_lshlrev_b32 v38, 8, v38"); e("v_lshl_add_u32 v38, v37, 4, v38")
    e("s_lshl_b32 s72, s63, 1"); e("s_add_u32 s72, s72, s71")
    e("s_lshl_b32 s73, s70, 19"); e("s_lshl_b32 s74, s72, 13"); e("s_add_u32 s73, s73, s74"); e(f"s_add_u32 s73, s73, {1536*256}")
    e("s_lshl_b32 s74, s3, 6"); e("s_add_u32 s87, s73, s74"); e("s_add_u32 s88, s87, 4096")
    e("s_lshr_b32 s74, s3, 1"); e("s_lshl_b32 s74, s74, 12"); e("s_add_u32 s73, s73, s74")
    e("s_and_b32 s74, s3, 1"); e("s_lshl_b32 s74, s74, 7"); e("s_add_u32 s89, s73, s74")
    e("s_lshl_b32 s82, s70, 18"); e(f"s_add_u32 s82, s82, {WS_KVP}")
    e("s_lshl_b32 s93, s72, 14"); e("s_add_u32 s93, s93, s82"); e("s_lshl_b32 s78, s3, 11"); e("s_add_u32 s93, s93, s78"); e("s_add_u32 s95, s93, 8192")
    e("s_lshl_b32 s90, s70, 7"); e(f"s_add_u32 s90, s90, {FL_KV}"); e("s_lshl_b32 s91, s72, 2"); e("s_add_u32 s91, s91, s90")
    e(f"s_mul_i32 s77, s3, {8*9216}"); e("s_lshl_b32 s79, s62, 8"); e("s_add_u32 s79, s79, s77"); e(f"s_mul_i32 s77, s3, {144*9216}")
    e("s_lshl_b32 s80, s70, 6"); e("s_add_u32 s80, s80, s77"); e("s_add_u32 s80, s80, 8192")
    e("s_mul_i32 s81, s3, 9216")
    e("s_lshl_b32 s83, s62, 12"); e(f"s_add_u32 s83, s83, {WS_ACT}"); e(f"s_add_u32 s84, s83, {128*1024}")
    e("s_lshl_b32 s85, s70, 10"); e(f"s_add_u32 s85, s85, {WS_ACT + 256*1024}")
    e(f"s_mov_b32 s86, {f32bits(QSCALE):#x}")
    e("s_lshl_b32 s37, s62, 8"); e("s_lshl_b32 s67, s3, 6"); e("s_add_u32 s37, s37, s67"); e("s_lshl_b32 s67, s3, 10")
    for i in range(5): e(f"s_mov_b32 s{74+i}, {WS_XN + i*4096}")
    e("s_lshr_b32 s7, s66, 1"); e("s_mul_i32 s7, s7, 18432"); e("s_lshl_b32 s72, s71, 7"); e("s_add_u32 s7, s7, s72")
    e("s_lshl_b32 s36, s63, 12"); e("s_lshl_b32 s72, s62, 2"); e("s_add_u32 s36, s36, s72"); e(f"s_add_u32 s36, s36, {FL_LN}")
    Fv = 64
    for d in range(12):
        e(f"v_lshlrev_b32 v{Fv+2*d}, 16, v{48+d}"); e(f"v_and_b32 v{Fv+2*d+1}, 0xffff0000, v{48+d}")
    e(f"buffer_load_dword v{vTOK}, v{vZ}, s[20:23], 0 offen sc1", "tch")
    if ORD == 1: e(not_w0(wq_touch))
    if ORD == 4: e(not_w0(wq_touch, 1))
    if CPF == 2: e([x.replace("s[68:69]", "s[100:101]").replace("s68", "s100").replace("s69", "s101") if isinstance(x, str) else x for x in code_touch])
    e(stamp(1))
    def pk(op, d, a, b): return f"{op} {vr(d,2)}, {vr(a,2)}, {vr(b,2)}"
    e(pk("v_pk_add_f32", 40, Fv, Fv + 2)); e(pk("v_pk_add_f32", 42, Fv + 4, Fv + 6))
    for d in range(8, 24, 2): e(pk("v_pk_add_f32", 40 + (d & 2), 40 + (d & 2), Fv + d))
    def red(r):
        e(pk("v_pk_add_f32", r, r, r + 2)); e(f"v_add_f32 v{r}, v{r}, v{r+1}")
        for sh in (8, 4, 2, 1): e(f"v_add_f32_dpp v{r}, v{r}, v{r} row_ror:{sh} row_mask:0xf bank_mask:0xf")
        e(xlane("v_add_f32", r, r + 1, both=False))
    red(40)
    e(f"v_mul_f32 v40, {f32bits(-1.0/576):#x}, v40"); e("v_mov_b32 v41, v40")
    e("v_cvt_pk_bf16_f32 v44, v40, v40"); e("v_lshlrev_b32 v44, 16, v44"); e("v_mov_b32 v45, v44")
    for d in range(0, 24, 2):
        if d == 16: e("s_mov_b32 exec_lo, 0xff"); e("s_mov_b32 exec_hi, 0xff")
        t = 92 + (d & 2); a = 88 + (d & 2)
        e(pk("v_pk_add_f32", t, Fv + d, 40))
        if d < 4: e(pk("v_pk_mul_f32", a, t, t))
        else: e(f"v_pk_fma_f32 {vr(a,2)}, {vr(t,2)}, {vr(t,2)}, {vr(a,2)}")
    e("s_mov_b64 exec, -1")
    for d in range(0, 24, 2):
        e(pk("v_pk_add_f32", Fv + d, Fv + d, 44)); e(f"v_cvt_pk_bf16_f32 v{48+d//2}, v{Fv+d}, v{Fv+d+1}")
    red(88)
    def rbf(r): e(f"v_cvt_pk_bf16_f32 v{r}, v{r}, v{r}"); e(f"v_lshlrev_b32 v{r}, 16, v{r}")
    e(f"v_mul_f32 v88, {f32bits(1.0/576):#x}, v88"); rbf(88)
    e(f"v_add_f32 v88, {f32bits(1e-5):#x}, v88"); rbf(88)
    e("v_sqrt_f32 v88, v88")
    for d in range(12):
        e(f"v_lshlrev_b32 v{Fv+2*d}, 16, v{48+d}"); e(f"v_and_b32 v{Fv+2*d+1}, 0xffff0000, v{48+d}")
        if d == 0: rbf(88)
        if d == 1: e("v_rcp_f32 v90, v88")
        if d == 2: e("v_fma_f32 v91, -v88, v90, 2.0")
        if d == 3: e("v_mul_f32 v90, v90, v91"); e("v_mov_b32 v91, v90")
    for d in range(12):
        e(pk("v_pk_mul_f32", Fv + 2 * d, Fv + 2 * d, 90)); e(f"v_cvt_pk_bf16_f32 v{48+d}, v{Fv+2*d}, v{Fv+2*d+1}")
        if d % 4 == 3:
            if d == 11: e("s_mov_b32 exec_lo, 0xff"); e("s_mov_b32 exec_hi, 0xff")
            e(f"ds_write_b128 v36, {vr(48 + d - 3)} offset:{(d//4)*4096}")
    e("s_mov_b64 exec, -1")
    e("s_waitcnt lgkmcnt(0)")
    e("s_barrier")
    e(stamp(2))
    e("s_cmp_lg_u32 s3, 0"); e("s_cbranch_scc1 KF_x123")
    w0 = [f"ds_read_b128 {vr(136+4*q)}, v39 offset:{q*1024}" for q in range(9)]
    for q in range(9):
        w0 += [f"s_waitcnt lgkmcnt({8-q})", f"buffer_store_dwordx4 {vr(136+4*q)}, v38, s[16:19], s7 offen offset:{(q%2)*2048} sc1"]
        if q % 2: w0 += ["s_add_u32 s7, s7, 4096"]
    w0 += ["v_lshlrev_b32 v38, 7, v21", "s_mov_b32 s73, 0"] + mst(62) + ["KF_tk:", "s_waitcnt vmcnt(0)", f"v_cmp_eq_u32 vcc, 0, v{vTOK}",
           "s_add_u32 s73, s73, 1", f"s_cmp_ge_u32 s73, {SPIN_MAX}",
           "s_cbranch_scc1 KF_tkd", "s_cbranch_vccz KF_tkd", f"buffer_load_dword v{vTOK}, v{vZ}, s[20:23], 0 offen sc1", "s_branch KF_tk", "KF_tkd:"]
    w0 += mst(63) + flag_store("s36", 32, 38, allw=True)
    w0 += [f"v_mov_b32 v39, {SPARE + 12288}", f"ds_write_b32 v39, v{vTOK}"]
    for x in w0: e(x if x.endswith(":") else C(x))
    e("KF_x123:")
    if ORD >= 3: e("s_barrier")
    def wq_piece(b):
        return [[f"s_add_u32 m0, s67, {b*4096}", f"s_add_u32 s68, s37, {b*131072}"],
                Inst(f"buffer_load_dwordx4 v{vDQ}, s[8:11], s68 offen lds", "wq")]
    NPW = opt.get("npw", 36); XD = opt.get("xd", 4); XEND = opt.get("xend", 8)
    e(srd(20, 60, WS_SIZE))
    e("s_cmp_lg_u32 s3, 0"); e("s_cbranch_scc1 KF_y123")
    pl = ["v_lshlrev_b32 v38, 2, v23", "s_lshl_b32 s72, s66, 7", f"s_add_u32 s72, s72, {FL_LN}"]
    pl += spin("buffer_load_dword v39, v38, s[16:19], s72 offen sc1", [39]) + ["s_branch KF_y0", "KF_y123:"]
    if ORD >= 2: pl += wq_touch
    pl += ["s_sub_u32 s72, s3, 1", "s_lshl_b32 s94, s62, 8", "KF_wql:", "s_lshl_b32 m0, s72, 10", "s_lshr_b32 s73, s72, 2", "s_lshl_b32 s73, s73, 17",
           "s_and_b32 s68, s72, 3", "s_lshl_b32 s68, s68, 6", "s_add_u32 s68, s68, s73", "s_add_u32 s68, s68, s94",
           f"buffer_load_dwordx4 v{vDQ}, s[8:11], s68 offen lds", "s_add_u32 s72, s72, 3", f"s_cmp_lt_u32 s72, {NPW*4}", "s_cbranch_scc1 KF_wql"]
    pl += [f"s_waitcnt vmcnt({(NPW - 12) * 4 // 3})", "KF_y0:"]
    for x in pl: e(x if x.endswith(":") else C(x))
    e(stamp(3))
    e("s_waitcnt lgkmcnt(0)")
    e("s_barrier")
    e(stamp(4))
    def xn_load(u, s):
        return Inst(f"buffer_load_dwordx4 {X(u, s)}, v{vXN[u]}, s[16:19], s{74 + s//4} offen offset:{(s%4)*1024} sc1", "xn")
    for s in range(XD):
        for u in range(4): e(xn_load(u, s))
    e(f"v_mov_b32 v39, {SPARE + 12288}"); e(f"ds_read_b32 v{vTOK}, v39")
    assert NPW == 36
    e(f"v_mov_b32 v{vDQ}, v238")

    k.begin(name="gemm")
    class Frags:
        def __init__(s, af): s.mf = []; s.fr = []; s.af = af
        def add(s, vbase, off, ms, d2=256):
            b = s.af + (len(s.fr) % NF) * 4
            s.fr.append((len(s.mf), len(ms), [f"ds_read_b64_tr_b16 {vr(b,2)}, v{vbase} offset:{off}",
                                              f"ds_read_b64_tr_b16 {vr(b+2,2)}, v{vbase} offset:{off+d2}"], vr(b)))
            s.mf += [m.replace("@A", vr(b)) for m in ms]
        def chain(s):
            fr = s.fr; flip = False
            for f in range(0, len(fr) - 1, 2):
                g0, n = fr[f][0], fr[f][1]
                assert fr[f + 1][0] == g0 + n and fr[f + 1][1] == n
                a, b = s.mf[g0:g0 + n], s.mf[g0 + n:g0 + 2 * n]
                dst = lambda m: m.split()[1]
                assert [dst(m) for m in a] == [dst(m) for m in b]
                prev = dst(s.mf[g0 - 1]) if g0 else None
                us = list(range(n))
                if prev == dst(a[-1]): us.reverse()
                out = []
                for i, u in enumerate(us):
                    out += [a[u], b[u]] if (i % 2 == 0 or a[u].endswith(", 0")) else [b[u], a[u]]
                s.mf[g0:g0 + 2 * n] = out
            s.paired = True
        def sched(s, wrap=False):
            sc = Sched(s.mf); fr = s.fr; N = len(fr)
            if getattr(s, "paired", False):
                for f in range(0, N, 2):
                    g0, n = fr[f][0], fr[f][1]
                    if f + LEAD < N or wrap:
                        rd = fr[(f + LEAD) % N][2] + fr[(f + LEAD + 1) % N][2]
                        for i, g in enumerate((0, 1, 4, 5) if n == 4 else (0, 1, 2, 3)): sc.put(g0 + g, rd[i])
                    if f + 2 < N or wrap:
                        sc.put(g0 + (5 if n == 4 else 3), WaitRegs(fr[(f + 2) % N][3], fr[(f + 3) % N][3]))
                return sc
            for f in range(N):
                g0, n, _, _ = fr[f]
                if f + LEAD < N or wrap:
                    sc.put(g0, fr[(f + LEAD) % N][2][0]); sc.put(g0 + 1, fr[(f + LEAD) % N][2][1])
                if (f + 1 < N or wrap) and (n == 4 or f % 2 == 0):
                    sc.put(g0 + 1, WaitRegs(*([fr[(f + 1) % N][3]] + ([fr[f + 2][3]] if n == 2 and f + 2 < N else []))))
            return sc
    G = Frags(AF); pos = {}
    KL, VL, VD, VO, ID = 200, 208, 216, 208, 240
    KVS = opt.get("kvs", 15)
    for s2 in range(0, 18, 2):
        for nt in range(8):
            if nt % 4 == 0:
                pos["Q", s2 + nt // 4] = len(G.mf)
                if s2 + nt // 4 == KVS: G.mf += tr_mf(VD, VL, ID)
            for s in (s2, s2 + 1):
                G.add(vB + 2 * (s // 8) + (nt & 1), (s % 8) * 8192 + (nt >> 1) * 1024,
                      [f"{MF} {vr(qa(nt,u))}, @A, {X(u,s)}, {'0' if s == 0 else vr(qa(nt,u))}" for u in range(4)])
    S = lambda u: (B1 if u < 2 else B3) + (u & 1) * 8
    def KF(b, f): return ar(128 + b * 32 + f * 4)
    def VF(b, f): return ar(192 + b * 32 + f * 4)
    K0F = lambda f: vr(B5 + f * 4) if f < 4 else vr(B7 + (f - 4) * 4)
    NEGM = B5; P = B7; L = XV + 16; FL = XV + 24
    def qk(u, kf, zero=False):
        out = []
        for kt in range(2):
            for s in range(4):
                c = vr(S(u) + 4 * kt)
                out.append(f"{MF} {c}, {kf(kt*4+s)}, {Qf(u, s)}, {c if s else ('0' if zero else vr(NEGM + 4*u))}")
        return out
    sb = lambda st, a: vB + (st & 1) * 2 + a
    for st in range(5):
        us = (0, 1) if st == 4 else (0, 1, 2, 3)
        for f in range(36):
            a, s = f // 18, f % 18
            pos["F", st, f] = len(G.mf)
            if st == 3 and f == 8:
                pos["QK0"] = len(G.mf)
                for u in range(4): G.mf += qk(u, K0F, zero=True)
                pos["QK0e"] = len(G.mf)
            ms = [f"{MF} {vr(fa(a,u))}, @A, {X(u,s)}, {'0' if s == 0 else vr(fa(a,u))}" for u in us]
            if st == 4: G.add(vB + 4 + a, s * 2048, ms)
            else: G.add(vB + 2 * a + (s >= 9), (s % 9) * 4096, ms, 512)
    END = len(G.mf)
    for f in range(LEAD): e(G.fr[f][2])
    G.chain()
    sc = G.sched()
    F = lambda st, f: pos["F", st, f]
    Qp = lambda s: pos["Q", s] if s < 18 else F(0, 0)
    def bar(g, *w): sc.put(g, list(w) + ["s_barrier"])
    bar(Qp(5) + 2)
    bar(Qp(10) + 2)
    bar(Qp(17) + 2, WaitTag(["f0"], 0))
    bar(F(0, 4) + 2, WaitTag(["kvst"], 0))
    bar(F(1, 28) + 2, WaitTag(["f1"], 0))
    bar(F(2, 0) + 6)
    bar(F(3, 0) + 6, WaitTag(["kv0"], 0))
    bar(F(3, 28) + 2, WaitTag(["f2", "dma"], 0))
    bar(F(4, 2))
    for s in range(2, 18, 2): sc.add([WaitRegs(*[X(u, s + q) for u in range(4) for q in range(2)])], Qp(s) - 4, Qp(s), spread=False)
    xp = sc.add([xn_load(u, s) for s in range(XD, 18) for u in range(4)], 2, Qp(XEND))
    for i, g in enumerate(xp): assert g < Qp((XD + i // 4) & ~1) - 24, (i, g)
    def pair_piece(pr, i):
        return [[f"s_add_u32 m0, s67, {pr*2*SLOT + i*4096}", f"s_add_u32 s68, s79, {pr*128 + i*32*9216}"],
                Inst(f"buffer_load_dwordx4 v{vDQ}, s[12:15], s68 offen lds", f"f{pr}")]
    def sp_piece(p):
        return [[f"s_add_u32 m0, s81, {p*1024}", f"s_add_u32 s68, s80, {p*16*9216}"],
                Inst(f"buffer_load_dwordx4 v{vD1}, s[12:15], s68 offen lds", "f2")]
    def lin_pieces(ldsb, ldsoff, src, srcoff, n=9, tag="dma"):
        out = []
        for p in range(n):
            if p % 4 == 0: out.append([f"s_add_u32 m0, {ldsb}, {ldsoff + p*1024}", f"s_add_u32 s68, {src}, {srcoff + p*1024}"])
            out.append(Inst(f"buffer_load_dwordx4 v{vL16}, s[20:23], s68 offen offset:{(p%4)*1024} sc1 lds", tag))
        return out
    F0AT = opt.get("f0at", 12)
    sc.add(flat([pair_piece(0, i) for i in range(18)]), Qp(F0AT), Qp(opt.get("f0end", 16)))
    kvl = []
    for f in range(2):
        kvl += [f"buffer_load_dwordx2 {vr(KL+4*f,2)}, v{vKO}, s[24:27], s89 offen offset:{f*64}", f"buffer_load_dwordx2 {vr(KL+2+4*f,2)}, v{vKO}, s[24:27], s89 offen offset:{f*64+32}"]
    kvl += [f"buffer_load_dwordx4 {vr(VL)}, v{vVO}, s[28:31], s87 offen", f"buffer_load_dwordx4 {vr(VL+4)}, v{vVO}, s[28:31], s88 offen"]
    T1 = opt.get("t1", XEND); T2 = opt.get("t2", 12)
    kvt = [Inst("s_mov_b64 exec, 0xffff"), Inst(f"buffer_load_dword v0, v{vKO}, s[24:27], s89 offen", "tch"),
           Inst(f"buffer_load_dword v0, v{vKO}, s[28:31], s89 offen", "tch"), Inst("s_mov_b64 exec, -1")]
    tlb = []
    PR = 21504
    if opt.get("tlb", 0):
        pre = [["s_lshl_b32 s72, s63, 2", "s_add_u32 s72, s72, s65"], ["s_lshl_b32 s72, s72, 2", "s_add_u32 s72, s72, s3"], ["s_lshl_b32 s72, s72, 3", "s_add_u32 s72, s72, s64"],
               [f"s_mul_i32 s72, s72, {PR}", f"s_add_u32 s39, s72, {WS_PART}"]]
        sc.add(pre, Qp(2), Qp(4))
        tlb = [[Inst("s_mov_b64 exec, 1")] + [Inst(f"buffer_load_dword v0, v{vST[u]}, s[16:19], {so} offen sc1", "tch") for u in range(4) for so in ("s83", "s84")] +
               [Inst(f"buffer_load_dword v0, v{vZ}, s[16:19], s39 offen sc1", "tch"), Inst("s_mov_b64 exec, -1")]]
    sc.add([w1_touch(0), kvt] + tlb, Qp(T1), Qp(T1) + 16)
    sc.add(kvl[4:] + kvl[:4], Qp(T2), Qp(T2) + 30)
    sc.add(ident(ID, vT, vL), Qp(10), Qp(KVS - 1))
    sc.add([WaitRegs(vr(VL), vr(VL + 4))], Qp(KVS) - 3, Qp(KVS), spread=False)
    kst = [Inst(f"buffer_store_dwordx4 {vr(KL+4*f)}, v{vL16}, s[16:19], s93 offen offset:{f*1024} sc1", "kvst") for f in range(2)]
    for h in range(2):
        kst += tr_cvt(VO + 4 * h, VD, h) + [Inst(f"buffer_store_dwordx4 {vr(VO+4*h)}, v{vL16}, s[16:19], s95 offen offset:{h*1024} sc1", "kvst")]
    sc.add(kst, Qp(KVS) + 6, Qp(KVS + 1) - 2)
    sc.add([w1_touch(1), w1_touch(2)], Qp(opt.get("t3", 16)) + 8, Qp(opt.get("t3", 16)) + 24)
    sc.add([flag_store("s91", 1, vZ)], F(0, 4) + 3, F(0, 4) + 8)
    sc.add(flat([pair_piece(1, i) for i in range(18)]), F(0, opt.get("f2at", 10)), F(1, 2))
    kvld = f"buffer_load_dword v{vT2}, v{vT}, s[16:19], s90 offen sc1"
    sc.add([f"v_bfe_u32 v{vT}, v{vL16}, 4, 4", f"v_lshlrev_b32 v{vT}, 2, v{vT}", kvld], F(1, 0), F(1, 3))
    c1, c2 = check(kvld, [vT2])
    sc.add([c1 + c2], F(1, 20), F(1, 21))
    kv0 = [["s_lshl_b32 s72, s3, 12", "s_add_u32 s70, s82, s72"]] + lin_pieces("s72", SPARE, "s70", 0, 4, "kv0") + [["s_add_u32 s92, s82, s81"]]
    sc.add(kv0, F(1, 21), F(1, 34))
    sc.add(flat([sp_piece(p) for p in range(9)]) + lin_pieces("s81", 1 * SLOT, "s92", 16384), F(2, 2), F(3, 6))
    sc.add(lin_pieces("s81", 2 * SLOT, "s92", 16384 + 32768), F(4, 3), F(4, 30))
    for st in range(4):
        for a in range(2):
            lo, hi = ((Qp(16), Qp(17)) if st == 0 else (F(st - 1, 16), F(st - 1, 30))) if a == 0 else (F(st, 0), F(st, 12))
            sc.add([f"v_xor_b32 v{vB+2*a}, {((st & 1)*2 + a) * 32}, v{vP5}", f"v_add_u32 v{vB+2*a}, {(st >> 1)*2*SLOT}, v{vB+2*a}",
                    f"v_add_u32 v{vB+2*a+1}, {SLOT}, v{vB+2*a}"], lo, hi)
    sc.add([f"v_mov_b32 v{vB+4}, v{vS0}", f"v_xor_b32 v{vB+5}, 32, v{vS0}"], F(2, 4), F(2, 20))
    sc.add([f"v_lshrrev_b32 v{vP5}, 6, v{vL16}", f"v_mul_u32_u24 v{vP5}, 288, v{vP5}", f"v_bfe_u32 v{vT2}, v{vL16}, 4, 2", f"v_lshl_add_u32 v{vP5}, v{vT2}, 3, v{vP5}"], F(3, 14), F(3, 30))
    ids = [["s_cmp_lt_u32 s64, 4", "s_cselect_b32 s24, s48, s54", "s_cselect_b32 s25, s49, s55"],
           ["s_cmp_lt_u32 s64, 4", "s_cselect_b32 s72, 32, 36", "s_cselect_b32 s5, 0, 1"],
           ["s_and_b32 s73, s64, 3", "s_mul_i32 s7, s73, s72"],
           ["s_lshl_b32 s6, s5, 7", "s_add_u32 s6, s6, s7"], ["s_add_u32 s26, s7, s72", f"s_mul_i32 s26, s26, {32*1152}"], [f"s_mul_i32 s7, s7, {32*1152}"],
           ["s_lshr_b32 s72, s2, 3", "s_lshl_b32 s72, s72, 2"], ["s_add_u32 s72, s72, s3", f"s_mul_i32 s72, s72, {(41 if opt.get('wtm', 1) == 0 else opt.get('wnl', 21))*128}"], ["s_add_u32 s89, s7, s72", "s_mov_b32 s39, s89"],
           [f"s_add_u32 s88, s89, {41*128*128}"], f"v_lshlrev_b32 v{vKO}, 3, v{vL16}"]
    sc.add(ids, F(0, 8), F(0, 34))
    WTM = opt.get("wtm", 1)
    for so, g in ((("s89", F(1, 4)), ("s88", F(3, opt.get("wt2", 10)))) if WTM == 0 else ()):
        sc.add([[Inst("s_mov_b32 exec_hi, 0x1ff"), Inst(f"buffer_load_dword v0, v{vKO}, s[24:27], {so} offen", "tch"), Inst("s_mov_b64 exec, -1")]], g, g + 6)
    def epi_a(us): return flat([[f"v_cvt_pk_bf16_f32 v{T+4*u}, v{fa(0,u)}, v{fa(0,u)+1}", f"v_cvt_pk_bf16_f32 v{T+4*u+1}, v{fa(0,u)+2}, v{fa(0,u)+3}",
                                 f"v_pk_max_i16 v{T+4*u}, v{T+4*u}, 0", f"v_pk_max_i16 v{T+4*u+1}, v{T+4*u+1}, 0"] for u in us])
    def epi_b(st, us):
        so, off = ("s85", 0) if st == 4 else ("s84", st * 1024)
        return flat([[f"v_cvt_pk_bf16_f32 v{T+4*u+2}, v{fa(1,u)}, v{fa(1,u)+1}", f"v_cvt_pk_bf16_f32 v{T+4*u+3}, v{fa(1,u)+2}, v{fa(1,u)+3}",
                      f"v_pk_max_i16 v{T+4*u+2}, v{T+4*u+2}, 0", f"v_pk_max_i16 v{T+4*u+3}, v{T+4*u+3}, 0",
                      Inst(f"buffer_store_dwordx4 {vr(T+4*u)}, v{vST[u]}, s[16:19], {so} offen offset:{off} sc1", "st")] for u in us])
    for st in range(5):
        us = (0, 1) if st == 4 else (0, 1, 2, 3)
        sc.add(epi_a(us), F(st, 20 if st < 4 else 22), F(st, 34))
        if st: sc.add(epi_b(st - 1, (0, 1, 2, 3)), F(st, 2 if st < 4 else 4), F(st, 16))
    qe = []
    for s in range(4):
        for u in range(4):
            a, b = qa(2 * s, u), qa(2 * s + 1, u)
            qe += [f"v_mul_f32 v{r}, s86, v{r}" for r in list(range(a, a + 4)) + list(range(b, b + 4))]
            qe += [f"v_cvt_pk_bf16_f32 v{a}, v{a}, v{a+1}", f"v_cvt_pk_bf16_f32 v{a+1}, v{a+2}, v{a+3}",
                   f"v_cvt_pk_bf16_f32 v{a+2}, v{b}, v{b+1}", f"v_cvt_pk_bf16_f32 v{a+3}, v{b+2}, v{b+3}"]
    qp = sc.add(qe, F(0, 1), F(2, 0), spread=False)
    pf = [["s_lshl_b32 s72, s63, 2", "s_add_u32 s72, s72, s65"], ["s_lshl_b32 s72, s72, 2", "s_add_u32 s72, s72, s3"],
          [f"s_mul_i32 s78, s72, {8*PR}", f"s_add_u32 s78, s78, {WS_PART if not opt.get('xp') else 0x70000000}"], [f"s_mul_i32 s73, s64, {PR}", "s_add_u32 s74, s78, s73"],
          ["s_add_u32 s75, s74, 5120", "s_add_u32 s76, s74, 10240"], ["s_add_u32 s77, s74, 15360", "s_mov_b32 s95, s74"]]
    sc.add(pf, F(1, 34), F(2, 4))
    sc.add([f"v_add_u32 v{vL}, {SPARE}, v{vL16}"], F(2, 30), F(2, 34))
    sc.add([f"ds_read_b128 {K0F(f)}, v{vL} offset:{f*1024}" for f in range(8)], F(3, 1) + 3, F(3, 7))
    sc.add([WaitRegs(*[K0F(f) for f in range(8)])], pos["QK0"] - 2, pos["QK0"], spread=False)
    M = lambda u: NEGM + 4 * u
    pa = []
    for u in range(4):
        s0 = S(u); m = M(u)
        pa += [f"v_max3_f32 v{m}, v{s0}, v{s0+1}, v{s0+2}", f"v_max3_f32 v{m}, v{m}, v{s0+3}, v{s0+4}",
               f"v_max3_f32 v{m}, v{m}, v{s0+5}, v{s0+6}", f"v_max_f32 v{m}, v{m}, v{s0+7}"]
    xl = [xlane("v_max_f32", M(u), M(u) + 1) for u in range(4)]
    for i in range(6): pa += [xl[u][i] for u in range(4)]
    for u in range(4):
        pa += [f"v_sub_f32 v{S(u)+i}, v{S(u)+i}, v{M(u)}" for i in range(8)] + [f"v_sub_f32 v{M(u)+i}, 0, v{M(u)}" for i in (3, 2, 1, 0)]
    for u in range(4): pa += [f"v_exp_f32 v{S(u)+i}, v{S(u)+i}" for i in range(8)]
    for u in range(4): pa += [f"v_cvt_pk_bf16_f32 v{P+4*u+i}, v{S(u)+2*i}, v{S(u)+2*i+1}" for i in range(4)]
    pp = sc.add(pa, pos["QK0e"] + 3, F(4, 6), spread=False)
    LM = opt.get("lm", 1); LT = 192; ONE4 = 208
    pl = []
    for u in range(4 if not LM else 0):
        s0 = S(u)
        pl += [f"v_add_f32 v{L+u}, v{s0}, v{s0+2}", f"v_add_f32 v{L+4+u}, v{s0+1}, v{s0+3}"]
        pl += [f"v_add_f32 v{L+u+4*(i&1)}, v{L+u+4*(i&1)}, v{s0+i}" for i in range(4, 8)]
    if pl: sc.add(pl, max(F(4, 1), pp[-1] + 1), END)
    if LM: sc.add([f"v_mov_b32 v{ONE4+r}, 0x3f803f80" for r in range(4)], F(4, 4), F(4, 20))
    sc.add([f"ds_read_b128 {VF(0, f)}, v{vL} offset:{8192 + f*1024}" for f in range(8)], F(4, 32), END, spread=False, mind=1)
    if stamps and opt.get("fine"):
        for i, g in enumerate([Qp(1), Qp(3), Qp(5), Qp(5) + 4, Qp(7), Qp(9), Qp(11), Qp(13), Qp(15), Qp(17), F(0, 0), F(0, 18), F(1, 0), F(2, 0), F(2, 6), F(3, 0), pos["QK0"], F(4, 0)]):
            sc.gap[g] = sc.gap[g] + [_mk(x) for x in mst(14 + i)]
    e(sc.flat())
    e(stamp(5))

    def O(dt, u): return (dt * 4 + u) * 4
    def pv(u, b, pb, zero=False, lm=True):
        return [f"{MF} {ar(O(dt, u))}, {VF(b, dt)}, {vr(P + 4*pb)}, {'0' if zero else ar(O(dt, u))}" for dt in range(8)] + \
               ([f"{MF} {vr(LT + 4*u)}, {vr(ONE4)}, {vr(P + 4*pb)}, {'0' if zero else vr(LT + 4*u)}"] if LM and lm else [])
    vD = list(range(16, 25)); vDW = list(range(176, 185)); vTW = 185
    def softmax(u):
        s0 = S(u); sm = []
        if LM:
            for i in range(4):
                a = s0 + 2 * i
                sm += [f"v_exp_f32 v{a}, v{a}", f"v_exp_f32 v{a+1}, v{a+1}"] + ([f"v_cvt_pk_bf16_f32 v{P+4*u+i-1}, v{a-2}, v{a-1}"] if i else [])
            return sm + [f"v_cvt_pk_bf16_f32 v{P+4*u+3}, v{s0+6}, v{s0+7}"]
        for i in range(4):
            a = s0 + 2 * i
            sm += [f"v_exp_f32 v{a}, v{a}", f"v_exp_f32 v{a+1}, v{a+1}"]
            if i: sm += [f"v_add_f32 v{L+u}, v{L+u}, v{a-2}", f"v_add_f32 v{L+4+u}, v{L+4+u}, v{a-1}", f"v_cvt_pk_bf16_f32 v{P+4*u+i-1}, v{a-2}, v{a-1}"]
        return sm + [f"v_cvt_pk_bf16_f32 v{P+4*u+3}, v{s0+6}, v{s0+7}", f"v_add_f32 v{L+u}, v{L+u}, v{s0+6}", f"v_add_f32 v{L+4+u}, v{L+4+u}, v{s0+7}"]
    def ring_dma():
        dm = [["s_xor_b32 s92, s88, s85"], ["s_mul_i32 s92, s92, s97"], ["s_add_u32 s92, s92, s93"]]
        for p in range(9):
            if p % 4 == 0: dm.append([f"s_add_u32 m0, s94, {p*1024}"])
            dm.append(Inst(f"buffer_load_dwordx4 v{vD[p]}, s[20:23], s92 offen offset:{(p%4)*1024} sc1 lds", "dma"))
        return dm + [["s_add_u32 s88, s88, 1"], [f"s_add_u32 s94, s94, {SLOT}"], [f"s_cmp_ge_u32 s94, {4*SLOT}", "s_cselect_b32 s94, s81, s94"]]
    adv_rd = [[f"s_add_u32 s96, s96, {SLOT}"], [f"s_cmp_eq_u32 s96, {4*SLOT}", "s_cselect_b32 s96, 0, s96"]]
    hfl = f"buffer_load_dword v{FL}, v{vT}, s[16:19], s84 offen sc1"
    def BF(b, s, u): return ar(128 + ((b * 4 + s) * 4 + u) * 4)
    def B1st(s, u): return BF(s >> 1, s & 1, u)
    def bload(dst, s, u):
        return Inst(f"buffer_load_dwordx4 {dst}, v{vST[u]}, s[28:31], s79 offen offset:{s*1024} sc1", "b")
    adv_b = [["s_xor_b32 s79, s87, s85", "s_lshl_b32 s79, s79, 12"], ["s_add_u32 s79, s79, s80", "s_add_u32 s87, s87, 1"]]
    def attn_iter(kind):
        first, last = kind == "first", kind == "last"
        mf = []; base = []
        for sl in range(8):
            base.append(len(mf))
            t2 = sl + 2; kb = (t2 // 4) & 1
            if not (last and sl >= 6) and not (first and sl < 2): mf += qk(t2 % 4, lambda f: KF(kb, f))
            mf += pv(sl % 4, (sl // 4) & 1, sl % 4, zero=(first and sl < 4))
        base.append(len(mf))
        sc = Sched(mf)
        for sl in range(8):
            u, half = sl % 4, sl // 4
            n = base[sl + 1] - base[sl]
            if not (last and half == 1):
                nb = (half + 1) & 1
                for i in range(4):
                    f = (u & 1) * 4 + i
                    d, o = (KF(nb, f), 0) if u < 2 else (VF(nb, f), 8192)
                    g = f if n <= 9 else base[sl] + (3 + 4 * i if u != 1 else (2, 3, 6, 7)[i])
                    sc.put(g, f"ds_read_b128 {d}, v{vL} offset:{half*16384 + o + f*1024}")
            if u == 1 and not (last and half == 1):
                sc.put(base[sl + 1] - (3 if n >= 16 else 1), WaitRegs(*[KF((half + 1) & 1, f) for f in range(8)]))
            if u == 0 and n >= 16: sc.put(base[sl] + 5, WaitRegs(*[VF(half & 1, f) for f in range(8)]))
        gb = base[1] + 11
        if first:
            gb = base[4] + 1
            sc.add(ring_dma(), 12, gb - 2)
        sc.put(gb, [WaitTag(["dma"] if first else ["dma", "st"], 9), "s_barrier"])
        dm = ring_dma() + adv_rd
        if kind == "loop" and WTM:
            WNL = opt.get("wnl", 21)
            dm += [[Inst(f"s_mov_b64 exec, {(1 << WNL) - 1:#x}" if WNL < 32 else f"s_mov_b32 exec_hi, {(1 << (WNL - 32)) - 1:#x}"), Inst(f"buffer_load_dword v0, v{vKO}, s[24:27], s39 offen", "tch"), Inst("s_mov_b64 exec, -1")],
                   [f"s_add_u32 s39, s39, {WNL*128*128}"]]
        ONES = 188
        if first: sc.add([f"v_mov_b32 v{ONES+r}, -1" for r in range(4)], 1, 12, spread=False)
        if not last:
            sc.add([Inst(f"buffer_store_dwordx4 {vr(ONES)}, v{vL16}, s[16:19], s95 offen offset:{c*1024} sc1", "pf") for c in range(3)] + [["s_add_u32 s95, s95, 3072"]],
                   base[4] + 3 if first else 2, base[8] - 4)
        if last:
            sc.add([f"v_lshlrev_b32 v{ONES}, 7, v{vL16}", [WaitTag(["pf"], 0)] + flag_store("s89", 8, ONES, allw=True)], base[6], base[8])
            for s in range(4): sc.add([bload(B1st(s, u), s, u) for u in range(4)], base[2 + s] + 1, base[3 + s] + 8)
        if first:
            sc.add([f"v_add_u32 v{vD[p]}, {(p - p % 4)*1024}, v{vL16}" if p < 5 else f"v_add_u32 v{vD[p]}, {('s72','s73')[p == 8]}, v{vL16}" for p in range(9)], 1, 12, spread=False)
            sc.add([Inst(x.text.replace("s85", "s36"), x.tag) if isinstance(x, Inst) else x for x in epi_b(4, (0, 1))], 6, gb)
        sc.add(dm, gb + 1, base[opt.get("dme", 8)] - 2 if kind == "loop" else base[8] - 2)
        for sl in range(8):
            if (last and sl == 7) or (first and sl < 3): continue
            hi = base[sl + 1] + (4 if sl < 7 and not (last and sl >= 5) else 0)
            sc.add(softmax((sl + 1) % 4), base[sl], hi, spread=False)
        if first:
            dw = [f"v_lshrrev_b32 v{vT2}, 4, v{vL16}"]
            for p in range(9):
                r = vDW[p]
                dw += [f"v_add_u32 v{vT}, {64*p}, v{vT2}", f"v_mul_u32_u24 v{r}, 3641, v{vT}", f"v_lshrrev_b32 v{r}, 16, v{r}",
                       f"v_mul_u32_u24 v{r}, {1152 - 288}, v{r}", f"v_lshl_add_u32 v{r}, v{vT}, 4, v{r}"]
                if p % 4: dw.append(f"v_subrev_u32 v{r}, {(p%4)*1024}, v{r}")
            dp = sc.add(dw, 1, base[7], spread=False)
            fa_ = [["s_lshl_b32 s72, s63, 14", "s_lshl_b32 s73, s3, 7"], ["s_add_u32 s72, s72, s73", f"s_add_u32 s72, s72, {FL_P2}"],
                   ["s_lshl_b32 s73, s62, 2", "s_add_u32 s91, s72, s73"], ["s_add_u32 s91, s91, 8192"],
                   ["s_lshr_b32 s73, s62, 3", "s_lshl_b32 s73, s73, 11"], ["s_add_u32 s90, s72, s73", "s_and_b32 s73, s62, 7"], ["s_lshl_b32 s73, s73, 2", "s_add_u32 s90, s90, s73"],
                   ["s_lshl_b32 s73, s64, 2", "s_add_u32 s73, s73, s65"], ["s_lshl_b32 s73, s73, 9", "s_add_u32 s84, s72, s73"],
                   [f"s_add_u32 s37, s84, {FL_EX - FL_P2}", "s_lshl_b32 s73, s64, 11"], ["s_sub_u32 s89, s37, s73", "s_lshl_b32 s73, s64, 2"], ["s_add_u32 s89, s89, s73"],
                   ["s_movk_i32 s73, 0x30", "s_cmp_eq_u32 s5, 0", "s_cselect_b32 s73, s73, 0x1f0"]]
            sc.add(fa_, base[3], base[6])
            sc.add([f"v_and_b32 v{vT}, s73, v{vL16}", f"v_lshrrev_b32 v{vT}, 2, v{vT}", f"v_lshlrev_b32 v{vT2}, 5, v{vL16}",
                    [WaitTag(["st"], 0)] + flag_store("s91", 16, vT2, allw=True)], max(base[7], dp[-1] + 1), base[8])
        e(f"v_add_u32 v{vL}, s96, v{vL16}")
        e(sc.flat())
    k.begin(name="attn_first")
    e(f"s_add_u32 s93, s92, {16384 + 2*32768}"); e("s_mov_b32 s97, 32768"); e("s_mov_b32 s88, 0"); e("s_mov_b32 s36, s85"); e("s_mov_b32 s85, 0")
    e(f"s_add_u32 s94, s81, {3*SLOT}"); e(f"s_mov_b32 s96, {SLOT}")
    e("s_mov_b32 s4, 1"); e("s_mov_b32 s28, s60"); e("s_mov_b32 s29, s61"); e("s_mov_b32 s30, 0")
    e("s_cmp_eq_u32 s3, 3"); e("s_cselect_b32 s72, s18, 0x1000"); e("s_cselect_b32 s73, s18, 0x2000")
    attn_iter("first")
    k.begin(loop=6, name="attn_loop")
    e(".p2align 3"); e("KF_aloop:")
    if stamps and opt.get("fine"):
        e(["s_memtime s[98:99]", "s_add_u32 s100, s4, 55", "s_lshl_b32 s100, s100, 4", f"v_cmp_eq_u32 vcc, s100, v{vL16}",
           "s_waitcnt lgkmcnt(0)", "v_mov_b32 v47, s98", f"v_cndmask_b32 v{STV}, v{STV}, v47, vcc"])
    e("s_cmp_eq_u32 s4, 5"); e("s_cbranch_scc1 KF_sw"); e("KF_oolr:")
    attn_iter("loop")
    e("s_add_u32 s4, s4, 1"); e("s_cmp_lt_u32 s4, 7"); e("s_cbranch_scc1 KF_aloop")
    ool.append([
                "KF_sw:",
                "s_mov_b32 s20, s24", "s_mov_b32 s21, s25", "s_mov_b32 s22, s26"] + [f"v_mov_b32 v{vD[p]}, v{vDW[p]}" for p in range(9)] +
               [f"s_mov_b32 s97, {128*1152}", f"s_mul_i32 s93, s3, {32*1152}", "s_add_u32 s93, s93, s7", "s_mul_i32 s72, s65, 288", "s_add_u32 s93, s93, s72",
                "s_lshl_b32 s80, s6, 10", f"s_add_u32 s80, s80, {WS_ACT}", "s_mov_b32 s79, s80", "s_mov_b32 s88, 0", "s_mov_b32 s87, 1",
                "s_cmp_eq_u32 s5, 0", "s_cselect_b32 s85, s65, 0", "s_cselect_b32 s30, 0, s18", hfl] + (
               ["s_getpc_b64 s[72:73]", "KF_pc2:", "s_sub_u32 s8, s72, KF_pc2-KF_nock", "s_subb_u32 s9, s73, 0", "s_mov_b32 s10, KF_codeend-KF_nock",
                "s_lshr_b32 s72, s2, 3", "s_lshl_b32 s72, s72, 2", "s_add_u32 s72, s72, s3", "s_mul_i32 s72, s72, 384",
                "s_mov_b64 exec, 7", Inst(f"buffer_load_dword v0, v{vKO}, s[8:11], s72 offen", "tch"), "s_mov_b64 exec, -1"] if opt.get("cpf2", 1) else []) + [
                "s_branch KF_oolr"])
    k.begin(name="attn_last")
    e("s_cmp_eq_u32 s5, 0"); e("s_cbranch_scc1 KF_nock")
    c1, c2 = check(hfl, [FL])
    for x in ["s_waitcnt vmcnt(18)"] + c1 + c2: e(x if x.endswith(":") else C(x))
    e("KF_nock:")
    attn_iter("last")
    e(stamp(6))
    W = 216
    if LM:
        for u in range(4): e(f"v_mov_b32 v{L+u}, v{LT+4*u}")
    else:
        for u in range(4): e(f"v_add_f32 v{L+u}, v{L+u}, v{L+4+u}")
        xl = [xlane("v_add_f32", L + u, W + 4 + u) for u in range(4)]
        for i in range(6):
            for u in range(4): e(xl[u][i])
    e(f"v_add_f32 v{W+1}, v{L}, v{L+1}"); e(f"v_add_f32 v{W+2}, v{L+2}, v{L+3}"); e(f"v_add_f32 v{W}, v{W+1}, v{W+2}")
    e(f"v_cmp_nge_f32 vcc, {f32bits(2.0**30):#x}, v{W}")
    e("s_cbranch_vccnz KF_slow")
    e("KF_epi:")
    k.begin(name="oepi")
    ACC = 48; A2 = 192
    def acc(nt, u): return ACC + (nt * 4 + u) * 4
    e(f"v_add_u32 v{vL}, s96, v{vP5}")
    def mkstage(bf, zero=False, pair=True):
        G = Frags(A2)
        for (s, nt) in ([(s2 + q, nt) for s2 in (0, 2) for nt in range(9) for q in range(2)] if pair else [(s, nt) for s in range(4) for nt in range(9)]):
            G.add(vL, s * 9216 + nt * 32, [f"{MF} {vr(acc(nt,u))}, @A, {bf(s,u)}, {'0' if zero and s == 0 else vr(acc(nt,u))}" for u in range(4)], 4608)
        if pair: G.chain()
        return G
    P5 = {b: mkstage(lambda s, u, b=b: BF(b, s, u)) for b in range(2)}
    for u in range(4): e(f"v_rcp_f32 v{L+u}, v{L+u}")
    if opt.get("xo"): e("s_mov_b32 s83, 0x7fff0000")
    if opt.get("xb"): e("s_mov_b32 s80, 0x70000000")
    if opt.get("xd2"): e("s_mov_b32 s22, 0")
    OB = lambda i, u: 216 + ((i & 1) * 4 + u) * 4
    def oepi(i, u, t, packed=False):
        o = OB(i, u)
        out = [f"v_accvgpr_read_b32 v{t+r}, a{O(2*i + r//4, u) + r%4}" for r in range(8)]
        if packed: out += [f"v_pk_mul_f32 {vr(t+r,2)}, {vr(t+r,2)}, {vr(L + (u & 2),2)} op_sel:[0,{u&1}] op_sel_hi:[1,{u&1}]" for r in range(0, 8, 2)]
        else: out += [f"v_mul_f32 v{t+r}, v{t+r}, v{L+u}" for r in range(8)]
        out += [f"v_cvt_pk_bf16_f32 v{o+r}, v{t+2*r}, v{t+2*r+1}" for r in range(4)]
        return out + [Inst(f"buffer_store_dwordx4 {vr(o)}, v{vST[u]}, s[16:19], s83 offen offset:{i*1024} sc1", "st")]
    def common(sc):
        sc.put(4 * (36 - LEAD) - 1, f"v_add_u32 v{vL}, s96, v{vP5}")
        sc.put(6, [WaitTag(["dma"], 9), "s_barrier"])
    e(stamp(7))
    e("s_mov_b32 s4, 0"); e("s_mov_b32 s101, s5")
    e("s_cmp_eq_u32 s5, 0"); e("s_cbranch_scc1 KF_spre")
    def BF2(s, u): return ar((s * 4 + u) * 4)
    lastb = [["s_add_u32 s72, s5, 7", "s_xor_b32 s72, s72, s85", "s_lshl_b32 s72, s72, 12", "s_add_u32 s82, s72, s80"]] + \
            [Inst(f"buffer_load_dwordx4 {BF2(s, u)}, v{vST[u]}, s[28:31], s82 offen offset:{s*1024} sc1", "b") for s in range(4) for u in range(4)]
    k.begin(name="g_pre")
    for f in range(LEAD): e(P5[0].fr[f][2])
    B2nd = lambda s, u: BF(s >> 1, 2 + (s & 1), u)
    G = mkstage(B1st, zero=True); G1 = mkstage(B2nd)
    off = len(G.mf); G.fr += [(g0 + off, n, r, d) for (g0, n, r, d) in G1.fr]; G.mf += G1.mf
    sc = G.sched(wrap=True)
    for o in (0, 144):
        sc.put(o + 4 * (36 - LEAD) - 1, f"v_add_u32 v{vL}, s96, v{vP5}")
        sc.put(o + 6, [WaitTag(["dma"], 9), "s_barrier"])
        sc.add(adv_rd, o + 7, o + 12, spread=False)
    def W2(f, s): return WaitRegs(*[f(s + q, u) for q in range(2) for u in range(4)])
    for q, w in enumerate([W2(B1st, 2), W2(B2nd, 0), W2(B2nd, 2), W2(lambda s, u: BF(0, s, u), 0)]): sc.add([w], 72 * q + 68, 72 * q + 72, spread=False)
    OEG = opt.get("oeg", 200); B2E = opt.get("b2e", 70)
    sc.add(adv_b + [bload(B2nd(s, u), s, u) for s in range(4) for u in range(4)] + adv_b + [["s_add_u32 s86, s79, 4096"]], 0, B2E)
    def bl2(b, s): return [Inst(bload(BF(b, s, u), s, u).text.replace("s79", "s86" if b else "s79"), "b") for u in range(4)]
    sc.add(bl2(0, 0) + bl2(0, 1), 80, 144)
    sc.add(bl2(1, 0) + bl2(1, 1), 146, 214)
    sc.add(bl2(0, 2) + bl2(0, 3) + adv_b, 216, 280)
    for q in range(2): sc.add(ring_dma(), 144 * q + 12, 144 * q + 140)
    sc.add(flat([oepi(i, u, 248) for i in range(4) for u in range(4)]), opt.get("oes", 0), OEG)
    sc.add([[WaitTag(["st"], 0)] + flag_store("s90", 4, vT2, allw=True)], min(OEG + 60, 282), 288, spread=False)
    e(sc.flat())
    e(stamp(8))
    e("s_branch KF_loop2")
    k.begin(name="s_pre")
    e("KF_spre:")
    for f in range(LEAD): e(mkstage(lambda s, u: vr(OB(s, u)), pair=False).fr[f][2])
    for u in range(4): e(oepi(0, u, 248 if u & 1 else 40, packed=True))
    G = mkstage(lambda s, u: vr(OB(s, u)), zero=True, pair=False); sc = G.sched(); common(sc)
    sc.add(adv_rd, 7, 12, spread=False)
    for i in range(1, 4): sc.add(flat([oepi(i, u, 248) for u in range(4)]), 36 * (i - 1), 36 * i - 1)
    sc.add(ring_dma(), 108, 143)
    e(sc.flat())
    e(mst(52))
    k.wait_tags("st")
    e(mst(53))
    e(flag_store("s90", 4, vT2, allw=True))
    e("s_mov_b32 s30, s18")
    e(adv_b)
    e(spin(hfl, [FL]))
    e(mst(54))
    for b in (0, 1):
        for s in range(4 - 2 * b):
            for u in range(4): e(bload(BF(b, s, u), s, u))
        if b == 0: e(adv_b)
    for f in range(LEAD): e(P5[0].fr[f][2])
    e(W2(lambda s, u: BF(0, s, u), 0))
    e("s_mov_b32 s4, 0")
    e(stamp(8))

    def stage2(b):
        G = P5[b]; sc = G.sched(wrap=True); common(sc)
        sc.add([W2(lambda s, u: BF(b, s, u), 2)], 68, 72, spread=False)
        sc.add([W2(lambda s, u: BF(b ^ 1, s, u), 0)], 140, 144, spread=False)
        sc.add(adv_rd, 7, 12, spread=False)
        sc.add([bload(BF(b ^ 1, s, u), s, u) for s in (2, 3) for u in range(4)] + adv_b, 2, 62)
        sc.add([bload(BF(b, s, u), s, u) for s in (0, 1) for u in range(4)], 72, 136)
        sc.add(ring_dma(), 12, 140)
        hk = [_mk(x) for x in ("s_cmp_eq_u32 s101, 0", f"s_cbranch_scc1 KF_hk{b}", f"KF_hk{b}r:")]
        sc.add([hk], (130, 64)[b], (136, 71)[b], spread=False)
        fl = sc.flat(); i = fl.index(hk[1])
        cnt[b] = sum(1 for x in (fl[i:] if b == 0 else fl[:i]) if x.kind in ("vload", "vstore", "dma"))
        assert b == 0 or not any(x.kind == "vload" and BF(1, 0, 0) in x.text for x in fl[:i])
        e(fl)
    cnt = {}
    k.begin(loop=2, name="L0")
    e(".p2align 3"); e("KF_loop2:")
    stage2(0)
    k.begin(loop=2, name="L1")
    stage2(1)
    e("s_add_u32 s4, s4, 1"); e("s_cmp_lt_u32 s4, 2"); e("s_cbranch_scc1 KF_loop2")
    hfl2 = hfl.replace("offen", "offen offset:16")
    ool.append(["KF_hk0:", hfl2, "s_branch KF_hk0r"])
    ool.append(["KF_hk1:", "s_mov_b32 s101, 1", f"s_waitcnt vmcnt({cnt[0] + cnt[1]})"] + cmpf([FL]) +
               ["s_nop 0", "s_cbranch_vccz KF_hk1r"] + spin(hfl2, [FL], "KF_hk1r"))

    k.begin(name="final")
    e(stamp(9))
    NPRE = opt.get("npre", 2)
    nts = [8, 0, 1, 2, 3, 4, 5, 6, 7]
    assert NPRE == 2
    order = [(0, s, nt) for nt in range(9) for s in range(2)]
    order += [(b, s, nt) for nt in nts for b in range(3) for s in range(4) if not (b == 0 and s < NPRE)]
    G = Frags(A2); done = {}
    vLb = [vL, vT, vB + 2]
    for (b, s, nt) in order:
        bf = (lambda u: BF(b, s, u)) if b < 2 else (lambda u: BF2(s, u))
        G.add(vLb[b], s * 9216 + nt * 32, [f"{MF} {vr(acc(nt,u))}, @A, {bf(u)}, {vr(acc(nt,u))}" for u in range(4)], 4608)
        done[nt] = len(G.mf)
    G.chain()
    sc = G.sched(); NG = len(G.mf); G0 = 36 * NPRE
    sc.put(G0 - 26, [WaitTag(["dma"], 0), "s_barrier"])
    sc.add([bload(BF(1, s, u), s, u) for s in (2, 3) for u in range(4)] + [Inst(x.text.replace("s82", "s86"), "b") if isinstance(x, Inst) else [y.replace("s82", "s86") for y in x] for x in lastb], 2, 56)
    gq = G0 + (8 - NPRE) * 4
    sc.add([WaitRegs(*[BF2(s, u) for s in range(4) for u in range(4)])], gq - 4, gq, spread=False)
    sc.add(adv_rd + [f"v_add_u32 v{vLb[1]}, s96, v{vP5}"] + adv_rd + [f"v_add_u32 v{vLb[2]}, s96, v{vP5}"], 7, 30, spread=False)
    sc.add([W2(lambda s, u: BF(1, s, u), 0)], G0 - 4, G0, spread=False)
    sc.add([W2(lambda s, u: BF(1, s, u), 2)], G0 + 12, G0 + 16, spread=False)
    SEL = 26; XRr = 36; vX = 25; vL8 = 46
    ad = [
          ["s_and_b32 s82, s64, 3", "s_mul_i32 s73, s82, 5120"], ["s_add_u32 s78, s78, s73", "s_lshl_b32 s73, s5, 10"], ["s_add_u32 s85, s78, s73"],
          ["s_lshl_b32 s73, s71, 1", "s_xor_b32 s82, s82, s73"], ["s_add_u32 s82, s82, s69", f"s_mul_i32 s83, s82, {16*1152}"],
          ["s_mul_i32 s73, s65, 288", "s_add_u32 s87, s83, s73"], ["s_lshl_b32 s73, s5, 6", "s_add_u32 s83, s87, s73"],
          ["s_mov_b32 s12, s56", "s_mov_b32 s13, s57"], [f"s_mov_b32 s14, {2048*1152}"],
          [f"s_mov_b32 s88, {f32bits(-math.log2(math.e)):#x}", "s_mov_b32 s89, 0xffff0000"]]
    sc.add(ad, 56, G0 + 36)
    va = [f"v_bfe_u32 v{vX}, v{vL16}, 4, 4", f"v_lshrrev_b32 v{vT2}, 8, v{vL16}", f"v_bfe_u32 v{vL8}, v{vL16}, 6, 2",
          [f"v_cmp_eq_u32 vcc, v{vL8}, v{vT2}", f"v_mov_b32 v{SEL}, 0x3f80", f"v_and_b32 v{vL8}, 16, v{vL16}", f"v_lshlrev_b32 v{SEL}, v{vL8}, v{SEL}",
           f"v_cndmask_b32 v{SEL}, 0, v{SEL}, vcc"],
          [f"v_and_b32 v{vL8}, 32, v{vL16}", f"v_cmp_eq_u32 vcc, 0, v{vL8}", "s_nop 1", f"v_cndmask_b32 v{SEL+2}, 0, v{SEL}, vcc", f"v_cndmask_b32 v{SEL+3}, v{SEL}, 0, vcc"],
          f"v_mov_b32 v{SEL}, 0", f"v_mov_b32 v{SEL+1}, 0", f"v_mov_b32 v{SEL+4}, 0", f"v_mov_b32 v{SEL+5}, 0",
          f"v_mov_b32 v{SEL+6}, v{SEL+2}", f"v_mov_b32 v{SEL+7}, v{SEL+3}", f"v_mov_b32 v{SEL+8}, v{SEL+2}", f"v_mov_b32 v{SEL+9}, v{SEL+3}",
          f"v_mul_u32_u24 v{vX}, 1152, v{vX}", f"v_lshl_add_u32 v{vX}, v{vT2}, 3, v{vX}",
          f"v_lshrrev_b32 v{vL8}, 1, v{vL16}", f"v_add_u32 v{vL8}, 4096, v{vL8}", f"v_lshlrev_b32 v{vT2}, 7, v{vL16}",
          f"v_bfe_u32 v{vB}, v{vL16}, 4, 3", f"v_lshlrev_b32 v{vB}, 2, v{vB}"]
    sc.add(va, 8, G0 + 30)
    xo = [(0, "s83", 0), (1, "s83", 32), (2, "s83", 128), (3, "s83", 160), (4, "s87", 256)]
    sc.add([f"buffer_load_dwordx2 {vr(XRr+2*t,2)}, v{vX}, s[32:35], {so} offen offset:{o}" for t, so, o in xo] +
           ([Inst(f"buffer_load_dword v0, v{vX}, s[12:15], {so} offen offset:{o}", "tch") for so, o in (("s83", 0), ("s83", 128), ("s87", 256))] if opt.get("otc", 0) else []), G0 + 38, G0 + 70)
    tail = []; per = done[0] - done[8]
    for c in (4, 0, 1, 2, 3):
        pkx = []
        for u in range(4):
            a = acc(2 * c, u); tg = "p1" if c in (4, 0, 1) else "p2"
            pkx += [f"v_cvt_pk_bf16_f32 v{a}, v{a}, v{a+1}", f"v_cvt_pk_bf16_f32 v{a+1}, v{a+2}, v{a+3}"]
            if c < 4:
                b = acc(2 * c + 1, u)
                pkx += [f"v_cvt_pk_bf16_f32 v{a+2}, v{b}, v{b+1}", f"v_cvt_pk_bf16_f32 v{a+3}, v{b+2}, v{b+3}",
                        Inst(f"buffer_store_dwordx4 {vr(a)}, v{vL16}, s[16:19], s{74+u} offen offset:{c*1024} sc1", tg)]
            else:
                pkx += [Inst(f"buffer_store_dwordx2 {vr(a,2)}, v{vL8}, s[16:19], s{74+u} offen sc1", tg)]
        d = done[8] if c == 4 else done[2 * c + 1]
        if c != 3: sc.add(pkx, d + 4, d + 4 + (per if c == 1 else 2 * per - 8))
        else: tail = pkx
    fl1 = f"buffer_load_dword v{vB+1}, v{vB}, s[16:19], s37 offen sc1"
    sc.add([fl1], G0 + 70, G0 + 80)
    c1, c2 = check(fl1, [vB + 1])
    sc.add([c1 + c2], done[3], done[3] + 3)
    R1 = 48; RE = 80; R2 = 216
    order8 = [4, 5, 6, 7, 0, 1, 2, 3]
    def lds1(): return flat([[[f"s_add_u32 s86, s85, {src*PR}"], f"buffer_load_dwordx4 {vr(R1 + src*4)}, v{vL16}, s[16:19], s86 offen sc1"] for src in order8]) + \
                       flat([[[f"s_add_u32 s86, s78, {src*PR}"], f"buffer_load_dwordx2 {vr(RE + src*2, 2)}, v{vL8}, s[28:31], s86 offen sc1"] for src in order8])
    def lds2(): return flat([[[f"s_add_u32 s86, s85, {src*PR}"], f"buffer_load_dwordx4 {vr(R2 + src*4)}, v{vL16}, s[16:19], s86 offen offset:2048 sc1"] for src in order8])
    def sent(base, n):
        t = 128; o = [f"v_max3_u32 v{t}, v{base}, v{base+1}, v{base+2}", f"v_max3_u32 v{t+1}, v{base+3}, v{base+4}, v{base+5}"]
        for i in range(6, n, 2): o.append(f"v_max3_u32 v{t + (i//2) % 2}, v{t + (i//2) % 2}, v{base+i}, v{base+i+1}")
        return o + [f"v_max_u32 v{t}, v{t}, v{t+1}", f"v_cmp_eq_u32 vcc, -1, v{t}"]
    def poll(name, ld, base, n):
        ool.append([f"{name}x:", "s_add_u32 s4, s4, 1", f"s_cmp_ge_u32 s4, {SPIN_MAX}", f"s_cbranch_scc1 {name}d", f"s_sleep {opt.get('slp', 2)}"] + ld + ["s_waitcnt vmcnt(0)", f"s_branch {name}"])
        return [f"{name}:"] + sent(base, n) + ["s_nop 0", f"s_cbranch_vccnz {name}x", f"{name}d:"]
    sc.add([["s_cmp_eq_u32 s5, 0", "s_cselect_b32 s30, 0, s18", "s_mov_b32 s4, 0"]] + lds1(), done[6] - opt.get("r1e", 8), NG - 4)
    e(sc.flat())
    e(tail)
    e(stamp(10))
    Gs = lambda t: 96 + 4 * t
    Ss = lambda t: 108 + 4 * t
    t0 = 120; g1 = 124
    def round2(a):
        return [f"v_cvt_pk_bf16_f32 v{t0}, v{a}, v{a+1}", f"v_cvt_pk_bf16_f32 v{t0+1}, v{a+2}, v{a+3}",
                f"v_lshlrev_b32 v{a}, 16, v{t0}", f"v_and_b32 v{a+1}, s89, v{t0}", f"v_lshlrev_b32 v{a+2}, 16, v{t0+1}", f"v_and_b32 v{a+3}, s89, v{t0+1}"]
    def gate(t):
        g = Gs(t)
        return round2(g) + [f"v_mul_f32 v{g1+r}, s88, v{g+r}" for r in range(4)] + [f"v_exp_f32 v{g1+r}, v{g1+r}" for r in range(4)] + \
               [f"v_add_f32 v{g1+r}, 1.0, v{g1+r}" for r in range(4)] + [f"v_rcp_f32 v{g1+r}, v{g1+r}" for r in range(4)] + \
               [pk("v_pk_mul_f32", g + r, g + r, g1 + r) for r in (0, 2)] + round2(g)
    def fin(t, x, so, o):
        g = Gs(t); s0 = Ss(t)
        return round2(s0) + [pk("v_pk_mul_f32", g + r, g + r, s0 + r) for r in (0, 2)] + round2(g) + \
               [f"v_lshlrev_b32 v{g1}, 16, v{x}", f"v_and_b32 v{g1+1}, s89, v{x}", f"v_lshlrev_b32 v{g1+2}, 16, v{x+1}", f"v_and_b32 v{g1+3}, s89, v{x+1}"] + \
               [pk("v_pk_add_f32", g + r, g + r, g1 + r) for r in (0, 2)] + \
               [f"v_cvt_pk_bf16_f32 v{s0}, v{g}, v{g+1}", f"v_cvt_pk_bf16_f32 v{s0+1}, v{g+2}, v{g+3}",
                f"buffer_store_dwordx2 {vr(s0,2)}, v{vX}, s[12:15], {so} offen offset:{o}"]
    def redu(R):
        return [f"{MF} {vr((Gs if src >= 4 else Ss)(t))}, {vr(SEL + (0 if t else 2))}, {vr(R + src*4)}, {'0' if src in (0, 4) else vr((Gs if src >= 4 else Ss)(t))}"
                for src in order8 for t in range(2)]
    e(poll("KF_q1", lds1(), R1, 48))
    e(mst(46))
    e(redu(R1))
    e([f"{MF} {vr((Gs if q >= 2 else Ss)(2))}, {vr(SEL + 6)}, {vr(RE + q*4)}, {'0' if q % 2 == 0 else vr((Gs if q >= 2 else Ss)(2))}" for q in (2, 3, 0, 1)])
    e(gate(0))
    e(lds2())
    e(gate(1))
    for t in range(2): e(fin(t, XRr + 2 * t, "s83", 32 * t))
    e("s_cmp_eq_u32 s5, 0"); e("s_cbranch_scc1 KF_r2")
    for x in gate(2) + fin(2, XRr + 8, "s87", 256): e(C(x))
    e("KF_r2:")
    e(stamp(11))
    e(poll("KF_q2", lds2(), R2, 32))
    e(mst(50))
    e(redu(R2))
    for t in range(2): e(gate(t))
    for t in range(2): e(fin(t, XRr + 4 + 2 * t, "s83", 128 + 32 * t))
    k.begin(name="fin")
    e("KF_fin:")
    if stamps:
        e(stamp(12)); e("s_waitcnt vmcnt(0)"); e(stamp(13))
        e("s_lshl_b32 s72, s2, 2"); e("s_add_u32 s72, s72, s3"); e("s_lshl_b32 s72, s72, 8"); e(f"s_add_u32 s72, s72, {200<<20}")
        e(f"v_lshrrev_b32 v2, 2, v{vL16}")
        e(f"buffer_store_dword v{STV}, v2, s[16:19], s72 offen")
        if "probe" in opt:
            e(f"s_cmp_lg_u32 s2, {opt.get('pw', 133)}"); e("s_cbranch_scc1 KF_end"); e("s_cmp_lg_u32 s3, 0"); e("s_cbranch_scc1 KF_end")
            if opt["probe"] >= 0: e(f"v_readlane_b32 s72, v{STV}, {32 + opt['probe']}")
            else: e("s_mov_b32 s72, s38")
            e("s_nop 3"); e("s_add_u32 s72, s72, 10000")
            e("KF_pw:"); e("s_memrealtime s[98:99]"); e("s_waitcnt lgkmcnt(0)"); e("s_sub_u32 s73, s72, s98"); e("s_cmp_lt_u32 s73, 20000"); e("s_cbranch_scc1 KF_pw")
        if opt.get("dbg"):
            e(f"s_cmp_lg_u32 s2, {opt['dbg']}"); e("s_cbranch_scc1 KF_end"); e("s_cmp_lg_u32 s3, 1"); e("s_cbranch_scc1 KF_end")
            e(srd(20, 58, 64)); e(f"v_readlane_b32 s72, v{STV}, 32"); e("v_subrev_u32 v2, 124, v2"); e(f"v_subrev_u32 v{STV}, s72, v{STV}")
            e("s_mov_b32 exec_lo, 0"); e(f"buffer_store_dword v{STV}, v2, s[20:23], 0 offen")
    e("KF_end:")
    e("s_endpgm")

    for i, blk in enumerate(ool):
        k.begin(name=f"ool{i}")
        e(blk); e("s_endpgm")
    Mx = W + 8; AL = W + 12; TT = W + 16
    k.begin(name="slow_pre")
    e("KF_codeend:")
    e("KF_slow:")
    e("s_waitcnt vmcnt(0) lgkmcnt(0)"); e("s_nop 15")
    for i in range(128): e(f"v_accvgpr_write_b32 a{i}, 0")
    for u in range(4): e(f"v_mov_b32 v{L+u}, 0"); e(f"v_mov_b32 v{Mx+u}, 0xff7fffff")
    e("s_mov_b32 s72, 0"); e("s_mov_b32 s68, s82")
    k.begin(loop=16, name="slow_loop")
    e("KF_sloop:")
    for q in range(4):
        for f in range(4):
            ff = q * 4 + f
            e(f"buffer_load_dwordx4 {KF(1, ff) if ff < 8 else VF(1, ff - 8)}, v{vL16}, s[16:19], s68 offen offset:{f*1024} sc1")
        e("s_add_u32 s68, s68, 4096")
    for u in range(4):
        e(qk(u, lambda f: KF(1, f), zero=True))
        s0 = S(u); m = W + u
        e(f"v_max3_f32 v{m}, v{s0}, v{s0+1}, v{s0+2}"); e(f"v_max3_f32 v{m}, v{m}, v{s0+3}, v{s0+4}")
        e(f"v_max3_f32 v{m}, v{m}, v{s0+5}, v{s0+6}"); e(f"v_max3_f32 v{m}, v{m}, v{s0+7}, v{Mx+u}")
        e(xlane("v_max_f32", m, W + 4))
        e(f"v_sub_f32 v{AL}, v{Mx+u}, v{m}"); e(f"v_exp_f32 v{AL}, v{AL}"); e(f"v_mov_b32 v{Mx+u}, v{m}")
        e(f"v_mul_f32 v{L+u}, v{L+u}, v{AL}")
        for i in range(8):
            e(f"v_sub_f32 v{s0+i}, v{s0+i}, v{m}"); e(f"v_exp_f32 v{s0+i}, v{s0+i}")
        for i in range(8): e(f"v_add_f32 v{L+u}, v{L+u}, v{s0+i}")
        for i in range(4): e(f"v_cvt_pk_bf16_f32 v{P+i}, v{s0+2*i}, v{s0+2*i+1}")
        for dt in range(8):
            for r in range(4): e(f"v_accvgpr_read_b32 v{TT+r}, a{O(dt,u)+r}")
            for r in range(4): e(f"v_mul_f32 v{TT+r}, v{TT+r}, v{AL}")
            for r in range(4): e(f"v_accvgpr_write_b32 a{O(dt,u)+r}, v{TT+r}")
        e(pv(u, 1, 0, lm=False))
    e("s_add_u32 s72, s72, 1"); e("s_cmp_lt_u32 s72, 16"); e("s_cbranch_scc1 KF_sloop")
    k.begin(name="slow_post")
    e("s_nop 15")
    for u in range(4): e(xlane("v_add_f32", L + u, W + 4))
    e("s_nop 15")
    e("s_branch KF_epi")
    pre = ["p0a", "gemm", "attn_first"]
    k.paths = []
    for na in (1, 2, 4):
        for nl in (1, 2):
            mid = pre + ["attn_loop"] * na + ["attn_last", "oepi"]
            if na > 1 and nl > 1 and (na, nl) != (4, 2): continue
            k.paths.append(mid + ["g_pre"] + ["L0", "L1"] * nl + ["final", "fin"])
            k.paths.append(mid + ["s_pre"] + ["L0", "L1"] * nl + ["final", "fin"])
    return kstart(name) + k.finish(), kdesc(name, 512, 256), (name, 256, 256, 163840)
```

```python
from lib import *
from lib import _mk
from common import *
import math

SLOT = 36864
SPARE = 4 * SLOT
MF = "v_mfma_f32_16x16x32_bf16"
QSCALE = math.log2(math.e) / math.sqrt(128.0)
SPIN_MAX = 100000
KNAME = "recurrent_scan__sliding_block_cached__dense_activation_relu__prompt_kernel"

def flat(l): return [x for y in l for x in y]

def gen_kf(name=KNAME, stamps=False, opt=None):
    opt = opt or {}
    k = Kernel(name)
    k.cur.name = 'p0a'
    e = k.e
    vL16, vDQ, vD1, vS0, vP5, vZ, vTOK, vL, vT = 1, 2, 3, 4, 5, 6, 7, 8, 9
    vST = [10, 11, 12, 13]
    vT2 = 14; STV = 15
    XV = 16; QA = 48; AF = 176; NF = 6; LEAD = 4
    FA = 200; T = 232; vB = 248
    vXN = [232, 233, 234, 235]; vKO, vVO = 254, 255
    B1, B3, B5, B7 = 64, 96, 128, 160
    def X(u, s):
        h, idx = u >> 1, s * 2 + (u & 1)
        return ar(h * 128 + idx * 4) if idx < 32 else vr(XV + h * 16 + (idx - 32) * 4)
    def qa(nt, u): return QA + (nt * 4 + u) * 4
    def Qf(u, s): return vr(qa(2 * s, u))
    def fa(a, u): return FA + a * 16 + u * 4
    def stamp(i):
        if not stamps: return []
        return ["s_memtime s[98:99]", "s_waitcnt lgkmcnt(0)", f"v_writelane_b32 v{STV}, s98, {i}",
                "s_memrealtime s[98:99]", "s_waitcnt lgkmcnt(0)", f"v_writelane_b32 v{STV}, s98, {32+i}"]
    def mst(i):
        if not (stamps and opt.get("fine")): return ["s_nop 0"] if False else []
        return ["s_memtime s[98:99]", "s_waitcnt lgkmcnt(0)", "s_nop 0", f"v_writelane_b32 v{STV}, s98, {i}"]
    def C(t): return Inst(t, "cond")
    uid = [0]
    def lab(p): uid[0] += 1; return f"KF_{p}{uid[0]}"
    def flag_store(sreg, nl, voff, allw=False):
        lb = lab("nf")
        m = ["s_mov_b64 exec, %#x" % ((1 << nl) - 1)] if nl < 32 else ["s_mov_b32 exec_hi, 0"]
        body = m + [f"buffer_store_dword v{vTOK}, v{voff}, s[16:19], {sreg} offen sc1", "s_mov_b64 exec, -1"]
        if allw: return body
        return ["s_cmp_lg_u32 s3, 0", f"s_cbranch_scc1 {lb}"] + [C(x) for x in body] + [f"{lb}:"]
    ool = []
    def spin(load, regs, ret=None):
        lb = lab("sp"); dn = ret or lab("sd")
        out = ["s_mov_b32 s73, 0", f"{lb}:", load, "s_waitcnt vmcnt(0)"] + cmpf(regs)
        out += ["s_add_u32 s73, s73, 1", f"s_cmp_ge_u32 s73, {SPIN_MAX}", f"s_cbranch_scc1 {dn}", f"s_cbranch_vccz {dn}", "s_sleep 2", f"s_branch {lb}"]
        if not ret: out.append(f"{dn}:")
        return out
    def cmpf(regs):
        out = []
        if len(regs) > 1:
            out += [f"v_xor_b32 v{r}, v{r}, v{vTOK}" for r in regs]
            out += [f"v_or_b32 v{regs[0]}, v{regs[0]}, v{r}" for r in regs[1:]]
            out += [f"v_cmp_ne_u32 vcc, 0, v{regs[0]}"]
        else:
            out += [f"v_cmp_ne_u32 vcc, v{regs[0]}, v{vTOK}"]
        return out
    def check(load, regs):
        a, b = lab("ck"), lab("cr")
        ool.append([f"{a}:"] + spin(load, regs, b))
        return cmpf(regs), ["s_nop 0", f"s_cbranch_vccnz {a}", f"{b}:"]
    def xlane(op, r, t, both=True):
        o = [f"v_mov_b32 v{t}, v{r}", f"v_permlane32_swap_b32 v{t}, v{r}", f"{op} v{r}, v{r}, v{t}"] if both else []
        return o + [f"v_mov_b32 v{t}, v{r}", f"v_permlane16_swap_b32 v{t}, v{r}", f"{op} v{r}, v{r}, v{t}"]
    def ident(ID, t0, t1):
        o = [f"v_lshrrev_b32 v{t0}, 4, v{vL16}", f"v_and_b32 v{t1}, 15, v{t0}", f"v_lshrrev_b32 v{t0}, 4, v{t0}", f"v_lshlrev_b32 v{t0}, 3, v{t0}",
             f"v_sub_u32 v{t0}, v{t1}, v{t0}", f"v_and_b32 v{t1}, 1, v{t0}", f"v_lshlrev_b32 v{t1}, 4, v{t1}", f"v_mov_b32 v{ID}, 0x3f80",
             f"v_lshlrev_b32 v{t1}, v{t1}, v{ID}", f"v_ashrrev_i32 v{t0}, 1, v{t0}"]
        for h in range(2):
            for r in range(4):
                o.append([f"v_cmp_eq_i32 vcc, {r - 8*h}, v{t0}", "s_nop 1", f"v_cndmask_b32 v{ID+4*h+r}, 0, v{t1}, vcc"])
        return o
    def tr_mf(D, A, ID): return [f"{MF} {vr(D + (h*2+r)*4)}, {vr(A + 4*r)}, {vr(ID + 4*h)}, 0" for h in range(2) for r in range(2)]
    def tr_cvt(o, D, h): return [f"v_cvt_pk_bf16_f32 v{o+2*r+q}, v{D+(h*2+r)*4+2*q}, v{D+(h*2+r)*4+2*q+1}" for r in range(2) for q in range(2)]

    e("s_cmp_ge_u32 s2, 256"); e("s_cbranch_scc1 KF_end")
    if opt.get("scr"):
        e("s_and_b32 s4, s2, 7"); e("s_bfe_u32 s5, s2, 0x30003"); e("s_andn2_b32 s2, s2, 63"); e("s_lshl_b32 s4, s4, 3"); e("s_or_b32 s2, s2, s4"); e("s_or_b32 s2, s2, s5")
    e("s_load_dwordx16 s[40:55], s[0:1], 0")
    e("s_load_dwordx4 s[56:59], s[0:1], 64")
    e("s_load_dwordx2 s[60:61], s[0:1], 80")
    e("s_memrealtime s[38:39]")
    if opt.get("cpf0", 8):
        e("s_getpc_b64 s[96:97]"); e(f"s_mov_b32 s98, {opt.get('cpf0', 8) * 1024}"); e("s_mov_b32 s99, 0x20000")
        e("v_lshlrev_b32 v27, 7, v0")
        e("buffer_load_dword v31, v27, s[96:99], 0 offen", "tch")
    e("v_lshrrev_b32 v20, 6, v0")
    e("v_and_b32 v21, 63, v0")
    e("v_readfirstlane_b32 s3, v20")
    e("s_and_b32 s64, s2, 7"); e("s_bfe_u32 s65, s2, 0x20003")
    e("s_and_b32 s62, s2, 3"); e("s_lshl_b32 s62, s62, 3"); e("s_and_b32 s63, s2, 4"); e("s_add_u32 s62, s62, s63"); e("s_add_u32 s62, s62, s65")
    e("s_lshr_b32 s63, s2, 5")
    e("s_lshl_b32 s66, s63, 5"); e("s_add_u32 s66, s66, s62")
    e("v_lshrrev_b32 v22, 5, v0"); e("v_mul_u32_u24 v22, 1152, v22")
    e("v_and_b32 v23, 31, v21"); e("v_lshl_add_u32 v22, v23, 4, v22")
    e("s_mul_i32 s67, s66, 9216")
    for r in range(56, 60): e(f"v_mov_b32 v{r}, 0")
    e(f"v_mov_b32 v{vZ}, 0")
    e(f"v_lshlrev_b32 v{vL16}, 4, v21")
    e("s_waitcnt lgkmcnt(0)")
    e(srd(32, 40, 2048 * 1152))
    e(f"buffer_load_dwordx4 {vr(48)}, v22, s[32:35], s67 offen")
    e(f"buffer_load_dwordx4 {vr(52)}, v22, s[32:35], s67 offen offset:512")
    e("s_mov_b32 exec_lo, 0xff"); e("s_mov_b32 exec_hi, 0xff")
    e(f"buffer_load_dwordx4 {vr(56)}, v22, s[32:35], s67 offen offset:1024")
    e("s_mov_b64 exec, -1")
    e(stamp(0))
    e(srd(8, 46, 576 * 8192)); e(srd(20, 58, 256))
    e("s_or_b32 s77, s2, s3"); e("s_cbranch_scc1 KF_w0")
    e(C("s_or_b32 s38, s38, 1")); e(C("v_mov_b32 v28, s38")); e(C("s_mov_b64 exec, 1"))
    e(C(f"buffer_store_dword v28, v{vZ}, s[20:23], 0 offen sc1")); e(C("s_mov_b64 exec, -1"))
    e("KF_w0:")
    e(srd(16, 60, WS_SIZE))
    if opt.get("flw", 1):
        e("s_lshl_b32 s72, s66, 7"); e(f"s_add_u32 s72, s72, {FL_LN}"); e("v_mov_b32 v27, s72")
        e("s_lshl_b32 s72, s63, 3"); e("s_add_u32 s72, s72, s64"); e("s_lshl_b32 s72, s72, 2"); e("s_add_u32 s72, s72, s65"); e("s_lshl_b32 s72, s72, 2")
        e("s_add_u32 s72, s72, s3"); e("s_lshl_b32 s72, s72, 7"); e(f"s_add_u32 s72, s72, {FL_P2}"); e("v_writelane_b32 v27, s72, 1")
        e(f"s_add_u32 s72, s72, {FL_EX - FL_P2}"); e("v_writelane_b32 v27, s72, 2")
        e("s_lshr_b32 s72, s62, 1"); e("s_lshl_b32 s72, s72, 7"); e(f"s_add_u32 s72, s72, {FL_KV}"); e("v_writelane_b32 v27, s72, 3")
        e("s_mov_b64 exec, 15"); e("buffer_load_dword v31, v27, s[16:19], 0 offen sc1", "tch"); e("s_mov_b64 exec, -1")
    e(srd(12, 52, 576 * 9216)); e(srd(24, 42, 8388608)); e(srd(28, 44, 8388608))
    e("v_lshrrev_b32 v28, 1, v21"); e("v_and_b32 v29, 1, v21"); e("v_lshlrev_b32 v29, 7, v29")
    e("v_lshl_add_u32 v34, v28, 13, v29"); e("v_mul_u32_u24 v239, 9216, v21")
    e("s_sub_u32 s77, s3, 1"); e("s_lshl_b32 s77, s77, 3"); e("s_add_u32 s77, s77, s63"); e(f"s_mul_i32 s4, s77, {24*8192}"); e("s_lshl_b32 s5, s63, 2"); e("s_add_u32 s5, s5, s3"); e(f"s_mul_i32 s5, s5, {18*9216}")
    e("s_lshr_b32 s70, s62, 1"); e("s_and_b32 s71, s62, 1")
    e("s_lshl_b32 s6, s70, 6"); e("s_add_u32 s6, s6, s5"); e("s_add_u32 s6, s6, 8192")
    e("s_lshl_b32 s79, s62, 8"); e("s_add_u32 s4, s4, s79"); e("s_add_u32 s5, s5, s79")
    wq_touch = ["s_mov_b32 exec_hi, 0xffff", "buffer_load_dword v31, v34, s[8:11], s4 offen", "s_mov_b64 exec, -1"]
    def w1_touch(i):
        return [Inst("s_mov_b64 exec, 0x3ffff"), Inst(f"buffer_load_dword v0, v239, s[12:15], {('s5','s5','s6')[i]} offen offset:{(0,128,0)[i]}", "tch"), Inst("s_mov_b64 exec, -1")]
    def not_w0(body, maxw=3):
        lb = lab("nw")
        return ["s_sub_u32 s72, s3, 1", f"s_cmp_ge_u32 s72, {maxw}", f"s_cbranch_scc1 {lb}"] + [C(x) for x in body] + [f"{lb}:"]
    ORD = opt.get("ord", 1)
    CPF = opt.get("codepf", 2)
    code_touch = ["s_getpc_b64 s[68:69]", "KF_pc:", f"s_sub_u32 s96, s68, KF_pc-{name}", "s_subb_u32 s97, s69, 0", f"s_mov_b32 s98, KF_codeend-{name}", "s_mov_b32 s99, 0x20000",
                  "s_lshr_b32 s94, s2, 3", "s_lshl_b32 s94, s94, 2", "s_add_u32 s94, s94, s3", "s_mul_i32 s94, s94, 640",
                  "v_lshlrev_b32 v27, 7, v21", "s_mov_b64 exec, 31", Inst("buffer_load_dword v31, v27, s[96:99], s94 offen", "tch"), "s_mov_b64 exec, -1"]
    if CPF == 1: e(code_touch)
    e("v_and_b32 v24, 15, v21"); e("v_lshrrev_b32 v25, 4, v21")
    e(f"v_lshlrev_b32 v{vKO}, 8, v24"); e(f"v_lshl_add_u32 v{vVO}, v25, 4, v{vKO}"); e(f"v_lshl_add_u32 v{vKO}, v25, 3, v{vKO}")
    e("v_lshrrev_b32 v28, 5, v21"); e("v_lshlrev_b32 v29, 1, v28"); e("v_and_b32 v30, 3, v21"); e("v_xor_b32 v29, v29, v30")
    e("v_lshlrev_b32 v29, 4, v29"); e("v_lshrrev_b32 v32, 2, v21")
    e(f"v_mul_u32_u24 v{vD1}, 9216, v32"); e(f"v_add_u32 v{vD1}, v{vD1}, v29")
    e("v_bfe_u32 v32, v21, 2, 2"); e("v_lshlrev_b32 v32, 6, v32"); e("v_lshl_add_u32 v32, v30, 3, v32")
    e("v_and_b32 v26, 1, v25"); e("v_lshl_add_u32 v32, v26, 5, v32")
    e(f"v_lshl_add_u32 v{vS0}, v25, 9, v32")
    e("v_bfe_u32 v33, v21, 2, 2"); e(f"v_lshlrev_b32 v{vP5}, 10, v25"); e(f"v_lshl_add_u32 v{vP5}, v33, 7, v{vP5}"); e(f"v_lshl_add_u32 v{vP5}, v30, 3, v{vP5}")
    e("v_lshrrev_b32 v33, 1, v33"); e(f"v_lshl_add_u32 v{vP5}, v33, 5, v{vP5}"); e(f"v_lshl_add_u32 v{vP5}, v26, 6, v{vP5}")
    e("v_lshrrev_b32 v33, 3, v21"); e("v_mul_u32_u24 v238, 9216, v33"); e("v_and_b32 v33, 7, v21"); e("v_lshlrev_b32 v35, 1, v26"); e("v_xor_b32 v33, v33, v35")
    e(f"v_lshrrev_b32 v{vDQ}, 3, v21"); e(f"v_lshlrev_b32 v{vDQ}, 13, v{vDQ}"); e(f"v_lshl_add_u32 v{vDQ}, v33, 4, v{vDQ}")
    e(f"v_xor_b32 v46, 64, v{vDQ}"); e("v_add_u32 v46, 0x10000, v46")
    e("v_and_b32 v35, 1, v20"); e("v_lshlrev_b32 v35, 2, v35"); e("v_xor_b32 v33, v33, v35"); e("v_lshl_add_u32 v238, v33, 4, v238")
    QB = [[vB, vB + 1, vB + 2, vB + 3], [vB + 4, vB + 5, 236, 237]]
    e(f"v_lshl_add_u32 v{vB}, v25, 10, v{vP5}")
    for r in range(1, 4): e(f"v_xor_b32 v{vB+r}, {32*r}, v{vB}")
    for r in range(4): e(f"v_add_u32 v{QB[1][r]}, 0x10000, v{QB[0][r]}")
    e("s_lshl_b32 s69, s63, 4"); e("s_lshl_b32 s78, s3, 2"); e("s_add_u32 s69, s69, s78"); e("s_lshl_b32 s78, s71, 1")
    for u in range(4):
        e(f"s_xor_b32 s79, s78, {u}"); e("s_add_u32 s79, s79, s69")
        e("s_mul_i32 s80, s79, 18432"); e(f"v_add_u32 v{vXN[u]}, s80, v{vL16}")
        e(f"s_mul_i32 s80, s79, {272*1024}"); e(f"v_add_u32 v{vST[u]}, s80, v{vL16}")
    e("v_lshrrev_b32 v36, 5, v0"); e("v_and_b32 v37, 7, v21"); e("v_xor_b32 v36, v36, v37"); e("v_lshlrev_b32 v36, 4, v36")
    e("v_lshl_add_u32 v36, v23, 7, v36"); e(f"v_add_u32 v36, {SPARE}, v36")
    e("v_lshrrev_b32 v38, 3, v21"); e("v_xor_b32 v39, v38, v37"); e("v_lshlrev_b32 v39, 4, v39"); e("v_lshl_add_u32 v39, v38, 7, v39"); e(f"v_add_u32 v39, {SPARE}, v39")
    e("v_lshlrev_b32 v38, 8, v38"); e("v_lshl_add_u32 v38, v37, 4, v38")
    e("s_lshl_b32 s72, s63, 1"); e("s_add_u32 s72, s72, s71")
    e("s_lshl_b32 s73, s70, 19"); e("s_lshl_b32 s74, s72, 13"); e("s_add_u32 s73, s73, s74"); e(f"s_add_u32 s73, s73, {1536*256}")
    e("s_lshl_b32 s74, s3, 6"); e("s_add_u32 s87, s73, s74"); e("s_add_u32 s88, s87, 4096")
    e("s_lshr_b32 s74, s3, 1"); e("s_lshl_b32 s74, s74, 12"); e("s_add_u32 s73, s73, s74")
    e("s_and_b32 s74, s3, 1"); e("s_lshl_b32 s74, s74, 7"); e("s_add_u32 s89, s73, s74")
    e("s_lshl_b32 s82, s70, 18"); e(f"s_add_u32 s82, s82, {WS_KVP}")
    e("s_lshl_b32 s93, s72, 14"); e("s_add_u32 s93, s93, s82"); e("s_lshl_b32 s78, s3, 11"); e("s_add_u32 s93, s93, s78"); e("s_add_u32 s95, s93, 8192")
    e("s_lshl_b32 s90, s70, 7"); e(f"s_add_u32 s90, s90, {FL_KV}"); e("s_lshl_b32 s91, s72, 2"); e("s_add_u32 s91, s91, s90")
    e(f"s_mul_i32 s77, s3, {8*9216}"); e("s_lshl_b32 s79, s62, 8"); e("s_add_u32 s79, s79, s77"); e(f"s_mul_i32 s77, s3, {144*9216}")
    e("s_lshl_b32 s80, s70, 6"); e("s_add_u32 s80, s80, s77"); e("s_add_u32 s80, s80, 8192")
    e("s_mul_i32 s81, s3, 9216")
    e("s_lshl_b32 s83, s62, 12"); e(f"s_add_u32 s83, s83, {WS_ACT}"); e(f"s_add_u32 s84, s83, {128*1024}")
    e("s_lshl_b32 s85, s70, 10"); e(f"s_add_u32 s85, s85, {WS_ACT + 256*1024}")
    e(f"s_mov_b32 s86, {f32bits(QSCALE):#x}")
    e("s_lshl_b32 s37, s62, 8"); e("s_lshl_b32 s67, s3, 6"); e("s_add_u32 s37, s37, s67"); e("s_lshl_b32 s67, s3, 10")
    for i in range(5): e(f"s_mov_b32 s{74+i}, {WS_XN + i*4096}")
    e("s_lshr_b32 s7, s66, 1"); e("s_mul_i32 s7, s7, 18432"); e("s_lshl_b32 s72, s71, 7"); e("s_add_u32 s7, s7, s72")
    e("s_lshl_b32 s36, s63, 12"); e("s_lshl_b32 s72, s62, 2"); e("s_add_u32 s36, s36, s72"); e(f"s_add_u32 s36, s36, {FL_LN}")
    Fv = 64
    for d in range(12):
        e(f"v_lshlrev_b32 v{Fv+2*d}, 16, v{48+d}"); e(f"v_and_b32 v{Fv+2*d+1}, 0xffff0000, v{48+d}")
    e(f"buffer_load_dword v{vTOK}, v{vZ}, s[20:23], 0 offen sc1", "tch")
    if ORD == 1: e(not_w0(wq_touch))
    if ORD == 4: e(not_w0(wq_touch, 1))
    if CPF == 2: e([x.replace("s[68:69]", "s[100:101]").replace("s68", "s100").replace("s69", "s101") if isinstance(x, str) else x for x in code_touch])
    e(stamp(1))
    def pk(op, d, a, b): return f"{op} {vr(d,2)}, {vr(a,2)}, {vr(b,2)}"
    e(pk("v_pk_add_f32", 40, Fv, Fv + 2)); e(pk("v_pk_add_f32", 42, Fv + 4, Fv + 6))
    for d in range(8, 24, 2): e(pk("v_pk_add_f32", 40 + (d & 2), 40 + (d & 2), Fv + d))
    def red(r):
        e(pk("v_pk_add_f32", r, r, r + 2)); e(f"v_add_f32 v{r}, v{r}, v{r+1}")
        for sh in (8, 4, 2, 1): e(f"v_add_f32_dpp v{r}, v{r}, v{r} row_ror:{sh} row_mask:0xf bank_mask:0xf")
        e(xlane("v_add_f32", r, r + 1, both=False))
    red(40)
    e(f"v_mul_f32 v40, {f32bits(-1.0/576):#x}, v40"); e("v_mov_b32 v41, v40")
    e("v_cvt_pk_bf16_f32 v44, v40, v40"); e("v_lshlrev_b32 v44, 16, v44"); e("v_mov_b32 v45, v44")
    for d in range(0, 24, 2):
        if d == 16: e("s_mov_b32 exec_lo, 0xff"); e("s_mov_b32 exec_hi, 0xff")
        t = 92 + (d & 2); a = 88 + (d & 2)
        e(pk("v_pk_add_f32", t, Fv + d, 40))
        if d < 4: e(pk("v_pk_mul_f32", a, t, t))
        else: e(f"v_pk_fma_f32 {vr(a,2)}, {vr(t,2)}, {vr(t,2)}, {vr(a,2)}")
    e("s_mov_b64 exec, -1")
    for d in range(0, 24, 2):
        e(pk("v_pk_add_f32", Fv + d, Fv + d, 44)); e(f"v_cvt_pk_bf16_f32 v{48+d//2}, v{Fv+d}, v{Fv+d+1}")
    red(88)
    def rbf(r): e(f"v_cvt_pk_bf16_f32 v{r}, v{r}, v{r}"); e(f"v_lshlrev_b32 v{r}, 16, v{r}")
    e(f"v_mul_f32 v88, {f32bits(1.0/576):#x}, v88"); rbf(88)
    e(f"v_add_f32 v88, {f32bits(1e-5):#x}, v88"); rbf(88)
    e("v_sqrt_f32 v88, v88")
    for d in range(12):
        e(f"v_lshlrev_b32 v{Fv+2*d}, 16, v{48+d}"); e(f"v_and_b32 v{Fv+2*d+1}, 0xffff0000, v{48+d}")
        if d == 0: rbf(88)
        if d == 1: e("v_rcp_f32 v90, v88")
        if d == 2: e("v_fma_f32 v91, -v88, v90, 2.0")
        if d == 3: e("v_mul_f32 v90, v90, v91"); e("v_mov_b32 v91, v90")
    for d in range(12):
        e(pk("v_pk_mul_f32", Fv + 2 * d, Fv + 2 * d, 90)); e(f"v_cvt_pk_bf16_f32 v{48+d}, v{Fv+2*d}, v{Fv+2*d+1}")
        if d % 4 == 3:
            if d == 11: e("s_mov_b32 exec_lo, 0xff"); e("s_mov_b32 exec_hi, 0xff")
            e(f"ds_write_b128 v36, {vr(48 + d - 3)} offset:{(d//4)*4096}")
    e("s_mov_b64 exec, -1")
    e("s_waitcnt lgkmcnt(0)")
    e("s_barrier")
    e(stamp(2))
    e("s_cmp_lg_u32 s3, 0"); e("s_cbranch_scc1 KF_x123")
    w0 = [f"ds_read_b128 {vr(136+4*q)}, v39 offset:{q*1024}" for q in range(9)]
    for q in range(9):
        w0 += [f"s_waitcnt lgkmcnt({8-q})", f"buffer_store_dwordx4 {vr(136+4*q)}, v38, s[16:19], s7 offen offset:{(q%2)*2048} sc1"]
        if q % 2: w0 += ["s_add_u32 s7, s7, 4096"]
    w0 += ["v_lshlrev_b32 v38, 7, v21", "s_mov_b32 s73, 0"] + mst(62) + ["KF_tk:", "s_waitcnt vmcnt(0)", f"v_cmp_eq_u32 vcc, 0, v{vTOK}",
           "s_add_u32 s73, s73, 1", f"s_cmp_ge_u32 s73, {SPIN_MAX}",
           "s_cbranch_scc1 KF_tkd", "s_cbranch_vccz KF_tkd", f"buffer_load_dword v{vTOK}, v{vZ}, s[20:23], 0 offen sc1", "s_branch KF_tk", "KF_tkd:"]
    w0 += mst(63) + flag_store("s36", 32, 38, allw=True)
    w0 += [f"v_mov_b32 v39, {SPARE + 12288}", f"ds_write_b32 v39, v{vTOK}"]
    for x in w0: e(x if x.endswith(":") else C(x))
    e("KF_x123:")
    if ORD >= 3: e("s_barrier")
    def wq_piece(b):
        return [[f"s_add_u32 m0, s67, {b*4096}", f"s_add_u32 s68, s37, {b*131072}"],
                Inst(f"buffer_load_dwordx4 v{vDQ}, s[8:11], s68 offen lds", "wq")]
    NPW = opt.get("npw", 36); XD = opt.get("xd", 4); XEND = opt.get("xend", 8)
    e(srd(20, 60, WS_SIZE))
    e("s_cmp_lg_u32 s3, 0"); e("s_cbranch_scc1 KF_y123")
    pl = ["v_lshlrev_b32 v38, 2, v23", "s_lshl_b32 s72, s66, 7", f"s_add_u32 s72, s72, {FL_LN}"]
    pl += spin("buffer_load_dword v39, v38, s[16:19], s72 offen sc1", [39]) + ["s_branch KF_y0", "KF_y123:"]
    if ORD >= 2: pl += wq_touch
    pl += ["s_sub_u32 s72, s3, 1", "s_lshl_b32 s68, s72, 17", "s_lshl_b32 s73, s62, 8", "s_add_u32 s68, s68, s73", "s_lshl_b32 s72, s72, 12", "KF_wql:"]
    for v, mo, o in ((vDQ, 0, 0), (vDQ, 896, 128), (46, 2048, 0), (46, 2944, 128)):
        pl += [f"s_add_u32 m0, s72, {mo}", "s_nop 0", f"buffer_load_dwordx4 v{v}, s[8:11], s68 offen offset:{o} lds"]
    pl += [f"s_add_u32 s68, s68, {3*131072}", f"s_add_u32 s72, s72, {3*4096}", f"s_cmp_lt_u32 s72, {36*4096}", "s_cbranch_scc1 KF_wql"]
    pl += ["s_waitcnt vmcnt(32)", "KF_y0:"]
    for x in pl: e(x if x.endswith(":") else C(x))
    e(stamp(3))
    e("s_waitcnt lgkmcnt(0)")
    e("s_barrier")
    e(stamp(4))
    def xn_load(u, s):
        return Inst(f"buffer_load_dwordx4 {X(u, s)}, v{vXN[u]}, s[16:19], s{74 + s//4} offen offset:{(s%4)*1024} sc1", "xn")
    for s in range(XD):
        for u in range(4): e(xn_load(u, s))
    e(f"v_mov_b32 v39, {SPARE + 12288}"); e(f"ds_read_b32 v{vTOK}, v39")
    assert NPW == 36
    e(f"v_mov_b32 v{vDQ}, v238")

    k.begin(name="gemm")
    class Frags:
        def __init__(s, af): s.mf = []; s.fr = []; s.af = af
        def add(s, vbase, off, ms, d2=256):
            b = s.af + (len(s.fr) % NF) * 4
            s.fr.append((len(s.mf), len(ms), [f"ds_read_b64_tr_b16 {vr(b,2)}, v{vbase} offset:{off}",
                                              f"ds_read_b64_tr_b16 {vr(b+2,2)}, v{vbase} offset:{off+d2}"], vr(b)))
            s.mf += [m.replace("@A", vr(b)) for m in ms]
        def chain(s):
            fr = s.fr; flip = False
            for f in range(0, len(fr) - 1, 2):
                g0, n = fr[f][0], fr[f][1]
                assert fr[f + 1][0] == g0 + n and fr[f + 1][1] == n
                a, b = s.mf[g0:g0 + n], s.mf[g0 + n:g0 + 2 * n]
                dst = lambda m: m.split()[1]
                assert [dst(m) for m in a] == [dst(m) for m in b]
                prev = dst(s.mf[g0 - 1]) if g0 else None
                us = list(range(n))
                if prev == dst(a[-1]): us.reverse()
                out = []
                for i, u in enumerate(us):
                    out += [a[u], b[u]] if (i % 2 == 0 or a[u].endswith(", 0")) else [b[u], a[u]]
                s.mf[g0:g0 + 2 * n] = out
            s.paired = True
        def sched(s, wrap=False):
            sc = Sched(s.mf); fr = s.fr; N = len(fr)
            if getattr(s, "paired", False):
                for f in range(0, N, 2):
                    g0, n = fr[f][0], fr[f][1]
                    if f + LEAD < N or wrap:
                        rd = fr[(f + LEAD) % N][2] + fr[(f + LEAD + 1) % N][2]
                        for i, g in enumerate((0, 1, 4, 5) if n == 4 else (0, 1, 2, 3)): sc.put(g0 + g, rd[i])
                    if f + 2 < N or wrap:
                        sc.put(g0 + (5 if n == 4 else 3), WaitRegs(fr[(f + 2) % N][3], fr[(f + 3) % N][3]))
                return sc
            for f in range(N):
                g0, n, _, _ = fr[f]
                if f + LEAD < N or wrap:
                    sc.put(g0, fr[(f + LEAD) % N][2][0]); sc.put(g0 + 1, fr[(f + LEAD) % N][2][1])
                if (f + 1 < N or wrap) and (n == 4 or f % 2 == 0):
                    sc.put(g0 + 1, WaitRegs(*([fr[(f + 1) % N][3]] + ([fr[f + 2][3]] if n == 2 and f + 2 < N else []))))
            return sc
    G = Frags(AF); pos = {}
    KL, VL, VD, VO, ID = 200, 208, 216, 208, 240
    KVS = opt.get("kvs", 15)
    for s2 in range(0, 18, 2):
        for nt in range(8):
            if nt % 4 == 0:
                pos["Q", s2 + nt // 4] = len(G.mf)
                if s2 + nt // 4 == KVS: G.mf += tr_mf(VD, VL, ID)
            for s in (s2, s2 + 1):
                G.add(QB[(s // 8) & 1][nt & 3], (s % 8) * 8192 + (nt >> 2) * 1024,
                      [f"{MF} {vr(qa(nt,u))}, @A, {X(u,s)}, {'0' if s == 0 else vr(qa(nt,u))}" for u in range(4)], 512)
    S = lambda u: (B1 if u < 2 else B3) + (u & 1) * 8
    def KF(b, f): return ar(128 + b * 32 + f * 4)
    def VF(b, f): return ar(192 + b * 32 + f * 4)
    K0F = lambda f: vr(B5 + f * 4) if f < 4 else vr(B7 + (f - 4) * 4)
    NEGM = B5; P = B7; L = XV + 16; FL = XV + 24
    def qk(u, kf, zero=False):
        out = []
        for kt in range(2):
            for s in range(4):
                c = vr(S(u) + 4 * kt)
                out.append(f"{MF} {c}, {kf(kt*4+s)}, {Qf(u, s)}, {c if s else ('0' if zero else vr(NEGM + 4*u))}")
        return out
    sb = lambda st, a: vB + (st & 1) * 2 + a
    for st in range(5):
        us = (0, 1) if st == 4 else (0, 1, 2, 3)
        for f in range(36):
            a, s = f // 18, f % 18
            pos["F", st, f] = len(G.mf)
            if st == 3 and f == 8:
                pos["QK0"] = len(G.mf)
                for u in range(4): G.mf += qk(u, K0F, zero=True)
                pos["QK0e"] = len(G.mf)
            ms = [f"{MF} {vr(fa(a,u))}, @A, {X(u,s)}, {'0' if s == 0 else vr(fa(a,u))}" for u in us]
            if st == 4: G.add(vB + a, s * 2048, ms)
            else: G.add(vB + 4 - 2 * a + (s >= 9), (s % 9) * 4096, ms, 512)
    END = len(G.mf)
    for f in range(LEAD): e(G.fr[f][2])
    G.chain()
    sc = G.sched()
    F = lambda st, f: pos["F", st, f]
    Qp = lambda s: pos["Q", s] if s < 18 else F(0, 0)
    def bar(g, *w): sc.put(g, list(w) + ["s_barrier"])
    bar(Qp(5) + 2)
    bar(Qp(10) + 2)
    bar(Qp(17) + 2, WaitTag(["f0"], 0))
    bar(F(0, 4) + 2, WaitTag(["kvst"], 0))
    bar(F(1, 28) + 2, WaitTag(["f1"], 0))
    bar(F(2, 0) + 6)
    bar(F(3, 0) + 6, WaitTag(["kv0"], 0))
    bar(F(3, 28) + 2, WaitTag(["f2", "dma"], 0))
    bar(F(4, 2))
    for s in range(2, 18, 2): sc.add([WaitRegs(*[X(u, s + q) for u in range(4) for q in range(2)])], Qp(s) - 4, Qp(s), spread=False)
    xp = sc.add([xn_load(u, s) for s in range(XD, 18) for u in range(4)], 2, Qp(XEND))
    for i, g in enumerate(xp): assert g < Qp((XD + i // 4) & ~1) - 24, (i, g)
    def pair_piece(pr, i):
        return [[f"s_add_u32 m0, s67, {pr*2*SLOT + i*4096}", f"s_add_u32 s68, s79, {pr*128 + i*32*9216}"],
                Inst(f"buffer_load_dwordx4 v{vDQ}, s[12:15], s68 offen lds", f"f{pr}")]
    def sp_piece(p):
        return [[f"s_add_u32 m0, s81, {p*1024}", f"s_add_u32 s68, s80, {p*16*9216}"],
                Inst(f"buffer_load_dwordx4 v{vD1}, s[12:15], s68 offen lds", "f2")]
    def lin_pieces(ldsb, ldsoff, src, srcoff, n=9, tag="dma"):
        out = []
        for p in range(n):
            if p % 4 == 0: out.append([f"s_add_u32 m0, {ldsb}, {ldsoff + p*1024}", f"s_add_u32 s68, {src}, {srcoff + p*1024}"])
            out.append(Inst(f"buffer_load_dwordx4 v{vL16}, s[20:23], s68 offen offset:{(p%4)*1024} sc1 lds", tag))
        return out
    F0AT = opt.get("f0at", 12)
    sc.add(flat([pair_piece(0, i) for i in range(18)]), Qp(F0AT), Qp(opt.get("f0end", 16)))
    kvl = []
    for f in range(2):
        kvl += [f"buffer_load_dwordx2 {vr(KL+4*f,2)}, v{vKO}, s[24:27], s89 offen offset:{f*64}", f"buffer_load_dwordx2 {vr(KL+2+4*f,2)}, v{vKO}, s[24:27], s89 offen offset:{f*64+32}"]
    kvl += [f"buffer_load_dwordx4 {vr(VL)}, v{vVO}, s[28:31], s87 offen", f"buffer_load_dwordx4 {vr(VL+4)}, v{vVO}, s[28:31], s88 offen"]
    T1 = opt.get("t1", XEND); T2 = opt.get("t2", 12)
    kvt = [Inst("s_mov_b64 exec, 0xffff"), Inst(f"buffer_load_dword v0, v{vKO}, s[24:27], s89 offen", "tch"),
           Inst(f"buffer_load_dword v0, v{vKO}, s[28:31], s89 offen", "tch"), Inst("s_mov_b64 exec, -1")]
    tlb = []
    PR = 21504
    if opt.get("tlb", 0):
        pre = [["s_lshl_b32 s72, s63, 2", "s_add_u32 s72, s72, s65"], ["s_lshl_b32 s72, s72, 2", "s_add_u32 s72, s72, s3"], ["s_lshl_b32 s72, s72, 3", "s_add_u32 s72, s72, s64"],
               [f"s_mul_i32 s72, s72, {PR}", f"s_add_u32 s39, s72, {WS_PART}"]]
        sc.add(pre, Qp(2), Qp(4))
        tlb = [[Inst("s_mov_b64 exec, 1")] + [Inst(f"buffer_load_dword v0, v{vST[u]}, s[16:19], {so} offen sc1", "tch") for u in range(4) for so in ("s83", "s84")] +
               [Inst(f"buffer_load_dword v0, v{vZ}, s[16:19], s39 offen sc1", "tch"), Inst("s_mov_b64 exec, -1")]]
    sc.add([w1_touch(0), kvt] + tlb, Qp(T1), Qp(T1) + 16)
    sc.add(kvl[4:] + kvl[:4], Qp(T2), Qp(T2) + 30)
    sc.add(ident(ID, vT, vL), Qp(10), Qp(KVS - 1))
    sc.add([WaitRegs(vr(VL), vr(VL + 4))], Qp(KVS) - 3, Qp(KVS), spread=False)
    kst = [Inst(f"buffer_store_dwordx4 {vr(KL+4*f)}, v{vL16}, s[16:19], s93 offen offset:{f*1024} sc1", "kvst") for f in range(2)]
    for h in range(2):
        kst += tr_cvt(VO + 4 * h, VD, h) + [Inst(f"buffer_store_dwordx4 {vr(VO+4*h)}, v{vL16}, s[16:19], s95 offen offset:{h*1024} sc1", "kvst")]
    sc.add(kst, Qp(KVS) + 6, Qp(KVS + 1) - 2)
    ot = []
    if opt.get("ot2", 0):
        sc.add([["s_mov_b32 s8, s56", "s_mov_b32 s9, s57"], [f"s_mov_b32 s10, {2048*1152}"], ["s_lshl_b32 s4, s2, 2", "s_add_u32 s4, s4, s3"], ["s_mul_i32 s4, s4, 2304"],
                f"v_lshlrev_b32 v238, 3, v{vL16}"], Qp(2), Qp(6))
        ot = [[Inst("s_mov_b64 exec, 0x3ffff"), Inst("buffer_load_dword v0, v238, s[8:11], s4 offen", "tch"), Inst("s_mov_b64 exec, -1")]]
    sc.add([w1_touch(1), w1_touch(2)] + ot, Qp(opt.get("t3", 16)) + 8, Qp(opt.get("t3", 16)) + 24)
    sc.add([flag_store("s91", 1, vZ)], F(0, 4) + 3, F(0, 4) + 8)
    sc.add(flat([pair_piece(1, i) for i in range(18)]), F(0, opt.get("f2at", 10)), F(1, 2))
    kvld = f"buffer_load_dword v{vT2}, v{vT}, s[16:19], s90 offen sc1"
    sc.add([f"v_bfe_u32 v{vT}, v{vL16}, 4, 4", f"v_lshlrev_b32 v{vT}, 2, v{vT}", kvld], F(1, 0), F(1, 3))
    c1, c2 = check(kvld, [vT2])
    sc.add([c1 + c2], F(1, 20), F(1, 21))
    kv0 = [["s_lshl_b32 s72, s3, 12", "s_add_u32 s70, s82, s72"]] + lin_pieces("s72", SPARE, "s70", 0, 4, "kv0") + [["s_add_u32 s92, s82, s81"]]
    sc.add(kv0, F(1, 21), F(1, 34))
    sc.add(flat([sp_piece(p) for p in range(9)]) + lin_pieces("s81", 1 * SLOT, "s92", 16384), F(2, 2), F(3, 6))
    sc.add(lin_pieces("s81", 2 * SLOT, "s92", 16384 + 32768), F(4, 3), F(4, 30))
    for st in range(4):
        for a in range(2):
            lo, hi = ((Qp(16), Qp(17)) if st == 0 else (F(st - 1, 16), F(st - 1, 30))) if a == 0 else (F(st, 0), F(st, 12))
            r = vB + 4 - 2 * a
            sc.add([f"v_xor_b32 v{r}, {((st & 1)*2 + a) * 32}, v{vP5}", f"v_add_u32 v{r}, {(st >> 1)*2*SLOT}, v{r}", f"v_add_u32 v{r+1}, {SLOT}, v{r}"], lo, hi)
    sc.add([f"v_mov_b32 v{vB}, v{vS0}", f"v_xor_b32 v{vB+1}, 32, v{vS0}"], F(2, 4), F(2, 20))
    sc.add([f"v_add_u32 v{r}, 0x20000, v{r}" for r in QB[0]], Qp(9), Qp(12))
    sc.add([f"v_lshrrev_b32 v{vP5}, 6, v{vL16}", f"v_mul_u32_u24 v{vP5}, 288, v{vP5}", f"v_bfe_u32 v{vT2}, v{vL16}, 4, 2", f"v_lshl_add_u32 v{vP5}, v{vT2}, 3, v{vP5}"], F(3, 14), F(3, 30))
    ids = [["s_cmp_lt_u32 s64, 4", "s_cselect_b32 s24, s48, s54", "s_cselect_b32 s25, s49, s55"],
           ["s_cmp_lt_u32 s64, 4", "s_cselect_b32 s72, 32, 36", "s_cselect_b32 s5, 0, 1"],
           ["s_and_b32 s73, s64, 3", "s_mul_i32 s7, s73, s72"],
           ["s_lshl_b32 s6, s5, 7", "s_add_u32 s6, s6, s7"], ["s_add_u32 s26, s7, s72", f"s_mul_i32 s26, s26, {32*1152}"], [f"s_mul_i32 s7, s7, {32*1152}"],
           ["s_lshr_b32 s72, s2, 3", "s_lshl_b32 s72, s72, 2"], ["s_add_u32 s72, s72, s3", f"s_mul_i32 s72, s72, {(41 if opt.get('wtm', 1) == 0 else opt.get('wnl', 21))*128}"], ["s_add_u32 s89, s7, s72", "s_mov_b32 s39, s89"],
           [f"s_add_u32 s88, s89, {41*128*128}"], f"v_lshlrev_b32 v{vKO}, 3, v{vL16}"]
    sc.add(ids, F(0, 8), F(0, 34))
    WTM = opt.get("wtm", 1)
    for so, g in ((("s89", F(1, 4)), ("s88", F(3, opt.get("wt2", 10)))) if WTM == 0 else ()):
        sc.add([[Inst("s_mov_b32 exec_hi, 0x1ff"), Inst(f"buffer_load_dword v0, v{vKO}, s[24:27], {so} offen", "tch"), Inst("s_mov_b64 exec, -1")]], g, g + 6)
    def epi_a(us): return flat([[f"v_cvt_pk_bf16_f32 v{T+4*u}, v{fa(0,u)}, v{fa(0,u)+1}", f"v_cvt_pk_bf16_f32 v{T+4*u+1}, v{fa(0,u)+2}, v{fa(0,u)+3}",
                                 f"v_pk_max_i16 v{T+4*u}, v{T+4*u}, 0", f"v_pk_max_i16 v{T+4*u+1}, v{T+4*u+1}, 0"] for u in us])
    def epi_b(st, us):
        so, off = ("s85", 0) if st == 4 else ("s84", st * 1024)
        return flat([[f"v_cvt_pk_bf16_f32 v{T+4*u+2}, v{fa(1,u)}, v{fa(1,u)+1}", f"v_cvt_pk_bf16_f32 v{T+4*u+3}, v{fa(1,u)+2}, v{fa(1,u)+3}",
                      f"v_pk_max_i16 v{T+4*u+2}, v{T+4*u+2}, 0", f"v_pk_max_i16 v{T+4*u+3}, v{T+4*u+3}, 0",
                      Inst(f"buffer_store_dwordx4 {vr(T+4*u)}, v{vST[u]}, s[16:19], {so} offen offset:{off} sc1", "st")] for u in us])
    for st in range(5):
        us = (0, 1) if st == 4 else (0, 1, 2, 3)
        sc.add(epi_a(us), F(st, 20 if st < 4 else 22), F(st, 34))
        if st: sc.add(epi_b(st - 1, (0, 1, 2, 3)), F(st, 2 if st < 4 else 4), F(st, 16))
    qe = []
    for s in range(4):
        for u in range(4):
            a, b = qa(2 * s, u), qa(2 * s + 1, u)
            qe += [f"v_mul_f32 v{r}, s86, v{r}" for r in list(range(a, a + 4)) + list(range(b, b + 4))]
            qe += [f"v_cvt_pk_bf16_f32 v{a}, v{a}, v{a+1}", f"v_cvt_pk_bf16_f32 v{a+1}, v{a+2}, v{a+3}",
                   f"v_cvt_pk_bf16_f32 v{a+2}, v{b}, v{b+1}", f"v_cvt_pk_bf16_f32 v{a+3}, v{b+2}, v{b+3}"]
    qp = sc.add(qe, F(0, 1), F(2, 0), spread=False)
    pf = [["s_lshl_b32 s72, s63, 2", "s_add_u32 s72, s72, s65"], ["s_lshl_b32 s72, s72, 2", "s_add_u32 s72, s72, s3"],
          [f"s_mul_i32 s78, s72, {8*PR}", f"s_add_u32 s78, s78, {WS_PART if not opt.get('xp') else 0x70000000}"], [f"s_mul_i32 s73, s64, {PR}", "s_add_u32 s74, s78, s73"],
          ["s_add_u32 s75, s74, 5120", "s_add_u32 s76, s74, 10240"], ["s_add_u32 s77, s74, 15360", "s_mov_b32 s95, s74"]]
    sc.add(pf, F(1, 34), F(2, 4))
    sc.add([f"v_add_u32 v{vL}, {SPARE}, v{vL16}"], F(2, 30), F(2, 34))
    sc.add([f"ds_read_b128 {K0F(f)}, v{vL} offset:{f*1024}" for f in range(8)], F(3, 1) + 3, F(3, 7))
    sc.add([WaitRegs(*[K0F(f) for f in range(8)])], pos["QK0"] - 2, pos["QK0"], spread=False)
    M = lambda u: NEGM + 4 * u
    pa = []
    for u in range(4):
        s0 = S(u); m = M(u)
        pa += [f"v_max3_f32 v{m}, v{s0}, v{s0+1}, v{s0+2}", f"v_max3_f32 v{m}, v{m}, v{s0+3}, v{s0+4}",
               f"v_max3_f32 v{m}, v{m}, v{s0+5}, v{s0+6}", f"v_max_f32 v{m}, v{m}, v{s0+7}"]
    xl = [xlane("v_max_f32", M(u), M(u) + 1) for u in range(4)]
    for i in range(6): pa += [xl[u][i] for u in range(4)]
    for u in range(4):
        pa += [f"v_sub_f32 v{S(u)+i}, v{S(u)+i}, v{M(u)}" for i in range(8)] + [f"v_sub_f32 v{M(u)+i}, 0, v{M(u)}" for i in (3, 2, 1, 0)]
    for u in range(4): pa += [f"v_exp_f32 v{S(u)+i}, v{S(u)+i}" for i in range(8)]
    for u in range(4): pa += [f"v_cvt_pk_bf16_f32 v{P+4*u+i}, v{S(u)+2*i}, v{S(u)+2*i+1}" for i in range(4)]
    pp = sc.add(pa, pos["QK0e"] + 3, F(4, 6), spread=False)
    LM = opt.get("lm", 1); LT = 192; ONE4 = 208
    pl = []
    for u in range(4 if not LM else 0):
        s0 = S(u)
        pl += [f"v_add_f32 v{L+u}, v{s0}, v{s0+2}", f"v_add_f32 v{L+4+u}, v{s0+1}, v{s0+3}"]
        pl += [f"v_add_f32 v{L+u+4*(i&1)}, v{L+u+4*(i&1)}, v{s0+i}" for i in range(4, 8)]
    if pl: sc.add(pl, max(F(4, 1), pp[-1] + 1), END)
    if LM: sc.add([f"v_mov_b32 v{ONE4+r}, 0x3f803f80" for r in range(4)], F(4, 4), F(4, 20))
    sc.add([f"ds_read_b128 {VF(0, f)}, v{vL} offset:{8192 + f*1024}" for f in range(8)], F(4, 32), END, spread=False, mind=1)
    if stamps and opt.get("fine"):
        for i, g in enumerate([Qp(1), Qp(3), Qp(5), Qp(5) + 4, Qp(7), Qp(9), Qp(11), Qp(13), Qp(15), Qp(17), F(0, 0), F(0, 18), F(1, 0), F(2, 0), F(2, 6), F(3, 0), pos["QK0"], F(4, 0)]):
            sc.gap[g] = sc.gap[g] + [_mk(x) for x in mst(14 + i)]
    e(sc.flat())
    e(stamp(5))

    def O(dt, u): return (dt * 4 + u) * 4
    def pv(u, b, pb, zero=False, lm=True):
        return [f"{MF} {ar(O(dt, u))}, {VF(b, dt)}, {vr(P + 4*pb)}, {'0' if zero else ar(O(dt, u))}" for dt in range(8)] + \
               ([f"{MF} {vr(LT + 4*u)}, {vr(ONE4)}, {vr(P + 4*pb)}, {'0' if zero else vr(LT + 4*u)}"] if LM and lm else [])
    vD = list(range(16, 25)); vDW = list(range(176, 185)); vTW = 185
    def softmax(u):
        s0 = S(u); sm = []
        if LM:
            for i in range(4):
                a = s0 + 2 * i
                sm += [f"v_exp_f32 v{a}, v{a}", f"v_exp_f32 v{a+1}, v{a+1}"] + ([f"v_cvt_pk_bf16_f32 v{P+4*u+i-1}, v{a-2}, v{a-1}"] if i else [])
            return sm + [f"v_cvt_pk_bf16_f32 v{P+4*u+3}, v{s0+6}, v{s0+7}"]
        for i in range(4):
            a = s0 + 2 * i
            sm += [f"v_exp_f32 v{a}, v{a}", f"v_exp_f32 v{a+1}, v{a+1}"]
            if i: sm += [f"v_add_f32 v{L+u}, v{L+u}, v{a-2}", f"v_add_f32 v{L+4+u}, v{L+4+u}, v{a-1}", f"v_cvt_pk_bf16_f32 v{P+4*u+i-1}, v{a-2}, v{a-1}"]
        return sm + [f"v_cvt_pk_bf16_f32 v{P+4*u+3}, v{s0+6}, v{s0+7}", f"v_add_f32 v{L+u}, v{L+u}, v{s0+6}", f"v_add_f32 v{L+4+u}, v{L+4+u}, v{s0+7}"]
    def ring_dma():
        dm = [["s_xor_b32 s92, s88, s85"], ["s_mul_i32 s92, s92, s97"], ["s_add_u32 s92, s92, s93"]]
        for p in range(9):
            if p % 4 == 0: dm.append([f"s_add_u32 m0, s94, {p*1024}"])
            dm.append(Inst(f"buffer_load_dwordx4 v{vD[p]}, s[20:23], s92 offen offset:{(p%4)*1024} sc1 lds", "dma"))
        return dm + [["s_add_u32 s88, s88, 1"], [f"s_add_u32 s94, s94, {SLOT}"], [f"s_cmp_ge_u32 s94, {4*SLOT}", "s_cselect_b32 s94, s81, s94"]]
    adv_rd = [[f"s_add_u32 s96, s96, {SLOT}"], [f"s_cmp_eq_u32 s96, {4*SLOT}", "s_cselect_b32 s96, 0, s96"]]
    hfl = f"buffer_load_dword v{FL}, v{vT}, s[16:19], s84 offen sc1"
    def BF(b, s, u): return ar(128 + ((b * 4 + s) * 4 + u) * 4)
    def B1st(s, u): return BF(s >> 1, s & 1, u)
    def bload(dst, s, u):
        return Inst(f"buffer_load_dwordx4 {dst}, v{vST[u]}, s[28:31], s79 offen offset:{s*1024} sc1", "b")
    adv_b = [["s_xor_b32 s79, s87, s85", "s_lshl_b32 s79, s79, 12"], ["s_add_u32 s79, s79, s80", "s_add_u32 s87, s87, 1"]]
    def attn_iter(kind):
        first, last = kind == "first", kind == "last"
        mf = []; base = []
        for sl in range(8):
            base.append(len(mf))
            t2 = sl + 2; kb = (t2 // 4) & 1
            if not (last and sl >= 6) and not (first and sl < 2): mf += qk(t2 % 4, lambda f: KF(kb, f))
            mf += pv(sl % 4, (sl // 4) & 1, sl % 4, zero=(first and sl < 4))
        base.append(len(mf))
        sc = Sched(mf)
        for sl in range(8):
            u, half = sl % 4, sl // 4
            n = base[sl + 1] - base[sl]
            if not (last and half == 1):
                nb = (half + 1) & 1
                for i in range(4):
                    f = (u & 1) * 4 + i
                    d, o = (KF(nb, f), 0) if u < 2 else (VF(nb, f), 8192)
                    g = f if n <= 9 else base[sl] + (3 + 4 * i if u != 1 else (2, 3, 6, 7)[i])
                    sc.put(g, f"ds_read_b128 {d}, v{vL} offset:{half*16384 + o + f*1024}")
            if u == 1 and not (last and half == 1):
                sc.put(base[sl + 1] - (3 if n >= 16 else 1), WaitRegs(*[KF((half + 1) & 1, f) for f in range(8)]))
            if u == 0 and n >= 16: sc.put(base[sl] + 5, WaitRegs(*[VF(half & 1, f) for f in range(8)]))
        gb = base[1] + 11
        if first:
            gb = base[4] + 1
            sc.add(ring_dma(), 12, gb - 2)
        sc.put(gb, [WaitTag(["dma"] if first else ["dma", "st"], 9), "s_barrier"])
        dm = ring_dma() + adv_rd
        if kind == "loop" and WTM:
            WNL = opt.get("wnl", 21)
            dm += [[Inst(f"s_mov_b64 exec, {(1 << WNL) - 1:#x}" if WNL < 32 else f"s_mov_b32 exec_hi, {(1 << (WNL - 32)) - 1:#x}"), Inst(f"buffer_load_dword v0, v{vKO}, s[24:27], s39 offen", "tch"), Inst("s_mov_b64 exec, -1")],
                   [f"s_add_u32 s39, s39, {WNL*128*128}"]]
        ONES = 188
        if first: sc.add([f"v_mov_b32 v{ONES+r}, -1" for r in range(4)], 1, 12, spread=False)
        if not last:
            sc.add([Inst(f"buffer_store_dwordx4 {vr(ONES)}, v{vL16}, s[16:19], s95 offen offset:{c*1024} sc1", "pf") for c in range(3)] + [["s_add_u32 s95, s95, 3072"]],
                   base[4] + 3 if first else 2, base[8] - 4)
        if last:
            sc.add([f"v_lshlrev_b32 v{ONES}, 7, v{vL16}", [WaitTag(["pf"], 0)] + flag_store("s89", 8, ONES, allw=True)], base[6], base[8])
            for s in range(4): sc.add([bload(B1st(s, u), s, u) for u in range(4)], base[2 + s] + 1, base[3 + s] + 8)
        if first:
            sc.add([f"v_add_u32 v{vD[p]}, {(p - p % 4)*1024}, v{vL16}" if p < 5 else f"v_add_u32 v{vD[p]}, {('s72','s73')[p == 8]}, v{vL16}" for p in range(9)], 1, 12, spread=False)
            sc.add([Inst(x.text.replace("s85", "s36"), x.tag) if isinstance(x, Inst) else x for x in epi_b(4, (0, 1))], 6, gb)
        sc.add(dm, gb + 1, base[opt.get("dme", 8)] - 2 if kind == "loop" else base[8] - 2)
        for sl in range(8):
            if (last and sl == 7) or (first and sl < 3): continue
            hi = base[sl + 1] + (4 if sl < 7 and not (last and sl >= 5) else 0)
            sc.add(softmax((sl + 1) % 4), base[sl], hi, spread=False)
        if first:
            dw = [f"v_lshrrev_b32 v{vT2}, 4, v{vL16}"]
            for p in range(9):
                r = vDW[p]
                dw += [f"v_add_u32 v{vT}, {64*p}, v{vT2}", f"v_mul_u32_u24 v{r}, 3641, v{vT}", f"v_lshrrev_b32 v{r}, 16, v{r}",
                       f"v_mul_u32_u24 v{r}, {1152 - 288}, v{r}", f"v_lshl_add_u32 v{r}, v{vT}, 4, v{r}"]
                if p % 4: dw.append(f"v_subrev_u32 v{r}, {(p%4)*1024}, v{r}")
            dp = sc.add(dw, 1, base[7], spread=False)
            fa_ = [["s_lshl_b32 s72, s63, 14", "s_lshl_b32 s73, s3, 7"], ["s_add_u32 s72, s72, s73", f"s_add_u32 s72, s72, {FL_P2}"],
                   ["s_lshl_b32 s73, s62, 2", "s_add_u32 s91, s72, s73"], ["s_add_u32 s91, s91, 8192"],
                   ["s_lshr_b32 s73, s62, 3", "s_lshl_b32 s73, s73, 11"], ["s_add_u32 s90, s72, s73", "s_and_b32 s73, s62, 7"], ["s_lshl_b32 s73, s73, 2", "s_add_u32 s90, s90, s73"],
                   ["s_lshl_b32 s73, s64, 2", "s_add_u32 s73, s73, s65"], ["s_lshl_b32 s73, s73, 9", "s_add_u32 s84, s72, s73"],
                   [f"s_add_u32 s37, s84, {FL_EX - FL_P2}", "s_lshl_b32 s73, s64, 11"], ["s_sub_u32 s89, s37, s73", "s_lshl_b32 s73, s64, 2"], ["s_add_u32 s89, s89, s73"],
                   ["s_movk_i32 s73, 0x30", "s_cmp_eq_u32 s5, 0", "s_cselect_b32 s73, s73, 0x1f0"]]
            sc.add(fa_, base[3], base[6])
            sc.add([f"v_and_b32 v{vT}, s73, v{vL16}", f"v_lshrrev_b32 v{vT}, 2, v{vT}", f"v_lshlrev_b32 v{vT2}, 5, v{vL16}",
                    [WaitTag(["st"], 0)] + flag_store("s91", 16, vT2, allw=True)], max(base[7], dp[-1] + 1), base[8])
        e(f"v_add_u32 v{vL}, s96, v{vL16}")
        e(sc.flat())
    k.begin(name="attn_first")
    e(f"s_add_u32 s93, s92, {16384 + 2*32768}"); e("s_mov_b32 s97, 32768"); e("s_mov_b32 s88, 0"); e("s_mov_b32 s36, s85"); e("s_mov_b32 s85, 0")
    e(f"s_add_u32 s94, s81, {3*SLOT}"); e(f"s_mov_b32 s96, {SLOT}")
    e("s_mov_b32 s4, 1"); e("s_mov_b32 s28, s60"); e("s_mov_b32 s29, s61"); e("s_mov_b32 s30, 0")
    e("s_cmp_eq_u32 s3, 3"); e("s_cselect_b32 s72, s18, 0x1000"); e("s_cselect_b32 s73, s18, 0x2000")
    attn_iter("first")
    k.begin(loop=6, name="attn_loop")
    e(".p2align 3"); e("KF_aloop:")
    if stamps and opt.get("fine"):
        e(["s_memtime s[98:99]", "s_add_u32 s100, s4, 55", "s_lshl_b32 s100, s100, 4", f"v_cmp_eq_u32 vcc, s100, v{vL16}",
           "s_waitcnt lgkmcnt(0)", "v_mov_b32 v47, s98", f"v_cndmask_b32 v{STV}, v{STV}, v47, vcc"])
    e("s_cmp_eq_u32 s4, 5"); e("s_cbranch_scc1 KF_sw"); e("KF_oolr:")
    attn_iter("loop")
    e("s_add_u32 s4, s4, 1"); e("s_cmp_lt_u32 s4, 7"); e("s_cbranch_scc1 KF_aloop")
    ool.append([
                "KF_sw:",
                "s_mov_b32 s20, s24", "s_mov_b32 s21, s25", "s_mov_b32 s22, s26"] + [f"v_mov_b32 v{vD[p]}, v{vDW[p]}" for p in range(9)] +
               [f"s_mov_b32 s97, {128*1152}", f"s_mul_i32 s93, s3, {32*1152}", "s_add_u32 s93, s93, s7", "s_mul_i32 s72, s65, 288", "s_add_u32 s93, s93, s72",
                "s_lshl_b32 s80, s6, 10", f"s_add_u32 s80, s80, {WS_ACT}", "s_mov_b32 s79, s80", "s_mov_b32 s88, 0", "s_mov_b32 s87, 1",
                "s_cmp_eq_u32 s5, 0", "s_cselect_b32 s85, s65, 0", "s_cselect_b32 s30, 0, s18", hfl] + (
               ["s_getpc_b64 s[72:73]", "KF_pc2:", "s_sub_u32 s8, s72, KF_pc2-KF_nock", "s_subb_u32 s9, s73, 0", "s_mov_b32 s10, KF_codeend-KF_nock",
                "s_lshr_b32 s72, s2, 3", "s_lshl_b32 s72, s72, 2", "s_add_u32 s72, s72, s3", "s_mul_i32 s72, s72, 384",
                "s_mov_b64 exec, 7", Inst(f"buffer_load_dword v0, v{vKO}, s[8:11], s72 offen", "tch"), "s_mov_b64 exec, -1"] if opt.get("cpf2", 1) else []) + [
                "s_branch KF_oolr"])
    k.begin(name="attn_last")
    e("s_cmp_eq_u32 s5, 0"); e("s_cbranch_scc1 KF_nock")
    c1, c2 = check(hfl, [FL])
    for x in ["s_waitcnt vmcnt(18)"] + c1 + c2: e(x if x.endswith(":") else C(x))
    e("KF_nock:")
    attn_iter("last")
    e(stamp(6))
    W = 216
    if LM:
        for u in range(4): e(f"v_mov_b32 v{L+u}, v{LT+4*u}")
    else:
        for u in range(4): e(f"v_add_f32 v{L+u}, v{L+u}, v{L+4+u}")
        xl = [xlane("v_add_f32", L + u, W + 4 + u) for u in range(4)]
        for i in range(6):
            for u in range(4): e(xl[u][i])
    e(f"v_add_f32 v{W+1}, v{L}, v{L+1}"); e(f"v_add_f32 v{W+2}, v{L+2}, v{L+3}"); e(f"v_add_f32 v{W}, v{W+1}, v{W+2}")
    e(f"v_cmp_nge_f32 vcc, {f32bits(2.0**30):#x}, v{W}")
    e("s_cbranch_vccnz KF_slow")
    e("KF_epi:")
    k.begin(name="oepi")
    ACC = 48; A2 = 192
    def acc(nt, u): return ACC + (nt * 4 + u) * 4
    e(f"v_add_u32 v{vL}, s96, v{vP5}")
    def mkstage(bf, zero=False, pair=True):
        G = Frags(A2)
        for (s, nt) in ([(s2 + q, nt) for s2 in (0, 2) for nt in range(9) for q in range(2)] if pair else [(s, nt) for s in range(4) for nt in range(9)]):
            G.add(vL, s * 9216 + nt * 32, [f"{MF} {vr(acc(nt,u))}, @A, {bf(s,u)}, {'0' if zero and s == 0 else vr(acc(nt,u))}" for u in range(4)], 4608)
        if pair: G.chain()
        return G
    P5 = {b: mkstage(lambda s, u, b=b: BF(b, s, u)) for b in range(2)}
    for u in range(4): e(f"v_rcp_f32 v{L+u}, v{L+u}")
    if opt.get("xo"): e("s_mov_b32 s83, 0x7fff0000")
    if opt.get("xb"): e("s_mov_b32 s80, 0x70000000")
    if opt.get("xd2"): e("s_mov_b32 s22, 0")
    OB = lambda i, u: 216 + ((i & 1) * 4 + u) * 4
    def oepi(i, u, t, packed=False):
        o = OB(i, u)
        out = [f"v_accvgpr_read_b32 v{t+r}, a{O(2*i + r//4, u) + r%4}" for r in range(8)]
        if packed: out += [f"v_pk_mul_f32 {vr(t+r,2)}, {vr(t+r,2)}, {vr(L + (u & 2),2)} op_sel:[0,{u&1}] op_sel_hi:[1,{u&1}]" for r in range(0, 8, 2)]
        else: out += [f"v_mul_f32 v{t+r}, v{t+r}, v{L+u}" for r in range(8)]
        out += [f"v_cvt_pk_bf16_f32 v{o+r}, v{t+2*r}, v{t+2*r+1}" for r in range(4)]
        return out + [Inst(f"buffer_store_dwordx4 {vr(o)}, v{vST[u]}, s[16:19], s83 offen offset:{i*1024} sc1", "st")]
    def common(sc):
        sc.put(4 * (36 - LEAD) - 1, f"v_add_u32 v{vL}, s96, v{vP5}")
        sc.put(6, [WaitTag(["dma"], 9), "s_barrier"])
    e(stamp(7))
    e("s_mov_b32 s4, 0"); e("s_mov_b32 s101, s5")
    e("s_cmp_eq_u32 s5, 0"); e("s_cbranch_scc1 KF_spre")
    def BF2(s, u): return ar((s * 4 + u) * 4)
    lastb = [["s_add_u32 s72, s5, 7", "s_xor_b32 s72, s72, s85", "s_lshl_b32 s72, s72, 12", "s_add_u32 s82, s72, s80"]] + \
            [Inst(f"buffer_load_dwordx4 {BF2(s, u)}, v{vST[u]}, s[28:31], s82 offen offset:{s*1024} sc1", "b") for s in range(4) for u in range(4)]
    k.begin(name="g_pre")
    for f in range(LEAD): e(P5[0].fr[f][2])
    B2nd = lambda s, u: BF(s >> 1, 2 + (s & 1), u)
    G = mkstage(B1st, zero=True); G1 = mkstage(B2nd)
    off = len(G.mf); G.fr += [(g0 + off, n, r, d) for (g0, n, r, d) in G1.fr]; G.mf += G1.mf
    sc = G.sched(wrap=True)
    for o in (0, 144):
        sc.put(o + 4 * (36 - LEAD) - 1, f"v_add_u32 v{vL}, s96, v{vP5}")
        sc.put(o + 6, [WaitTag(["dma"], 9), "s_barrier"])
        sc.add(adv_rd, o + 7, o + 12, spread=False)
    def W2(f, s): return WaitRegs(*[f(s + q, u) for q in range(2) for u in range(4)])
    for q, w in enumerate([W2(B1st, 2), W2(B2nd, 0), W2(B2nd, 2), W2(lambda s, u: BF(0, s, u), 0)]): sc.add([w], 72 * q + 68, 72 * q + 72, spread=False)
    OEG = opt.get("oeg", 140); B2E = opt.get("b2e", 70)
    sc.add(adv_b + [bload(B2nd(s, u), s, u) for s in range(4) for u in range(4)] + adv_b + [["s_add_u32 s86, s79, 4096"]], 0, B2E)
    def bl2(b, s): return [Inst(bload(BF(b, s, u), s, u).text.replace("s79", "s86" if b else "s79"), "b") for u in range(4)]
    sc.add(bl2(0, 0) + bl2(0, 1), 80, 144)
    sc.add(bl2(1, 0) + bl2(1, 1), 146, 214)
    sc.add(bl2(0, 2) + bl2(0, 3) + adv_b, 216, 280)
    for q in range(2): sc.add(ring_dma(), 144 * q + 12, 144 * q + 140)
    sc.add(flat([oepi(i, u, 248) for i in range(4) for u in range(4)]), opt.get("oes", 0), OEG)
    sc.add([[WaitTag(["st"], 0)] + flag_store("s90", 4, vT2, allw=True)], min(OEG + 60, 282), 288, spread=False)
    e(sc.flat())
    e(stamp(8))
    e("s_branch KF_loop2")
    k.begin(name="s_pre")
    e("KF_spre:")
    for f in range(LEAD): e(mkstage(lambda s, u: vr(OB(s, u)), pair=False).fr[f][2])
    for u in range(4): e(oepi(0, u, 248 if u & 1 else 40, packed=True))
    G = mkstage(lambda s, u: vr(OB(s, u)), zero=True, pair=False); sc = G.sched(); common(sc)
    sc.add(adv_rd, 7, 12, spread=False)
    for i in range(1, 4): sc.add(flat([oepi(i, u, 248) for u in range(4)]), 36 * (i - 1), 36 * i - 1)
    sc.add(ring_dma(), 108, 143)
    e(sc.flat())
    e(mst(52))
    k.wait_tags("st")
    e(mst(53))
    e(flag_store("s90", 4, vT2, allw=True))
    e("s_mov_b32 s30, s18")
    e(adv_b)
    e(spin(hfl, [FL]))
    e(mst(54))
    for b in (0, 1):
        for s in range(4 - 2 * b):
            for u in range(4): e(bload(BF(b, s, u), s, u))
        if b == 0: e(adv_b)
    for f in range(LEAD): e(P5[0].fr[f][2])
    e(W2(lambda s, u: BF(0, s, u), 0))
    e("s_mov_b32 s4, 0")
    e(stamp(8))

    def stage2(b):
        G = P5[b]; sc = G.sched(wrap=True); common(sc)
        sc.add([W2(lambda s, u: BF(b, s, u), 2)], 68, 72, spread=False)
        sc.add([W2(lambda s, u: BF(b ^ 1, s, u), 0)], 140, 144, spread=False)
        sc.add(adv_rd, 7, 12, spread=False)
        sc.add([bload(BF(b ^ 1, s, u), s, u) for s in (2, 3) for u in range(4)] + adv_b, 2, 62)
        sc.add([bload(BF(b, s, u), s, u) for s in (0, 1) for u in range(4)], 72, 136)
        sc.add(ring_dma(), 12, 140)
        hk = [_mk(x) for x in ("s_cmp_eq_u32 s101, 0", f"s_cbranch_scc1 KF_hk{b}", f"KF_hk{b}r:")]
        sc.add([hk], (130, 64)[b], (136, 71)[b], spread=False)
        fl = sc.flat(); i = fl.index(hk[1])
        cnt[b] = sum(1 for x in (fl[i:] if b == 0 else fl[:i]) if x.kind in ("vload", "vstore", "dma"))
        assert b == 0 or not any(x.kind == "vload" and BF(1, 0, 0) in x.text for x in fl[:i])
        e(fl)
    cnt = {}
    k.begin(loop=2, name="L0")
    e(".p2align 3"); e("KF_loop2:")
    stage2(0)
    k.begin(loop=2, name="L1")
    stage2(1)
    e("s_add_u32 s4, s4, 1"); e("s_cmp_lt_u32 s4, 2"); e("s_cbranch_scc1 KF_loop2")
    hfl2 = hfl.replace("offen", "offen offset:16")
    ool.append(["KF_hk0:", hfl2, "s_branch KF_hk0r"])
    ool.append(["KF_hk1:", "s_mov_b32 s101, 1", f"s_waitcnt vmcnt({cnt[0] + cnt[1]})"] + cmpf([FL]) +
               ["s_nop 0", "s_cbranch_vccz KF_hk1r"] + spin(hfl2, [FL], "KF_hk1r"))

    k.begin(name="final")
    e(stamp(9))
    NPRE = opt.get("npre", 2)
    nts = [8, 0, 1, 2, 3, 4, 5, 6, 7]
    assert NPRE == 2
    order = [(0, s, nt) for nt in range(9) for s in range(2)]
    order += [(b, s, nt) for nt in nts for b in range(3) for s in range(4) if not (b == 0 and s < NPRE)]
    G = Frags(A2); done = {}
    vLb = [vL, vT, vB + 2]
    for (b, s, nt) in order:
        bf = (lambda u: BF(b, s, u)) if b < 2 else (lambda u: BF2(s, u))
        G.add(vLb[b], s * 9216 + nt * 32, [f"{MF} {vr(acc(nt,u))}, @A, {bf(u)}, {vr(acc(nt,u))}" for u in range(4)], 4608)
        done[nt] = len(G.mf)
    G.chain()
    sc = G.sched(); NG = len(G.mf); G0 = 36 * NPRE
    sc.put(G0 - 26, [WaitTag(["dma"], 0), "s_barrier"])
    sc.add([bload(BF(1, s, u), s, u) for s in (2, 3) for u in range(4)] + [Inst(x.text.replace("s82", "s86"), "b") if isinstance(x, Inst) else [y.replace("s82", "s86") for y in x] for x in lastb], 2, 56)
    gq = G0 + (8 - NPRE) * 4
    sc.add([WaitRegs(*[BF2(s, u) for s in range(4) for u in range(4)])], gq - 4, gq, spread=False)
    sc.add(adv_rd + [f"v_add_u32 v{vLb[1]}, s96, v{vP5}"] + adv_rd + [f"v_add_u32 v{vLb[2]}, s96, v{vP5}"], 7, 30, spread=False)
    sc.add([W2(lambda s, u: BF(1, s, u), 0)], G0 - 4, G0, spread=False)
    sc.add([W2(lambda s, u: BF(1, s, u), 2)], G0 + 12, G0 + 16, spread=False)
    SEL = 26; XRr = 36; vX = 25; vL8 = 46
    ad = [
          ["s_and_b32 s82, s64, 3", "s_mul_i32 s73, s82, 5120"], ["s_add_u32 s78, s78, s73", "s_lshl_b32 s73, s5, 10"], ["s_add_u32 s85, s78, s73"],
          ["s_lshl_b32 s73, s71, 1", "s_xor_b32 s82, s82, s73"], ["s_add_u32 s82, s82, s69", f"s_mul_i32 s83, s82, {16*1152}"],
          ["s_mul_i32 s73, s65, 288", "s_add_u32 s87, s83, s73"], ["s_lshl_b32 s73, s5, 6", "s_add_u32 s83, s87, s73"],
          ["s_mov_b32 s12, s56", "s_mov_b32 s13, s57"], [f"s_mov_b32 s14, {2048*1152}"],
          [f"s_mov_b32 s88, {f32bits(-math.log2(math.e)):#x}", "s_mov_b32 s89, 0xffff0000"]]
    sc.add(ad, 56, G0 + 36)
    va = [f"v_bfe_u32 v{vX}, v{vL16}, 4, 4", f"v_lshrrev_b32 v{vT2}, 8, v{vL16}", f"v_bfe_u32 v{vL8}, v{vL16}, 6, 2",
          [f"v_cmp_eq_u32 vcc, v{vL8}, v{vT2}", f"v_mov_b32 v{SEL}, 0x3f80", f"v_and_b32 v{vL8}, 16, v{vL16}", f"v_lshlrev_b32 v{SEL}, v{vL8}, v{SEL}",
           f"v_cndmask_b32 v{SEL}, 0, v{SEL}, vcc"],
          [f"v_and_b32 v{vL8}, 32, v{vL16}", f"v_cmp_eq_u32 vcc, 0, v{vL8}", "s_nop 1", f"v_cndmask_b32 v{SEL+2}, 0, v{SEL}, vcc", f"v_cndmask_b32 v{SEL+3}, v{SEL}, 0, vcc"],
          f"v_mov_b32 v{SEL}, 0", f"v_mov_b32 v{SEL+1}, 0", f"v_mov_b32 v{SEL+4}, 0", f"v_mov_b32 v{SEL+5}, 0",
          f"v_mov_b32 v{SEL+6}, v{SEL+2}", f"v_mov_b32 v{SEL+7}, v{SEL+3}", f"v_mov_b32 v{SEL+8}, v{SEL+2}", f"v_mov_b32 v{SEL+9}, v{SEL+3}",
          f"v_mul_u32_u24 v{vX}, 1152, v{vX}", f"v_lshl_add_u32 v{vX}, v{vT2}, 3, v{vX}",
          f"v_lshrrev_b32 v{vL8}, 1, v{vL16}", f"v_add_u32 v{vL8}, 4096, v{vL8}", f"v_lshlrev_b32 v{vT2}, 7, v{vL16}",
          f"v_bfe_u32 v{vB}, v{vL16}, 4, 3", f"v_lshlrev_b32 v{vB}, 2, v{vB}"]
    sc.add(va, 8, G0 + 30)
    xo = [(0, "s83", 0), (1, "s83", 32), (2, "s83", 128), (3, "s83", 160), (4, "s87", 256)]
    sc.add([f"buffer_load_dwordx2 {vr(XRr+2*t,2)}, v{vX}, s[32:35], {so} offen offset:{o}" for t, so, o in xo] +
           ([Inst(f"buffer_load_dword v0, v{vX}, s[12:15], {so} offen offset:{o}", "tch") for so, o in (("s83", 0), ("s83", 128), ("s87", 256))] if opt.get("otc", 0) else []), G0 + 38, G0 + 70)
    tail = []; per = done[0] - done[8]
    for c in (4, 0, 1, 2, 3):
        pkx = []
        for u in range(4):
            a = acc(2 * c, u); tg = "p1" if c in (4, 0, 1) else "p2"
            pkx += [f"v_cvt_pk_bf16_f32 v{a}, v{a}, v{a+1}", f"v_cvt_pk_bf16_f32 v{a+1}, v{a+2}, v{a+3}"]
            if c < 4:
                b = acc(2 * c + 1, u)
                pkx += [f"v_cvt_pk_bf16_f32 v{a+2}, v{b}, v{b+1}", f"v_cvt_pk_bf16_f32 v{a+3}, v{b+2}, v{b+3}",
                        Inst(f"buffer_store_dwordx4 {vr(a)}, v{vL16}, s[16:19], s{74+u} offen offset:{c*1024} sc1", tg)]
            else:
                pkx += [Inst(f"buffer_store_dwordx2 {vr(a,2)}, v{vL8}, s[16:19], s{74+u} offen sc1", tg)]
        d = done[8] if c == 4 else done[2 * c + 1]
        if c != 3: sc.add(pkx, d + 4, d + 4 + (per if c == 1 else 2 * per - 8))
        else: tail = pkx
    fl1 = f"buffer_load_dword v{vB+1}, v{vB}, s[16:19], s37 offen sc1"
    sc.add([fl1], G0 + 70, G0 + 80)
    c1, c2 = check(fl1, [vB + 1])
    sc.add([c1 + c2], done[3], done[3] + 3)
    R1 = 48; RE = 80; R2 = 216
    order8 = [4, 5, 6, 7, 0, 1, 2, 3]
    def lds1(): return flat([[[f"s_add_u32 s86, s85, {src*PR}"], f"buffer_load_dwordx4 {vr(R1 + src*4)}, v{vL16}, s[16:19], s86 offen sc1"] for src in order8]) + \
                       flat([[[f"s_add_u32 s86, s78, {src*PR}"], f"buffer_load_dwordx2 {vr(RE + src*2, 2)}, v{vL8}, s[28:31], s86 offen sc1"] for src in order8])
    def lds2(): return flat([[[f"s_add_u32 s86, s85, {src*PR}"], f"buffer_load_dwordx4 {vr(R2 + src*4)}, v{vL16}, s[16:19], s86 offen offset:2048 sc1"] for src in order8])
    def sent(base, n):
        t = 128; o = [f"v_max3_u32 v{t}, v{base}, v{base+1}, v{base+2}", f"v_max3_u32 v{t+1}, v{base+3}, v{base+4}, v{base+5}"]
        for i in range(6, n, 2): o.append(f"v_max3_u32 v{t + (i//2) % 2}, v{t + (i//2) % 2}, v{base+i}, v{base+i+1}")
        return o + [f"v_max_u32 v{t}, v{t}, v{t+1}", f"v_cmp_eq_u32 vcc, -1, v{t}"]
    def poll(name, ld, base, n):
        ool.append([f"{name}x:", "s_add_u32 s4, s4, 1", f"s_cmp_ge_u32 s4, {SPIN_MAX}", f"s_cbranch_scc1 {name}d", f"s_sleep {opt.get('slp', 2)}"] + ld + ["s_waitcnt vmcnt(0)", f"s_branch {name}"])
        return [f"{name}:"] + sent(base, n) + ["s_nop 0", f"s_cbranch_vccnz {name}x", f"{name}d:"]
    sc.add([["s_cmp_eq_u32 s5, 0", "s_cselect_b32 s30, 0, s18", "s_mov_b32 s4, 0"]] + lds1(), done[6] - opt.get("r1e", 8), NG - 4)
    e(sc.flat())
    e(tail)
    e(stamp(10))
    Gs = lambda t: 96 + 4 * t
    Ss = lambda t: 108 + 4 * t
    t0 = 120; g1 = 124
    def round2(a):
        return [f"v_cvt_pk_bf16_f32 v{t0}, v{a}, v{a+1}", f"v_cvt_pk_bf16_f32 v{t0+1}, v{a+2}, v{a+3}",
                f"v_lshlrev_b32 v{a}, 16, v{t0}", f"v_and_b32 v{a+1}, s89, v{t0}", f"v_lshlrev_b32 v{a+2}, 16, v{t0+1}", f"v_and_b32 v{a+3}, s89, v{t0+1}"]
    def gate(t):
        g = Gs(t)
        return round2(g) + [f"v_mul_f32 v{g1+r}, s88, v{g+r}" for r in range(4)] + [f"v_exp_f32 v{g1+r}, v{g1+r}" for r in range(4)] + \
               [f"v_add_f32 v{g1+r}, 1.0, v{g1+r}" for r in range(4)] + [f"v_rcp_f32 v{g1+r}, v{g1+r}" for r in range(4)] + \
               [pk("v_pk_mul_f32", g + r, g + r, g1 + r) for r in (0, 2)] + round2(g)
    def fin(t, x, so, o):
        g = Gs(t); s0 = Ss(t)
        return round2(s0) + [pk("v_pk_mul_f32", g + r, g + r, s0 + r) for r in (0, 2)] + round2(g) + \
               [f"v_lshlrev_b32 v{g1}, 16, v{x}", f"v_and_b32 v{g1+1}, s89, v{x}", f"v_lshlrev_b32 v{g1+2}, 16, v{x+1}", f"v_and_b32 v{g1+3}, s89, v{x+1}"] + \
               [pk("v_pk_add_f32", g + r, g + r, g1 + r) for r in (0, 2)] + \
               [f"v_cvt_pk_bf16_f32 v{s0}, v{g}, v{g+1}", f"v_cvt_pk_bf16_f32 v{s0+1}, v{g+2}, v{g+3}",
                f"buffer_store_dwordx2 {vr(s0,2)}, v{vX}, s[12:15], {so} offen offset:{o}"]
    def redu(R):
        return [f"{MF} {vr((Gs if src >= 4 else Ss)(t))}, {vr(SEL + (0 if t else 2))}, {vr(R + src*4)}, {'0' if src in (0, 4) else vr((Gs if src >= 4 else Ss)(t))}"
                for src in order8 for t in range(2)]
    e(poll("KF_q1", lds1(), R1, 48))
    e(mst(46))
    e(redu(R1))
    e([f"{MF} {vr((Gs if q >= 2 else Ss)(2))}, {vr(SEL + 6)}, {vr(RE + q*4)}, {'0' if q % 2 == 0 else vr((Gs if q >= 2 else Ss)(2))}" for q in (2, 3, 0, 1)])
    e(gate(0))
    e(lds2())
    e(gate(1))
    for t in range(2): e(fin(t, XRr + 2 * t, "s83", 32 * t))
    e("s_cmp_eq_u32 s5, 0"); e("s_cbranch_scc1 KF_r2")
    for x in gate(2) + fin(2, XRr + 8, "s87", 256): e(C(x))
    e("KF_r2:")
    e(stamp(11))
    e(poll("KF_q2", lds2(), R2, 32))
    e(mst(50))
    e(redu(R2))
    for t in range(2): e(gate(t))
    for t in range(2): e(fin(t, XRr + 4 + 2 * t, "s83", 128 + 32 * t))
    k.begin(name="fin")
    e("KF_fin:")
    if stamps:
        e(stamp(12)); e("s_waitcnt vmcnt(0)"); e(stamp(13))
        e("s_lshl_b32 s72, s2, 2"); e("s_add_u32 s72, s72, s3"); e("s_lshl_b32 s72, s72, 8"); e(f"s_add_u32 s72, s72, {200<<20}")
        e(f"v_lshrrev_b32 v2, 2, v{vL16}")
        e(f"buffer_store_dword v{STV}, v2, s[16:19], s72 offen")
        if "probe" in opt:
            e(f"s_cmp_lg_u32 s2, {opt.get('pw', 133)}"); e("s_cbranch_scc1 KF_end"); e("s_cmp_lg_u32 s3, 0"); e("s_cbranch_scc1 KF_end")
            if opt["probe"] >= 0: e(f"v_readlane_b32 s72, v{STV}, {32 + opt['probe']}")
            else: e("s_mov_b32 s72, s38")
            e("s_nop 3"); e("s_add_u32 s72, s72, 10000")
            e("KF_pw:"); e("s_memrealtime s[98:99]"); e("s_waitcnt lgkmcnt(0)"); e("s_sub_u32 s73, s72, s98"); e("s_cmp_lt_u32 s73, 20000"); e("s_cbranch_scc1 KF_pw")
        if opt.get("dbg"):
            e(f"s_cmp_lg_u32 s2, {opt['dbg']}"); e("s_cbranch_scc1 KF_end"); e("s_cmp_lg_u32 s3, 1"); e("s_cbranch_scc1 KF_end")
            e(srd(20, 58, 64)); e(f"v_readlane_b32 s72, v{STV}, 32"); e("v_subrev_u32 v2, 124, v2"); e(f"v_subrev_u32 v{STV}, s72, v{STV}")
            e("s_mov_b32 exec_lo, 0"); e(f"buffer_store_dword v{STV}, v2, s[20:23], 0 offen")
    e("KF_end:")
    e("s_endpgm")

    for i, blk in enumerate(ool):
        k.begin(name=f"ool{i}")
        e(blk); e("s_endpgm")
    Mx = W + 8; AL = W + 12; TT = W + 16
    k.begin(name="slow_pre")
    e("KF_codeend:")
    e("KF_slow:")
    e("s_waitcnt vmcnt(0) lgkmcnt(0)"); e("s_nop 15")
    for i in range(128): e(f"v_accvgpr_write_b32 a{i}, 0")
    for u in range(4): e(f"v_mov_b32 v{L+u}, 0"); e(f"v_mov_b32 v{Mx+u}, 0xff7fffff")
    e("s_mov_b32 s72, 0"); e("s_mov_b32 s68, s82")
    k.begin(loop=16, name="slow_loop")
    e("KF_sloop:")
    for q in range(4):
        for f in range(4):
            ff = q * 4 + f
            e(f"buffer_load_dwordx4 {KF(1, ff) if ff < 8 else VF(1, ff - 8)}, v{vL16}, s[16:19], s68 offen offset:{f*1024} sc1")
        e("s_add_u32 s68, s68, 4096")
    for u in range(4):
        e(qk(u, lambda f: KF(1, f), zero=True))
        s0 = S(u); m = W + u
        e(f"v_max3_f32 v{m}, v{s0}, v{s0+1}, v{s0+2}"); e(f"v_max3_f32 v{m}, v{m}, v{s0+3}, v{s0+4}")
        e(f"v_max3_f32 v{m}, v{m}, v{s0+5}, v{s0+6}"); e(f"v_max3_f32 v{m}, v{m}, v{s0+7}, v{Mx+u}")
        e(xlane("v_max_f32", m, W + 4))
        e(f"v_sub_f32 v{AL}, v{Mx+u}, v{m}"); e(f"v_exp_f32 v{AL}, v{AL}"); e(f"v_mov_b32 v{Mx+u}, v{m}")
        e(f"v_mul_f32 v{L+u}, v{L+u}, v{AL}")
        for i in range(8):
            e(f"v_sub_f32 v{s0+i}, v{s0+i}, v{m}"); e(f"v_exp_f32 v{s0+i}, v{s0+i}")
        for i in range(8): e(f"v_add_f32 v{L+u}, v{L+u}, v{s0+i}")
        for i in range(4): e(f"v_cvt_pk_bf16_f32 v{P+i}, v{s0+2*i}, v{s0+2*i+1}")
        for dt in range(8):
            for r in range(4): e(f"v_accvgpr_read_b32 v{TT+r}, a{O(dt,u)+r}")
            for r in range(4): e(f"v_mul_f32 v{TT+r}, v{TT+r}, v{AL}")
            for r in range(4): e(f"v_accvgpr_write_b32 a{O(dt,u)+r}, v{TT+r}")
        e(pv(u, 1, 0, lm=False))
    e("s_add_u32 s72, s72, 1"); e("s_cmp_lt_u32 s72, 16"); e("s_cbranch_scc1 KF_sloop")
    k.begin(name="slow_post")
    e("s_nop 15")
    for u in range(4): e(xlane("v_add_f32", L + u, W + 4))
    e("s_nop 15")
    e("s_branch KF_epi")
    pre = ["p0a", "gemm", "attn_first"]
    k.paths = []
    for na in (1, 2, 4):
        for nl in (1, 2):
            mid = pre + ["attn_loop"] * na + ["attn_last", "oepi"]
            if na > 1 and nl > 1 and (na, nl) != (4, 2): continue
            k.paths.append(mid + ["g_pre"] + ["L0", "L1"] * nl + ["final", "fin"])
            k.paths.append(mid + ["s_pre"] + ["L0", "L1"] * nl + ["final", "fin"])
    return kstart(name) + k.finish(), kdesc(name, 512, 256), (name, 256, 256, 163840)
```

```python
from lib import *
from lib import _mk
from common import *
import math

SLOT = 36864
SPARE = 4 * SLOT
MF = "v_mfma_f32_16x16x32_bf16"
QSCALE = math.log2(math.e) / math.sqrt(128.0)
SPIN_MAX = 100000
KNAME = "recurrent_scan__sliding_block_cached__dense_activation_relu__prompt_kernel"

def flat(l): return [x for y in l for x in y]

def gen_kf(name=KNAME, stamps=False, opt=None):
    opt = opt or {}
    k = Kernel(name)
    k.cur.name = 'p0a'
    e = k.e
    vL16, vDQ, vD1, vS0, vP5, vZ, vTOK, vL, vT = 1, 2, 3, 4, 5, 6, 7, 8, 9
    vST = [10, 11, 12, 13]
    vT2 = 14; STV = 15
    XV = 16; QA = 48; AF = 176; NF = 6; LEAD = 4
    FA = 200; T = 232; vB = 248
    vXN = [232, 233, 234, 235]; vKO, vVO = 254, 255
    B1, B3, B5, B7 = 64, 96, 128, 160
    def X(u, s):
        h, idx = u >> 1, s * 2 + (u & 1)
        return ar(h * 128 + idx * 4) if idx < 32 else vr(XV + h * 16 + (idx - 32) * 4)
    def qa(nt, u): return QA + (nt * 4 + u) * 4
    def Qf(u, s): return vr(qa(2 * s, u))
    def fa(a, u): return FA + a * 16 + u * 4
    def stamp(i):
        if not stamps: return []
        return ["s_memtime s[98:99]", "s_waitcnt lgkmcnt(0)", f"v_writelane_b32 v{STV}, s98, {i}",
                "s_memrealtime s[98:99]", "s_waitcnt lgkmcnt(0)", f"v_writelane_b32 v{STV}, s98, {32+i}"]
    def mst(i):
        if not (stamps and opt.get("fine")): return ["s_nop 0"] if False else []
        return ["s_memtime s[98:99]", "s_waitcnt lgkmcnt(0)", "s_nop 0", f"v_writelane_b32 v{STV}, s98, {i}"]
    def C(t): return Inst(t, "cond")
    uid = [0]
    def lab(p): uid[0] += 1; return f"KF_{p}{uid[0]}"
    def flag_store(sreg, nl, voff, allw=False):
        lb = lab("nf")
        m = ["s_mov_b64 exec, %#x" % ((1 << nl) - 1)] if nl < 32 else ["s_mov_b32 exec_hi, 0"]
        body = m + [f"buffer_store_dword v{vTOK}, v{voff}, s[16:19], {sreg} offen sc1", "s_mov_b64 exec, -1"]
        if allw: return body
        return ["s_cmp_lg_u32 s3, 0", f"s_cbranch_scc1 {lb}"] + [C(x) for x in body] + [f"{lb}:"]
    ool = []
    def spin(load, regs, ret=None):
        lb = lab("sp"); dn = ret or lab("sd")
        out = ["s_mov_b32 s73, 0", f"{lb}:", load, "s_waitcnt vmcnt(0)"] + cmpf(regs)
        out += ["s_add_u32 s73, s73, 1", f"s_cmp_ge_u32 s73, {SPIN_MAX}", f"s_cbranch_scc1 {dn}", f"s_cbranch_vccz {dn}", "s_sleep 2", f"s_branch {lb}"]
        if not ret: out.append(f"{dn}:")
        return out
    def cmpf(regs):
        out = []
        if len(regs) > 1:
            out += [f"v_xor_b32 v{r}, v{r}, v{vTOK}" for r in regs]
            out += [f"v_or_b32 v{regs[0]}, v{regs[0]}, v{r}" for r in regs[1:]]
            out += [f"v_cmp_ne_u32 vcc, 0, v{regs[0]}"]
        else:
            out += [f"v_cmp_ne_u32 vcc, v{regs[0]}, v{vTOK}"]
        return out
    def check(load, regs):
        a, b = lab("ck"), lab("cr")
        ool.append([f"{a}:"] + spin(load, regs, b))
        return cmpf(regs), ["s_nop 0", f"s_cbranch_vccnz {a}", f"{b}:"]
    def xlane(op, r, t, both=True):
        o = [f"v_mov_b32 v{t}, v{r}", f"v_permlane32_swap_b32 v{t}, v{r}", f"{op} v{r}, v{r}, v{t}"] if both else []
        return o + [f"v_mov_b32 v{t}, v{r}", f"v_permlane16_swap_b32 v{t}, v{r}", f"{op} v{r}, v{r}, v{t}"]
    def ident(ID, t0, t1):
        o = [f"v_lshrrev_b32 v{t0}, 4, v{vL16}", f"v_and_b32 v{t1}, 15, v{t0}", f"v_lshrrev_b32 v{t0}, 4, v{t0}", f"v_lshlrev_b32 v{t0}, 3, v{t0}",
             f"v_sub_u32 v{t0}, v{t1}, v{t0}", f"v_and_b32 v{t1}, 1, v{t0}", f"v_lshlrev_b32 v{t1}, 4, v{t1}", f"v_mov_b32 v{ID}, 0x3f80",
             f"v_lshlrev_b32 v{t1}, v{t1}, v{ID}", f"v_ashrrev_i32 v{t0}, 1, v{t0}"]
        for h in range(2):
            for r in range(4):
                o.append([f"v_cmp_eq_i32 vcc, {r - 8*h}, v{t0}", "s_nop 1", f"v_cndmask_b32 v{ID+4*h+r}, 0, v{t1}, vcc"])
        return o
    def tr_mf(D, A, ID): return [f"{MF} {vr(D + (h*2+r)*4)}, {vr(A + 4*r)}, {vr(ID + 4*h)}, 0" for h in range(2) for r in range(2)]
    def tr_cvt(o, D, h): return [f"v_cvt_pk_bf16_f32 v{o+2*r+q}, v{D+(h*2+r)*4+2*q}, v{D+(h*2+r)*4+2*q+1}" for r in range(2) for q in range(2)]

    e("s_cmp_ge_u32 s2, 256"); e("s_cbranch_scc1 KF_end")
    if opt.get("scr"):
        e("s_and_b32 s4, s2, 7"); e("s_bfe_u32 s5, s2, 0x30003"); e("s_andn2_b32 s2, s2, 63"); e("s_lshl_b32 s4, s4, 3"); e("s_or_b32 s2, s2, s4"); e("s_or_b32 s2, s2, s5")
    e("s_load_dwordx16 s[40:55], s[0:1], 0")
    e("s_load_dwordx4 s[56:59], s[0:1], 64")
    e("s_load_dwordx2 s[60:61], s[0:1], 80")
    e("s_memrealtime s[38:39]")
    if opt.get("cpf0", 8):
        e("s_getpc_b64 s[96:97]"); e(f"s_mov_b32 s98, {opt.get('cpf0', 8) * 1024}"); e("s_mov_b32 s99, 0x20000")
        e("v_lshlrev_b32 v27, 7, v0")
        e("buffer_load_dword v31, v27, s[96:99], 0 offen", "tch")
    e("v_lshrrev_b32 v20, 6, v0")
    e("v_and_b32 v21, 63, v0")
    e("v_readfirstlane_b32 s3, v20")
    e("s_and_b32 s64, s2, 7"); e("s_bfe_u32 s65, s2, 0x20003")
    e("s_and_b32 s62, s2, 3"); e("s_lshl_b32 s62, s62, 3"); e("s_and_b32 s63, s2, 4"); e("s_add_u32 s62, s62, s63"); e("s_add_u32 s62, s62, s65")
    e("s_lshr_b32 s63, s2, 5")
    e("s_lshl_b32 s66, s63, 5"); e("s_add_u32 s66, s66, s62")
    e("v_lshrrev_b32 v22, 5, v0"); e("v_mul_u32_u24 v22, 1152, v22")
    e("v_and_b32 v23, 31, v21"); e("v_lshl_add_u32 v22, v23, 4, v22")
    e("s_mul_i32 s67, s66, 9216")
    for r in range(56, 60): e(f"v_mov_b32 v{r}, 0")
    e(f"v_mov_b32 v{vZ}, 0")
    e(f"v_lshlrev_b32 v{vL16}, 4, v21")
    e("s_waitcnt lgkmcnt(0)")
    e(srd(32, 40, 2048 * 1152))
    e(f"buffer_load_dwordx4 {vr(48)}, v22, s[32:35], s67 offen")
    e(f"buffer_load_dwordx4 {vr(52)}, v22, s[32:35], s67 offen offset:512")
    e("s_mov_b32 exec_lo, 0xff"); e("s_mov_b32 exec_hi, 0xff")
    e(f"buffer_load_dwordx4 {vr(56)}, v22, s[32:35], s67 offen offset:1024")
    e("s_mov_b64 exec, -1")
    e(stamp(0))
    e(srd(8, 46, 576 * 8192)); e(srd(20, 58, 256))
    e("s_or_b32 s77, s2, s3"); e("s_cbranch_scc1 KF_w0")
    e(C("s_or_b32 s38, s38, 1")); e(C("v_mov_b32 v28, s38")); e(C("s_mov_b64 exec, 1"))
    e(C(f"buffer_store_dword v28, v{vZ}, s[20:23], 0 offen sc1")); e(C("s_mov_b64 exec, -1"))
    e("KF_w0:")
    e(srd(16, 60, WS_SIZE))
    if opt.get("flw", 1):
        e("s_lshl_b32 s72, s66, 7"); e(f"s_add_u32 s72, s72, {FL_LN}"); e("v_mov_b32 v27, s72")
        e("s_lshl_b32 s72, s63, 3"); e("s_add_u32 s72, s72, s64"); e("s_lshl_b32 s72, s72, 2"); e("s_add_u32 s72, s72, s65"); e("s_lshl_b32 s72, s72, 2")
        e("s_add_u32 s72, s72, s3"); e("s_lshl_b32 s72, s72, 7"); e(f"s_add_u32 s72, s72, {FL_P2}"); e("v_writelane_b32 v27, s72, 1")
        e(f"s_add_u32 s72, s72, {FL_EX - FL_P2}"); e("v_writelane_b32 v27, s72, 2")
        e("s_lshr_b32 s72, s62, 1"); e("s_lshl_b32 s72, s72, 7"); e(f"s_add_u32 s72, s72, {FL_KV}"); e("v_writelane_b32 v27, s72, 3")
        e("s_mov_b64 exec, 15"); e("buffer_load_dword v31, v27, s[16:19], 0 offen sc1", "tch"); e("s_mov_b64 exec, -1")
    e(srd(12, 52, 576 * 9216)); e(srd(24, 42, 8388608)); e(srd(28, 44, 8388608))
    e("v_lshrrev_b32 v28, 1, v21"); e("v_and_b32 v29, 1, v21"); e("v_lshlrev_b32 v29, 7, v29")
    e("v_lshl_add_u32 v34, v28, 13, v29"); e("v_mul_u32_u24 v239, 9216, v21")
    e("s_sub_u32 s77, s3, 1"); e("s_lshl_b32 s77, s77, 3"); e("s_add_u32 s77, s77, s63"); e(f"s_mul_i32 s4, s77, {24*8192}"); e("s_lshl_b32 s5, s63, 2"); e("s_add_u32 s5, s5, s3"); e(f"s_mul_i32 s5, s5, {18*9216}")
    e("s_lshr_b32 s70, s62, 1"); e("s_and_b32 s71, s62, 1")
    e("s_lshl_b32 s6, s70, 6"); e("s_add_u32 s6, s6, s5"); e("s_add_u32 s6, s6, 8192")
    e("s_lshl_b32 s79, s62, 8"); e("s_add_u32 s4, s4, s79"); e("s_add_u32 s5, s5, s79")
    wq_touch = ["s_mov_b32 exec_hi, 0xffff", "buffer_load_dword v31, v34, s[8:11], s4 offen", "s_mov_b64 exec, -1"]
    def w1_touch(i):
        return [Inst("s_mov_b64 exec, 0x3ffff"), Inst(f"buffer_load_dword v0, v239, s[12:15], {('s5','s5','s6')[i]} offen offset:{(0,128,0)[i]}", "tch"), Inst("s_mov_b64 exec, -1")]
    def not_w0(body, maxw=3):
        lb = lab("nw")
        return ["s_sub_u32 s72, s3, 1", f"s_cmp_ge_u32 s72, {maxw}", f"s_cbranch_scc1 {lb}"] + [C(x) for x in body] + [f"{lb}:"]
    ORD = opt.get("ord", 1)
    CPF = opt.get("codepf", 2)
    code_touch = ["s_getpc_b64 s[68:69]", "KF_pc:", f"s_sub_u32 s96, s68, KF_pc-{name}", "s_subb_u32 s97, s69, 0", f"s_mov_b32 s98, KF_codeend-{name}", "s_mov_b32 s99, 0x20000",
                  "s_lshr_b32 s94, s2, 3", "s_lshl_b32 s94, s94, 2", "s_add_u32 s94, s94, s3", "s_mul_i32 s94, s94, 640",
                  "v_lshlrev_b32 v27, 7, v21", "s_mov_b64 exec, 31", Inst("buffer_load_dword v31, v27, s[96:99], s94 offen", "tch"), "s_mov_b64 exec, -1"]
    if CPF == 1: e(code_touch)
    e("v_and_b32 v24, 15, v21"); e("v_lshrrev_b32 v25, 4, v21")
    e(f"v_lshlrev_b32 v{vKO}, 8, v24"); e(f"v_lshl_add_u32 v{vVO}, v25, 4, v{vKO}"); e(f"v_lshl_add_u32 v{vKO}, v25, 3, v{vKO}")
    e("v_lshrrev_b32 v28, 5, v21"); e("v_lshlrev_b32 v29, 1, v28"); e("v_and_b32 v30, 3, v21"); e("v_xor_b32 v29, v29, v30")
    e("v_lshlrev_b32 v29, 4, v29"); e("v_lshrrev_b32 v32, 2, v21")
    e(f"v_mul_u32_u24 v{vD1}, 9216, v32"); e(f"v_add_u32 v{vD1}, v{vD1}, v29")
    e("v_bfe_u32 v32, v21, 2, 2"); e("v_lshlrev_b32 v32, 6, v32"); e("v_lshl_add_u32 v32, v30, 3, v32")
    e("v_and_b32 v26, 1, v25"); e("v_lshl_add_u32 v32, v26, 5, v32")
    e(f"v_lshl_add_u32 v{vS0}, v25, 9, v32")
    e("v_bfe_u32 v33, v21, 2, 2"); e(f"v_lshlrev_b32 v{vP5}, 10, v25"); e(f"v_lshl_add_u32 v{vP5}, v33, 7, v{vP5}"); e(f"v_lshl_add_u32 v{vP5}, v30, 3, v{vP5}")
    e("v_lshrrev_b32 v33, 1, v33"); e(f"v_lshl_add_u32 v{vP5}, v33, 5, v{vP5}"); e(f"v_lshl_add_u32 v{vP5}, v26, 6, v{vP5}")
    e("v_lshrrev_b32 v33, 3, v21"); e("v_mul_u32_u24 v238, 9216, v33"); e("v_and_b32 v33, 7, v21"); e("v_lshlrev_b32 v35, 1, v26"); e("v_xor_b32 v33, v33, v35")
    e(f"v_lshrrev_b32 v{vDQ}, 3, v21"); e(f"v_lshlrev_b32 v{vDQ}, 13, v{vDQ}"); e(f"v_lshl_add_u32 v{vDQ}, v33, 4, v{vDQ}")
    e(f"v_xor_b32 v46, 64, v{vDQ}"); e("v_add_u32 v46, 0x10000, v46")
    e("v_and_b32 v35, 1, v20"); e("v_lshlrev_b32 v35, 2, v35"); e("v_xor_b32 v33, v33, v35"); e("v_lshl_add_u32 v238, v33, 4, v238")
    QB = [[vB, vB + 1, vB + 2, vB + 3], [vB + 4, vB + 5, 236, 237]]
    e(f"v_lshl_add_u32 v{vB}, v25, 10, v{vP5}")
    for r in range(1, 4): e(f"v_xor_b32 v{vB+r}, {32*r}, v{vB}")
    for r in range(4): e(f"v_add_u32 v{QB[1][r]}, 0x10000, v{QB[0][r]}")
    e("s_lshl_b32 s69, s63, 4"); e("s_lshl_b32 s78, s3, 2"); e("s_add_u32 s69, s69, s78"); e("s_lshl_b32 s78, s71, 1")
    for u in range(4):
        e(f"s_xor_b32 s79, s78, {u}"); e("s_add_u32 s79, s79, s69")
        e("s_mul_i32 s80, s79, 18432"); e(f"v_add_u32 v{vXN[u]}, s80, v{vL16}")
        e(f"s_mul_i32 s80, s79, {272*1024}"); e(f"v_add_u32 v{vST[u]}, s80, v{vL16}")
    e("v_lshrrev_b32 v36, 5, v0"); e("v_and_b32 v37, 7, v21"); e("v_xor_b32 v36, v36, v37"); e("v_lshlrev_b32 v36, 4, v36")
    e("v_lshl_add_u32 v36, v23, 7, v36"); e(f"v_add_u32 v36, {SPARE}, v36")
    e("v_lshrrev_b32 v38, 3, v21"); e("v_xor_b32 v39, v38, v37"); e("v_lshlrev_b32 v39, 4, v39"); e("v_lshl_add_u32 v39, v38, 7, v39"); e(f"v_add_u32 v39, {SPARE}, v39")
    e("v_lshlrev_b32 v38, 8, v38"); e("v_lshl_add_u32 v38, v37, 4, v38")
    e("s_lshl_b32 s72, s63, 1"); e("s_add_u32 s72, s72, s71")
    e("s_lshl_b32 s73, s70, 19"); e("s_lshl_b32 s74, s72, 13"); e("s_add_u32 s73, s73, s74"); e(f"s_add_u32 s73, s73, {1536*256}")
    e("s_lshl_b32 s74, s3, 6"); e("s_add_u32 s87, s73, s74"); e("s_add_u32 s88, s87, 4096")
    e("s_lshr_b32 s74, s3, 1"); e("s_lshl_b32 s74, s74, 12"); e("s_add_u32 s73, s73, s74")
    e("s_and_b32 s74, s3, 1"); e("s_lshl_b32 s74, s74, 7"); e("s_add_u32 s89, s73, s74")
    e("s_lshl_b32 s82, s70, 18"); e(f"s_add_u32 s82, s82, {WS_KVP}")
    e("s_lshl_b32 s93, s72, 14"); e("s_add_u32 s93, s93, s82"); e("s_lshl_b32 s78, s3, 11"); e("s_add_u32 s93, s93, s78"); e("s_add_u32 s95, s93, 8192")
    e("s_lshl_b32 s90, s70, 7"); e(f"s_add_u32 s90, s90, {FL_KV}"); e("s_lshl_b32 s91, s72, 2"); e("s_add_u32 s91, s91, s90")
    e(f"s_mul_i32 s77, s3, {8*9216}"); e("s_lshl_b32 s79, s62, 8"); e("s_add_u32 s79, s79, s77"); e(f"s_mul_i32 s77, s3, {144*9216}")
    e("s_lshl_b32 s80, s70, 6"); e("s_add_u32 s80, s80, s77"); e("s_add_u32 s80, s80, 8192")
    e("s_mul_i32 s81, s3, 9216")
    e("s_lshl_b32 s83, s62, 12"); e(f"s_add_u32 s83, s83, {WS_ACT}"); e(f"s_add_u32 s84, s83, {128*1024}")
    e("s_lshl_b32 s85, s70, 10"); e(f"s_add_u32 s85, s85, {WS_ACT + 256*1024}")
    e(f"s_mov_b32 s86, {f32bits(QSCALE):#x}")
    e("s_lshl_b32 s37, s62, 8"); e("s_lshl_b32 s67, s3, 6"); e("s_add_u32 s37, s37, s67"); e("s_lshl_b32 s67, s3, 10")
    for i in range(5): e(f"s_mov_b32 s{74+i}, {WS_XN + i*4096}")
    e("s_lshr_b32 s7, s66, 1"); e("s_mul_i32 s7, s7, 18432"); e("s_lshl_b32 s72, s71, 7"); e("s_add_u32 s7, s7, s72")
    e("s_lshl_b32 s36, s63, 12"); e("s_lshl_b32 s72, s62, 2"); e("s_add_u32 s36, s36, s72"); e(f"s_add_u32 s36, s36, {FL_LN}")
    Fv = 64
    for d in range(12):
        e(f"v_lshlrev_b32 v{Fv+2*d}, 16, v{48+d}"); e(f"v_and_b32 v{Fv+2*d+1}, 0xffff0000, v{48+d}")
    e(f"buffer_load_dword v{vTOK}, v{vZ}, s[20:23], 0 offen sc1", "tch")
    if ORD == 1: e(not_w0(wq_touch))
    if ORD == 4: e(not_w0(wq_touch, 1))
    if CPF == 2: e([x.replace("s[68:69]", "s[100:101]").replace("s68", "s100").replace("s69", "s101") if isinstance(x, str) else x for x in code_touch])
    e(stamp(1))
    def pk(op, d, a, b): return f"{op} {vr(d,2)}, {vr(a,2)}, {vr(b,2)}"
    e(pk("v_pk_add_f32", 40, Fv, Fv + 2)); e(pk("v_pk_add_f32", 42, Fv + 4, Fv + 6))
    for d in range(8, 24, 2): e(pk("v_pk_add_f32", 40 + (d & 2), 40 + (d & 2), Fv + d))
    def red(r):
        e(pk("v_pk_add_f32", r, r, r + 2)); e(f"v_add_f32 v{r}, v{r}, v{r+1}")
        for sh in (8, 4, 2, 1): e(f"v_add_f32_dpp v{r}, v{r}, v{r} row_ror:{sh} row_mask:0xf bank_mask:0xf")
        e(xlane("v_add_f32", r, r + 1, both=False))
    red(40)
    e(f"v_mul_f32 v40, {f32bits(-1.0/576):#x}, v40"); e("v_mov_b32 v41, v40")
    e("v_cvt_pk_bf16_f32 v44, v40, v40"); e("v_lshlrev_b32 v44, 16, v44"); e("v_mov_b32 v45, v44")
    for d in range(0, 24, 2):
        if d == 16: e("s_mov_b32 exec_lo, 0xff"); e("s_mov_b32 exec_hi, 0xff")
        t = 92 + (d & 2); a = 88 + (d & 2)
        e(pk("v_pk_add_f32", t, Fv + d, 40))
        if d < 4: e(pk("v_pk_mul_f32", a, t, t))
        else: e(f"v_pk_fma_f32 {vr(a,2)}, {vr(t,2)}, {vr(t,2)}, {vr(a,2)}")
    e("s_mov_b64 exec, -1")
    for d in range(0, 24, 2):
        e(pk("v_pk_add_f32", Fv + d, Fv + d, 44)); e(f"v_cvt_pk_bf16_f32 v{48+d//2}, v{Fv+d}, v{Fv+d+1}")
    red(88)
    def rbf(r): e(f"v_cvt_pk_bf16_f32 v{r}, v{r}, v{r}"); e(f"v_lshlrev_b32 v{r}, 16, v{r}")
    e(f"v_mul_f32 v88, {f32bits(1.0/576):#x}, v88"); rbf(88)
    e(f"v_add_f32 v88, {f32bits(1e-5):#x}, v88"); rbf(88)
    e("v_sqrt_f32 v88, v88")
    for d in range(12):
        e(f"v_lshlrev_b32 v{Fv+2*d}, 16, v{48+d}"); e(f"v_and_b32 v{Fv+2*d+1}, 0xffff0000, v{48+d}")
        if d == 0: rbf(88)
        if d == 1: e("v_rcp_f32 v90, v88")
        if d == 2: e("v_fma_f32 v91, -v88, v90, 2.0")
        if d == 3: e("v_mul_f32 v90, v90, v91"); e("v_mov_b32 v91, v90")
    for d in range(12):
        e(pk("v_pk_mul_f32", Fv + 2 * d, Fv + 2 * d, 90)); e(f"v_cvt_pk_bf16_f32 v{48+d}, v{Fv+2*d}, v{Fv+2*d+1}")
        if d % 4 == 3:
            if d == 11: e("s_mov_b32 exec_lo, 0xff"); e("s_mov_b32 exec_hi, 0xff")
            e(f"ds_write_b128 v36, {vr(48 + d - 3)} offset:{(d//4)*4096}")
    e("s_mov_b64 exec, -1")
    e("s_waitcnt lgkmcnt(0)")
    e("s_barrier")
    e(stamp(2))
    e("s_cmp_lg_u32 s3, 0"); e("s_cbranch_scc1 KF_x123")
    w0 = [f"ds_read_b128 {vr(136+4*q)}, v39 offset:{q*1024}" for q in range(9)]
    for q in range(9):
        w0 += [f"s_waitcnt lgkmcnt({8-q})", f"buffer_store_dwordx4 {vr(136+4*q)}, v38, s[16:19], s7 offen offset:{(q%2)*2048} sc1"]
        if q % 2: w0 += ["s_add_u32 s7, s7, 4096"]
    w0 += ["v_lshlrev_b32 v38, 7, v21", "s_mov_b32 s73, 0"] + mst(62) + ["KF_tk:", "s_waitcnt vmcnt(0)", f"v_cmp_eq_u32 vcc, 0, v{vTOK}",
           "s_add_u32 s73, s73, 1", f"s_cmp_ge_u32 s73, {SPIN_MAX}",
           "s_cbranch_scc1 KF_tkd", "s_cbranch_vccz KF_tkd", f"buffer_load_dword v{vTOK}, v{vZ}, s[20:23], 0 offen sc1", "s_branch KF_tk", "KF_tkd:"]
    w0 += mst(63) + flag_store("s36", 32, 38, allw=True)
    w0 += [f"v_mov_b32 v39, {SPARE + 12288}", f"ds_write_b32 v39, v{vTOK}"]
    for x in w0: e(x if x.endswith(":") else C(x))
    e("KF_x123:")
    if ORD >= 3: e("s_barrier")
    def wq_piece(b):
        return [[f"s_add_u32 m0, s67, {b*4096}", f"s_add_u32 s68, s37, {b*131072}"],
                Inst(f"buffer_load_dwordx4 v{vDQ}, s[8:11], s68 offen lds", "wq")]
    NPW = opt.get("npw", 36); XD = opt.get("xd", 4); XEND = opt.get("xend", 8)
    e(srd(20, 60, WS_SIZE))
    e("s_cmp_lg_u32 s3, 0"); e("s_cbranch_scc1 KF_y123")
    pl = ["v_lshlrev_b32 v38, 2, v23", "s_lshl_b32 s72, s66, 7", f"s_add_u32 s72, s72, {FL_LN}"]
    pl += spin("buffer_load_dword v39, v38, s[16:19], s72 offen sc1", [39]) + ["s_branch KF_y0", "KF_y123:"]
    if ORD >= 2: pl += wq_touch
    pl += ["s_sub_u32 s72, s3, 1", "s_lshl_b32 s68, s72, 17", "s_lshl_b32 s73, s62, 8", "s_add_u32 s68, s68, s73", "s_lshl_b32 s72, s72, 12", "KF_wql:"]
    for v, mo, o in ((vDQ, 0, 0), (vDQ, 896, 128), (46, 2048, 0), (46, 2944, 128)):
        pl += [f"s_add_u32 m0, s72, {mo}", "s_nop 0", f"buffer_load_dwordx4 v{v}, s[8:11], s68 offen offset:{o} lds"]
    pl += [f"s_add_u32 s68, s68, {3*131072}", f"s_add_u32 s72, s72, {3*4096}", f"s_cmp_lt_u32 s72, {36*4096}", "s_cbranch_scc1 KF_wql"]
    pl += ["s_waitcnt vmcnt(32)", "KF_y0:"]
    for x in pl: e(x if x.endswith(":") else C(x))
    e(stamp(3))
    e("s_waitcnt lgkmcnt(0)")
    e("s_barrier")
    e(stamp(4))
    def xn_load(u, s):
        return Inst(f"buffer_load_dwordx4 {X(u, s)}, v{vXN[u]}, s[16:19], s{74 + s//4} offen offset:{(s%4)*1024} sc1", "xn")
    for s in range(XD):
        for u in range(4): e(xn_load(u, s))
    e(f"v_mov_b32 v39, {SPARE + 12288}"); e(f"ds_read_b32 v{vTOK}, v39")
    assert NPW == 36
    e(f"v_mov_b32 v{vDQ}, v238")

    k.begin(name="gemm")
    class Frags:
        def __init__(s, af): s.mf = []; s.fr = []; s.af = af
        def add(s, vbase, off, ms, d2=256):
            b = s.af + (len(s.fr) % NF) * 4
            s.fr.append((len(s.mf), len(ms), [f"ds_read_b64_tr_b16 {vr(b,2)}, v{vbase} offset:{off}",
                                              f"ds_read_b64_tr_b16 {vr(b+2,2)}, v{vbase} offset:{off+d2}"], vr(b)))
            s.mf += [m.replace("@A", vr(b)) for m in ms]
        def chain(s):
            fr = s.fr; flip = False
            for f in range(0, len(fr) - 1, 2):
                g0, n = fr[f][0], fr[f][1]
                assert fr[f + 1][0] == g0 + n and fr[f + 1][1] == n
                a, b = s.mf[g0:g0 + n], s.mf[g0 + n:g0 + 2 * n]
                dst = lambda m: m.split()[1]
                assert [dst(m) for m in a] == [dst(m) for m in b]
                prev = dst(s.mf[g0 - 1]) if g0 else None
                us = list(range(n))
                if prev == dst(a[-1]): us.reverse()
                out = []
                for i, u in enumerate(us):
                    out += [a[u], b[u]] if (i % 2 == 0 or a[u].endswith(", 0")) else [b[u], a[u]]
                s.mf[g0:g0 + 2 * n] = out
            s.paired = True
        def sched(s, wrap=False):
            sc = Sched(s.mf); fr = s.fr; N = len(fr)
            if getattr(s, "paired", False):
                for f in range(0, N, 2):
                    g0, n = fr[f][0], fr[f][1]
                    if f + LEAD < N or wrap:
                        rd = fr[(f + LEAD) % N][2] + fr[(f + LEAD + 1) % N][2]
                        for i, g in enumerate((0, 1, 4, 5) if n == 4 else (0, 1, 2, 3)): sc.put(g0 + g, rd[i])
                    if f + 2 < N or wrap:
                        sc.put(g0 + (5 if n == 4 else 3), WaitRegs(fr[(f + 2) % N][3], fr[(f + 3) % N][3]))
                return sc
            for f in range(N):
                g0, n, _, _ = fr[f]
                if f + LEAD < N or wrap:
                    sc.put(g0, fr[(f + LEAD) % N][2][0]); sc.put(g0 + 1, fr[(f + LEAD) % N][2][1])
                if (f + 1 < N or wrap) and (n == 4 or f % 2 == 0):
                    sc.put(g0 + 1, WaitRegs(*([fr[(f + 1) % N][3]] + ([fr[f + 2][3]] if n == 2 and f + 2 < N else []))))
            return sc
    G = Frags(AF); pos = {}
    KL, VL, VD, VO, ID = 200, 208, 216, 208, 240
    KVS = opt.get("kvs", 15)
    for s2 in range(0, 18, 2):
        for nt in range(8):
            if nt % 4 == 0:
                pos["Q", s2 + nt // 4] = len(G.mf)
                if s2 + nt // 4 == KVS: G.mf += tr_mf(VD, VL, ID)
            for s in (s2, s2 + 1):
                G.add(QB[(s // 8) & 1][nt & 3], (s % 8) * 8192 + (nt >> 2) * 1024,
                      [f"{MF} {vr(qa(nt,u))}, @A, {X(u,s)}, {'0' if s == 0 else vr(qa(nt,u))}" for u in range(4)], 512)
    S = lambda u: (B1 if u < 2 else B3) + (u & 1) * 8
    def KF(b, f): return ar(128 + b * 32 + f * 4)
    def VF(b, f): return ar(192 + b * 32 + f * 4)
    K0F = lambda f: vr(B5 + f * 4) if f < 4 else vr(B7 + (f - 4) * 4)
    NEGM = B5; P = B7; L = XV + 16; FL = XV + 24
    def qk(u, kf, zero=False):
        out = []
        for kt in range(2):
            for s in range(4):
                c = vr(S(u) + 4 * kt)
                out.append(f"{MF} {c}, {kf(kt*4+s)}, {Qf(u, s)}, {c if s else ('0' if zero else vr(NEGM + 4*u))}")
        return out
    sb = lambda st, a: vB + (st & 1) * 2 + a
    for st in range(5):
        us = (0, 1) if st == 4 else (0, 1, 2, 3)
        for f in range(36):
            a, s = f // 18, f % 18
            pos["F", st, f] = len(G.mf)
            if st == 3 and f == 8:
                pos["QK0"] = len(G.mf)
                for u in range(4): G.mf += qk(u, K0F, zero=True)
                pos["QK0e"] = len(G.mf)
            ms = [f"{MF} {vr(fa(a,u))}, @A, {X(u,s)}, {'0' if s == 0 else vr(fa(a,u))}" for u in us]
            if st == 4: G.add(vB + a, s * 2048, ms)
            else: G.add(vB + 4 - 2 * a + (s >= 9), (s % 9) * 4096, ms, 512)
    END = len(G.mf)
    for f in range(LEAD): e(G.fr[f][2])
    G.chain()
    sc = G.sched()
    F = lambda st, f: pos["F", st, f]
    Qp = lambda s: pos["Q", s] if s < 18 else F(0, 0)
    def bar(g, *w): sc.put(g, list(w) + ["s_barrier"])
    bar(Qp(5) + 2)
    bar(Qp(10) + 2)
    bar(Qp(17) + 2, WaitTag(["f0"], 0))
    bar(F(0, 4) + 2, WaitTag(["kvst"], 0))
    bar(F(1, 28) + 2, WaitTag(["f1"], 0))
    bar(F(2, 0) + 6)
    bar(F(3, 0) + 6, WaitTag(["kv0"], 0))
    bar(F(3, 28) + 2, WaitTag(["f2", "dma"], 0))
    bar(F(4, 2))
    for s in range(2, 18, 2): sc.add([WaitRegs(*[X(u, s + q) for u in range(4) for q in range(2)])], Qp(s) - 4, Qp(s), spread=False)
    xp = sc.add([xn_load(u, s) for s in range(XD, 18) for u in range(4)], 2, Qp(XEND))
    for i, g in enumerate(xp): assert g < Qp((XD + i // 4) & ~1) - 24, (i, g)
    def pair_piece(pr, i):
        return [[f"s_add_u32 m0, s67, {pr*2*SLOT + i*4096}", f"s_add_u32 s68, s79, {pr*128 + i*32*9216}"],
                Inst(f"buffer_load_dwordx4 v{vDQ}, s[12:15], s68 offen lds", f"f{pr}")]
    def sp_piece(p):
        return [[f"s_add_u32 m0, s81, {p*1024}", f"s_add_u32 s68, s80, {p*16*9216}"],
                Inst(f"buffer_load_dwordx4 v{vD1}, s[12:15], s68 offen lds", "f2")]
    def lin_pieces(ldsb, ldsoff, src, srcoff, n=9, tag="dma"):
        out = []
        for p in range(n):
            if p % 4 == 0: out.append([f"s_add_u32 m0, {ldsb}, {ldsoff + p*1024}", f"s_add_u32 s68, {src}, {srcoff + p*1024}"])
            out.append(Inst(f"buffer_load_dwordx4 v{vL16}, s[20:23], s68 offen offset:{(p%4)*1024} sc1 lds", tag))
        return out
    F0AT = opt.get("f0at", 12)
    sc.add(flat([pair_piece(0, i) for i in range(18)]), Qp(F0AT), Qp(opt.get("f0end", 16)))
    kvl = []
    for f in range(2):
        kvl += [f"buffer_load_dwordx2 {vr(KL+4*f,2)}, v{vKO}, s[24:27], s89 offen offset:{f*64}", f"buffer_load_dwordx2 {vr(KL+2+4*f,2)}, v{vKO}, s[24:27], s89 offen offset:{f*64+32}"]
    kvl += [f"buffer_load_dwordx4 {vr(VL)}, v{vVO}, s[28:31], s87 offen", f"buffer_load_dwordx4 {vr(VL+4)}, v{vVO}, s[28:31], s88 offen"]
    T1 = opt.get("t1", XEND); T2 = opt.get("t2", 12)
    kvt = [Inst("s_mov_b64 exec, 0xffff"), Inst(f"buffer_load_dword v0, v{vKO}, s[24:27], s89 offen", "tch"),
           Inst(f"buffer_load_dword v0, v{vKO}, s[28:31], s89 offen", "tch"), Inst("s_mov_b64 exec, -1")]
    tlb = []
    PR = 21504
    if opt.get("tlb", 0):
        pre = [["s_lshl_b32 s72, s63, 2", "s_add_u32 s72, s72, s65"], ["s_lshl_b32 s72, s72, 2", "s_add_u32 s72, s72, s3"], ["s_lshl_b32 s72, s72, 3", "s_add_u32 s72, s72, s64"],
               [f"s_mul_i32 s72, s72, {PR}", f"s_add_u32 s39, s72, {WS_PART}"]]
        sc.add(pre, Qp(2), Qp(4))
        tlb = [[Inst("s_mov_b64 exec, 1")] + [Inst(f"buffer_load_dword v0, v{vST[u]}, s[16:19], {so} offen sc1", "tch") for u in range(4) for so in ("s83", "s84")] +
               [Inst(f"buffer_load_dword v0, v{vZ}, s[16:19], s39 offen sc1", "tch"), Inst("s_mov_b64 exec, -1")]]
    sc.add([w1_touch(0), kvt] + tlb, Qp(T1), Qp(T1) + 16)
    sc.add(kvl[4:] + kvl[:4], Qp(T2), Qp(T2) + 30)
    sc.add(ident(ID, vT, vL), Qp(10), Qp(KVS - 1))
    sc.add([WaitRegs(vr(VL), vr(VL + 4))], Qp(KVS) - 3, Qp(KVS), spread=False)
    kst = [Inst(f"buffer_store_dwordx4 {vr(KL+4*f)}, v{vL16}, s[16:19], s93 offen offset:{f*1024} sc1", "kvst") for f in range(2)]
    for h in range(2):
        kst += tr_cvt(VO + 4 * h, VD, h) + [Inst(f"buffer_store_dwordx4 {vr(VO+4*h)}, v{vL16}, s[16:19], s95 offen offset:{h*1024} sc1", "kvst")]
    sc.add(kst, Qp(KVS) + 6, Qp(KVS + 1) - 2)
    ot = []
    if opt.get("ot2", 0):
        sc.add([["s_mov_b32 s8, s56", "s_mov_b32 s9, s57"], [f"s_mov_b32 s10, {2048*1152}"], ["s_lshl_b32 s4, s2, 2", "s_add_u32 s4, s4, s3"], ["s_mul_i32 s4, s4, 2304"],
                f"v_lshlrev_b32 v238, 3, v{vL16}"], Qp(2), Qp(6))
        ot = [[Inst("s_mov_b64 exec, 0x3ffff"), Inst("buffer_load_dword v0, v238, s[8:11], s4 offen", "tch"), Inst("s_mov_b64 exec, -1")]]
    sc.add([w1_touch(1), w1_touch(2)] + ot, Qp(opt.get("t3", 16)) + 8, Qp(opt.get("t3", 16)) + 24)
    sc.add([flag_store("s91", 1, vZ)], F(0, 4) + 3, F(0, 4) + 8)
    sc.add(flat([pair_piece(1, i) for i in range(18)]), F(0, opt.get("f2at", 10)), F(1, 2))
    kvld = f"buffer_load_dword v{vT2}, v{vT}, s[16:19], s90 offen sc1"
    sc.add([f"v_bfe_u32 v{vT}, v{vL16}, 4, 4", f"v_lshlrev_b32 v{vT}, 2, v{vT}", kvld], F(1, 0), F(1, 3))
    c1, c2 = check(kvld, [vT2])
    sc.add([c1 + c2], F(1, 20), F(1, 21))
    kv0 = [["s_lshl_b32 s72, s3, 12", "s_add_u32 s70, s82, s72"]] + lin_pieces("s72", SPARE, "s70", 0, 4, "kv0") + [["s_add_u32 s92, s82, s81"]]
    sc.add(kv0, F(1, 21), F(1, 34))
    sc.add(flat([sp_piece(p) for p in range(9)]) + lin_pieces("s81", 1 * SLOT, "s92", 16384), F(2, 2), F(3, 6))
    sc.add(lin_pieces("s81", 2 * SLOT, "s92", 16384 + 32768), F(4, 3), F(4, 30))
    for st in range(4):
        for a in range(2):
            lo, hi = ((Qp(16), Qp(17)) if st == 0 else (F(st - 1, 16), F(st - 1, 30))) if a == 0 else (F(st, 0), F(st, 12))
            r = vB + 4 - 2 * a
            sc.add([f"v_xor_b32 v{r}, {((st & 1)*2 + a) * 32}, v{vP5}", f"v_add_u32 v{r}, {(st >> 1)*2*SLOT}, v{r}", f"v_add_u32 v{r+1}, {SLOT}, v{r}"], lo, hi)
    sc.add([f"v_mov_b32 v{vB}, v{vS0}", f"v_xor_b32 v{vB+1}, 32, v{vS0}"], F(2, 4), F(2, 20))
    sc.add([f"v_add_u32 v{r}, 0x20000, v{r}" for r in QB[0]], Qp(9), Qp(12))
    sc.add([f"v_lshrrev_b32 v{vP5}, 6, v{vL16}", f"v_mul_u32_u24 v{vP5}, 288, v{vP5}", f"v_bfe_u32 v{vT2}, v{vL16}, 4, 2", f"v_lshl_add_u32 v{vP5}, v{vT2}, 3, v{vP5}"], F(3, 14), F(3, 30))
    ids = [["s_cmp_lt_u32 s64, 4", "s_cselect_b32 s24, s48, s54", "s_cselect_b32 s25, s49, s55"],
           ["s_cmp_lt_u32 s64, 4", "s_cselect_b32 s72, 32, 36", "s_cselect_b32 s5, 0, 1"],
           ["s_and_b32 s73, s64, 3", "s_mul_i32 s7, s73, s72"],
           ["s_lshl_b32 s6, s5, 7", "s_add_u32 s6, s6, s7"], ["s_add_u32 s26, s7, s72", f"s_mul_i32 s26, s26, {32*1152}"], [f"s_mul_i32 s7, s7, {32*1152}"],
           ["s_lshr_b32 s72, s2, 3", "s_lshl_b32 s72, s72, 2"], ["s_add_u32 s72, s72, s3", f"s_mul_i32 s72, s72, {(41 if opt.get('wtm', 1) == 0 else opt.get('wnl', 21))*128}"], ["s_add_u32 s89, s7, s72", "s_mov_b32 s39, s89"],
           [f"s_add_u32 s88, s89, {41*128*128}"], f"v_lshlrev_b32 v{vKO}, 3, v{vL16}"]
    sc.add(ids, F(0, 8), F(0, 34))
    WTM = opt.get("wtm", 1)
    for so, g in ((("s89", F(1, 4)), ("s88", F(3, opt.get("wt2", 10)))) if WTM == 0 else ()):
        sc.add([[Inst("s_mov_b32 exec_hi, 0x1ff"), Inst(f"buffer_load_dword v0, v{vKO}, s[24:27], {so} offen", "tch"), Inst("s_mov_b64 exec, -1")]], g, g + 6)
    def epi_a(us): return flat([[f"v_cvt_pk_bf16_f32 v{T+4*u}, v{fa(0,u)}, v{fa(0,u)+1}", f"v_cvt_pk_bf16_f32 v{T+4*u+1}, v{fa(0,u)+2}, v{fa(0,u)+3}",
                                 f"v_pk_max_i16 v{T+4*u}, v{T+4*u}, 0", f"v_pk_max_i16 v{T+4*u+1}, v{T+4*u+1}, 0"] for u in us])
    def epi_b(st, us):
        so, off = ("s85", 0) if st == 4 else ("s84", st * 1024)
        return flat([[f"v_cvt_pk_bf16_f32 v{T+4*u+2}, v{fa(1,u)}, v{fa(1,u)+1}", f"v_cvt_pk_bf16_f32 v{T+4*u+3}, v{fa(1,u)+2}, v{fa(1,u)+3}",
                      f"v_pk_max_i16 v{T+4*u+2}, v{T+4*u+2}, 0", f"v_pk_max_i16 v{T+4*u+3}, v{T+4*u+3}, 0",
                      Inst(f"buffer_store_dwordx4 {vr(T+4*u)}, v{vST[u]}, s[16:19], {so} offen offset:{off} sc1", "st")] for u in us])
    for st in range(5):
        us = (0, 1) if st == 4 else (0, 1, 2, 3)
        sc.add(epi_a(us), F(st, 20 if st < 4 else 22), F(st, 34))
        if st: sc.add(epi_b(st - 1, (0, 1, 2, 3)), F(st, 2 if st < 4 else 4), F(st, 16))
    qe = []
    for s in range(4):
        for u in range(4):
            a, b = qa(2 * s, u), qa(2 * s + 1, u)
            qe += [f"v_mul_f32 v{r}, s86, v{r}" for r in list(range(a, a + 4)) + list(range(b, b + 4))]
            qe += [f"v_cvt_pk_bf16_f32 v{a}, v{a}, v{a+1}", f"v_cvt_pk_bf16_f32 v{a+1}, v{a+2}, v{a+3}",
                   f"v_cvt_pk_bf16_f32 v{a+2}, v{b}, v{b+1}", f"v_cvt_pk_bf16_f32 v{a+3}, v{b+2}, v{b+3}"]
    qp = sc.add(qe, F(0, 1), F(2, 0), spread=False)
    pf = [["s_lshl_b32 s72, s63, 2", "s_add_u32 s72, s72, s65"], ["s_lshl_b32 s72, s72, 2", "s_add_u32 s72, s72, s3"],
          [f"s_mul_i32 s78, s72, {8*PR}", f"s_add_u32 s78, s78, {WS_PART if not opt.get('xp') else 0x70000000}"], [f"s_mul_i32 s73, s64, {PR}", "s_add_u32 s74, s78, s73"],
          ["s_add_u32 s75, s74, 5120", "s_add_u32 s76, s74, 10240"], ["s_add_u32 s77, s74, 15360", "s_mov_b32 s95, s74"]]
    sc.add(pf, F(1, 34), F(2, 4))
    sc.add([f"v_add_u32 v{vL}, {SPARE}, v{vL16}"], F(2, 30), F(2, 34))
    sc.add([f"ds_read_b128 {K0F(f)}, v{vL} offset:{f*1024}" for f in range(8)], F(3, 1) + 3, F(3, 7))
    sc.add([WaitRegs(*[K0F(f) for f in range(8)])], pos["QK0"] - 2, pos["QK0"], spread=False)
    M = lambda u: NEGM + 4 * u
    pa = []
    for u in range(4):
        s0 = S(u); m = M(u)
        pa += [f"v_max3_f32 v{m}, v{s0}, v{s0+1}, v{s0+2}", f"v_max3_f32 v{m}, v{m}, v{s0+3}, v{s0+4}",
               f"v_max3_f32 v{m}, v{m}, v{s0+5}, v{s0+6}", f"v_max_f32 v{m}, v{m}, v{s0+7}"]
    xl = [xlane("v_max_f32", M(u), M(u) + 1) for u in range(4)]
    for i in range(6): pa += [xl[u][i] for u in range(4)]
    for u in range(4):
        pa += [f"v_sub_f32 v{S(u)+i}, v{S(u)+i}, v{M(u)}" for i in range(8)] + [f"v_sub_f32 v{M(u)+i}, 0, v{M(u)}" for i in (3, 2, 1, 0)]
    for u in range(4): pa += [f"v_exp_f32 v{S(u)+i}, v{S(u)+i}" for i in range(8)]
    for u in range(4): pa += [f"v_cvt_pk_bf16_f32 v{P+4*u+i}, v{S(u)+2*i}, v{S(u)+2*i+1}" for i in range(4)]
    pp = sc.add(pa, pos["QK0e"] + 3, F(4, 6), spread=False)
    LM = opt.get("lm", 1); LT = 192; ONE4 = 208
    pl = []
    for u in range(4 if not LM else 0):
        s0 = S(u)
        pl += [f"v_add_f32 v{L+u}, v{s0}, v{s0+2}", f"v_add_f32 v{L+4+u}, v{s0+1}, v{s0+3}"]
        pl += [f"v_add_f32 v{L+u+4*(i&1)}, v{L+u+4*(i&1)}, v{s0+i}" for i in range(4, 8)]
    if pl: sc.add(pl, max(F(4, 1), pp[-1] + 1), END)
    if LM: sc.add([f"v_mov_b32 v{ONE4+r}, 0x3f803f80" for r in range(4)], F(4, 4), F(4, 20))
    sc.add([f"ds_read_b128 {VF(0, f)}, v{vL} offset:{8192 + f*1024}" for f in range(8)], F(4, 32), END, spread=False, mind=1)
    if stamps and opt.get("fine"):
        for i, g in enumerate([Qp(1), Qp(3), Qp(5), Qp(5) + 4, Qp(7), Qp(9), Qp(11), Qp(13), Qp(15), Qp(17), F(0, 0), F(0, 18), F(1, 0), F(2, 0), F(2, 6), F(3, 0), pos["QK0"], F(4, 0)]):
            sc.gap[g] = sc.gap[g] + [_mk(x) for x in mst(14 + i)]
    e(sc.flat())
    e(stamp(5))

    def O(dt, u): return (dt * 4 + u) * 4
    def pv(u, b, pb, zero=False, lm=True):
        return [f"{MF} {ar(O(dt, u))}, {VF(b, dt)}, {vr(P + 4*pb)}, {'0' if zero else ar(O(dt, u))}" for dt in range(8)] + \
               ([f"{MF} {vr(LT + 4*u)}, {vr(ONE4)}, {vr(P + 4*pb)}, {'0' if zero else vr(LT + 4*u)}"] if LM and lm else [])
    vD = list(range(16, 25)); vDW = list(range(176, 185)); vTW = 185
    def softmax(u):
        s0 = S(u); sm = []
        if LM:
            for i in range(4):
                a = s0 + 2 * i
                sm += [f"v_exp_f32 v{a}, v{a}", f"v_exp_f32 v{a+1}, v{a+1}"] + ([f"v_cvt_pk_bf16_f32 v{P+4*u+i-1}, v{a-2}, v{a-1}"] if i else [])
            return sm + [f"v_cvt_pk_bf16_f32 v{P+4*u+3}, v{s0+6}, v{s0+7}"]
        for i in range(4):
            a = s0 + 2 * i
            sm += [f"v_exp_f32 v{a}, v{a}", f"v_exp_f32 v{a+1}, v{a+1}"]
            if i: sm += [f"v_add_f32 v{L+u}, v{L+u}, v{a-2}", f"v_add_f32 v{L+4+u}, v{L+4+u}, v{a-1}", f"v_cvt_pk_bf16_f32 v{P+4*u+i-1}, v{a-2}, v{a-1}"]
        return sm + [f"v_cvt_pk_bf16_f32 v{P+4*u+3}, v{s0+6}, v{s0+7}", f"v_add_f32 v{L+u}, v{L+u}, v{s0+6}", f"v_add_f32 v{L+4+u}, v{L+4+u}, v{s0+7}"]
    def ring_dma():
        dm = [["s_xor_b32 s92, s88, s85"], ["s_mul_i32 s92, s92, s97"], ["s_add_u32 s92, s92, s93"]]
        for p in range(9):
            if p % 4 == 0: dm.append([f"s_add_u32 m0, s94, {p*1024}"])
            dm.append(Inst(f"buffer_load_dwordx4 v{vD[p]}, s[20:23], s92 offen offset:{(p%4)*1024} sc1 lds", "dma"))
        return dm + [["s_add_u32 s88, s88, 1"], [f"s_add_u32 s94, s94, {SLOT}"], [f"s_cmp_ge_u32 s94, {4*SLOT}", "s_cselect_b32 s94, s81, s94"]]
    adv_rd = [[f"s_add_u32 s96, s96, {SLOT}"], [f"s_cmp_eq_u32 s96, {4*SLOT}", "s_cselect_b32 s96, 0, s96"]]
    hfl = f"buffer_load_dword v{FL}, v{vT}, s[16:19], s84 offen sc1"
    def BF(b, s, u): return ar(128 + ((b * 4 + s) * 4 + u) * 4)
    def B1st(s, u): return BF(s >> 1, s & 1, u)
    def bload(dst, s, u):
        return Inst(f"buffer_load_dwordx4 {dst}, v{vST[u]}, s[28:31], s79 offen offset:{s*1024} sc1", "b")
    adv_b = [["s_xor_b32 s79, s87, s85", "s_lshl_b32 s79, s79, 12"], ["s_add_u32 s79, s79, s80", "s_add_u32 s87, s87, 1"]]
    def attn_iter(kind):
        first, last = kind == "first", kind == "last"
        mf = []; base = []
        for sl in range(8):
            base.append(len(mf))
            t2 = sl + 2; kb = (t2 // 4) & 1
            if not (last and sl >= 6) and not (first and sl < 2): mf += qk(t2 % 4, lambda f: KF(kb, f))
            mf += pv(sl % 4, (sl // 4) & 1, sl % 4, zero=(first and sl < 4))
        base.append(len(mf))
        sc = Sched(mf)
        for sl in range(8):
            u, half = sl % 4, sl // 4
            n = base[sl + 1] - base[sl]
            if not (last and half == 1):
                nb = (half + 1) & 1
                for i in range(4):
                    f = (u & 1) * 4 + i
                    d, o = (KF(nb, f), 0) if u < 2 else (VF(nb, f), 8192)
                    g = f if n <= 9 else base[sl] + (3 + 4 * i if u != 1 else (2, 3, 6, 7)[i])
                    sc.put(g, f"ds_read_b128 {d}, v{vL} offset:{half*16384 + o + f*1024}")
            if u == 1 and not (last and half == 1):
                sc.put(base[sl + 1] - (3 if n >= 16 else 1), WaitRegs(*[KF((half + 1) & 1, f) for f in range(8)]))
            if u == 0 and n >= 16: sc.put(base[sl] + 5, WaitRegs(*[VF(half & 1, f) for f in range(8)]))
        gb = base[1] + 11
        if first:
            gb = base[4] + 1
            sc.add(ring_dma(), 12, gb - 2)
        sc.put(gb, [WaitTag(["dma"] if first else ["dma", "st"], 9), "s_barrier"])
        dm = ring_dma() + adv_rd
        if kind == "loop" and WTM:
            WNL = opt.get("wnl", 21); STEP = WNL * 128 * 128
            mask = Inst(f"s_mov_b64 exec, {(1 << WNL) - 1:#x}" if WNL < 32 else f"s_mov_b32 exec_hi, {(1 << (WNL - 32)) - 1:#x}")
            ta = Inst(f"buffer_load_dword v0, v{vKO}, s[24:27], s39 offen", "tch")
            if opt.get("xt", 1):
                dm += [[mask, ta, Inst(f"buffer_load_dword v0, v{vKO}, s[12:15], s70 offen", "tch"), Inst("s_mov_b64 exec, -1")],
                       ["s_mov_b32 s39, s38"], ["s_mov_b32 s38, s67"], [f"s_add_u32 s67, s67, {STEP}"], [f"s_add_u32 s70, s70, {STEP}"]]
            else:
                dm += [[mask, ta, Inst("s_mov_b64 exec, -1")], [f"s_add_u32 s39, s39, {STEP}"]]
        if first and WTM and opt.get("xt", 1):
            STEP = opt.get("wnl", 21) * 128 * 128
            sc.add([["s_mov_b32 s12, s54", "s_mov_b32 s13, s55"], ["s_add_u32 s70, s64, 1", f"s_mul_i32 s14, s70, {1152*1152}"],
                    ["s_sub_u32 s70, s39, s7", f"s_sub_u32 s67, s14, {1152*1152}"], ["s_add_u32 s70, s70, s67"],
                    [f"s_add_u32 s38, s39, {STEP}", f"s_add_u32 s67, s39, {2*STEP}"],
                    ["s_cmp_eq_u32 s5, 0", "s_cselect_b32 s14, s14, 0", "s_cselect_b32 s67, s67, s39"],
                    ["s_cmp_eq_u32 s5, 0", "s_cselect_b32 s38, s38, s18", "s_cselect_b32 s39, s39, s18"]], 14, base[3])
        ONES = 188
        if first: sc.add([f"v_mov_b32 v{ONES+r}, -1" for r in range(4)], 1, 12, spread=False)
        if not last:
            sc.add([Inst(f"buffer_store_dwordx4 {vr(ONES)}, v{vL16}, s[16:19], s95 offen offset:{c*1024} sc1", "pf") for c in range(3)] + [["s_add_u32 s95, s95, 3072"]],
                   base[4] + 3 if first else 2, base[8] - 4)
        if last:
            sc.add([f"v_lshlrev_b32 v{ONES}, 7, v{vL16}", [WaitTag(["pf"], 0)] + flag_store("s89", 8, ONES, allw=True)], base[6], base[8])
            for s in range(4): sc.add([bload(B1st(s, u), s, u) for u in range(4)], base[2 + s] + 1, base[3 + s] + 8)
        if first:
            sc.add([f"v_add_u32 v{vD[p]}, {(p - p % 4)*1024}, v{vL16}" if p < 5 else f"v_add_u32 v{vD[p]}, {('s72','s73')[p == 8]}, v{vL16}" for p in range(9)], 1, 12, spread=False)
            sc.add([Inst(x.text.replace("s85", "s36"), x.tag) if isinstance(x, Inst) else x for x in epi_b(4, (0, 1))], 6, gb)
        sc.add(dm, gb + 1, base[opt.get("dme", 8)] - 2 if kind == "loop" else base[8] - 2)
        for sl in range(8):
            if (last and sl == 7) or (first and sl < 3): continue
            hi = base[sl + 1] + (4 if sl < 7 and not (last and sl >= 5) else 0)
            sc.add(softmax((sl + 1) % 4), base[sl], hi, spread=False)
        if first:
            dw = [f"v_lshrrev_b32 v{vT2}, 4, v{vL16}"]
            for p in range(9):
                r = vDW[p]
                dw += [f"v_add_u32 v{vT}, {64*p}, v{vT2}", f"v_mul_u32_u24 v{r}, 3641, v{vT}", f"v_lshrrev_b32 v{r}, 16, v{r}",
                       f"v_mul_u32_u24 v{r}, {1152 - 288}, v{r}", f"v_lshl_add_u32 v{r}, v{vT}, 4, v{r}"]
                if p % 4: dw.append(f"v_subrev_u32 v{r}, {(p%4)*1024}, v{r}")
            dp = sc.add(dw, 1, base[7], spread=False)
            fa_ = [["s_lshl_b32 s72, s63, 14", "s_lshl_b32 s73, s3, 7"], ["s_add_u32 s72, s72, s73", f"s_add_u32 s72, s72, {FL_P2}"],
                   ["s_lshl_b32 s73, s62, 2", "s_add_u32 s91, s72, s73"], ["s_add_u32 s91, s91, 8192"],
                   ["s_lshr_b32 s73, s62, 3", "s_lshl_b32 s73, s73, 11"], ["s_add_u32 s90, s72, s73", "s_and_b32 s73, s62, 7"], ["s_lshl_b32 s73, s73, 2", "s_add_u32 s90, s90, s73"],
                   ["s_lshl_b32 s73, s64, 2", "s_add_u32 s73, s73, s65"], ["s_lshl_b32 s73, s73, 9", "s_add_u32 s84, s72, s73"],
                   [f"s_add_u32 s37, s84, {FL_EX - FL_P2}", "s_lshl_b32 s73, s64, 11"], ["s_sub_u32 s89, s37, s73", "s_lshl_b32 s73, s64, 2"], ["s_add_u32 s89, s89, s73"],
                   ["s_movk_i32 s73, 0x30", "s_cmp_eq_u32 s5, 0", "s_cselect_b32 s73, s73, 0x1f0"]]
            sc.add(fa_, base[3], base[6])
            sc.add([f"v_and_b32 v{vT}, s73, v{vL16}", f"v_lshrrev_b32 v{vT}, 2, v{vT}", f"v_lshlrev_b32 v{vT2}, 5, v{vL16}",
                    [WaitTag(["st"], 0)] + flag_store("s91", 16, vT2, allw=True)], max(base[7], dp[-1] + 1), base[8])
        e(f"v_add_u32 v{vL}, s96, v{vL16}")
        e(sc.flat())
    k.begin(name="attn_first")
    e(f"s_add_u32 s93, s92, {16384 + 2*32768}"); e("s_mov_b32 s97, 32768"); e("s_mov_b32 s88, 0"); e("s_mov_b32 s36, s85"); e("s_mov_b32 s85, 0")
    e(f"s_add_u32 s94, s81, {3*SLOT}"); e(f"s_mov_b32 s96, {SLOT}")
    e("s_mov_b32 s4, 1"); e("s_mov_b32 s28, s60"); e("s_mov_b32 s29, s61"); e("s_mov_b32 s30, 0")
    e("s_cmp_eq_u32 s3, 3"); e("s_cselect_b32 s72, s18, 0x1000"); e("s_cselect_b32 s73, s18, 0x2000")
    attn_iter("first")
    k.begin(loop=6, name="attn_loop")
    e(".p2align 3"); e("KF_aloop:")
    if stamps and opt.get("fine"):
        e(["s_memtime s[98:99]", "s_add_u32 s100, s4, 55", "s_lshl_b32 s100, s100, 4", f"v_cmp_eq_u32 vcc, s100, v{vL16}",
           "s_waitcnt lgkmcnt(0)", "v_mov_b32 v47, s98", f"v_cndmask_b32 v{STV}, v{STV}, v47, vcc"])
    e("s_cmp_eq_u32 s4, 5"); e("s_cbranch_scc1 KF_sw"); e("KF_oolr:")
    attn_iter("loop")
    e("s_add_u32 s4, s4, 1"); e("s_cmp_lt_u32 s4, 7"); e("s_cbranch_scc1 KF_aloop")
    ool.append([
                "KF_sw:",
                "s_mov_b32 s20, s24", "s_mov_b32 s21, s25", "s_mov_b32 s22, s26"] + [f"v_mov_b32 v{vD[p]}, v{vDW[p]}" for p in range(9)] +
               [f"s_mov_b32 s97, {128*1152}", f"s_mul_i32 s93, s3, {32*1152}", "s_add_u32 s93, s93, s7", "s_mul_i32 s72, s65, 288", "s_add_u32 s93, s93, s72",
                "s_lshl_b32 s80, s6, 10", f"s_add_u32 s80, s80, {WS_ACT}", "s_mov_b32 s79, s80", "s_mov_b32 s88, 0", "s_mov_b32 s87, 1",
                "s_cmp_eq_u32 s5, 0", "s_cselect_b32 s85, s65, 0", "s_cselect_b32 s30, 0, s18", hfl] + (
               ["s_getpc_b64 s[72:73]", "KF_pc2:", "s_sub_u32 s8, s72, KF_pc2-KF_nock", "s_subb_u32 s9, s73, 0", "s_mov_b32 s10, KF_codeend-KF_nock",
                "s_lshr_b32 s72, s2, 3", "s_lshl_b32 s72, s72, 2", "s_add_u32 s72, s72, s3", "s_mul_i32 s72, s72, 384",
                "s_mov_b64 exec, 7", Inst(f"buffer_load_dword v0, v{vKO}, s[8:11], s72 offen", "tch"), "s_mov_b64 exec, -1"] if opt.get("cpf2", 1) else []) + [
                "s_branch KF_oolr"])
    k.begin(name="attn_last")
    e("s_cmp_eq_u32 s5, 0"); e("s_cbranch_scc1 KF_nock")
    c1, c2 = check(hfl, [FL])
    for x in ["s_waitcnt vmcnt(18)"] + c1 + c2: e(x if x.endswith(":") else C(x))
    e("KF_nock:")
    attn_iter("last")
    e(stamp(6))
    W = 216
    if LM:
        for u in range(4): e(f"v_mov_b32 v{L+u}, v{LT+4*u}")
    else:
        for u in range(4): e(f"v_add_f32 v{L+u}, v{L+u}, v{L+4+u}")
        xl = [xlane("v_add_f32", L + u, W + 4 + u) for u in range(4)]
        for i in range(6):
            for u in range(4): e(xl[u][i])
    e(f"v_add_f32 v{W+1}, v{L}, v{L+1}"); e(f"v_add_f32 v{W+2}, v{L+2}, v{L+3}"); e(f"v_add_f32 v{W}, v{W+1}, v{W+2}")
    e(f"v_cmp_nge_f32 vcc, {f32bits(2.0**30):#x}, v{W}")
    e("s_cbranch_vccnz KF_slow")
    e("KF_epi:")
    k.begin(name="oepi")
    ACC = 48; A2 = 192
    def acc(nt, u): return ACC + (nt * 4 + u) * 4
    e(f"v_add_u32 v{vL}, s96, v{vP5}")
    def mkstage(bf, zero=False, pair=True):
        G = Frags(A2)
        for (s, nt) in ([(s2 + q, nt) for s2 in (0, 2) for nt in range(9) for q in range(2)] if pair else [(s, nt) for s in range(4) for nt in range(9)]):
            G.add(vL, s * 9216 + nt * 32, [f"{MF} {vr(acc(nt,u))}, @A, {bf(s,u)}, {'0' if zero and s == 0 else vr(acc(nt,u))}" for u in range(4)], 4608)
        if pair: G.chain()
        return G
    P5 = {b: mkstage(lambda s, u, b=b: BF(b, s, u)) for b in range(2)}
    for u in range(4): e(f"v_rcp_f32 v{L+u}, v{L+u}")
    if opt.get("xo"): e("s_mov_b32 s83, 0x7fff0000")
    if opt.get("xb"): e("s_mov_b32 s80, 0x70000000")
    if opt.get("xd2"): e("s_mov_b32 s22, 0")
    OB = lambda i, u: 216 + ((i & 1) * 4 + u) * 4
    def oepi(i, u, t, packed=False):
        o = OB(i, u)
        out = [f"v_accvgpr_read_b32 v{t+r}, a{O(2*i + r//4, u) + r%4}" for r in range(8)]
        if packed: out += [f"v_pk_mul_f32 {vr(t+r,2)}, {vr(t+r,2)}, {vr(L + (u & 2),2)} op_sel:[0,{u&1}] op_sel_hi:[1,{u&1}]" for r in range(0, 8, 2)]
        else: out += [f"v_mul_f32 v{t+r}, v{t+r}, v{L+u}" for r in range(8)]
        out += [f"v_cvt_pk_bf16_f32 v{o+r}, v{t+2*r}, v{t+2*r+1}" for r in range(4)]
        return out + [Inst(f"buffer_store_dwordx4 {vr(o)}, v{vST[u]}, s[16:19], s83 offen offset:{i*1024} sc1", "st")]
    def common(sc):
        sc.put(4 * (36 - LEAD) - 1, f"v_add_u32 v{vL}, s96, v{vP5}")
        sc.put(6, [WaitTag(["dma"], 9), "s_barrier"])
    e(stamp(7))
    e("s_mov_b32 s4, 0"); e("s_mov_b32 s101, s5"); e("s_mov_b32 s82, 0x70000000")
    e("s_cmp_eq_u32 s5, 0"); e("s_cbranch_scc1 KF_spre")
    def BF2(s, u): return ar((s * 4 + u) * 4)
    lastb = [["s_add_u32 s72, s5, 7", "s_xor_b32 s72, s72, s85", "s_lshl_b32 s72, s72, 12", "s_add_u32 s82, s72, s80"]] + \
            [Inst(f"buffer_load_dwordx4 {BF2(s, u)}, v{vST[u]}, s[28:31], s82 offen offset:{s*1024} sc1", "b") for s in range(4) for u in range(4)]
    k.begin(name="g_pre")
    for f in range(LEAD): e(P5[0].fr[f][2])
    B2nd = lambda s, u: BF(s >> 1, 2 + (s & 1), u)
    G = mkstage(B1st, zero=True); G1 = mkstage(B2nd)
    off = len(G.mf); G.fr += [(g0 + off, n, r, d) for (g0, n, r, d) in G1.fr]; G.mf += G1.mf
    sc = G.sched(wrap=True)
    for o in (0, 144):
        sc.put(o + 4 * (36 - LEAD) - 1, f"v_add_u32 v{vL}, s96, v{vP5}")
        sc.put(o + 6, [WaitTag(["dma"], 9), "s_barrier"])
        sc.add(adv_rd, o + 7, o + 12, spread=False)
    def W2(f, s): return WaitRegs(*[f(s + q, u) for q in range(2) for u in range(4)])
    for q, w in enumerate([W2(B1st, 2), W2(B2nd, 0), W2(B2nd, 2), W2(lambda s, u: BF(0, s, u), 0)]): sc.add([w], 72 * q + 68, 72 * q + 72, spread=False)
    OEG = opt.get("oeg", 140); B2E = opt.get("b2e", 70)
    sc.add(adv_b + [bload(B2nd(s, u), s, u) for s in range(4) for u in range(4)] + adv_b + [["s_add_u32 s86, s79, 4096"]], 0, B2E)
    def bl2(b, s): return [Inst(bload(BF(b, s, u), s, u).text.replace("s79", "s86" if b else "s79"), "b") for u in range(4)]
    sc.add(bl2(0, 0) + bl2(0, 1), 80, 144)
    sc.add(bl2(1, 0) + bl2(1, 1), 146, 214)
    sc.add(bl2(0, 2) + bl2(0, 3) + adv_b, 216, 280)
    for q in range(2): sc.add(ring_dma(), 144 * q + 12, 144 * q + 140)
    sc.add(flat([oepi(i, u, 248) for i in range(4) for u in range(4)]), opt.get("oes", 0), OEG)
    sc.add([[WaitTag(["st"], 0)] + flag_store("s90", 4, vT2, allw=True)], min(OEG + 60, 282), 288, spread=False)
    e(sc.flat())
    e(stamp(8))
    e("s_branch KF_loop2")
    k.begin(name="s_pre")
    e("KF_spre:")
    for f in range(LEAD): e(mkstage(lambda s, u: vr(OB(s, u)), pair=False).fr[f][2])
    for u in range(4): e(oepi(0, u, 248 if u & 1 else 40, packed=True))
    G = mkstage(lambda s, u: vr(OB(s, u)), zero=True, pair=False); sc = G.sched(); common(sc)
    sc.add(adv_rd, 7, 12, spread=False)
    for i in range(1, 4): sc.add(flat([oepi(i, u, 248) for u in range(4)]), 36 * (i - 1), 36 * i - 1)
    sc.add(ring_dma(), 108, 143)
    e(sc.flat())
    e(mst(52))
    k.wait_tags("st")
    e(mst(53))
    e(flag_store("s90", 4, vT2, allw=True))
    e("s_mov_b32 s30, s18")
    e(adv_b)
    e(spin(hfl, [FL]))
    e(mst(54))
    for b in (0, 1):
        for s in range(4 - 2 * b):
            for u in range(4): e(bload(BF(b, s, u), s, u))
        if b == 0: e(adv_b)
    for f in range(LEAD): e(P5[0].fr[f][2])
    e(W2(lambda s, u: BF(0, s, u), 0))
    e("s_mov_b32 s4, 0")
    e(stamp(8))

    LBL = opt.get("lbl", 0)
    def stage2(b):
        G = P5[b]; sc = G.sched(wrap=True); common(sc)
        sc.add([W2(lambda s, u: BF(b, s, u), 2)], 68, 72, spread=False)
        sc.add([W2(lambda s, u: BF(b ^ 1, s, u), 0)], 140, 144, spread=False)
        sc.add(adv_rd, 7, 12, spread=False)
        sc.add([bload(BF(b ^ 1, s, u), s, u) for s in (2, 3) for u in range(4)] + adv_b, 2, 62)
        sc.add([bload(BF(b, s, u), s, u) for s in (0, 1) for u in range(4)], 72, 136)
        if LBL:
            sc.add([x for x in lastb[1:] if (lastb.index(x) - 1) // 8 == b], 14, 138)
        sc.add(ring_dma(), 12, 140)
        hk = [_mk(x) for x in ("s_cmp_eq_u32 s101, 0", f"s_cbranch_scc1 KF_hk{b}", f"KF_hk{b}r:")]
        sc.add([hk], (130, 64)[b], (136, 71)[b], spread=False)
        fl = sc.flat(); i = fl.index(hk[1])
        cnt[b] = sum(1 for x in (fl[i:] if b == 0 else fl[:i]) if x.kind in ("vload", "vstore", "dma"))
        assert b == 0 or not any(x.kind == "vload" and BF(1, 0, 0) in x.text for x in fl[:i])
        e(fl)
    cnt = {}
    k.begin(loop=2, name="L0")
    e(".p2align 3"); e("KF_loop2:")
    stage2(0)
    k.begin(loop=2, name="L1")
    stage2(1)
    if LBL: e(lastb[0])
    e("s_add_u32 s4, s4, 1"); e("s_cmp_lt_u32 s4, 2"); e("s_cbranch_scc1 KF_loop2")
    hfl2 = hfl.replace("offen", "offen offset:16")
    ool.append(["KF_hk0:", hfl2, "s_branch KF_hk0r"])
    ool.append(["KF_hk1:", "s_mov_b32 s101, 1", f"s_waitcnt vmcnt({cnt[0] + cnt[1]})"] + cmpf([FL]) +
               ["s_nop 0", "s_cbranch_vccz KF_hk1r"] + spin(hfl2, [FL], "KF_hk1r"))

    k.begin(name="final")
    e(stamp(9))
    NPRE = opt.get("npre", 2)
    EL = opt.get('el', 0)
    nts = [8, 0, 1, 2, 3, 4, 5, 6, 7] if not EL else list(range(9))
    assert NPRE == 2
    order = [(0, s, nt) for nt in range(9) for s in range(2)]
    order += [(b, s, nt) for nt in nts for b in range(3) for s in range(4) if not (b == 0 and s < NPRE)]
    G = Frags(A2); done = {}
    vLb = [vL, vT, vB + 2]
    for (b, s, nt) in order:
        bf = (lambda u: BF(b, s, u)) if b < 2 else (lambda u: BF2(s, u))
        G.add(vLb[b], s * 9216 + nt * 32, [f"{MF} {vr(acc(nt,u))}, @A, {bf(u)}, {vr(acc(nt,u))}" for u in range(4)], 4608)
        done[nt] = len(G.mf)
    G.chain()
    sc = G.sched(); NG = len(G.mf); G0 = 36 * NPRE
    sc.put(G0 - 26, [WaitTag(["dma"], 0), "s_barrier"])
    sc.add([bload(BF(1, s, u), s, u) for s in (2, 3) for u in range(4)] + [Inst(x.text.replace("s82", "s86"), "b") if isinstance(x, Inst) else [y.replace("s82", "s86") for y in x] for x in (lastb if not LBL else [])], 2, 56 if not LBL else 30)
    gq = G0 + (8 - NPRE) * 4
    sc.add([WaitRegs(*[BF2(s, u) for s in range(4) for u in range(4)])], gq - 4, gq, spread=False)
    sc.add(adv_rd + [f"v_add_u32 v{vLb[1]}, s96, v{vP5}"] + adv_rd + [f"v_add_u32 v{vLb[2]}, s96, v{vP5}"], 7, 30, spread=False)
    sc.add([W2(lambda s, u: BF(1, s, u), 0)], G0 - 4, G0, spread=False)
    sc.add([W2(lambda s, u: BF(1, s, u), 2)], G0 + 12, G0 + 16, spread=False)
    SEL = 26; XRr = 36; vX = 25; vL8 = 46
    ad = [
          ["s_and_b32 s82, s64, 3", "s_mul_i32 s73, s82, 5120"], ["s_add_u32 s78, s78, s73", "s_lshl_b32 s73, s5, 10"], ["s_add_u32 s85, s78, s73"],
          ["s_lshl_b32 s73, s71, 1", "s_xor_b32 s82, s82, s73"], ["s_add_u32 s82, s82, s69", f"s_mul_i32 s83, s82, {16*1152}"],
          ["s_mul_i32 s73, s65, 288", "s_add_u32 s87, s83, s73"], ["s_lshl_b32 s73, s5, 6", "s_add_u32 s83, s87, s73"],
          ["s_mov_b32 s12, s56", "s_mov_b32 s13, s57"], [f"s_mov_b32 s14, {2048*1152}"],
          [f"s_mov_b32 s88, {f32bits(-math.log2(math.e)):#x}", "s_mov_b32 s89, 0xffff0000"]]
    sc.add(ad, 56, G0 + 36)
    va = [f"v_bfe_u32 v{vX}, v{vL16}, 4, 4", f"v_lshrrev_b32 v{vT2}, 8, v{vL16}", f"v_bfe_u32 v{vL8}, v{vL16}, 6, 2",
          [f"v_cmp_eq_u32 vcc, v{vL8}, v{vT2}", f"v_mov_b32 v{SEL}, 0x3f80", f"v_and_b32 v{vL8}, 16, v{vL16}", f"v_lshlrev_b32 v{SEL}, v{vL8}, v{SEL}",
           f"v_cndmask_b32 v{SEL}, 0, v{SEL}, vcc"],
          [f"v_and_b32 v{vL8}, 32, v{vL16}", f"v_cmp_eq_u32 vcc, 0, v{vL8}", "s_nop 1", f"v_cndmask_b32 v{SEL+2}, 0, v{SEL}, vcc", f"v_cndmask_b32 v{SEL+3}, v{SEL}, 0, vcc"],
          f"v_mov_b32 v{SEL}, 0", f"v_mov_b32 v{SEL+1}, 0", f"v_mov_b32 v{SEL+4}, 0", f"v_mov_b32 v{SEL+5}, 0",
          f"v_mov_b32 v{SEL+6}, v{SEL+2}", f"v_mov_b32 v{SEL+7}, v{SEL+3}", f"v_mov_b32 v{SEL+8}, v{SEL+2}", f"v_mov_b32 v{SEL+9}, v{SEL+3}",
          f"v_mul_u32_u24 v{vX}, 1152, v{vX}", f"v_lshl_add_u32 v{vX}, v{vT2}, 3, v{vX}",
          f"v_lshrrev_b32 v{vL8}, 1, v{vL16}", f"v_add_u32 v{vL8}, 4096, v{vL8}", f"v_lshlrev_b32 v{vT2}, 7, v{vL16}",
          f"v_bfe_u32 v{vB}, v{vL16}, 4, 3", f"v_lshlrev_b32 v{vB}, 2, v{vB}"]
    sc.add(va, 8, G0 + 30)
    xo = [(0, "s83", 0), (1, "s83", 32), (2, "s83", 128), (3, "s83", 160), (4, "s87", 256)]
    sc.add([f"buffer_load_dwordx2 {vr(XRr+2*t,2)}, v{vX}, s[32:35], {so} offen offset:{o}" for t, so, o in xo] +
           ([Inst(f"buffer_load_dword v0, v{vX}, s[12:15], {so} offen offset:{o}", "tch") for so, o in (("s83", 0), ("s83", 128), ("s87", 256))] if opt.get("otc", 0) else []), G0 + 38, G0 + 70)
    tail = []; per = done[1] - done[0]
    for c in (4, 0, 1, 2, 3):
        pkx = []
        for u in range(4):
            a = acc(2 * c, u); tg = "p1" if c in (4, 0, 1) else "p2"
            pkx += [f"v_cvt_pk_bf16_f32 v{a}, v{a}, v{a+1}", f"v_cvt_pk_bf16_f32 v{a+1}, v{a+2}, v{a+3}"]
            if c < 4:
                b = acc(2 * c + 1, u)
                pkx += [f"v_cvt_pk_bf16_f32 v{a+2}, v{b}, v{b+1}", f"v_cvt_pk_bf16_f32 v{a+3}, v{b+2}, v{b+3}",
                        Inst(f"buffer_store_dwordx4 {vr(a)}, v{vL16}, s[16:19], s{74+u} offen offset:{c*1024} sc1", tg)]
            else:
                pkx += [Inst(f"buffer_store_dwordx2 {vr(a,2)}, v{vL8}, s[16:19], s{74+u} offen sc1", tg)]
        d = done[8] if c == 4 else done[2 * c + 1]
        if c != (4 if EL else 3): sc.add(pkx, d + 4, d + 4 + (per if c == 1 else per - 8 if c == 3 else 2 * per - 8))
        else: tail = pkx
    fl1 = f"buffer_load_dword v{vB+1}, v{vB}, s[16:19], s37 offen sc1"
    sc.add([fl1], G0 + 70, G0 + 80)
    c1, c2 = check(fl1, [vB + 1])
    sc.add([c1 + c2], done[3], done[3] + 3)
    R1 = 48; RE = 80; R2 = 216
    order8 = [4, 5, 6, 7, 0, 1, 2, 3]
    def lds1(): return flat([[[f"s_add_u32 s86, s85, {src*PR}"], f"buffer_load_dwordx4 {vr(R1 + src*4)}, v{vL16}, s[16:19], s86 offen sc1"] for src in order8]) + ([] if EL else ldse())
    def ldse(): return flat([[[f"s_add_u32 s86, s78, {src*PR}"], f"buffer_load_dwordx2 {vr(RE + src*2, 2)}, v{vL8}, s[28:31], s86 offen sc1"] for src in order8])
    def lds2(): return flat([[[f"s_add_u32 s86, s85, {src*PR}"], f"buffer_load_dwordx4 {vr(R2 + src*4)}, v{vL16}, s[16:19], s86 offen offset:2048 sc1"] for src in order8])
    def sent(base, n):
        t = 128; o = [f"v_max3_u32 v{t}, v{base}, v{base+1}, v{base+2}", f"v_max3_u32 v{t+1}, v{base+3}, v{base+4}, v{base+5}"]
        for i in range(6, n, 2): o.append(f"v_max3_u32 v{t + (i//2) % 2}, v{t + (i//2) % 2}, v{base+i}, v{base+i+1}")
        return o + [f"v_max_u32 v{t}, v{t}, v{t+1}", f"v_cmp_eq_u32 vcc, -1, v{t}"]
    def poll(name, ld, base, n):
        ool.append([f"{name}x:", "s_add_u32 s4, s4, 1", f"s_cmp_ge_u32 s4, {SPIN_MAX}", f"s_cbranch_scc1 {name}d", f"s_sleep {opt.get('slp', 2)}"] + ld + ["s_waitcnt vmcnt(0)", f"s_branch {name}"])
        return [f"{name}:"] + sent(base, n) + ["s_nop 0", f"s_cbranch_vccnz {name}x", f"{name}d:"]
    sc.add([[f"s_cmp_eq_u32 s5, {opt.get('eo', 1)}", "s_cselect_b32 s30, 0, s18", "s_mov_b32 s4, 0"]] + lds1(), done[6] - opt.get("r1e", 8), NG - 4 if not EL else done[7])
    e(sc.flat())
    e(tail)
    e(stamp(10))
    Gs = lambda t: 96 + 4 * t
    Ss = lambda t: 108 + 4 * t
    t0 = 120; g1 = 124
    def round2(a):
        return [f"v_cvt_pk_bf16_f32 v{t0}, v{a}, v{a+1}", f"v_cvt_pk_bf16_f32 v{t0+1}, v{a+2}, v{a+3}",
                f"v_lshlrev_b32 v{a}, 16, v{t0}", f"v_and_b32 v{a+1}, s89, v{t0}", f"v_lshlrev_b32 v{a+2}, 16, v{t0+1}", f"v_and_b32 v{a+3}, s89, v{t0+1}"]
    RND = opt.get("rnd", 0)
    def gate(t):
        g = Gs(t)
        return (round2(g) if RND & 1 else []) + [f"v_mul_f32 v{g1+r}, s88, v{g+r}" for r in range(4)] + [f"v_exp_f32 v{g1+r}, v{g1+r}" for r in range(4)] + \
               [f"v_add_f32 v{g1+r}, 1.0, v{g1+r}" for r in range(4)] + [f"v_rcp_f32 v{g1+r}, v{g1+r}" for r in range(4)] + \
               [pk("v_pk_mul_f32", g + r, g + r, g1 + r) for r in (0, 2)] + (round2(g) if RND & 2 else [])
    def fin(t, x, so, o):
        g = Gs(t); s0 = Ss(t)
        ux = [f"v_lshlrev_b32 v{g1}, 16, v{x}", f"v_and_b32 v{g1+1}, s89, v{x}", f"v_lshlrev_b32 v{g1+2}, 16, v{x+1}", f"v_and_b32 v{g1+3}, s89, v{x+1}"]
        if RND & 8: mid = [pk("v_pk_mul_f32", g + r, g + r, s0 + r) for r in (0, 2)] + round2(g) + ux + [pk("v_pk_add_f32", g + r, g + r, g1 + r) for r in (0, 2)]
        else: mid = ux + [f"v_pk_fma_f32 {vr(g+r,2)}, {vr(g+r,2)}, {vr(s0+r,2)}, {vr(g1+r,2)}" for r in (0, 2)]
        return (round2(s0) if RND & 4 else []) + mid + \
               [f"v_cvt_pk_bf16_f32 v{s0}, v{g}, v{g+1}", f"v_cvt_pk_bf16_f32 v{s0+1}, v{g+2}, v{g+3}",
                f"buffer_store_dwordx2 {vr(s0,2)}, v{vX}, s[12:15], {so} offen offset:{o}"]
    def redu(R):
        return [f"{MF} {vr((Gs if src >= 4 else Ss)(t))}, {vr(SEL + (0 if t else 2))}, {vr(R + src*4)}, {'0' if src in (0, 4) else vr((Gs if src >= 4 else Ss)(t))}"
                for src in order8 for t in range(2)]
    ered = [f"{MF} {vr((Gs if q >= 2 else Ss)(2))}, {vr(SEL + 6)}, {vr(RE + q*4)}, {'0' if q % 2 == 0 else vr((Gs if q >= 2 else Ss)(2))}" for q in (2, 3, 0, 1)]
    if EL:
        e(lds2())
        e(poll("KF_q1", lds1(), R1, 32))
        e(mst(46))
        e(redu(R1))
        for t in range(2): e(gate(t))
        e(ldse())
        for t in range(2): e(fin(t, XRr + 2 * t, "s83", 32 * t))
        e(stamp(11))
        e(poll("KF_q2", lds2(), R2, 32))
        e(mst(50))
        e(redu(R2))
        for t in range(2): e(gate(t))
        for t in range(2): e(fin(t, XRr + 4 + 2 * t, "s83", 128 + 32 * t))
        e(f"s_cmp_eq_u32 s5, {opt.get('eo', 1)}"); e("s_cbranch_scc1 KF_fin")
        e(poll("KF_q3", ldse(), RE, 16))
        e(ered); e(gate(2)); e(fin(2, XRr + 8, "s87", 256))
    else:
        e(poll("KF_q1", lds1(), R1, 48))
        e(mst(46))
        e(redu(R1))
        e(ered)
        e(gate(0))
        e(lds2())
        e(gate(1))
        for t in range(2): e(fin(t, XRr + 2 * t, "s83", 32 * t))
        e(f"s_cmp_eq_u32 s5, {opt.get('eo', 1)}"); e("s_cbranch_scc1 KF_r2")
        for x in gate(2) + fin(2, XRr + 8, "s87", 256): e(C(x))
        e("KF_r2:")
        e(stamp(11))
        e(poll("KF_q2", lds2(), R2, 32))
        e(mst(50))
        e(redu(R2))
        for t in range(2): e(gate(t))
        for t in range(2): e(fin(t, XRr + 4 + 2 * t, "s83", 128 + 32 * t))
    k.begin(name="fin")
    e("KF_fin:")
    if stamps:
        e(stamp(12)); e("s_waitcnt vmcnt(0)"); e(stamp(13))
        e("s_lshl_b32 s72, s2, 2"); e("s_add_u32 s72, s72, s3"); e("s_lshl_b32 s72, s72, 8"); e(f"s_add_u32 s72, s72, {200<<20}")
        e(f"v_lshrrev_b32 v2, 2, v{vL16}")
        e(f"buffer_store_dword v{STV}, v2, s[16:19], s72 offen")
        if "probe" in opt:
            e(f"s_cmp_lg_u32 s2, {opt.get('pw', 133)}"); e("s_cbranch_scc1 KF_end"); e("s_cmp_lg_u32 s3, 0"); e("s_cbranch_scc1 KF_end")
            if opt["probe"] >= 0: e(f"v_readlane_b32 s72, v{STV}, {32 + opt['probe']}")
            else: e("s_mov_b32 s72, s38")
            e("s_nop 3"); e("s_add_u32 s72, s72, 10000")
            e("KF_pw:"); e("s_memrealtime s[98:99]"); e("s_waitcnt lgkmcnt(0)"); e("s_sub_u32 s73, s72, s98"); e("s_cmp_lt_u32 s73, 20000"); e("s_cbranch_scc1 KF_pw")
        if opt.get("dbg"):
            e(f"s_cmp_lg_u32 s2, {opt['dbg']}"); e("s_cbranch_scc1 KF_end"); e("s_cmp_lg_u32 s3, 1"); e("s_cbranch_scc1 KF_end")
            e(srd(20, 58, 64)); e(f"v_readlane_b32 s72, v{STV}, 32"); e("v_subrev_u32 v2, 124, v2"); e(f"v_subrev_u32 v{STV}, s72, v{STV}")
            e("s_mov_b32 exec_lo, 0"); e(f"buffer_store_dword v{STV}, v2, s[20:23], 0 offen")
    e("KF_end:")
    e("s_endpgm")

    for i, blk in enumerate(ool):
        k.begin(name=f"ool{i}")
        e(blk); e("s_endpgm")
    Mx = W + 8; AL = W + 12; TT = W + 16
    k.begin(name="slow_pre")
    e("KF_codeend:")
    e("KF_slow:")
    e("s_waitcnt vmcnt(0) lgkmcnt(0)"); e("s_nop 15")
    for i in range(128): e(f"v_accvgpr_write_b32 a{i}, 0")
    for u in range(4): e(f"v_mov_b32 v{L+u}, 0"); e(f"v_mov_b32 v{Mx+u}, 0xff7fffff")
    e("s_mov_b32 s72, 0"); e("s_mov_b32 s68, s82")
    k.begin(loop=16, name="slow_loop")
    e("KF_sloop:")
    for q in range(4):
        for f in range(4):
            ff = q * 4 + f
            e(f"buffer_load_dwordx4 {KF(1, ff) if ff < 8 else VF(1, ff - 8)}, v{vL16}, s[16:19], s68 offen offset:{f*1024} sc1")
        e("s_add_u32 s68, s68, 4096")
    for u in range(4):
        e(qk(u, lambda f: KF(1, f), zero=True))
        s0 = S(u); m = W + u
        e(f"v_max3_f32 v{m}, v{s0}, v{s0+1}, v{s0+2}"); e(f"v_max3_f32 v{m}, v{m}, v{s0+3}, v{s0+4}")
        e(f"v_max3_f32 v{m}, v{m}, v{s0+5}, v{s0+6}"); e(f"v_max3_f32 v{m}, v{m}, v{s0+7}, v{Mx+u}")
        e(xlane("v_max_f32", m, W + 4))
        e(f"v_sub_f32 v{AL}, v{Mx+u}, v{m}"); e(f"v_exp_f32 v{AL}, v{AL}"); e(f"v_mov_b32 v{Mx+u}, v{m}")
        e(f"v_mul_f32 v{L+u}, v{L+u}, v{AL}")
        for i in range(8):
            e(f"v_sub_f32 v{s0+i}, v{s0+i}, v{m}"); e(f"v_exp_f32 v{s0+i}, v{s0+i}")
        for i in range(8): e(f"v_add_f32 v{L+u}, v{L+u}, v{s0+i}")
        for i in range(4): e(f"v_cvt_pk_bf16_f32 v{P+i}, v{s0+2*i}, v{s0+2*i+1}")
        for dt in range(8):
            for r in range(4): e(f"v_accvgpr_read_b32 v{TT+r}, a{O(dt,u)+r}")
            for r in range(4): e(f"v_mul_f32 v{TT+r}, v{TT+r}, v{AL}")
            for r in range(4): e(f"v_accvgpr_write_b32 a{O(dt,u)+r}, v{TT+r}")
        e(pv(u, 1, 0, lm=False))
    e("s_add_u32 s72, s72, 1"); e("s_cmp_lt_u32 s72, 16"); e("s_cbranch_scc1 KF_sloop")
    k.begin(name="slow_post")
    e("s_nop 15")
    for u in range(4): e(xlane("v_add_f32", L + u, W + 4))
    e("s_nop 15")
    e("s_branch KF_epi")
    pre = ["p0a", "gemm", "attn_first"]
    k.paths = []
    for na in (1, 2, 4):
        for nl in (1, 2):
            mid = pre + ["attn_loop"] * na + ["attn_last", "oepi"]
            if na > 1 and nl > 1 and (na, nl) != (4, 2): continue
            k.paths.append(mid + ["g_pre"] + ["L0", "L1"] * nl + ["final", "fin"])
            k.paths.append(mid + ["s_pre"] + ["L0", "L1"] * nl + ["final", "fin"])
    return kstart(name) + k.finish(), kdesc(name, 512, 256), (name, 256, 256, 163840)
```

```python
import re

REG_RE = re.compile(r"^(-|\|)?(abs\()?([vas])(?:(\d+)|\[(\d+):(\d+)\])\)?\|?$")

def regs_of(tok):
    tok = tok.strip()
    m = REG_RE.match(tok)
    if m:
        f = m.group(3)
        if m.group(4) is not None:
            return [(f, int(m.group(4)))]
        return [(f, i) for i in range(int(m.group(5)), int(m.group(6)) + 1)]
    if tok == "vcc": return [("s", 106), ("s", 107)]
    if tok == "vcc_lo": return [("s", 106)]
    if tok == "vcc_hi": return [("s", 107)]
    if tok == "exec": return [("s", 126), ("s", 127)]
    if tok == "exec_lo": return [("s", 126)]
    if tok == "exec_hi": return [("s", 127)]
    if tok == "m0": return [("s", 124)]
    return []

TRANS = ("v_exp_f32", "v_log_f32", "v_rcp_f32", "v_rsq_f32", "v_sqrt_f32", "v_sin_f32", "v_cos_f32")
M0 = ("s", 124)
VCC = [("s", 106), ("s", 107)]

class Inst:
    __slots__ = ("text", "mn", "kind", "rd", "wr", "tag", "srcA", "srcB", "srcC", "passes", "dpp", "comment", "wide", "sdata")
    def __init__(self, text, tag=None):
        self.text = text.strip()
        self.tag = tag
        self.srcA = self.srcB = self.srcC = ()
        self.passes = 0
        self.wide = False
        self.sdata = ()
        t = self.text.split(";")[0].strip()
        if t.endswith(":") or t.startswith("."):
            self.mn = t; self.kind = "label" if t.endswith(":") else "dir"; self.rd = set(); self.wr = set(); self.dpp = False
            return
        sp = t.split(None, 1)
        mn = self.mn = sp[0]
        rest = sp[1] if len(sp) > 1 else ""
        ops = []; cur = ""; depth = 0
        for ch in rest:
            if ch in "[(": depth += 1
            if ch in "])": depth -= 1
            if ch == "," and depth == 0:
                ops.append(cur.strip()); cur = ""
            else:
                cur += ch
        if cur.strip(): ops.append(cur.strip())
        mods = ""
        if ops:
            last = ops[-1].split(None, 1)
            ops[-1] = last[0]
            mods = last[1] if len(last) > 1 else ""
        R = [regs_of(o) for o in ops]
        self.dpp = ("row_" in mods or "quad_perm" in mods or "wave_" in mods or "_dpp" in mn)
        rd = set(); wr = set()
        def allr(lst):
            s = set()
            for x in lst: s.update(x)
            return s
        if mn.startswith("v_mfma"):
            self.kind = "mfma"
            wr = set(R[0]); rd = allr(R[1:])
            self.srcA, self.srcB, self.srcC = tuple(R[1]), tuple(R[2]), tuple(R[3])
            self.passes = 4 if "16x16x32" in mn else 8 if "32x32x16" in mn else None
            assert self.passes
        elif mn.startswith("ds_read") or mn.startswith("ds_bpermute") or mn.startswith("ds_swizzle"):
            self.kind = "ds_read"; wr = set(R[0]); rd = allr(R[1:])
        elif mn.startswith("ds_write"):
            self.kind = "ds_write"; rd = allr(R)
        elif mn.startswith("buffer_load") or mn.startswith("global_load"):
            if re.search(r"\blds\b", mods) or "_lds_" in mn:
                self.kind = "dma"; rd = allr(R) | {M0}
            else:
                self.kind = "vload"; wr = set(R[0]); rd = allr(R[1:])
        elif mn.startswith("buffer_store") or mn.startswith("global_store"):
            self.kind = "vstore"; rd = allr(R)
            self.wide = mn.endswith("x4") or mn.endswith("x3")
            self.sdata = tuple(R[0] if mn.startswith("buffer") else R[1])
        elif mn.startswith("buffer_atomic") or mn.startswith("global_atomic"):
            rd = allr(R)
            if re.search(r"\bsc0\b", mods):
                self.kind = "vload"; wr = set(R[0])
            else:
                self.kind = "vstore"
        elif mn.startswith("buffer_wbl2") or mn.startswith("buffer_inv"):
            self.kind = "vstore"
        elif mn.startswith("s_load") or mn.startswith("s_memtime") or mn.startswith("s_memrealtime"):
            self.kind = "smem"; wr = set(R[0]); rd = allr(R[1:])
        elif mn == "s_waitcnt": self.kind = "wait"
        elif mn == "s_nop": self.kind = "nop"
        elif mn == "s_barrier": self.kind = "barrier"
        elif mn.startswith("s_cbranch") or mn == "s_branch" or mn == "s_endpgm":
            self.kind = "branch"
            if "vcc" in mn: rd = set(VCC)
        elif mn in ("s_setprio", "s_sleep"): self.kind = "salu"
        elif mn.startswith("s_cmp") or mn.startswith("s_bitcmp"):
            self.kind = "salu"; rd = allr(R)
        elif mn.startswith("s_"):
            self.kind = "salu"; wr = set(R[0]); rd = allr(R[1:])
            if mn in ("s_addk_i32", "s_mulk_i32"): rd |= wr
            if "saveexec" in mn: wr |= {("s", 126), ("s", 127)}
        elif mn.startswith("v_"):
            self.kind = "trans" if mn.replace("_e32", "").replace("_e64", "") in TRANS else "valu"
            if mn.startswith("v_permlane") and "swap" in mn or mn.startswith("v_swap"):
                wr = allr(R); rd = allr(R)
            elif mn.startswith("v_add_co") or mn.startswith("v_sub_co") or mn.startswith("v_addc_co") or mn.startswith("v_subb_co"):
                wr = set(R[0]) | set(R[1]); rd = allr(R[2:])
            else:
                wr = set(R[0]); rd = allr(R[1:])
                if mn.startswith("v_writelane") or mn.startswith("v_fmac") or mn.startswith("v_dot2c") or mn.startswith("v_mac") or self.dpp or "sdwa" in mn:
                    rd |= wr
                if mn.startswith("v_cmpx"): wr |= {("s", 126), ("s", 127)}
        else:
            raise ValueError("unknown instruction: " + text)
        if tag == "tch": wr = set()
        self.rd = rd; self.wr = wr
    def is_valu(self): return self.kind in ("valu", "trans")
    def is_vmem(self): return self.kind in ("vload", "vstore", "dma")
    def is_ds(self): return self.kind in ("ds_read", "ds_write")
    def states(self):
        if self.kind in ("label", "dir") or self.tag == "cond": return 0
        if self.kind == "nop": return int(self.text.split()[1], 0) + 1
        return 1

class WaitTag:
    kind = "waittag"
    def __init__(self, tags, skip=0): self.tags = set(tags); self.skip = skip

class WaitRegs:
    kind = "waitregs"
    def __init__(self, *toks):
        self.rd = set(); self.wr = set()
        for t in toks: self.rd.update(regs_of(t))

class Seg:
    def __init__(self, insts, loop=0, name=""):
        self.insts = insts; self.loop = loop; self.name = name

class Kernel:
    def __init__(self, name):
        self.name = name
        self.segs = []
        self.cur = None
        self.tail = []
        self.begin()
    def begin(self, loop=0, name=""):
        self.cur = Seg([], loop, name); self.segs.append(self.cur)
    def e(self, text, tag=None):
        if isinstance(text, (Inst, WaitTag, WaitRegs)):
            self.cur.insts.append(text); return
        if isinstance(text, (list, tuple)):
            for t in text: self.e(t, tag)
            return
        for line in text.split("\n"):
            if line.strip(): self.cur.insts.append(Inst(line, tag))
    def wait_tags(self, *tags, skip=0): self.cur.insts.append(WaitTag(tags, skip))

    def traces(self):
        out = []
        if getattr(self, "paths", None):
            idx = {}
            for si, s in enumerate(self.segs):
                assert s.name not in idx, s.name
                idx[s.name] = si
            seen = set()
            for path in self.paths:
                tr = []
                for nm in path:
                    si = idx[nm]; seen.add(si)
                    tr += [(si, ii, 0) for ii in range(len(self.segs[si].insts))]
                out.append(tr)
            for si, s in enumerate(self.segs):
                if si not in seen:
                    out.append([(si, ii, 0) for _ in range(3 if s.loop else 1) for ii in range(len(s.insts))])
            return out
        for reps in (1, 2, 4):
            tr = []
            for si, s in enumerate(self.segs):
                n = min(reps, s.loop) if s.loop else 1
                for it in range(n):
                    for ii in range(len(s.insts)): tr.append((si, ii, it))
            out.append(tr)
        return out

    def solve_waits(self):
        W = {}
        changed = True
        trs = self.traces()
        while changed:
            changed = False
            for tr in trs:
                ntag = {}; tagcount = {}
                vq = []
                lq = []
                for (si, ii, it) in tr:
                    ins = self.segs[si].insts[ii]
                    key = (si, ii)
                    needv = needl = None
                    if ins.kind == "waittag":
                        lim = ntag.get(tuple(sorted(ins.tags)), None)
                        cnt = sum(tagcount.get(t, 0) for t in ins.tags)
                        for p in range(len(vq) - 1, -1, -1):
                            if vq[p][1] in ins.tags:
                                newer = sum(1 for q in range(p + 1, len(vq)) if vq[q][1] in ins.tags)
                                if newer >= ins.skip:
                                    needv = len(vq) - 1 - p; break
                    elif ins.kind == "wait":
                        if ins.tag == "cond": continue
                        m = re.search(r"vmcnt\((\d+)\)", ins.text)
                        if m: vq = vq[len(vq) - int(m.group(1)):] if int(m.group(1)) < len(vq) else vq
                        if m and int(m.group(1)) == 0: vq = []
                        m = re.search(r"lgkmcnt\((\d+)\)", ins.text)
                        if m:
                            n = int(m.group(1))
                            lq = [] if n == 0 else (lq[len(lq) - n:] if n < len(lq) else lq)
                        continue
                    elif ins.kind not in ("label", "dir"):
                        touch = ins.rd | ins.wr
                        for p in range(len(vq) - 1, -1, -1):
                            if vq[p][0] & touch:
                                needv = len(vq) - 1 - p; break
                        for p in range(len(lq) - 1, -1, -1):
                            if lq[p][0] & touch:
                                needl = len(lq) - 1 - p
                                if any(x[1] for x in lq): needl = 0
                                break
                    w = W.setdefault(key, [None, None])
                    if needv is not None and (w[0] is None or needv < w[0]): w[0] = needv; changed = True
                    if needl is not None and (w[1] is None or needl < w[1]): w[1] = needl; changed = True
                    if getattr(ins, "tag", None) == "cond": continue
                    if w[0] is not None and w[0] < len(vq): vq = vq[len(vq) - w[0]:] if w[0] else []
                    if w[1] is not None and w[1] < len(lq): lq = lq[len(lq) - w[1]:] if w[1] else []
                    if ins.kind == "branch" and ins.mn == "s_endpgm":
                        vq = []; lq = []
                    if ins.kind in ("vload", "vstore", "dma"):
                        vq.append((set(ins.wr), ins.tag))
                        assert len(vq) <= 63, f"vmcnt overflow at {ins.text} in {self.segs[si].name}"
                    elif ins.kind in ("ds_read", "ds_write"):
                        lq.append((set(ins.wr), False))
                        if len(lq) > 15: lq = lq[-15:] if False else lq
                    elif ins.kind == "smem":
                        lq.append((set(ins.wr), True))
        return W

    def apply_waits(self):
        W = self.solve_waits()
        for si, s in enumerate(self.segs):
            new = []
            for ii, ins in enumerate(s.insts):
                w = W.get((si, ii), [None, None])
                parts = []
                if w[0] is not None: parts.append(f"vmcnt({min(w[0], 63)})")
                if w[1] is not None: parts.append(f"lgkmcnt({min(w[1], 15)})")
                if parts: new.append(Inst("s_waitcnt " + " ".join(parts), "cond" if getattr(ins, "tag", None) == "cond" else None))
                if ins.kind not in ("waittag", "waitregs"): new.append(ins)
            s.insts = new

    @staticmethod
    def need_states(p, c):
        n = 0
        pv = {r for r in p.wr if r[0] in "va"}
        ps = {r for r in p.wr if r[0] == "s"}
        if p.kind == "mfma":
            full = {4: 8, 8: 12}[p.passes]
            if c.kind == "mfma":
                if pv & (set(c.srcA) | set(c.srcB)): n = max(n, full)
                if pv & set(c.srcC):
                    if set(c.srcC) == pv and c.passes == p.passes: pass
                    else: n = max(n, p.passes + 2)
                elif pv & c.wr: n = max(n, p.passes + 2)
            elif c.is_valu() or c.is_vmem() or c.is_ds():
                if pv & (c.rd | c.wr): n = max(n, full)
            if c.is_valu() and set(p.srcC) & c.wr: n = max(n, {4: 3, 8: 7}[p.passes])
        if p.is_valu():
            if c.kind == "mfma" and pv & c.rd: n = max(n, 2)
            if c.is_valu():
                if pv & c.rd:
                    if c.mn.startswith("v_permlane") or c.dpp: n = max(n, 2)
                    if c.mn.startswith("v_readlane") or c.mn.startswith("v_readfirstlane"): n = max(n, 1)
                    if p.kind == "trans" and c.kind != "trans": n = max(n, 1)
                    if "sdwa" in p.mn or "op_sel" in p.text: n = max(n, 1)
                if ps & c.rd or (ps & set(VCC) and c.mn.startswith("v_cndmask")):
                    n = max(n, 4 if c.mn.startswith(("v_readlane", "v_writelane")) else 2)
                if ("s", 126) in ps: n = max(n, 5 if c.dpp else 4)
            if c.is_vmem() and ps & c.rd: n = max(n, 5)
            if c.kind == "mfma" and ("s", 126) in ps: n = max(n, 4)
            if c.kind in ("salu", "branch") and ps & c.rd: n = max(n, 1)
            if p.kind == "trans" and (c.is_vmem() or c.is_ds()) and pv & c.rd: n = max(n, 1)
        if p.kind == "salu" and M0 in p.wr and c.kind == "dma": n = max(n, 1)
        if p.kind == "vstore" and p.wide and set(p.sdata) & c.wr:
            n = max(n, 2 if c.is_valu() else 1)
        return n

    def apply_hazards(self, verbose=True):
        total = 0
        while True:
            pad = {}
            for tr in self.traces():
                hist = []
                pos = 0
                for (si, ii, it) in tr:
                    c = self.segs[si].insts[ii]
                    if c.kind in ("label", "dir"): continue
                    need = 0
                    for (p, ppos) in hist:
                        dist = pos - ppos
                        if dist >= 20: continue
                        n = self.need_states(p, c)
                        if n > dist: need = max(need, n - dist)
                    if need: pad[(si, ii)] = max(pad.get((si, ii), 0), need)
                    pos += need
                    pos += c.states()
                    hist.append((c, pos))
                    if len(hist) > 24: hist.pop(0)
            if not pad: break
            for si, s in enumerate(self.segs):
                new = []
                for ii, ins in enumerate(s.insts):
                    n = pad.get((si, ii), 0)
                    if n:
                        total += n
                        if verbose and (s.loop or s.name.startswith(("gemm", "attn_f", "attn_l"))) and "slow" not in s.name: print(f"  [{s.name}] s_nop {n-1} before: {ins.text}")
                        new.append(Inst(f"s_nop {n-1}"))
                    new.append(ins)
                s.insts = new
        return total

    def finish(self, verbose=True):
        self.apply_waits()
        self.apply_hazards(verbose)
        lines = []
        for s in self.segs:
            if verbose:
                c, n = est_cycles(s.insts)
                if n: print(f"  [{s.name}] {n} mfma, est {c} cycles ({c/n:.2f}/mfma), {len(s.insts)} instrs")
            if s.name: lines.append(f"; ---- {s.name}")
            for i in s.insts:
                lines.append(i.text if i.kind in ("label", "dir") else "    " + i.text)
        lines += self.tail
        return lines

def interleave(mfmas, streams):
    n = len(mfmas)
    slots = [[] for _ in range(n)]
    for (a, b, ins) in streams:
        m = len(ins)
        for i, x in enumerate(ins):
            slots[min(n - 1, a + (i * (b - a)) // m)].append(x)
    out = []
    for i in range(n):
        out.append(mfmas[i])
        for x in slots[i]:
            if isinstance(x, list): out += x
            else: out.append(x)
    return out

def header(launches):
    L = []
    for (k, g, b, lds) in launches:
        if len(launches) == 1 and k.startswith("recurrent"):
            L.append(f"; @launch grid=({g},1,1) block=({b},1,1) lds={lds}"); continue
        L.append(f"; @launch kernel={k} grid=({g},1,1) block=({b},1,1) lds={lds}")
    L += ["; Generated by gen/build.py (hand-written generator; gen/kf_head.py + gen/kf_body.py).",
          "; One persistent launch, 256 workgroups (one per CU), 4 waves x 512 registers, bf16 MFMA 16x16x32:",
          ";   layernorm hand-off -> Q projection + FFN up -> attention (first-tile max, checked, exact online-softmax fallback)",
          ";   -> split-K output projection / FFN down -> partial exchange -> x + s * silu(g).",
          "; Hand-offs use write-through stores plus per-launch token flags (token published through d_debug); every spin is bounded."]
    L.append('.amdgcn_target "amdgcn-amd-amdhsa--gfx950"')
    L.append(".text")
    return L

def kstart(name):
    return [f".globl {name}", ".p2align 8", f".type {name},@function", f"{name}:"]

def kdesc(name, vgpr, accum, sgpr=102):
    return [f".amdhsa_kernel {name}", f"  .amdhsa_next_free_vgpr {vgpr}", f"  .amdhsa_next_free_sgpr {sgpr}",
            f"  .amdhsa_accum_offset {accum}", "  .amdhsa_group_segment_fixed_size 0", "  .amdhsa_kernarg_size 88",
            "  .amdhsa_user_sgpr_count 2", "  .amdhsa_user_sgpr_kernarg_segment_ptr 1",
            "  .amdhsa_system_sgpr_workgroup_id_x 1", "  .amdhsa_float_denorm_mode_32 3", ".end_amdhsa_kernel"]


def _mk(x):
    return x if isinstance(x, (Inst, WaitTag, WaitRegs)) else Inst(x)

def gap_cost(items):
    t = 4; prev_valu = False
    for i in items:
        k = i.kind
        if k in ("label", "dir"): continue
        if k in ("valu", "trans"):
            t = max(t, 8) + (8 if k == "trans" else 4); prev_valu = True; continue
        pen = 4 if prev_valu else 0
        if k == "ds_read": t += 8 + pen
        elif k in ("vload", "dma"): t += 12 + pen
        elif k in ("vstore", "ds_write"): t += 24 + pen
        elif k == "branch": t += 14
        elif k == "barrier": t += 12
        elif k == "nop": t += 4 * i.states()
        else: t += 4
        prev_valu = False
    return t

class Sched:
    def __init__(self, mfmas):
        self.mf = [_mk(m) for m in mfmas]
        self.gap = [[] for _ in mfmas]
    @staticmethod
    def _isv(i): return i.kind in ("valu", "trans")
    def _ins(self, g, grp, after=None):
        cur = self.gap[g]
        if self._isv(grp[0]): return cur + grp
        p = len(cur)
        for i, x in enumerate(cur):
            if self._isv(x): p = i; break
        if after is not None:
            for i, x in enumerate(cur):
                if x is after: p = max(p, i + 1)
        return cur[:p] + grp + cur[p:]
    def cost(self, g): return gap_cost(self.gap[g])
    def put(self, g, grp, after=None):
        grp = [_mk(x) for x in (grp if isinstance(grp, (list, tuple)) else [grp])]
        self.gap[g] = self._ins(g, grp, after)
        return g
    def add(self, items, lo, hi, spread=True, mind=0, look=6):
        n = len(items); last = lo; prev = None
        hi = min(hi, len(self.mf)); pos = []
        for i, it in enumerate(items):
            grp = [_mk(x) for x in (it if isinstance(it, (list, tuple)) else [it])]
            tgt = lo + (i * (hi - lo)) // n
            start = max(tgt if spread else lo, last + mind if i else lo)
            start = min(start, hi - 1)
            limit = min(hi, max(start + 1, lo + ((i + 1) * (hi - lo) + n - 1) // n))
            best = None
            for g in range(start, limit):
                inc = max(16, gap_cost(self._ins(g, grp, prev))) - max(16, self.cost(g))
                if best is None or inc < best[0]: best = (inc, g)
                if inc == 0 or g - start >= (look if gap_cost(grp) > 16 else 60): break
            g = best[1]
            self.gap[g] = self._ins(g, grp, prev); last = g; prev = grp[-1]; pos.append(g)
        return pos
    def flat(self):
        out = []
        for m, a in zip(self.mf, self.gap): out += [m] + a
        return out
    def cycles(self): return sum(max(16, self.cost(g)) for g in range(len(self.mf)))

def est_cycles(insts):
    tot = 0; cur = None; n = 0
    for i in insts:
        if i.kind == "mfma":
            if cur is not None: tot += max(16, gap_cost(cur))
            cur = []; n += 1
        elif cur is not None: cur.append(i)
    if cur is not None: tot += max(16, gap_cost(cur))
    return tot, n
```
